```python
import torch

def _softmax(x, axis=-1):
    return torch.softmax(x, dim=axis)

def _gelu(x):
    return torch.nn.functional.gelu(x, approximate='tanh')

def _silu(x):
    return torch.nn.functional.silu(x)

def _sigmoid(x):
    return torch.sigmoid(x)

def _layernorm(x, axis=-1, eps=1e-05):
    m = x.mean(dim=axis, keepdim=True)
    v = x.var(dim=axis, keepdim=True, unbiased=False)
    return (x - m) / torch.sqrt(v + eps)

def _scatter_add(tgt, idx, src, axis=0):
    return tgt.clone().index_add_(axis, idx, src)

def _segment_sum(src, seg, n):
    out = torch.zeros((n,) + src.shape[1:], dtype=src.dtype)
    return out.index_add_(0, seg, src)

def _pad(x, pw):
    flat = tuple((v for pair in reversed(pw) for v in pair))
    return torch.nn.functional.pad(x, flat)
kernel_name = 'gated_mix__memory_aug_recurrent_mem_tr__swiglu_ffn__prompt'

def setup_inputs():

    _w = lambda a: (lambda t: t.to(torch.bfloat16) if t.is_floating_point() else t)(torch.as_tensor(a))

    def _A_setup():
        B, S, Dm = (1, 2048, 1024)
        H, Dh = (32, 128)
        M, seg = (8, 32)
        seg = min(seg, S)
        S = S // seg * seg
        return {'x': _w((lambda *s: torch.randn(*s, dtype=torch.bfloat16) * 0.05)(B, S, Dm)), 'mem0': _w((lambda *s: torch.randn(*s, dtype=torch.bfloat16) * 0.4)(B, M, Dm)), 'Wq': _w((lambda *s: torch.randn(*s, dtype=torch.bfloat16) * 6.4)(Dm, H, Dh) * Dm ** (-0.5)), 'Wk': _w((lambda *s: torch.randn(*s, dtype=torch.bfloat16) * 6.4)(Dm, H, Dh) * Dm ** (-0.5)), 'Wv': _w((lambda *s: torch.randn(*s, dtype=torch.bfloat16) * 0.4)(Dm, H, Dh) * Dm ** (-0.5)), 'Wo': _w((lambda *s: torch.randn(*s, dtype=torch.bfloat16) * 0.4)(H, Dh, Dm) * (H * Dh) ** (-0.5)), 'seg_len': seg}
    _A_in = _A_setup()

    def _B_setup():
        B, S, D, F = (1, 2048, 1024, 3584)
        return {'x': _w((lambda *s: torch.randn(*s, dtype=torch.bfloat16) * 0.05)(B, S, D)), 'w_gate': _w((lambda *s: torch.randn(*s, dtype=torch.bfloat16) * 0.05)(D, F)), 'w_up': _w((lambda *s: torch.randn(*s, dtype=torch.bfloat16) * 0.05)(D, F)), 'w_down': _w((lambda *s: torch.randn(*s, dtype=torch.bfloat16) * 0.05)(F, D))}
    _B_in = _B_setup()
    return {'A_x': _A_in['x'], 'A_mem0': _A_in['mem0'], 'A_Wq': _A_in['Wq'], 'A_Wk': _A_in['Wk'], 'A_Wv': _A_in['Wv'], 'A_Wo': _A_in['Wo'], 'A_seg_len': _A_in['seg_len'], 'B_x': _B_in['x'], 'B_w_gate': _B_in['w_gate'], 'B_w_up': _B_in['w_up'], 'B_w_down': _B_in['w_down'], 'gate_w': _w((lambda *s: torch.randn(*s, dtype=torch.bfloat16) * 0.05)(1024) * 16.0)}

def reference(A_x, A_mem0, A_Wq, A_Wk, A_Wv, A_Wo, A_seg_len, B_x, B_w_gate, B_w_up, B_w_down, gate_w):

    def _A_ref(x, mem0, Wq, Wk, Wv, Wo, seg_len):
        B, S, Dm = x.shape
        H, Dh = (Wq.shape[1], Wq.shape[2])
        M = mem0.shape[1]
        scale = Dh ** (-0.5)
        n_seg = S // seg_len
        L = M + seg_len
        idx = torch.arange(L)
        mask = (idx[:, None] < M) | (idx[:, None] >= idx[None, :])
        mem = mem0
        outs = []
        for s in range(n_seg):
            xs = x[:, s * seg_len:(s + 1) * seg_len, :].clone()
            h = torch.concatenate([mem, xs], axis=1)
            q = torch.einsum('btd,dhe->bhte', h, Wq)
            k = torch.einsum('btd,dhe->bhte', h, Wk)
            v = torch.einsum('btd,dhe->bhte', h, Wv)
            scores = torch.einsum('bhqe,bhke->bhqk', q, k) * scale
            scores = torch.where(mask[None, None], scores, -1000000000.0)
            p = _softmax(scores, axis=-1)
            o = torch.einsum('bhqk,bhke->bhqe', p, v)
            o = torch.einsum('bhte,hed->btd', o, Wo)
            mem = o[:, :M, :].clone()
            outs.append(o[:, M:, :])
        return torch.concatenate(outs, axis=1)

    def _B_ref(x, w_gate, w_up, w_down):
        g = _silu(x @ w_gate)
        u = x @ w_up
        return g * u @ w_down
    x = A_x
    g = _sigmoid((x * gate_w).sum(-1, keepdims=True))
    a = _A_ref(x, A_mem0, A_Wq, A_Wk, A_Wv, A_Wo, A_seg_len)
    b = _B_ref(x, B_w_gate, B_w_up, B_w_down)
    return g * a + (1 - g) * b
```

```python
import re

def _r(pfx, i, n=1):
    return f"{pfx}{i}" if n == 1 else f"{pfx}[{i}:{i+n-1}]"
def v(i, n=1):
    assert 0 <= i and i+n <= 256, (i, n)
    return _r('v', i, n)
def a(i, n=1):
    assert 0 <= i and i+n <= 256, (i, n)
    return _r('a', i, n)
def s(i, n=1):
    assert 0 <= i and i+n <= 102, (i, n)
    return _r('s', i, n)
def r(i, n=1):
    return v(i, n) if i < 256 else a(i-256, n)

_re_reg = re.compile(r'^(-|\|)?([vas])(\d+)\|?$')
_re_rng = re.compile(r'^(-)?([vas])\[(\d+):(\d+)\]$')
def regs_of(op):
    op = str(op).strip()
    m = _re_reg.match(op)
    if m:
        k, i = m.group(2), int(m.group(3))
        return {('v', i)} if k == 'v' else ({('v', 256+i)} if k == 'a' else {('s', i)})
    m = _re_rng.match(op)
    if m:
        k, lo, hi = m.group(2), int(m.group(3)), int(m.group(4))
        if k == 'v': return {('v', i) for i in range(lo, hi+1)}
        if k == 'a': return {('v', 256+i) for i in range(lo, hi+1)}
        return {('s', i) for i in range(lo, hi+1)}
    if op in ('vcc',): return {('s', 'vcc_lo'), ('s', 'vcc_hi')}
    if op in ('vcc_lo', 'vcc_hi'): return {('s', op)}
    if op == 'exec': return {('s', 'exec_lo'), ('s', 'exec_hi')}
    if op in ('exec_lo', 'exec_hi'): return {('s', op)}
    if op == 'm0': return {('s', 'm0')}
    return set()

TRANS = ('v_exp_f32', 'v_log_f32', 'v_rcp_f32', 'v_rsq_f32', 'v_sqrt_f32', 'v_sin_f32', 'v_cos_f32')

class Ins:
    __slots__ = ('op', 'ops', 'mods', 'cm', 'kind', 'rd', 'wr', 'passes', 'srcc', 'ab', 'tag')
    def __init__(self, op, ops, mods='', cm=''):
        self.op, self.ops, self.mods, self.cm = op, [str(o) for o in ops], mods, cm
        self.passes = 0; self.srcc = set(); self.ab = set(); self.tag = None
        self.classify()
    def text(self):
        t = '  ' + self.op
        if self.ops: t += ' ' + ', '.join(self.ops)
        if self.mods: t += ' ' + self.mods
        if self.cm: t += '   ; ' + self.cm
        return t
    def classify(self):
        op, o = self.op, self.ops
        R = lambda idx: set().union(*[regs_of(o[i]) for i in idx if i < len(o)]) if idx else set()
        n = len(o)
        rd, wr = set(), set()
        if op.startswith('v_mfma') or op.startswith('v_smfmac'):
            self.kind = 'mfma'
            self.passes = 8 if '32x32' in op else 4
            wr = R([0])
            if op.startswith('v_smfmac'):
                self.srcc = R([0]); self.ab = R([1, 2, 3])
            else:
                self.srcc = R([3]); self.ab = R([1, 2])
            rd = self.srcc | self.ab
        elif op.startswith('v_'):
            self.kind = 'valu'
            if op.startswith('v_permlane') and 'swap' in op:
                wr = R([0, 1]); rd = R([0, 1])
            elif op.startswith('v_cmp'):
                wr = R([0]); rd = R(range(1, n))
                assert not op.startswith('v_cmpx')
            elif op.startswith('v_fmac') or op.startswith('v_pk_fmac') or op.startswith('v_dot2c') or op.startswith('v_writelane'):
                wr = R([0]); rd = R(range(0, n))
            elif op.startswith('v_add_co') or op.startswith('v_sub_co') or op.startswith('v_addc_co') or op.startswith('v_subb_co'):
                wr = R([0, 1]); rd = R(range(2, n))
            elif op.startswith('v_cndmask') and n == 3:
                wr = R([0]); rd = R([1, 2]) | regs_of('vcc')
            elif op == 'v_nop':
                pass
            else:
                wr = R([0]); rd = R(range(1, n))
                if 'dpp' in op or 'row_' in self.mods or 'quad_perm' in self.mods:
                    if 'bound_ctrl' not in self.mods: rd |= R([0])
        elif op.startswith('buffer_') or op.startswith('global_'):
            self.kind = 'vmem'
            if 'load' in op:
                if re.search(r'\blds\b', self.mods) or 'load_lds' in op:
                    rd = R(range(0, n)) | regs_of('m0'); self.tag = 'dma'
                else:
                    wr = R([0]); rd = R(range(1, n)); self.tag = 'load'
            elif 'store' in op:
                rd = R(range(0, n)); self.tag = 'store'
            elif 'atomic' in op:
                rd = R(range(0, n)); self.tag = 'store'
                if 'sc0' in self.mods:
                    self.tag = 'load'
                    w = regs_of(o[0])
                    if 'cmpswap' in op: w = {min(w)} if 'x2' not in op else set(sorted(w)[:2])
                    wr = w
            else: raise ValueError(op)
        elif op.startswith('ds_'):
            self.kind = 'ds'
            if op.startswith('ds_read') or op.startswith('ds_bpermute') or op.startswith('ds_permute') or op.startswith('ds_swizzle') or 'rtn' in op:
                wr = R([0]); rd = R(range(1, n)); self.tag = 'load'
            else:
                rd = R(range(0, n)); self.tag = 'store'
        elif op.startswith('s_load') or op.startswith('s_buffer_load') or op in ('s_memtime', 's_memrealtime'):
            self.kind = 'smem'; wr = R([0]); rd = R(range(1, n)); self.tag = 'load'
        elif op.startswith('s_'):
            self.kind = 'salu'
            if op in ('s_waitcnt', 's_nop', 's_barrier', 's_endpgm', 's_setprio', 's_sleep', 's_branch') or op.startswith('s_cbranch'):
                self.kind = 'ctl'
                if 'vcc' in op: rd = regs_of('vcc')
                if 'exec' in op: rd = regs_of('exec')
            elif op.startswith('s_cmp') or op.startswith('s_bitcmp'):
                rd = R(range(0, n))
            elif op in ('s_setpc_b64',):
                self.kind = 'ctl'; rd = R([0])
            elif op in ('s_swappc_b64',):
                self.kind = 'ctl'; wr = R([0]); rd = R([1])
            elif 'saveexec' in op:
                wr = R([0]) | regs_of('exec'); rd = R([1]) | regs_of('exec')
            else:
                wr = R([0]); rd = R(range(1, n))
                if op.startswith('s_cselect') or op.startswith('s_cmov') or op.startswith('s_addk') or op.startswith('s_mulk') or op.startswith('s_bitset'):
                    rd |= R([0])
        else:
            raise ValueError('unknown op ' + op)
        self.rd, self.wr = rd, wr
    def states(self):
        if self.op == 's_nop': return int(self.ops[0], 0) + 1
        return 1
    def is_branch(self): return self.op == 's_branch' or self.op.startswith('s_cbranch')
    def is_dpp(self): return self.kind == 'valu' and ('row_' in self.mods or 'quad_perm' in self.mods or 'dpp' in self.op)
    def is_wide_store(self): return self.kind == 'vmem' and self.tag == 'store' and ('x4' in self.op or 'x3' in self.op)

class Label:
    def __init__(self, name): self.name = name
    def text(self): return self.name + ':'
class Raw:
    def __init__(self, t): self.t = t
    def text(self): return self.t

def vonly(st): return {x for x in st if x[0] == 'v'}
def sonly(st): return {x for x in st if x[0] == 's'}

def need(p, c):
    n = 0
    if p.kind == 'valu':
        pv, ps = vonly(p.wr), sonly(p.wr)
        if pv:
            if c.kind == 'mfma' and pv & c.rd: n = max(n, 2)
            if c.kind == 'valu':
                if c.op.startswith('v_permlane') and pv & c.rd: n = max(n, 2)
                if c.is_dpp() and pv & c.rd: n = max(n, 2)
                if (c.op.startswith('v_readlane') or c.op.startswith('v_readfirstlane')) and pv & c.rd: n = max(n, 1)
                if p.op in TRANS and pv & c.rd: n = max(n, 1)
                if (('op_sel' in p.mods and not p.op.startswith('v_pk')) or 'dst_sel' in p.mods) and pv & (c.rd | c.wr): n = max(n, 1)
            if p.op in TRANS and c.kind in ('vmem', 'ds') and pv & c.rd: n = max(n, 1)
            if p.op.startswith('v_dot') and pv & (c.rd | c.wr):
                if not (c.op == p.op and not (pv & (regs_of(c.ops[1]) | regs_of(c.ops[2])))): n = max(n, 3)
        if ps:
            if c.kind == 'vmem' and ps & c.rd: n = max(n, 5)
            if c.kind == 'valu' and ps & c.rd:
                n = max(n, 4 if (c.op.startswith('v_readlane') or c.op.startswith('v_writelane')) else 2)
            if c.kind in ('salu', 'smem', 'ctl') and ps & c.rd: n = max(n, 0)
    if p.kind == 'mfma':
        big = p.passes == 8
        if c.kind == 'mfma':
            if p.wr & c.ab: n = max(n, 12 if big else 8)
            if p.wr & c.srcc:
                if not (p.wr == c.srcc and p.passes == c.passes): n = max(n, 10 if big else 6)
            elif p.wr & c.wr: n = max(n, 12 if big else 8)
        elif c.kind == 'valu':
            if p.wr & (c.rd | c.wr): n = max(n, 12 if big else 8)
            if p.srcc & c.wr: n = max(n, 7 if big else 3)
        elif c.kind in ('vmem', 'ds'):
            if p.wr & (c.rd | c.wr): n = max(n, 12 if big else 8)
            if p.srcc & c.wr: n = max(n, 7 if big else 3)
    if p.kind == 'salu' and ('s', 'm0') in p.wr and c.kind == 'vmem' and c.tag == 'dma': n = max(n, 1)
    if p.is_wide_store():
        d = vonly(regs_of(p.ops[0]) if p.op.startswith('buffer') else regs_of(p.ops[1]))
        if d & c.wr: n = max(n, 2 if c.kind in ('valu', 'mfma') else 1)
    return n

MAXW = 13
def occ(p):
    if '16x16x16' in p.op or '4x4' in p.op: return 2
    if '32x32x8' in p.op: return 4
    return p.passes
def path_missing(path, c):
    worst = 0
    for k, p in enumerate(path):
        nn = need(p, c)
        if nn <= 0: continue
        t = 0; lastm = (0, occ(p)) if p.kind == 'mfma' else None
        prev = p
        for x in reversed(path[:k]):
            t += prev.states()
            if x.kind == 'mfma':
                if lastm: t = max(t, lastm[0] + lastm[1])
                lastm = (t, occ(x))
            prev = x
        t += prev.states()
        if c.kind == 'mfma' and lastm: t = max(t, lastm[0] + lastm[1])
        d = t - p.states()
        if nn > d: worst = max(worst, nn - d)
    return worst
class Asm:
    def __init__(self):
        self.items = []
        self.uid = 0
    def I(self, op, *ops, m='', cm=''):
        ins = Ins(op, ops, m, cm); self.items.append(ins); return ins
    def __getattr__(self, name):
        if name.startswith(('v_', 's_', 'ds_', 'buffer_', 'global_')):
            return lambda *ops, m='', cm='': self.I(name, *ops, m=m, cm=cm)
        raise AttributeError(name)
    def label(self, name): self.items.append(Label(name)); return name
    def newlabel(self, base='L'):
        self.uid += 1; return f".{base}_{self.uid}"
    def raw(self, t): self.items.append(Raw(t))
    def c(self, t): self.items.append(Raw('  ; ' + t))
    def wait(self, vm=None, lgkm=None):
        parts = []
        if vm is not None: assert 0 <= vm <= 63; parts.append(f'vmcnt({vm})')
        if lgkm is not None: assert 0 <= lgkm <= 15; parts.append(f'lgkmcnt({lgkm})')
        self.I('s_waitcnt', ' '.join(parts))
    def nop(self, n):
        while n > 0:
            k = min(n, 16); self.I('s_nop', k-1); n -= k

    def _preds(self, idx, labels, branches):
        out = []
        def walk2(i, acc, st, depth, via):
            while i >= 0 and st < MAXW:
                it = self.items[i]
                if isinstance(it, Label):
                    if depth < 3:
                        for b in branches.get(it.name, []):
                            walk2(b, list(acc), st, depth+1, True)
                elif isinstance(it, Ins):
                    if it.op in ('s_branch', 's_endpgm', 's_setpc_b64') and not via:
                        out.append(acc); return
                    acc.append(it); st += it.states()
                via = False
                i -= 1
            out.append(acc)
        walk2(idx-1, [], 0, 0, False)
        return out
    def fix_hazards(self):
        total = 0
        changed = True
        while changed:
            changed = False
            branches = {}
            for i, it in enumerate(self.items):
                if isinstance(it, Ins) and it.is_branch(): branches.setdefault(it.ops[0], []).append(i)
            new = []
            inserts = {}
            for i, it in enumerate(self.items):
                if not isinstance(it, Ins) or it.kind == 'ctl': continue
                worst = 0
                for path in self._preds(i, None, branches):
                    worst = max(worst, path_missing(path, it))
                if worst > 0:
                    inserts[i] = worst
                    break
            if inserts:
                (i, w), = inserts.items()
                self.items.insert(i, Ins('s_nop', [w-1], '', 'hz'))
                total += 1
                changed = True
                self._fix_from(i+1)
        return total
    def _fix_from(self, i):
        def mk():
            b = {}
            for j, it in enumerate(self.items):
                if isinstance(it, Ins) and it.is_branch(): b.setdefault(it.ops[0], []).append(j)
            return b
        branches = mk()
        while i < len(self.items):
            it = self.items[i]
            if isinstance(it, Ins) and it.kind != 'ctl':
                worst = 0
                for path in self._preds(i, None, branches):
                    worst = max(worst, path_missing(path, it))
                if worst > 0:
                    self.items.insert(i, Ins('s_nop', [worst-1], '', 'hz'))
                    for k in branches: branches[k] = [j+1 if j >= i else j for j in branches[k]]
                    i += 1
            i += 1

    def check_waits(self):
        errs = []
        lab = {it.name: i for i, it in enumerate(self.items) if isinstance(it, Label)}
        def run(seq, vm, lg):
            for i in seq:
                it = self.items[i]
                if not isinstance(it, Ins): continue
                if it.op == 's_waitcnt':
                    t = it.ops[0]
                    m = re.search(r'vmcnt\((\d+)\)', t)
                    if m:
                        k = int(m.group(1));
                        if len(vm) > k: del vm[:len(vm)-k]
                    m = re.search(r'lgkmcnt\((\d+)\)', t)
                    if m:
                        k = int(m.group(1))
                        if k == 0: lg.clear()
                        else:
                            if any(x[0] == 'smem' for x in lg):
                                pass
                            elif len(lg) > k: del lg[:len(lg)-k]
                    continue
                if it.op in ('s_branch', 's_endpgm', 's_setpc_b64'):
                    vm.clear(); lg.clear(); continue
                use = it.rd | it.wr
                for q in (vm, lg):
                    for (kind, w, src) in q:
                        if w & use:
                            errs.append(f"pending {src.text().strip()}  <-- used by [{i}] {it.text().strip()}")
                if it.kind == 'vmem': vm.append(('vmem', it.wr, it))
                elif it.kind == 'ds': lg.append(('ds', it.wr, it))
                elif it.kind == 'smem': lg.append(('smem', it.wr, it))
            return vm, lg
        run(range(len(self.items)), [], [])
        for i, it in enumerate(self.items):
            if isinstance(it, Ins) and it.is_branch() and it.ops[0] in lab and lab[it.ops[0]] < i:
                body = [j for j in range(lab[it.ops[0]], i)]
                if any(isinstance(self.items[j], Ins) and self.items[j].op in ('s_branch', 's_endpgm') for j in body):
                    continue
                vm, lg = run(body, [], [])
                run(body, vm, lg)
        return sorted(set(errs))
    def text(self):
        return '\n'.join(it.text() for it in self.items) + '\n'
```

```python
from asmlib import *
from layout import *

OPT = set()
S_WS, S_DBG, S_TMP = 4, 8, 12
S_X, S_H, S_W, S_STEP, S_TO = 16, 17, 18, 19, 20
S_MEMLD = 21
S_MEMST = 25
S_XQO = 27
S_XQI = 31
S_PST = 35
S_PLD = 37
S_SLO, S_SHI = 39, 40
S_PRG = 41
S_MPUB, S_MX = 42, 44
S_KX0, S_KX1, S_VTO, S_PUB = 47, 48, 49, 50
S_T0 = 51
S_MN8, S_MST, S_MLO = 52, 54, 56
S_C = 58
S_T1, S_T2, S_T3 = 60, 61, 62
S_KXM = 63
S_PTR = 64
S_KVR = 12
S_TM = 96
def ptr(i): return S_PTR + 2*i

V_L16H, V_XV, V_WO, V_QKW, V_QKR, V_KXR, V_KXD, V_VT, V_OBW, V_PST, V_PLD, V_MST, V_IDX = 0, 1, 2, 3, 4, 5, 9, 10, 11, 12, 13, 14, 15
VT0 = 16
RA, RB, RC = 32, 64, 96
WQ, WK, WV = 256, 384, 128

def srd(A, d, p, nbytes):
    A.s_mov_b32(s(d), s(ptr(p))); A.s_mov_b32(s(d+1), s(ptr(p)+1))
    A.s_mov_b32(s(d+2), hex(nbytes)); A.s_mov_b32(s(d+3), '0x20000')

def load_ptrs(A):
    for i in range(0, 14, 2):
        A.s_load_dwordx4(s(ptr(i), 4), s(0, 2), i*8)
    A.s_load_dwordx2(s(ptr(14), 2), s(0, 2), 112)

def spin_guard(A, retry, abort):
    A.s_sub_u32(s(S_TO), s(S_TO), 1)
    A.s_cbranch_scc0(retry)
    A.s_branch(abort)

def chain_setup(A, abort, fb=False):
    L, T1, T2, T3, T4 = 100, 101, 102, 103, 104
    WS_XQ_, WS_PART_, WS_MEM_ = WS_XQ + (FB_XQ if fb else 0), WS_PART + (FB_PART if fb else 0), WS_MEM + (FB_MEM if fb else 0)
    A.c('---- chain setup: lane constants ----')
    A.v_mbcnt_lo_u32_b32(v(L), -1, 0); A.v_mbcnt_hi_u32_b32(v(L), -1, v(L))
    A.v_and_b32(v(T1), 31, v(L)); A.v_lshlrev_b32(v(T1), 4, v(T1)); A.v_lshrrev_b32(v(T2), 5, v(L))
    A.v_lshl_add_u32(v(T1), v(T2), 3, v(T1)); A.s_lshl_b32(s(S_T0), s(S_W), 9); A.v_add_u32(v(V_XV), s(S_T0), v(T1))
    G, N16 = 105, 106
    A.v_lshrrev_b32(v(G), 4, v(L))
    A.v_and_b32(v(N16), 15, v(L))
    A.v_lshlrev_b32(v(V_L16H), 4, v(L))
    A.s_lshl_b32(s(S_T0), s(S_W), 15)
    A.v_add_u32(v(V_WO), s(S_T0), v(V_L16H))
    A.v_add_u32(v(V_L16H), L_MEMB, v(V_L16H))
    A.v_lshrrev_b32(v(T1), 5, v(L)); A.v_lshl_add_u32(v(T1), v(T1), 4, v(N16))
    A.v_and_b32(v(T2), 1, v(G))
    A.v_lshlrev_b32(v(T3), 4, v(T1)); A.v_lshl_add_u32(v(T3), v(T2), 3, v(T3))
    A.s_lshl_b32(s(S_T0), s(S_W), 9); A.s_add_u32(s(S_T0), s(S_T0), L_QB)
    A.v_add_u32(v(V_QKW), s(S_T0), v(T3))
    A.v_bfe_u32(v(T3), v(L), 2, 2); A.v_lshl_add_u32(v(T3), v(G), 3, v(T3)); A.v_lshlrev_b32(v(T3), 4, v(T3))
    A.v_and_b32(v(T4), 1, v(L)); A.v_lshl_add_u32(v(T3), v(T4), 3, v(T3))
    A.v_add_u32(v(V_QKR), L_QB, v(T3))
    A.v_lshrrev_b32(v(T3), 2, v(N16)); A.v_and_b32(v(T4), 3, v(N16)); A.v_lshl_add_u32(v(T3), v(T3), 3, v(T4))
    A.v_lshlrev_b32(v(T3), 8, v(T3)); A.v_add_u32(v(T3), L_KXB, v(T3))
    for jj in range(4):
        A.v_add_u32(v(T4), 4*jj, v(G)); A.v_xor_b32(v(T4), v(T4), v(N16))
        A.v_lshl_add_u32(v(V_KXR+jj), v(T4), 4, v(T3))
    A.s_lshl_b32(s(S_T0), s(S_W), 2)
    A.v_add_u32(v(T3), s(S_T0), v(G)); A.v_xor_b32(v(T3), v(T3), v(N16)); A.v_lshlrev_b32(v(T3), 4, v(T3))
    A.v_lshl_add_u32(v(T3), v(G), 13, v(T3))
    A.s_lshl_b32(s(S_T0), s(S_W), 16); A.s_lshl_b32(s(S_T1), s(S_H), 8); A.s_add_u32(s(S_T0), s(S_T0), s(S_T1))
    A.v_add_u32(v(V_KXD), s(S_T0), v(T3))
    A.v_lshlrev_b32(v(T3), 6, v(N16)); A.v_lshl_add_u32(v(T3), v(G), 4, v(T3))
    A.s_lshl_b32(s(S_T0), s(S_H), 13); A.s_lshl_b32(s(S_T1), s(S_W), 11); A.s_add_u32(s(S_T0), s(S_T0), s(S_T1))
    A.v_add_u32(v(V_VT), s(S_T0), v(T3))
    A.v_lshl_add_u32(v(T3), v(G), 3, v(N16)); A.v_lshlrev_b32(v(T3), 4, v(T3))
    A.s_lshl_b32(s(S_T0), s(S_W), 9); A.s_add_u32(s(S_T0), s(S_T0), L_OB)
    A.v_add_u32(v(V_OBW), s(S_T0), v(T3))
    A.v_and_b32(v(T3), 1, v(G)); A.v_lshlrev_b32(v(T3), 1, v(T3)); A.v_lshrrev_b32(v(T4), 1, v(G)); A.v_add_u32(v(T3), v(T3), v(T4))
    A.v_lshlrev_b32(v(T3), 13, v(T3)); A.v_lshl_add_u32(v(T3), v(N16), 4, v(T3))
    A.s_lshl_b32(s(S_T0), s(S_W), 16); A.s_lshl_b32(s(S_T1), s(S_H), 8); A.s_add_u32(s(S_T0), s(S_T0), s(S_T1))
    A.v_add_u32(v(V_PST), s(S_T0), v(T3))
    A.v_lshrrev_b32(v(T3), 2, v(L)); A.v_lshlrev_b32(v(T3), 8, v(T3))
    A.v_and_b32(v(T4), 3, v(L)); A.v_lshl_add_u32(v(T3), v(T4), 4, v(T3))
    A.s_lshl_b32(s(S_T0), s(S_H), 13); A.s_lshl_b32(s(S_T1), s(S_W), 6); A.s_add_u32(s(S_T0), s(S_T0), s(S_T1))
    A.v_add_u32(v(V_PLD), s(S_T0), v(T3))
    A.v_lshrrev_b32(v(T3), 3, v(L)); A.v_lshlrev_b32(v(T3), 4, v(T3))
    A.v_and_b32(v(T4), 2, v(L)); A.v_lshl_add_u32(v(T3), v(T4), 1, v(T3))
    A.s_lshl_b32(s(S_T0), s(S_H), 8); A.s_lshr_b32(s(S_T1), s(S_W), 1); A.s_lshl_b32(s(S_T1), s(S_T1), 7); A.s_add_u32(s(S_T0), s(S_T0), s(S_T1))
    A.s_and_b32(s(S_T1), s(S_W), 1); A.s_lshl_b32(s(S_T1), s(S_T1), 3); A.s_add_u32(s(S_T0), s(S_T0), s(S_T1))
    A.v_add_u32(v(V_MST), s(S_T0), v(T3))
    A.v_mov_b32(v(T3), '0x4444'); A.v_mov_b32(v(T4), '0xeeee')
    A.v_cmp_lt_u32('vcc', 7, v(N16)); A.v_cndmask_b32(v(V_IDX), v(T3), v(T4))
    A.c('---- scalar constants ----')
    for p, val in ((S_MN8, 0x00FF00FF), (S_MST, 0x05050505), (S_MPUB, 0x0000FFFF)):
        A.s_mov_b32(s(p), hex(val)); A.s_mov_b32(s(p+1), hex(val))
    A.s_mov_b32(s(S_MLO), -1); A.s_mov_b32(s(S_MLO+1), 0)
    import struct
    cbits = struct.unpack('<I', struct.pack('<f', (128 ** -0.5) * 1.4426950408889634))[0]
    A.s_mov_b32(s(S_C), hex(cbits)); A.s_mov_b32(s(S_C+1), hex(cbits))
    A.s_lshl_b32(s(S_T0), s(S_X), 14)
    for par in range(2):
        A.s_add_u32(s(S_MEMST+par), s(S_T0), WS_MEM_ + par*8192)
        for q in range(2):
            A.s_add_u32(s(S_MEMLD+2*par+q), s(S_T0), WS_MEM_ + par*8192 + q*4096 - L_MEMB)
    A.s_mov_b32(s(S_SLO), '0x3f80'); A.s_mov_b32(s(S_SHI), '0x3f800000')
    A.s_sub_u32(s(S_MX), 0, s(S_X)); A.s_mov_b32(s(S_MX+1), s(S_MX))
    A.s_lshl_b32(s(S_PRG), s(S_X), 5); A.s_add_u32(s(S_PRG), s(S_PRG), s(S_H)); A.s_lshl_b32(s(S_PRG), s(S_PRG), 7); A.s_add_u32(s(S_PRG), s(S_PRG), WS_CTL + C_PROG)
    A.s_lshl_b32(s(S_T0), s(S_X), 19)
    A.s_lshl_b32(s(S_T1), s(S_H), 12); A.s_lshl_b32(s(S_T2), s(S_W), 10); A.s_add_u32(s(S_T1), s(S_T1), s(S_T2)); A.s_add_u32(s(S_T1), s(S_T1), s(S_T0))
    A.s_lshl_b32(s(S_T2), s(S_H), 11); A.s_add_u32(s(S_T2), s(S_T2), s(S_T0))
    for par in range(2):
        A.s_add_u32(s(S_XQI+2*par), s(S_T1), WS_XQ_ + par*(1 << 18) - L_MEMB)
        A.s_add_u32(s(S_XQI+2*par+1), s(S_T2), WS_XQ_ + par*(1 << 18) + (1 << 17))
    A.s_xor_b32(s(S_T1), s(S_T1), 1 << 19); A.s_xor_b32(s(S_T2), s(S_T2), 1 << 19)
    for par in range(2):
        A.s_add_u32(s(S_XQO+2*par), s(S_T1), WS_XQ_ + par*(1 << 18) - L_MEMB)
        A.s_add_u32(s(S_XQO+2*par+1), s(S_T2), WS_XQ_ + par*(1 << 18) + (1 << 17))
    A.s_lshl_b32(s(S_T0), s(S_X), 18)
    for i in range(2):
        A.s_add_u32(s(S_PST+i), s(S_T0), WS_PART_ + i*32768)
        A.s_add_u32(s(S_PLD+i), s(S_T0), WS_PART_ + i*4096)
    A.s_lshl_b32(s(S_T0), s(S_X), 22); A.s_lshl_b32(s(S_T1), s(S_H), 11); A.s_add_u32(s(S_T0), s(S_T0), s(S_T1))
    assert WS_VM - WS_KM == 1 << 22
    A.s_add_u32(s(S_PUB), s(S_T0), WS_KM - L_QB)
    A.s_lshl_b32(s(S_KXM), s(S_W), 11); A.s_add_u32(s(S_KXM), s(S_KXM), L_KXB)
    A.c('---- init hand-off buffers (write-through) ----')
    for i in range(4): A.v_mov_b32(v(108+i), 1)
    A.v_mov_b32(v(112), -1)
    for par in range(2):
        A.buffer_store_dwordx4(v(108, 4), v(V_L16H), s(S_WS, 4), s(S_XQI+2*par), m='offen sc1')
    for q in range(2):
        A.buffer_store_dwordx4(v(108, 4), v(V_PLD), s(S_WS, 4), s(S_PLD+q), m='offen sc1')
    A.s_mov_b64('exec', s(S_MLO, 2))
    for par in range(2):
        A.buffer_store_dwordx4(v(108, 4), v(V_XV), s(S_WS, 4), s(S_XQI+2*par+1), m='offen sc1')
    A.s_mov_b64('exec', s(S_MST, 2))
    for par in range(2):
        A.buffer_store_dword(v(112), v(V_MST), s(S_WS, 4), s(S_MEMST+par), m='offen sc1')
    A.s_mov_b64('exec', -1)
    A.c('---- weight load ----')
    VD, VDO, VR0, VR1 = 116, 117, 118, 119
    R_, TP, HF = 107, 113, 114
    A.v_bfe_u32(v(R_), v(L), 2, 2)
    A.v_bfe_u32(v(TP), v(L), 1, 1)
    A.v_and_b32(v(T3), 1, v(G))
    A.v_xor_b32(v(TP), v(TP), v(T3))
    A.v_and_b32(v(HF), 1, v(L))
    A.v_lshlrev_b32(v(TP), 5, v(TP)); A.v_lshl_add_u32(v(TP), v(HF), 4, v(TP))
    A.v_lshrrev_b32(v(T4), 1, v(G)); A.v_lshlrev_b32(v(T4), 4, v(T4)); A.v_lshl_add_u32(v(T4), v(T3), 2, v(T4))
    A.v_lshrrev_b32(v(T1), 1, v(R_)); A.v_lshl_add_u32(v(T4), v(T1), 3, v(T4))
    A.v_and_b32(v(T2), 1, v(R_)); A.v_add_u32(v(T4), v(T4), v(T2))
    A.v_lshl_add_u32(v(VD), v(T4), 13, v(TP))
    A.s_lshl_b32(s(S_T0), s(S_X), 22); A.s_lshl_b32(s(S_T1), s(S_H), 8); A.s_add_u32(s(S_T0), s(S_T0), s(S_T1))
    A.s_lshl_b32(s(S_T1), s(S_W), 6); A.s_add_u32(s(S_T0), s(S_T0), s(S_T1))
    A.v_add_u32(v(VD), s(S_T0), v(VD))
    A.v_lshlrev_b32(v(T4), 4, v(T3)); A.v_lshrrev_b32(v(T3), 1, v(G)); A.v_lshl_add_u32(v(T4), v(T3), 3, v(T4))
    A.v_lshl_add_u32(v(T4), v(T1), 2, v(T4)); A.v_add_u32(v(T4), v(T4), v(T2))
    A.v_lshl_add_u32(v(VDO), v(T4), 11, v(TP))
    A.s_lshl_b32(s(S_T0), s(S_H), 18); A.s_lshl_b32(s(S_T1), s(S_X), 10); A.s_add_u32(s(S_T0), s(S_T0), s(S_T1))
    A.s_lshl_b32(s(S_T1), s(S_W), 8); A.s_add_u32(s(S_T0), s(S_T0), s(S_T1))
    A.v_add_u32(v(VDO), s(S_T0), v(VDO))
    A.v_lshlrev_b32(v(T4), 8, v(G)); A.v_lshl_add_u32(v(T4), v(R_), 6, v(T4))
    A.v_and_b32(v(T1), 3, v(L)); A.v_lshl_add_u32(v(T4), v(T1), 3, v(T4))
    A.v_and_b32(v(T3), 1, v(G)); A.v_lshl_add_u32(v(T4), v(T3), 5, v(T4))
    A.s_lshl_b32(s(S_T3), s(S_W), 15)
    A.v_add_u32(v(VR0), s(S_T3), v(T4)); A.v_xor_b32(v(VR1), 32, v(VR0))
    A.v_and_b32(v(T1), 7, v(L)); A.v_lshlrev_b32(v(T1), 11, v(T1))
    A.v_lshrrev_b32(v(T2), 3, v(L)); A.v_lshl_add_u32(v(T1), v(T2), 4, v(T1))
    A.s_lshl_b32(s(S_T0), s(S_X), 10); A.v_add_u32(v(115), s(S_T0), v(T1))
    mats = [(P_WQ, WQ), (P_WK, WK), (P_WV, WV)]
    def issue(g):
        slot = g % 4
        if g < 12:
            if g % 4 == 0: srd(A, S_TMP, mats[g//4][0], 1024*4096*2)
        elif g == 12: srd(A, S_TMP, P_WO, 4096*1024*2)
        for b in range(8):
            j2, m = b // 4, b % 4
            if g < 12:
                j = 2*(g % 4) + j2
                so = (64*j + 32*(m//2) + 2*(m % 2)) * 8192
            else:
                so = (64*j2 + 32*(m//2) + 2*(m % 2)) * 2048 + (g-12)*64
            A.s_add_u32('m0', s(S_T3), slot*8192 + b*1024)
            A.s_mov_b32(s(S_T0), hex(so))
            A.buffer_load_dwordx4(v(VD if g < 12 else VDO), s(S_TMP, 4), s(S_T0), m='offen lds')
    for g in range(4): issue(g)
    for g in range(16):
        rem = min(3, 15-g) * 8
        A.wait(vm=rem)
        slot = g % 4
        for b in range(8):
            j2, m = b // 4, b % 4
            for tau in range(2):
                if g < 12:
                    j = 2*(g % 4) + j2
                    dst = mats[g//4][1] + (tau*8 + j)*8 + 2*m
                else:
                    dst = RA + (tau*2 + j2)*8 + 2*m
                A.ds_read_b64_tr_b16(r(dst, 2), v(VR1 if tau else VR0), m=f'offset:{slot*8192 + b*1024}')
        A.wait(lgkm=0)
        if g+4 < 16: issue(g+4)
        if g >= 12:
            for f in range(4):
                for u in range(2):
                    A.ds_write_b128(v(V_WO), v(RA + f*8 + u*4, 4), m=f'offset:{slot*8192 + f*2048 + u*1024}')
            A.wait(lgkm=0)
    srd(A, S_TMP, P_MEM0, 8*1024*2)
    for j in range(8):
        A.buffer_load_dwordx4(v(RA+4*j, 4), v(115), s(S_TMP, 4), 0, m=f'offen offset:{j*128}')

def kv_wait(A, abort, blk_sreg):
    lp, ok = A.newlabel('kvw'), A.newlabel('kvok')
    A.s_cmp_lt_u32(s(blk_sreg), s(S_KVR)); A.s_cbranch_scc1(ok)
    A.v_bfe_u32(v(120), v(V_L16H), 4, 4); A.v_lshlrev_b32(v(120), 7, v(120))
    A.s_mov_b32(s(S_T0), WS_CTL + C_CNT + T_KV*2048)
    A.label(lp)
    A.buffer_load_dword(v(121), v(120), s(S_WS, 4), s(S_T0), m='offen sc1')
    A.wait(vm=0)
    A.v_cmp_gt_u32('vcc', KV_TARGET, v(121))
    A.s_or_b32(s(S_KVR), 'vcc_lo', 0x10000); A.s_ff1_i32_b32(s(S_KVR), s(S_KVR))
    A.s_cmp_lt_u32(s(blk_sreg), s(S_KVR)); A.s_cbranch_scc1(ok)
    spin_guard(A, lp, abort)
    A.label(ok)
KV_TARGET = 32

def kv_prefetch(A, par):
    A.s_add_u32('m0', s(S_KXM), par*8192)
    A.buffer_load_dwordx4(v(V_KXD), s(S_WS, 4), s(S_KX0), m='offen sc1 lds')
    A.s_add_u32('m0', s(S_KXM), par*8192 + 1024)
    A.buffer_load_dwordx4(v(V_KXD), s(S_WS, 4), s(S_KX1), m='offen sc1 lds')
    for t in range(2):
        A.buffer_load_dwordx4(v(VT0+8*par+4*t, 4), v(V_VT), s(S_WS, 4), s(S_VTO), m=f'offen offset:{1024*t} sc1')
    A.s_add_u32(s(S_KX0), s(S_KX0), 262144); A.s_add_u32(s(S_KX1), s(S_KX1), 262144); A.s_add_u32(s(S_VTO), s(S_VTO), 262144)

def interleave(main, side, start=2, per=1):
    k = 0
    for i, f in enumerate(main):
        f()
        if i+1 >= start:
            for _ in range(per):
                if k < len(side): side[k](); k += 1
    while k < len(side): side[k](); k += 1

def half_sum_ops(A, a0, a1, tag, store):
    ops = []
    for i in range(4): ops.append(lambda i=i: A.v_permlane32_swap_b32(v(a0+i), v(a1+i)))
    ops.append(lambda: A.v_pk_add_f32(v(a0, 2), v(a0, 2), v(a1, 2)))
    ops.append(lambda: A.v_pk_add_f32(v(a0+2, 2), v(a0+2, 2), v(a1+2, 2)))
    ops.append((lambda: A.v_or_b32(v(a0), 1, v(a0))) if tag else (lambda: A.v_and_b32(v(a0), -2, v(a0))))
    ops.append(store)
    return ops

def tag_check(A, regs, tag, tmp, retry, abort):
    ok = A.newlabel('ok')
    if len(regs) == 1: A.v_and_b32(v(tmp), 1, v(regs[0]))
    else:
        cur = regs[0]; rest = list(regs[1:])
        while rest:
            if not tag and len(rest) >= 2:
                A.v_or3_b32(v(tmp), v(cur), v(rest[0]), v(rest[1])); rest = rest[2:]
            else:
                (A.v_and_b32 if tag else A.v_or_b32)(v(tmp), v(cur), v(rest[0])); rest = rest[1:]
            cur = tmp
        A.v_and_b32(v(tmp), 1, v(tmp))
    A.v_cmp_ne_u32('vcc', tag, v(tmp))
    A.s_cbranch_vccz(ok)
    spin_guard(A, retry, abort)
    A.label(ok)

TIMERS = False
def TM(A, i):
    if TIMERS: A.s_memtime(s(64+2*i, 2))
def TMACC(A):
    if TIMERS:
        A.wait(lgkm=0)
        for i in range(10):
            A.s_sub_u32(s(S_T0), s(66+2*i), s(64+2*i)); A.s_add_u32(s(86+i), s(86+i), s(S_T0))
def hsum(A, a0, a1):
    ops = [lambda i=i: A.v_permlane32_swap_b32(v(a0+i), v(a1+i)) for i in range(4)]
    ops.append(lambda: A.v_pk_add_f32(v(a0, 2), v(a0, 2), v(a1, 2)))
    ops.append(lambda: A.v_pk_add_f32(v(a0+2, 2), v(a0+2, 2), v(a1+2, 2)))
    return ops
def tagrnd(A, dst, src, tag):
    if tag: return [lambda: A.v_and_b32(v(dst), '0xfffe0000', v(src)), lambda: A.v_or_b32(v(dst), '0x10000', v(dst))]
    return [lambda: A.v_add_u32(v(dst), '0x10000', v(src)), lambda: A.v_and_b32(v(dst), '0xfffe0000', v(dst))]
def cvt(A, d, a, b): return lambda: A.v_cvt_pk_bf16_f32(v(d), v(a), v(b))
def run(ops):
    for f in ops: f()

def chain_step(A, u, abort, fb, cold, first_entry=None, last=False, done=None):
    par, xtag, ptag = u % 2, (u // 2) % 2, u % 2
    st = 'offen sc1' if fb else 'offen'
    Q0, Q1, K0, K1, V0, V1 = 96, 100, 104, 108, 112, 116
    PK, T0 = 120, 124
    A.c(f'======== chain step u={u} last={last} ========')
    zero = lambda: [A.v_mov_b64(v(96+2*i, 2), 0) for i in range(12)]
    def memld(j):
        A.buffer_load_dwordx4(v(RA+4*j, 4), v(V_L16H), s(S_WS, 4), s(S_MEMLD+2*par+j//4), m=f'offen offset:{(j%4)*1024} sc1')
    TM(A, 0)
    zero()
    A.wait(vm=0)
    TM(A, 1)
    for j in range(8): memld(j)
    if first_entry:
        j0 = A.newlabel('j0'); A.s_branch(j0)
        A.label(first_entry); zero(); A.wait(vm=0)
        for i in range(32): A.v_min_u32(v(RA+i), -2, v(RA+i))
        A.s_barrier(); TM(A, 0); TM(A, 1); A.label(j0)
    def chk(j):
        A.v_max3_u32(v(T0), v(RA+4*j), v(RA+4*j+1), v(RA+4*j+2)); A.v_max_u32(v(T0), v(T0), v(RA+4*j+3))
        A.v_cmp_eq_u32('vcc', -1, v(T0))
    def br(j):
        slow, cont = A.newlabel('ms'), A.newlabel('mc')
        A.s_cbranch_vccnz(slow); A.label(cont)
        def emit():
            A.label(slow)
            for jj in range(j, 8): memld(jj)
            A.wait(vm=0); chk(j); A.s_cbranch_vccz(cont); spin_guard(A, slow, abort)
        cold.append(emit)
    sm = lambda acc, j, W, tau: A.v_smfmac_f32_16x16x64_bf16(v(acc, 4), v(RA+4*j, 4), r(W+(tau*8+j)*8, 8), v(V_IDX))
    A.wait(vm=7); chk(0); br(0)
    TM(A, 2)
    for j in range(8):
        sm(Q0, j, WQ, 0); sm(Q1, j, WQ, 1); sm(K0, j, WK, 0)
        if j < 7: A.wait(vm=6-j); chk(j+1)
        sm(K1, j, WK, 1)
        if j < 7: br(j+1)
    vmm = [lambda j=j, tau=tau: sm(V1 if tau else V0, j, WV, tau) for j in range(8) for tau in range(2)]
    side = hsum(A, Q0, Q1) + tagrnd(A, PK+4, Q0, xtag) + [cvt(A, PK, PK+4, Q0+1), cvt(A, PK+1, Q0+2, Q0+3)] + hsum(A, K0, K1) \
        + [cvt(A, PK+2, K0, K0+1), cvt(A, PK+3, K0+2, K0+3),
           lambda: A.buffer_store_dwordx4(v(PK, 4), v(V_L16H), s(S_WS, 4), s(S_XQO+2*par), m='offen sc1')]
    interleave(vmm, side, start=1, per=4)
    if not last:
        for t in range(2):
            for jj in range(4):
                A.ds_read_b128(v(RA+16*t+4*jj, 4), v(V_KXR+jj), m=f'offset:{par*8192 + t*1024}')
    PV_ = 124
    run(hsum(A, V0, V1) + tagrnd(A, V1, V0, xtag) + [cvt(A, PV_, V1, V0+1), cvt(A, PV_+1, V0+2, V0+3)])
    A.v_mov_b64(v(PV_+2, 2), v(PV_, 2))
    A.v_permlane32_swap_b32(v(PV_), v(PV_+2)); A.v_permlane32_swap_b32(v(PV_+1), v(PV_+3))
    A.s_mov_b64('exec', s(S_MLO, 2))
    A.buffer_store_dwordx4(v(PV_, 4), v(V_XV), s(S_WS, 4), s(S_XQO+2*par+1), m='offen sc1')
    A.s_mov_b64('exec', -1)
    TM(A, 3)
    PJ = Q1
    if 'noack' not in OPT: A.wait(vm=1)
    lp = A.newlabel('pq'); A.label(lp)
    A.buffer_load_dwordx4(v(PJ, 4), v(V_L16H), s(S_WS, 4), s(S_XQI+2*par), m='offen sc1')
    A.wait(vm=0)
    tag_check(A, [PJ], xtag, 120, lp, abort)
    TM(A, 4)
    def addp(a0, pj, out):
        for i in range(4): A.v_dot2c_f32_bf16(v(a0+i), s(S_SHI if i % 2 else S_SLO), v(pj+i//2))
        A.v_cvt_pk_bf16_f32(v(out), v(a0), v(a0+1)); A.v_cvt_pk_bf16_f32(v(out+1), v(a0+2), v(a0+3))
    KP = 108
    if not last:
        addp(Q0, PJ, Q0); A.ds_write_b64(v(V_QKW), v(Q0, 2))
    addp(K0, PJ+2, KP)
    if not last: A.ds_write_b64(v(V_QKW), v(KP, 2), m='offset:2048')
    vld = lambda: A.buffer_load_dwordx2(v(V1, 2), v(V_XV), s(S_WS, 4), s(S_XQI+2*par+1), m='offen sc1')
    vld()
    npf = 0
    if not last:
        if u == 3:
            A.s_add_u32(s(S_T1), s(S_STEP), 1); A.s_lshr_b32(s(S_T1), s(S_T1), 2)
            kv_wait(A, abort, S_T1)
        kv_prefetch(A, 1-par); npf = 4
    def v_finish():
        A.wait(vm=npf)
        slow, cont = A.newlabel('vs'), A.newlabel('vc')
        A.v_and_b32(v(V1+2), 1, v(V1)); A.v_cmp_ne_u32('vcc', xtag, v(V1+2))
        A.s_cbranch_vccnz(slow); A.label(cont)
        def emit():
            A.label(slow); vld(); A.wait(vm=0)
            A.v_and_b32(v(V1+2), 1, v(V1)); A.v_cmp_ne_u32('vcc', xtag, v(V1+2))
            A.s_cbranch_vccz(cont); spin_guard(A, slow, abort)
        cold.append(emit)
        addp(V0, V1, V0)
    def publish(P):
        ops = [lambda: A.v_cndmask_b32(v(P), v(KP), v(V0), s(S_MX, 2)), lambda: A.v_cndmask_b32(v(P+1), v(KP+1), v(V0+1), s(S_MX, 2)),
               lambda: A.v_mov_b64(v(P+2, 2), v(P, 2)),
               lambda: A.v_permlane16_swap_b32(v(P), v(P+2)), lambda: A.v_permlane16_swap_b32(v(P+1), v(P+3))]
        def stp():
            A.s_mov_b64('exec', s(S_MPUB, 2))
            A.buffer_store_dwordx4(v(P, 4), v(V_QKW), s(S_WS, 4), s(S_PUB), m='offen sc1')
            A.s_mov_b64('exec', -1)
            A.s_add_u32(s(S_PUB), s(S_PUB), 65536)
        return ops + [stp]
    def progress(val, t):
        sk = A.newlabel('np')
        A.s_cmp_lg_u32(s(S_W), 0); A.s_cbranch_scc1(sk)
        A.v_mov_b32(v(t), val); A.v_mov_b32(v(t+1), 0)
        A.s_mov_b64('exec', 1)
        A.buffer_store_dword(v(t), v(t+1), s(S_WS, 4), s(S_PRG), m='offen sc1')
        A.s_mov_b64('exec', -1)
        A.label(sk)
    if last:
        v_finish(); run(publish(120))
        A.wait(vm=0); A.s_barrier()
        progress(64, 120)
        A.s_branch(done)
        return
    A.wait(lgkm=0); A.s_barrier()
    TM(A, 5)
    QF, KF = RB, RB+16
    for jj in range(4):
        for uu in range(2):
            A.ds_read_b64_tr_b16(v(QF+4*jj+2*uu, 2), v(V_QKR), m=f'offset:{(32*jj+4*uu)*16}')
    for jj in range(4):
        for uu in range(2):
            A.ds_read_b64_tr_b16(v(KF+4*jj+2*uu, 2), v(V_QKR), m=f'offset:{2048 + (32*jj+4*uu)*16}')
    SX0, SX1, SM = 96, 100, 104
    for jj in range(4):
        A.wait(lgkm=14-2*jj)
        A.v_mfma_f32_16x16x32_bf16(v(SX0, 4), v(RA+4*jj, 4), v(QF+4*jj, 4), v(SX0, 4) if jj else 0)
        A.v_mfma_f32_16x16x32_bf16(v(SX1, 4), v(RA+16+4*jj, 4), v(QF+4*jj, 4), v(SX1, 4) if jj else 0)
    for jj in range(4):
        A.wait(lgkm=6-2*jj)
        A.v_mfma_f32_16x16x32_bf16(v(SM, 4), v(KF+4*jj, 4), v(QF+4*jj, 4), v(SM, 4) if jj else 0)
    def wo_read(f, slot, uu): A.ds_read_b128(v(RA+8*slot+4*uu, 4), v(V_WO), m=f'offset:{f*2048 + uu*1024}')
    wr = [lambda f=f, uu=uu: wo_read(f, f, uu) for f in range(8) for uu in range(2)]
    M, T, LS = 120, 121, 122
    run(wr[0:3])
    A.v_max3_f32(v(M), v(96), v(97), v(98)); A.v_max3_f32(v(T), v(99), v(100), v(101))
    A.v_max3_f32(v(M), v(M), v(102), v(103))
    run(wr[3:4])
    TM(A, 6)
    A.v_max3_f32(v(T), v(T), v(104), v(105))
    A.v_max3_f32(v(M), v(M), v(106), v(107)); A.v_max_f32(v(M), v(M), v(T))
    A.v_mov_b32(v(T), v(M)); run(wr[4:6]); A.v_permlane16_swap_b32(v(M), v(T)); A.v_max_f32(v(M), v(M), v(T))
    A.v_mov_b32(v(T), v(M)); run(wr[6:8]); A.v_permlane32_swap_b32(v(M), v(T)); A.v_max_f32(v(M), v(M), v(T))
    A.v_mul_f32(v(M), s(S_C), v(M))
    for i in range(6):
        A.v_pk_fma_f32(v(96+2*i, 2), v(96+2*i, 2), s(S_C, 2), v(M, 2), m='op_sel_hi:[1,1,0] neg_lo:[0,0,1] neg_hi:[0,0,1]')
    for i in range(12):
        A.v_exp_f32(v(96+i), v(96+i))
        if i < 8: wr[8+i]()
    PX, PM = 124, 110
    for i in range(4): A.v_cvt_pk_bf16_f32(v(PX+i), v(96+2*i), v(97+2*i))
    vt = VT0 + 8*par
    O0, O1 = 120, 100
    A.v_pk_add_f32(v(96, 2), v(96, 2), v(98, 2)); A.v_pk_add_f32(v(100, 2), v(100, 2), v(102, 2))
    A.v_pk_add_f32(v(96, 2), v(96, 2), v(100, 2))
    A.v_mfma_f32_16x16x32_bf16(v(O0, 4), v(vt, 4), v(PX, 4), 0)
    A.v_mfma_f32_16x16x32_bf16(v(O1, 4), v(vt+4, 4), v(PX, 4), 0)
    for i in range(2): A.v_cvt_pk_bf16_f32(v(PM+i), v(104+2*i), v(105+2*i))
    v_finish()
    VA0, VA1 = 114, 116
    A.v_cndmask_b32(v(VA0), 0, v(V0), s(S_MLO, 2)); A.v_cndmask_b32(v(VA0+1), 0, v(V0+1), s(S_MLO, 2))
    A.v_cndmask_b32(v(VA1), v(V0), 0, s(S_MLO, 2)); A.v_cndmask_b32(v(VA1+1), v(V0+1), 0, s(S_MLO, 2))
    A.v_pk_add_f32(v(104, 2), v(104, 2), v(106, 2))
    A.v_mfma_f32_16x16x16_bf16(v(O0, 4), v(VA0, 2), v(PM, 2), v(O0, 4))
    A.v_mfma_f32_16x16x16_bf16(v(O1, 4), v(VA1, 2), v(PM, 2), v(O1, 4))
    LS, T = 98, 99
    A.v_pk_fma_f32(v(96, 2), v(104, 2), 0.5, v(96, 2), m='op_sel_hi:[1,0,1]')
    A.v_add_f32(v(LS), v(96), v(97))
    pub = publish(104)
    A.v_mov_b32(v(T), v(LS)); run(pub[0:2]); A.v_permlane16_swap_b32(v(LS), v(T)); A.v_add_f32(v(LS), v(LS), v(T))
    A.v_mov_b32(v(T), v(LS)); run(pub[2:4]); A.v_permlane32_swap_b32(v(LS), v(T)); A.v_add_f32(v(LS), v(LS), v(T))
    A.v_rcp_f32(v(LS), v(LS))
    run(pub[4:5])
    for o in (O0, O0+2, O1, O1+2):
        A.v_pk_mul_f32(v(o, 2), v(o, 2), v(LS, 2), m='op_sel_hi:[1,0]')
    OP = 124
    A.v_cvt_pk_bf16_f32(v(OP), v(O0), v(O0+1)); A.v_cvt_pk_bf16_f32(v(OP+1), v(O0+2), v(O0+3))
    A.v_cvt_pk_bf16_f32(v(OP+2), v(O1), v(O1+1)); A.v_cvt_pk_bf16_f32(v(OP+3), v(O1+2), v(O1+3))
    A.s_mov_b64('exec', s(S_MN8, 2))
    A.ds_write_b128(v(V_OBW), v(OP, 4))
    A.s_mov_b64('exec', -1)
    if 'nopub' not in OPT:
        run(pub[5:])
        if u == 0: progress(s(S_STEP), 108)
    for i in range(16): A.v_mov_b64(v(96+2*((i+6) % 16), 2), 0)
    A.wait(lgkm=0); A.s_barrier()
    TM(A, 7)
    OF = vt
    for j in range(2): A.ds_read_b128(v(OF+4*j, 4), v(V_L16H), m=f'offset:{L_OB - L_MEMB + j*1024}')
    def wmm(f):
        T_, j = f // 2, f % 2
        A.v_smfmac_f32_16x16x64_bf16(v(96+4*T_, 4), v(OF+4*j, 4), v(RA+8*(f % 8), 8), v(V_IDX))
    def post(aa):
        a0, a1 = 96+8*aa, 100+8*aa
        b = 100 + 16*(aa//2) + 2*(aa % 2)
        return hsum(A, a0, a1) + tagrnd(A, a0, a0, ptag) + [cvt(A, b, a0, a0+1), cvt(A, b+1, a0+2, a0+3)]
    def fin(k):
        b = 100 + 16*k
        return [lambda: A.v_permlane16_swap_b32(v(b), v(b+2)), lambda: A.v_permlane16_swap_b32(v(b+1), v(b+3)),
                lambda: A.buffer_store_dwordx4(v(b, 4), v(V_PST), s(S_WS, 4), s(S_PST+k), m=st)]
    order = [0, 2, 1, 3, 4, 6, 5, 7]
    for n, f in enumerate(order):
        if n == 0: A.wait(lgkm=1)
        if n == 2: A.wait(lgkm=4)
        wmm(f); wo_read(f+8, f, 0); wo_read(f+8, f, 1)
    side = post(0) + post(1) + fin(0)
    k = 0
    for n, f in enumerate(order):
        A.wait(lgkm=14-2*n)
        wmm(f+8)
        for _ in range(3):
            if k < len(side): side[k](); k += 1
    run(side[k:])
    p2, p3 = post(2), post(3)
    run(p2 + p3 + fin(1))
    TM(A, 8)
    SEL = RB
    A.v_and_b32(v(SEL+4), 16, v(V_L16H)); A.v_lshlrev_b32(v(SEL+4), v(SEL+4), s(S_SLO))
    for i in range(4):
        A.s_mov_b32('vcc_lo', hex(0x00030003 << (4*i))); A.s_mov_b32('vcc_hi', hex(0x00030003 << (4*i)))
        A.v_cndmask_b32(v(SEL+i), 0, v(SEL+4), 'vcc')
    A.v_mov_b32(v(SEL+4), -1)
    if 'noack' not in OPT: A.wait(vm=0)
    lp = A.newlabel('pb'); A.label(lp)
    for q in range(2):
        A.buffer_load_dwordx4(v(RA+4*q, 4), v(V_PLD), s(S_WS, 4), s(S_PLD+q), m='offen sc1')
    A.wait(vm=0)
    tag_check(A, [RA, RA+4], ptag, 120, lp, abort)
    TM(A, 9)
    X = RA+8
    A.v_mfma_f32_16x16x32_bf16(v(X, 4), v(SEL, 4), v(RA, 4), 0)
    A.v_mfma_f32_16x16x32_bf16(v(X, 4), v(SEL, 4), v(RA+4, 4), v(X, 4))
    A.v_cndmask_b32(v(X+4), v(X+1), v(X), s(S_MN8, 2)); A.v_cndmask_b32(v(X+5), v(X), v(X+1), s(S_MN8, 2))
    A.v_add_f32_dpp(v(X+4), v(X+5), v(X+4), m='row_ror:8 row_mask:0xf bank_mask:0xf')
    A.v_add_f32_dpp(v(X+4), v(X+4), v(X+4), m='row_shl:4 row_mask:0xf bank_mask:0xf')
    A.v_mov_b32_dpp(v(X+5), v(X+4), m='quad_perm:[1,1,3,3] row_mask:0xf bank_mask:0xf')
    A.v_cvt_pk_bf16_f32(v(X+6), v(X+4), v(X+5))
    A.v_min_u32(v(X+6), -2, v(X+6))
    A.s_mov_b64('exec', s(S_MST, 2))
    A.buffer_store_dword(v(X+6), v(V_MST), s(S_WS, 4), s(S_MEMST+1-par), m=st)
    A.buffer_store_dword(v(SEL+4), v(V_MST), s(S_WS, 4), s(S_MEMST+par), m=st)
    A.s_mov_b64('exec', -1)
    TM(A, 10); TMACC(A)
    A.s_add_u32(s(S_STEP), s(S_STEP), 1)

def chain_loop(A, abort, done, fb):
    top, ent, lastl = A.newlabel('ctop'), A.newlabel('cent'), A.newlabel('clast')
    cold = []
    A.s_mov_b32(s(S_STEP), 0); A.s_mov_b32(s(S_KVR), 0)
    if TIMERS:
        for i in range(10): A.s_mov_b32(s(86+i), 0)
    A.s_mov_b32(s(S_KX0), WS_KX); A.s_mov_b32(s(S_KX1), WS_KX + 32768); A.s_mov_b32(s(S_VTO), WS_VT)
    kv_wait(A, abort, S_STEP)
    kv_prefetch(A, 0)
    A.s_branch(ent)
    A.label(top)
    chain_step(A, 0, abort, fb, cold, first_entry=ent)
    chain_step(A, 1, abort, fb, cold)
    chain_step(A, 2, abort, fb, cold)
    A.s_cmp_eq_u32(s(S_STEP), 63); A.s_cbranch_scc1(lastl)
    chain_step(A, 3, abort, fb, cold)
    A.s_branch(top)
    A.label(lastl)
    chain_step(A, 3, abort, fb, cold, last=True, done=done)
    for e in cold: e()
```

```python
from asmlib import *
from layout import *
from chain import S_WS, S_DBG, S_TMP, S_X, S_H, S_W, S_TO, ptr, srd, spin_guard

S_XCC, S_INIT, S_TASK = 2, 3, 46
SRD_A, SRD_B0, SRD_B1, SRD_C = 24, 28, 32, 36
G_SA, G_SB0, G_SB1, G_BSTEP, G_N, G_M0, G_DELTA, G_BUF, G_REM = 40, 41, 42, 43, 44, 45, 47, 48, 49
G_SC, G_MB, G_NT, G_EPI, G_CNT = 50, 51, 52, 53, 54
G_T0, G_T1, G_T2, G_T3 = 56, 57, 58, 59
G_STA, G_STB = 60, 61
V_LANE, V_C, V_T = 16, 17, 18
FSET = [32, 56]
V_DA, V_DB, V_RA, V_RB = 80, 84, 88, 92
ACC = 128
STG = 49152
def acc(mt, nf): return ACC + (mt*2 + nf)*16

def lane_id(A, d):
    A.v_mbcnt_lo_u32_b32(v(d), -1, 0); A.v_mbcnt_hi_u32_b32(v(d), -1, v(d))

def gemm_consts(A):
    L, T0, T1, T2, T3 = V_LANE, V_T, V_T+1, V_T+2, V_T+3
    lane_id(A, L)
    A.v_lshrrev_b32(v(T0), 3, v(L)); A.s_lshl_b32(s(G_T0), s(S_W), 5); A.v_add_u32(v(T0), s(G_T0), v(T0))
    A.v_mul_u32_u24(v(T0), s(G_STA), v(T0))
    A.v_lshrrev_b32(v(T1), 4, v(L))
    A.v_and_b32(v(T2), 7, v(L)); A.v_xor_b32(v(T2), v(T2), v(T1))
    A.s_lshl_b32(s(G_T1), s(G_STA), 3); A.s_sub_u32(s(G_T1), s(G_T1), 1024)
    A.v_lshl_add_u32(v(V_DA), v(T2), 4, v(T0))
    A.v_xor_b32(v(T2), 4, v(T2)); A.v_lshl_add_u32(v(V_DA+1), v(T2), 4, v(T0)); A.v_add_u32(v(V_DA+1), s(G_T1), v(V_DA+1))
    A.s_lshl_b32(s(G_T1), s(G_T1), 1)
    A.v_add_u32(v(V_DA+2), s(G_T1), v(V_DA)); A.v_add_u32(v(V_DA+3), s(G_T1), v(V_DA+1))
    A.s_lshl_b32(s(G_T0), s(S_W), 4); A.v_add_u32(v(T0), s(G_T0), v(T1)); A.v_mul_u32_u24(v(T0), s(G_STB), v(T0))
    A.v_and_b32(v(T2), 15, v(L)); A.v_lshlrev_b32(v(T3), 2, v(T1)); A.v_xor_b32(v(T2), v(T2), v(T3))
    A.v_lshl_add_u32(v(V_DB), v(T2), 4, v(T0))
    A.s_lshl_b32(s(G_T1), s(G_STB), 2); A.s_sub_u32(s(G_T1), s(G_T1), 1024)
    for j in range(1, 4): A.v_add_u32(v(V_DB+j), s(G_T1), v(V_DB+j-1))
    A.v_and_b32(v(T0), 31, v(L)); A.v_bfe_u32(v(T2), v(L), 1, 3); A.v_lshrrev_b32(v(T3), 5, v(L)); A.v_xor_b32(v(T2), v(T2), v(T3))
    A.v_lshlrev_b32(v(T0), 7, v(T0)); A.v_lshl_add_u32(v(V_RA), v(T2), 4, v(T0))
    for kk in range(1, 4): A.v_xor_b32(v(V_RA+kk), 32*kk, v(V_RA))
    A.v_bfe_u32(v(T0), v(L), 2, 2)
    A.v_lshl_add_u32(v(T2), v(T3), 3, v(T0)); A.v_lshlrev_b32(v(T2), 8, v(T2))
    A.v_xor_b32(v(T0), s(S_W), v(T0)); A.v_lshl_add_u32(v(T2), v(T0), 6, v(T2))
    A.v_and_b32(v(T0), 1, v(T1)); A.v_lshl_add_u32(v(T2), v(T0), 5, v(T2))
    A.v_and_b32(v(T0), 3, v(L)); A.v_lshl_add_u32(v(T2), v(T0), 3, v(T2))
    A.v_add_u32(v(V_RB), 16384, v(T2))

def store_lane(A, stride_shift=None, stride=None):
    L, T0, T1 = V_LANE, V_T, V_T+1
    A.v_bfe_u32(v(T0), v(L), 4, 1); A.v_lshlrev_b32(v(T0), 5, v(T0)); A.v_lshrrev_b32(v(T1), 5, v(L)); A.v_lshl_add_u32(v(T0), v(T1), 4, v(T0))
    A.v_and_b32(v(T1), 15, v(L))
    if stride_shift is not None: A.v_lshl_add_u32(v(V_C), v(T1), stride_shift, v(T0))
    else: A.v_mul_u32_u24(v(T1), stride, v(T1)); A.v_add_u32(v(V_C), v(T0), v(T1))

class LQ:
    def __init__(self, A, init=()): self.A, self.q = A, list(init)
    def issue(self, tag): self.q.append(tag)
    def need(self, tags):
        idx = max([i for i, t in enumerate(self.q) if t in tags], default=-1)
        if idx >= 0:
            self.A.wait(lgkm=len(self.q) - 1 - idx); del self.q[:idx+1]

RORD = ['A0', 'B0a', 'B0b', 'A1', 'B1a', 'B1b', 'A2', 'A3']
MORD = [(0, 0), (1, 0), (0, 1), (1, 1), (2, 0), (2, 1), (3, 0), (3, 1)]
def frag_read(A, st, kk, name):
    f = FSET[st]
    if name[0] == 'A':
        mt = int(name[1]); A.ds_read_b128(v(f+4*mt, 4), v(V_RA+kk), m=f'offset:{mt*4096}')
    else:
        nf, u = int(name[1]), 'ab'.index(name[2])
        A.ds_read_b64_tr_b16(v(f+16+4*nf+2*u, 2), v(V_RB), m=f'offset:{nf*16384 + kk*4096 + u*1024}')

def dma(A, i, asc):
    g, j = i // 4, i % 4
    if j == 0: A.s_add_u32('m0', s(G_M0), g*16384)
    if g == 0: A.buffer_load_dwordx4(v(V_DA+j), s(SRD_A, 4), s(G_SA), m=f'offen offset:{1024*j} {asc} lds')
    else: A.buffer_load_dwordx4(v(V_DB+j), s(SRD_B0 if g == 1 else SRD_B1, 4), s(G_SB0 if g == 1 else G_SB1), m=f'offen offset:{1024*j} lds')
def dma_advance(A):
    A.s_add_u32(s(G_SA), s(G_SA), 128); A.s_add_u32(s(G_SB0), s(G_SB0), s(G_BSTEP)); A.s_add_u32(s(G_SB1), s(G_SB1), s(G_BSTEP))
    A.s_add_u32(s(G_M0), s(G_M0), STG); A.s_cmp_ge_u32(s(G_M0), 3*STG); A.s_cselect_b32(s(G_T0), 3*STG, 0); A.s_sub_u32(s(G_M0), s(G_M0), s(G_T0))
    A.s_sub_u32(s(G_REM), s(G_REM), 1); A.s_cmp_gt_i32(s(G_REM), 0)
    for r_ in (SRD_A, SRD_B0, SRD_B1): A.s_cselect_b32(s(r_+2), s(r_+2), 0)

def gemm_main(A, swap):
    asc = 'sc1'
    A.s_lshl_b32(s(G_M0), s(S_W), 12); A.s_mov_b32(s(G_REM), s(G_N)); A.s_mov_b32(s(G_BUF), 0)
    for st in range(2):
        for i in range(12): dma(A, i, asc)
        dma_advance(A)
    for i in range(3): dma(A, i, asc)
    for i in range(64): A.v_mov_b64(v(ACC+2*i, 2), 0)
    A.wait(vm=15); A.s_barrier()
    for n in RORD: frag_read(A, 0, 0, n)
    top = A.newlabel('gl'); A.label(top)
    q = LQ(A, [(0, n) for n in RORD])
    for kk in range(4):
        st = kk % 2
        f = FSET[st]
        nxt = [(1-st, (kk+1) % 4, n) for n in RORD]
        def rd(lst):
            for (s_, k_, n) in lst: frag_read(A, s_, k_, n); q.issue((s_, n))
        for i, (mt, nf) in enumerate(MORD):
            q.need([(st, f'A{mt}'), (st, f'B{nf}a'), (st, f'B{nf}b')])
            fa, fb = v(f+4*mt, 4), v(f+16+4*nf, 4)
            c = v(acc(mt, nf), 16)
            if swap: A.v_mfma_f32_32x32x16_bf16(c, fa, fb, c)
            else: A.v_mfma_f32_32x32x16_bf16(c, fb, fa, c)
            if kk < 3:
                if i == 0: rd(nxt[0:3])
                if i == 1: rd(nxt[3:6])
                if i == 2: rd(nxt[6:8])
                if i in (3, 5, 7): dma(A, 3 + 3*kk + (i-3)//2, asc)
                if kk == 2 and i == 7: pass
            else:
                if i == 0:
                    dma_advance(A)
                    A.s_add_u32(s(G_BUF), s(G_BUF), 1); A.s_cmp_eq_u32(s(G_BUF), 3)
                    A.s_mov_b32(s(G_DELTA), STG); A.s_cmov_b32(s(G_DELTA), -2*STG); A.s_cmov_b32(s(G_BUF), 0)
                if i == 1:
                    q.need([(st, n) for n in RORD])
                    A.wait(vm=12); A.s_barrier()
                    for r_ in (V_RA, V_RB): A.v_add_u32(v(r_), s(G_DELTA), v(r_))
                if i == 2: rd(nxt[0:3])
                if i == 3: rd(nxt[3:6])
                if i == 4:
                    rd(nxt[6:8])
                    for r_ in (V_RA+1, V_RA+2, V_RA+3): A.v_add_u32(v(r_), s(G_DELTA), v(r_))
                if i in (5, 6, 7): dma(A, i-5, asc)
    assert q.q == [(0, n) for n in RORD], q.q
    A.s_sub_u32(s(G_N), s(G_N), 1); A.s_cmp_lg_u32(s(G_N), 0); A.s_cbranch_scc1(top)
    A.wait(lgkm=0)

def pack_ops(A, T):
    return [lambda i=i: A.v_cvt_pk_bf16_f32(v(T+i), v(T+2*i), v(T+2*i+1)) for i in range(8)]
def shuf32(A, T):
    return [lambda a_=a_: A.v_permlane32_swap_b32(v(T+a_), v(T+a_+2)) for a_ in (0, 1, 4, 5)]
def shuf16(A, T):
    return [lambda i=i: A.v_permlane16_swap_b32(v(T+i), v(T+4+i)) for i in range(4)]
def tile_stores(A, T, off, yoff, srd_, mods):
    def f():
        A.s_add_u32(s(G_T0), s(G_SC), hex(off)); A.s_add_u32(s(G_T1), s(G_SC), hex(off + yoff))
        A.buffer_store_dwordx4(v(T, 4), v(V_C), s(srd_, 4), s(G_T0), m='offen ' + mods)
        A.buffer_store_dwordx4(v(T+4, 4), v(V_C), s(srd_, 4), s(G_T1), m='offen ' + mods)
    return [f]
def epi_tiles(A, tiles, yoff, srd_, mods, pre=None):
    n = len(tiles)
    for k in range(n+2):
        ops = []
        if k < n: ops += (pre(k) if pre else []) + pack_ops(A, tiles[k][0])
        if 0 <= k-2 < n: ops += shuf16(A, tiles[k-2][0])
        if 0 <= k-1 < n: ops += shuf32(A, tiles[k-1][0])
        if 0 <= k-2 < n: ops += tile_stores(A, tiles[k-2][0], tiles[k-2][1], yoff, srd_, mods)
        for f in ops: f()

ALLT = [(mt, nf) for mt in range(4) for nf in range(2)]
def epi_rm(A):
    store_lane(A, stride_shift=13)
    epi_tiles(A, [(acc(mt, nf), mt*32*8192 + nf*256) for mt, nf in ALLT], 16*8192, S_WS, 'sc1')
def epi_vt(A):
    store_lane(A, stride_shift=6)
    epi_tiles(A, [(acc(mt, nf), mt*262144 + nf*8192) for mt, nf in ALLT], 1024, S_WS, 'sc1')
def epi_gu(A):
    A.s_mov_b32(s(G_T2), 7168); store_lane(A, stride=s(G_T2))
    A.s_mov_b32(s(G_T2), '0xbfb8aa3b'); A.s_mov_b32(s(G_T3), '0xbfb8aa3b')
    E = 32
    def pre(k):
        g, u = acc(k, 0), acc(k, 1)
        ops = [lambda i=i: A.v_pk_mul_f32(v(E+2*i, 2), v(g+2*i, 2), s(G_T2, 2)) for i in range(8)]
        ops += [lambda i=i: A.v_exp_f32(v(E+i), v(E+i)) for i in range(16)]
        ops += [lambda i=i: A.v_pk_mul_f32(v(g+2*i, 2), v(g+2*i, 2), v(u+2*i, 2)) for i in range(8)]
        ops += [lambda i=i: A.v_pk_add_f32(v(E+2*i, 2), v(E+2*i, 2), 1.0, m='op_sel_hi:[1,0]') for i in range(8)]
        ops += [lambda i=i: A.v_rcp_f32(v(E+i), v(E+i)) for i in range(16)]
        ops += [lambda i=i: A.v_pk_mul_f32(v(g+2*i, 2), v(g+2*i, 2), v(E+2*i, 2)) for i in range(8)]
        return ops
    epi_tiles(A, [(acc(mt, 0), mt*32*7168) for mt in range(4)], 16*7168, S_WS, 'sc1', pre)
def epi_dn(A):
    A.v_lshlrev_b32(v(V_C), 4, v(V_LANE))
    for k, (mt, nf) in enumerate(ALLT):
        T = acc(mt, nf)
        for f in pack_ops(A, T): f()
        if k % 2 == 0: A.s_add_u32(s(G_T0), s(G_SC), k*2048)
        for hh in range(2):
            A.buffer_store_dwordx4(v(T+4*hh, 4), v(V_C), s(S_WS, 4), s(G_T0), m=f'offen offset:{(k % 2)*2048 + hh*1024} sc1')
def epi_op_loads(A):
    A.v_lshlrev_b32(v(V_T), 4, v(V_LANE)); A.v_and_b32(v(V_T+1), 31, v(V_LANE)); A.v_lshlrev_b32(v(V_T+1), 2, v(V_T+1))
    for mt in range(4): A.buffer_load_dword(v(24+mt), v(V_T+1), s(S_WS, 4), s(G_T3), m=f'offen offset:{mt*128} sc1')
    for k in range(8):
        if k % 2 == 0 and k: A.s_add_u32(s(G_T2), s(G_T2), 4096)
        for hh in range(2):
            A.buffer_load_dwordx4(v(32+8*k+4*hh, 4), v(V_T), s(S_WS, 4), s(G_T2), m=f'offen offset:{(k % 2)*2048 + hh*1024} sc1')
def epi_op(A):
    store_lane(A, stride_shift=11)
    E = 96
    A.wait(vm=0)
    def pre(k):
        mt, T, B = k // 2, ACC + 16*k, 32 + 8*k
        ops = []
        for i in range(8):
            ops.append(lambda i=i: A.v_lshlrev_b32(v(E+2*i), 16, v(B+i)))
            ops.append(lambda i=i: A.v_and_b32(v(E+2*i+1), '0xffff0000', v(B+i)))
        ops += [lambda i=i: A.v_pk_add_f32(v(T+2*i, 2), v(T+2*i, 2), v(E+2*i, 2), m='neg_lo:[0,1] neg_hi:[0,1]') for i in range(8)]
        sel = 'op_sel:[0,1,0] op_sel_hi:[1,1,1]' if mt % 2 else 'op_sel_hi:[1,0,1]'
        ops += [lambda i=i: A.v_pk_fma_f32(v(T+2*i, 2), v(T+2*i, 2), v(24 + (mt & 2), 2), v(E+2*i, 2), m=sel) for i in range(8)]
        return ops
    epi_tiles(A, [(acc(mt, nf), mt*32*2048 + nf*256) for mt, nf in ALLT], 16*2048, SRD_C, '', pre)
```

```python
WS_KX   = 0x0000000
WS_VT   = 0x1000000
WS_QX   = 0x2000000
WS_H    = 0x3000000
WS_O    = 0x4000000
WS_B    = 0x5000000
WS_G    = 0x5800000
WS_KM   = 0x6000000
WS_VM   = 0x6400000
WS_XQ   = 0x7000000
WS_PART = 0x7400000
WS_MEM  = 0x7500000
FB_XQ, FB_PART, FB_MEM = 0x200000, 0x80000, 0x8000
WS_CTL  = 0x7600000
C_CNT   = 0x0000
C_TAB   = 0x3000
C_PROG  = 0x4000
CTL_BYTES = 0x6000
T_KV, T_Q, T_GU, T_DN, T_AT = range(5)
WS_TIM  = 0x7800000
WS_SIZE = 0x10000000
D_CNT0, D_CNT1, D_READY, D_READY2, D_GHEAD, D_INIT, D_FBT, D_ABORT = range(8)
D_LH   = 8
D_SLOT0 = 16
L_WO   = 0
L_MEMB = 131072
L_KXB  = 139264
L_QB   = 155648
L_KB   = 157696
L_OB   = 159744
L_MISC = 161792
LDS_BYTES = 163840
P_X, P_MEM0, P_WQ, P_WK, P_WV, P_WO, P_SEG, P_BX, P_WG, P_WU, P_WD, P_GW, P_OUT, P_DBG, P_WS = range(15)
KNAME = 'gated_mix__memory_aug_recurrent_mem_tr__swiglu_ffn__prompt'
```

```python
from gemm import *
import struct
def f2u(x): return struct.unpack('<I', struct.pack('<f', x))[0]

def poll_sleep(A): A.s_sleep(4)

def task_g(A):
    L, T0, T1, AC = V_LANE, V_T, V_T+1, 24
    lane_id(A, L)
    srd(A, SRD_A, P_X, 2048*2048); srd(A, SRD_B0, P_GW, 2048)
    A.v_and_b32(v(T0), 31, v(L)); A.v_lshrrev_b32(v(T1), 5, v(L)); A.v_lshlrev_b32(v(T1), 10, v(T1))
    A.v_lshl_add_u32(v(T0), v(T0), 11, v(T1))
    A.s_lshl_b32(s(G_T0), s(G_MB), 2); A.s_add_u32(s(G_T0), s(G_T0), s(S_W)); A.s_lshl_b32(s(G_T1), s(G_T0), 16)
    for i in range(4): A.v_mov_b32(v(AC+i), 0)
    for blk in range(4):
        for c in range(16):
            A.buffer_load_dwordx4(v(32+4*c, 4), v(T0), s(SRD_A, 4), s(G_T1), m=f'offen offset:{blk*256 + c*16}')
            A.buffer_load_dwordx4(v(128+4*c, 4), v(T1), s(SRD_B0, 4), 0, m=f'offen offset:{blk*256 + c*16}')
        for c in range(16):
            A.wait(vm=30-2*c)
            for i in range(4): A.v_dot2c_f32_bf16(v(AC+i), v(32+4*c+i), v(128+4*c+i))
    A.v_add_f32(v(AC), v(AC), v(AC+1)); A.v_add_f32(v(AC+2), v(AC+2), v(AC+3)); A.v_add_f32(v(AC), v(AC), v(AC+2))
    A.v_mov_b32(v(AC+1), v(AC)); A.v_permlane32_swap_b32(v(AC), v(AC+1)); A.v_add_f32(v(AC), v(AC), v(AC+1))
    A.v_mul_f32(v(AC), '0xbfb8aa3b', v(AC)); A.v_exp_f32(v(AC), v(AC)); A.v_add_f32(v(AC), 1.0, v(AC)); A.v_rcp_f32(v(AC), v(AC))
    A.v_lshlrev_b32(v(T0), 2, v(L))
    A.s_lshl_b32(s(G_T0), s(G_T0), 7); A.s_add_u32(s(G_T0), s(G_T0), WS_G)
    A.s_mov_b64('exec', '0xffffffff')
    A.buffer_store_dword(v(AC), v(T0), s(S_WS, 4), s(G_T0), m='offen sc1')
    A.s_mov_b64('exec', -1)

AT_LDS = 0
def task_at_pre(A):
    L, T0, T1, T2 = V_LANE, V_T, V_T+1, V_T+2
    VQ, VK, VV, VM, VTR, VZ, VKM = 21, 22, 23, 24, 25, 26, 27
    lane_id(A, L)
    A.v_and_b32(v(T0), 31, v(L)); A.v_lshrrev_b32(v(T1), 5, v(L))
    A.v_lshlrev_b32(v(T2), 4, v(T1))
    A.v_lshl_add_u32(v(VQ), v(T0), 13, v(T2))
    A.v_lshl_add_u32(v(VV), v(T0), 6, v(T2))
    A.v_lshlrev_b32(v(VM), 4, v(T0)); A.v_lshl_add_u32(v(VM), v(T1), 3, v(VM))
    A.v_lshlrev_b32(v(VZ), 3, v(T1)); A.v_sub_u32(v(VZ), v(T0), v(VZ))
    A.v_and_b32(v(VK), 19, v(T0)); A.v_bfe_u32(v(VTR), v(T0), 3, 1); A.v_lshl_add_u32(v(VK), v(VTR), 2, v(VK))
    A.v_bfe_u32(v(VTR), v(T0), 2, 1); A.v_lshl_add_u32(v(VK), v(VTR), 3, v(VK))
    A.v_lshl_add_u32(v(VK), v(VK), 13, v(T2))
    A.v_bfe_u32(v(VTR), v(L), 2, 2); A.v_lshl_add_u32(v(VTR), v(T1), 3, v(VTR)); A.v_lshlrev_b32(v(VTR), 4, v(VTR))
    A.v_and_b32(v(T2), 1, v(L)); A.v_lshl_add_u32(v(VTR), v(T2), 3, v(VTR))
    A.s_lshl_b32(s(G_M0), s(S_W), 12); A.v_add_u32(v(VTR), s(G_M0), v(VTR))
    A.v_lshlrev_b32(v(VKM), 4, v(L))
    A.s_lshl_b32(s(G_T0), s(G_MB), 2); A.s_add_u32(s(G_T0), s(G_T0), s(S_W))
    A.s_lshl_b32(s(G_SC), s(G_T0), 18); A.s_lshl_b32(s(G_T1), s(G_NT), 9); A.s_add_u32(s(G_SC), s(G_SC), s(G_T1))
    A.s_add_u32(s(G_SA), s(G_SC), WS_QX); A.s_add_u32(s(G_SB0), s(G_SC), WS_KX); A.s_add_u32(s(G_SC), s(G_SC), WS_O)
    A.s_lshl_b32(s(G_SB1), s(G_T0), 18); A.s_lshl_b32(s(G_T1), s(G_NT), 14); A.s_add_u32(s(G_SB1), s(G_SB1), s(G_T1)); A.s_add_u32(s(G_SB1), s(G_SB1), WS_VT)
    A.s_lshl_b32(s(G_BSTEP), s(G_T0), 16); A.s_lshl_b32(s(G_T1), s(G_NT), 12); A.s_add_u32(s(G_BSTEP), s(G_BSTEP), s(G_T1)); A.s_add_u32(s(G_BSTEP), s(G_BSTEP), WS_KM)
    for hd in range(2):
        b = 96*hd
        for j in range(8):
            A.buffer_load_dwordx4(a(b+32+4*j, 4), v(VK), s(S_WS, 4), s(G_SB0), m=f'offen offset:{hd*256 + j*32} sc1')
            A.buffer_load_dwordx4(a(b+4*j, 4), v(VQ), s(S_WS, 4), s(G_SA), m=f'offen offset:{hd*256 + j*32} sc1')
    for hd in range(2):
        b = 96*hd + 64
        for et in range(4):
            if et % 2 == 0: A.s_add_u32(s(G_T0), s(G_SB1), hd*8192 + et*2048)
            for t in range(2):
                A.buffer_load_dwordx4(a(b+8*et+4*t, 4), v(VV), s(S_WS, 4), s(G_T0), m=f'offen offset:{(et % 2)*2048 + t*32} sc1')
    A.v_mov_b32(v(T0), hex(f2u(-1e9 * 128 ** 0.5)))
    for hd in range(2):
        b, S = 96*hd, 32 + 16*hd
        for j in range(8):
            A.wait(vm=46 - 16*hd - 2*j)
            A.v_mfma_f32_32x32x16_bf16(v(S, 16), a(b+32+4*j, 4), a(b+4*j, 4), v(S, 16) if j else 0)
    for hd in range(2):
        S = 32 + 16*hd
        for i in range(16):
            g = i // 4
            kap = 16*(g//2) + 4*(g % 2) + i % 4
            A.v_cmp_le_i32('vcc', kap, v(VZ)); A.v_cndmask_b32(v(S+i), v(T0), v(S+i), 'vcc')

def task_at_post(A):
    L, T0, T1, T2 = V_LANE, V_T, V_T+1, V_T+2
    VM, VTR, VKM = 24, 25, 27
    for hd in range(2):
        A.s_add_u32('m0', s(G_M0), hd*2048); A.s_add_u32(s(G_T0), s(G_BSTEP), hd*2048)
        for u in range(2):
            A.buffer_load_dwordx4(v(VKM), s(S_WS, 4), s(G_T0), m=f'offen offset:{u*1024} sc1 lds')
    A.s_add_u32(s(G_T0), s(G_BSTEP), WS_VM - WS_KM)
    VMF = 96
    for hd in range(2):
        for et in range(4):
            A.buffer_load_dwordx2(v(VMF+8*hd+2*et, 2), v(VM), s(S_WS, 4), s(G_T0), m=f'offen offset:{hd*2048 + et*512} sc1')
    store_lane(A, stride_shift=13)
    c = hex(f2u(128 ** -0.5 * 1.4426950408889634))
    A.s_mov_b32(s(G_T2), c); A.s_mov_b32(s(G_T3), c)
    KF = 128
    for hd in range(2):
        A.wait(vm=10 - 2*hd)
        for j in range(8):
            for u in range(2):
                if hd and j == 7 and u == 1: pass
                A.ds_read_b64_tr_b16(v(KF+32*hd+4*j+2*u, 2), v(VTR), m=f'offset:{hd*2048 + j*256 + u*64}')
            if j % 4 == 3: A.wait(lgkm=0)
    for hd in range(2):
        SM = 64 + 16*hd
        for j in range(8):
            A.v_mfma_f32_32x32x16_bf16(v(SM, 16), v(KF+32*hd+4*j, 4), a(96*hd+4*j, 4), v(SM, 16) if j else 0)
    A.wait(vm=0)
    for hd in range(2):
        S, SM = 32 + 16*hd, 64 + 16*hd
        M, T = 112, 113
        A.v_max3_f32(v(M), v(S), v(S+1), v(S+2))
        for i in range(3, 15, 2): A.v_max3_f32(v(M), v(M), v(S+i), v(S+i+1))
        A.v_max3_f32(v(M), v(M), v(S+15), v(SM)); A.v_max3_f32(v(M), v(M), v(SM+1), v(SM+2)); A.v_max_f32(v(M), v(M), v(SM+3))
        A.v_mov_b32(v(T), v(M)); A.v_permlane32_swap_b32(v(M), v(T)); A.v_max_f32(v(M), v(M), v(T))
        A.v_mul_f32(v(M), s(G_T2), v(M))
        regs = [S+2*i for i in range(8)] + [SM, SM+2]
        for r_ in regs: A.v_pk_fma_f32(v(r_, 2), v(r_, 2), s(G_T2, 2), v(M, 2), m='op_sel_hi:[1,1,0] neg_lo:[0,0,1] neg_hi:[0,0,1]')
        for r_ in regs: A.v_exp_f32(v(r_), v(r_)); A.v_exp_f32(v(r_+1), v(r_+1))
        P = 116
        for k, r_ in enumerate(regs): A.v_cvt_pk_bf16_f32(v(P+k), v(r_), v(r_+1))
        O = 128 + 64*hd
        for et in range(4):
            va = 96*hd + 64 + 8*et
            A.v_mfma_f32_32x32x16_bf16(v(O+16*et, 16), a(va, 4), v(P, 4), 0)
            A.v_mfma_f32_32x32x16_bf16(v(O+16*et, 16), a(va+4, 4), v(P+4, 4), v(O+16*et, 16))
            A.v_mfma_f32_32x32x8_bf16(v(O+16*et, 16), v(VMF+8*hd+2*et, 2), v(P+8, 2), v(O+16*et, 16))
        for r_ in regs[1:]: A.v_pk_add_f32(v(S, 2), v(S, 2), v(r_, 2))
        LS = 114 + hd
        A.v_add_f32(v(LS), v(S), v(S+1)); A.v_mov_b32(v(T), v(LS)); A.v_permlane32_swap_b32(v(LS), v(T)); A.v_add_f32(v(LS), v(LS), v(T))
        A.v_rcp_f32(v(LS), v(LS))
    def pre(k):
        T_, hd = 128 + 16*k, k // 4
        sel = 'op_sel:[0,1] op_sel_hi:[1,1]' if hd else 'op_sel_hi:[1,0]'
        return [lambda i=i: A.v_pk_mul_f32(v(T_+2*i, 2), v(T_+2*i, 2), v(114, 2), m=sel) for i in range(8)]
    epi_tiles(A, [(128+16*k, k*64) for k in range(8)], 16*8192, S_WS, 'sc1', pre)
```

```python
import sys
from asmlib import *
from layout import *
import chain
from chain import S_WS, S_DBG, S_X, S_H, S_W, S_TO, ptr, srd, load_ptrs, chain_setup, chain_loop
from gemm import *
from tasks import *

C0, C1, C2, C3, C4, C5 = 94, 95, 96, 97, 98, 99
CV = 120
K_EXIT, K_FB = 0xFFFF, 0x10000
POISON = 16
N_SID = 58
OPTS = set()

def header(launch_lines):
    ref = open('cdna_kernels/%s.s.ref' % KNAME).read().split('\n')
    hd = [l for l in ref if l.startswith(';') and '@launch' not in l]
    return '\n'.join(hd + launch_lines) + '\n.amdgcn_target "amdgcn-amd-amdhsa--gfx950"\n.text\n'
def kernel_wrap(name, body, vgpr=512, accum=256):
    return (f".globl {name}\n.p2align 8\n.type {name},@function\n{name}:\n" + body,
            f".p2align 6\n.amdhsa_kernel {name}\n  .amdhsa_next_free_vgpr {vgpr}\n  .amdhsa_next_free_sgpr 102\n  .amdhsa_accum_offset {accum}\n"
            f"  .amdhsa_group_segment_fixed_size 0\n  .amdhsa_kernarg_size 120\n  .amdhsa_user_sgpr_count 2\n  .amdhsa_user_sgpr_kernarg_segment_ptr 1\n"
            f"  .amdhsa_system_sgpr_workgroup_id_x 1\n.end_amdhsa_kernel\n")

def only_w0(A):
    sk = A.newlabel('w0'); A.s_cmp_lg_u32(s(S_W), 0); A.s_cbranch_scc1(sk); return sk
def dbg_atomic(A, dw, soff=0, ret=True, val=1):
    A.v_mov_b32(v(CV), val); A.v_mov_b32(v(CV+1), 0)
    A.s_mov_b64('exec', 1)
    A.buffer_atomic_add(v(CV), v(CV+1), s(S_DBG, 4), soff, m=f'offen offset:{dw*4} ' + ('sc0 sc1' if ret else 'sc1'))
    A.s_mov_b64('exec', -1)
    if ret: A.wait(vm=0); A.v_readfirstlane_b32(s(C0), v(CV))
def bcast(A, sk):
    A.v_mov_b32(v(CV), s(C0)); A.v_mov_b32(v(CV+1), L_MISC)
    A.ds_write_b32(v(CV+1), v(CV)); A.wait(lgkm=0)
    A.label(sk)
    A.s_barrier()
    A.v_mov_b32(v(CV+1), L_MISC); A.ds_read_b32(v(CV), v(CV+1)); A.wait(lgkm=0)
    A.v_readfirstlane_b32(s(C0), v(CV))
    A.s_barrier()
def guard(A, retry, out):
    A.s_sub_u32(s(S_TO), s(S_TO), 1); A.s_cbranch_scc0(retry)
    A.v_mov_b32(v(CV), '0xdead'); A.v_mov_b32(v(CV+1), 0)
    A.buffer_store_dword(v(CV), v(CV+1), s(S_DBG, 4), 0, m=f'offen offset:{D_ABORT*4} sc1')
    A.s_mov_b32(s(S_TO), 0); A.s_mov_b32(s(C0), K_EXIT); A.s_branch(out)
def ensure_init(A, out):
    ok, lp = A.newlabel('ini'), A.newlabel('inl')
    A.s_bitcmp1_b32(s(S_INIT), 0); A.s_cbranch_scc1(ok)
    A.v_mov_b32(v(CV+1), 0)
    A.label(lp)
    A.buffer_load_dword(v(CV), v(CV+1), s(S_DBG, 4), 0, m=f'offen offset:{D_INIT*4} sc1')
    A.wait(vm=0); A.v_readfirstlane_b32(s(C1), v(CV)); A.s_or_b32(s(S_INIT), s(S_INIT), s(C1))
    A.s_bitcmp1_b32(s(S_INIT), 0); A.s_cbranch_scc1(ok)
    A.s_sleep(2)
    guard(A, lp, out)
    A.label(ok)
def take_fb(A, out, cont):
    dbg_atomic(A, D_FBT)
    A.s_or_b32(s(S_INIT), s(S_INIT), 2)
    A.s_cmp_ge_u32(s(C0), 64); A.s_cbranch_scc1(cont)
    A.s_or_b32(s(C0), s(C0), K_FB); A.s_branch(out)
def dep_wait(A, setup, special):
    sk = only_w0(A)
    out, lp, sl = A.newlabel('dwo'), A.newlabel('dwl'), A.newlabel('dws')
    ensure_init(A, out)
    setup()
    A.v_mov_b32(v(CV+6), 0)
    A.label(lp)
    A.buffer_load_dword(v(CV+4), v(CV+2), s(S_WS, 4), 0, m='offen sc1')
    A.buffer_load_dword(v(CV+5), v(CV+6), s(S_DBG, 4), 0, m=f'offen offset:{D_READY*4} sc1')
    A.wait(vm=0)
    A.s_mov_b32(s(C0), 0)
    A.v_cmp_lt_u32('vcc', v(CV+4), v(CV+3)); A.s_cbranch_vccz(out)
    A.v_readfirstlane_b32(s(C1), v(CV+5))
    A.s_bitcmp0_b32(s(C1), POISON); A.s_cbranch_scc1(sl)
    A.s_bitcmp1_b32(s(S_INIT), 1); A.s_cbranch_scc1(sl)
    take_fb(A, out, sl)
    A.label(sl)
    A.s_sleep(4)
    guard(A, lp, out)
    A.label(out)
    bcast(A, sk)
    A.s_cmp_lg_u32(s(C0), 0); A.s_cbranch_scc1(special)
def cnt_addr(t): return WS_CTL + C_CNT + t*2048
def dep_cnt(A, t, target):
    def f():
        A.s_lshl_b32(s(C2), s(G_MB), 7); A.s_add_u32(s(C2), s(C2), cnt_addr(t))
        A.v_mov_b32(v(CV+2), s(C2)); A.v_mov_b32(v(CV+3), target)
    return f

def ws_srd(A, d):
    A.s_mov_b32(s(d), s(ptr(P_WS))); A.s_mov_b32(s(d+1), s(ptr(P_WS)+1)); A.s_mov_b32(s(d+2), hex(WS_SIZE)); A.s_mov_b32(s(d+3), '0x20000')

def build():
    A = Asm()
    END, NEXT, DECODE, SPECIAL, DONE, CABORT = '.end', '.next', '.decode', '.special', '.done', '.cabort'
    GEMM, GEMMV, CHAINP, CHAINF, CDONE = '.gemm', '.gemmv', '.chainp', '.chainf', '.cdone'
    A.s_cmp_ge_u32(s(2), 256); A.s_cbranch_scc1('.end0')
    load_ptrs(A)
    A.v_lshrrev_b32(v(1), 6, v(0)); A.v_readfirstlane_b32(s(S_W), v(1))
    A.s_getreg_b32(s(S_XCC), 'hwreg(HW_REG_XCC_ID, 0, 3)')
    A.s_mov_b32(s(S_TO), 1 << 17); A.s_mov_b32(s(S_INIT), 0); A.s_mov_b32(s(S_TASK), -1)
    A.wait(lgkm=0)
    srd(A, S_WS, P_WS, WS_SIZE); srd(A, S_DBG, P_DBG, 256)
    if 'tim' in OPTS: A.s_memtime(s(100, 2))
    if 'nochain' not in OPTS:
        A.s_cmp_gt_u32(s(S_XCC), 0 if 'forcefb' in OPTS else 1); A.s_cbranch_scc1(NEXT)
        sk = only_w0(A)
        A.s_lshl_b32(s(C1), s(S_XCC), 2)
        dbg_atomic(A, D_CNT0, s(C1))
        bcast(A, sk)
        A.s_cmp_lt_u32(s(C0), 32); A.s_cbranch_scc1(CHAINP)
    A.label(NEXT)
    A.s_sub_u32(s(S_TO), s(S_TO), 32); A.s_cbranch_scc1(END)
    sk = only_w0(A)
    out, lead, got, lp = A.newlabel('dqo'), A.newlabel('dqlead'), A.newlabel('dqgot'), A.newlabel('dql')
    A.s_lshl_b32(s(C1), s(S_XCC), 2)
    A.v_mov_b32(v(CV), 1); A.v_mov_b32(v(CV+1), 0)
    A.s_mov_b64('exec', 1)
    A.buffer_atomic_add(v(CV), v(CV+1), s(S_DBG, 4), s(C1), m=f'offen offset:{D_LH*4} sc0 sc1')
    A.buffer_load_dwordx4(v(CV+4, 4), v(CV+1), s(S_DBG, 4), 0, m=f'offen offset:{D_READY*4} sc1')
    A.s_mov_b64('exec', -1)
    A.wait(vm=0)
    A.v_readfirstlane_b32(s(C2), v(CV)); A.v_readfirstlane_b32(s(C5), v(CV+4)); A.v_readfirstlane_b32(s(C1), v(CV+7))
    A.s_or_b32(s(S_INIT), s(S_INIT), s(C1))
    A.s_lshr_b32(s(C3), s(C2), 5); A.s_and_b32(s(C2), s(C2), 31)
    A.s_mov_b32(s(C0), K_EXIT); A.s_cmp_ge_u32(s(C3), 128); A.s_cbranch_scc1(out)
    z = A.newlabel('dqz')
    A.s_cmp_eq_u32(s(C3), 0); A.s_cbranch_scc1(z)
    ensure_init(A, out)
    A.label(z)
    A.s_lshl_b32(s(C4), s(S_XCC), 7); A.s_add_u32(s(C4), s(C4), s(C3)); A.s_lshl_b32(s(C4), s(C4), 2); A.s_add_u32(s(C4), s(C4), WS_CTL + C_TAB)
    A.s_cmp_eq_u32(s(C2), 0); A.s_cbranch_scc1(lead)
    A.v_mov_b32(v(CV+1), 0)
    A.label(lp)
    l0, l1 = A.newlabel('dq0'), A.newlabel('dq1')
    A.s_cmp_eq_u32(s(C3), 0); A.s_cbranch_scc1(l0)
    A.buffer_load_dword(v(CV), v(CV+1), s(S_WS, 4), s(C4), m='offen sc1'); A.s_branch(l1)
    A.label(l0)
    A.s_lshl_b32(s(C1), s(S_XCC), 2)
    A.buffer_load_dword(v(CV), v(CV+1), s(S_DBG, 4), s(C1), m=f'offen offset:{D_SLOT0*4} sc1')
    A.label(l1)
    A.wait(vm=0); A.v_readfirstlane_b32(s(C0), v(CV))
    A.s_sub_u32(s(C0), s(C0), 1); A.s_cbranch_scc0(got)
    guard(A, lp, out)
    A.label(lead)
    dbg_atomic(A, D_GHEAD)
    A.s_add_u32(s(C1), s(C0), 1); A.v_mov_b32(v(CV), s(C1))
    l0 = A.newlabel('dq0')
    A.s_mov_b64('exec', 1)
    A.s_cmp_eq_u32(s(C3), 0); A.s_cbranch_scc1(l0)
    A.buffer_store_dword(v(CV), v(CV+1), s(S_WS, 4), s(C4), m='offen sc1'); A.s_mov_b64('exec', -1); A.s_branch(got)
    A.label(l0)
    A.s_lshl_b32(s(C1), s(S_XCC), 2)
    A.buffer_store_dword(v(CV), v(CV+1), s(S_DBG, 4), s(C1), m=f'offen offset:{D_SLOT0*4} sc1'); A.s_mov_b64('exec', -1)
    A.label(got)
    A.s_min_u32(s(C0), s(C0), 1023)
    A.s_lshl_b32(s(C0), s(C0), 5); A.s_or_b32(s(C0), s(C0), s(C2))
    A.s_bitcmp0_b32(s(C5), POISON); A.s_cbranch_scc1(out)
    A.s_bitcmp1_b32(s(S_INIT), 1); A.s_cbranch_scc1(out)
    A.s_cmp_lt_u32(s(C0), 16*32); A.s_cbranch_scc1(out)
    A.s_mov_b32(s(C5), s(C0))
    back = A.newlabel('dqb')
    dbg_atomic(A, D_FBT)
    A.s_or_b32(s(S_INIT), s(S_INIT), 2)
    A.s_cmp_ge_u32(s(C0), 64); A.s_cbranch_scc1(back)
    A.s_lshl_b32(s(C0), s(C0), 17); A.s_or_b32(s(C0), s(C0), K_FB); A.s_or_b32(s(C0), s(C0), s(C5)); A.s_branch(out)
    A.label(back); A.s_mov_b32(s(C0), s(C5))
    A.label(out)
    bcast(A, sk)
    A.s_and_b32(s(S_TASK), s(C0), 0xFFFF)
    dec0 = A.newlabel('dec0')
    A.s_bitcmp0_b32(s(C0), 16); A.s_cbranch_scc1(DECODE)
    A.s_lshr_b32(s(C0), s(C0), 17); A.s_branch(CHAINF)
    A.label(SPECIAL)
    A.s_bitcmp0_b32(s(C0), 16); A.s_cbranch_scc1(END)
    A.s_and_b32(s(C0), s(C0), 63); A.s_branch(CHAINF)
    A.label(DECODE)
    A.s_lshr_b32(s(C0), s(S_TASK), 5); A.s_and_b32(s(C1), s(S_TASK), 31)
    tKV, tGU, tDN, tQ, tAO = (A.newlabel(n) for n in ('tkv', 'tgu', 'tdn', 'tq', 'tao'))
    A.s_cmp_lt_u32(s(C0), 16); A.s_cbranch_scc1(tKV)
    A.s_cmp_lt_u32(s(C0), 32); A.s_cbranch_scc1(tGU)
    A.s_cmp_lt_u32(s(C0), 34); A.s_cbranch_scc1(tDN)
    A.s_cmp_lt_u32(s(C0), 42); A.s_cbranch_scc1(tQ)
    A.s_cmp_lt_u32(s(C0), N_SID); A.s_cbranch_scc1(tAO)
    A.label(END)
    if 'tim' in OPTS:
        A.s_memtime(s(C0, 2)); A.wait(lgkm=0); A.s_sub_u32(s(C0), s(C0), s(100))
        A.v_mov_b32(v(CV), s(C0)); A.v_mov_b32(v(CV+1), 0); A.s_mov_b64('exec', 1)
        A.buffer_atomic_umax(v(CV), v(CV+1), s(S_DBG, 4), 0, m='offen offset:128 sc1'); A.wait(vm=0)
    A.label('.end0')
    A.s_endpgm()

    def x_operand():
        srd(A, SRD_A, P_X, 2048*2048); A.s_lshl_b32(s(G_SA), s(G_MB), 18); A.s_mov_b32(s(G_STA), 2048); A.s_mov_b32(s(G_N), 16)
    def b_operand(p, nbytes, stride, ntreg):
        srd(A, SRD_B0, p, nbytes); srd(A, SRD_B1, p, nbytes)
        A.s_lshl_b32(s(G_SB0), s(ntreg), 9); A.s_add_u32(s(G_SB1), s(G_SB0), 256)
        A.s_mov_b32(s(G_STB), stride); A.s_mov_b32(s(G_BSTEP), 64*stride)
    def set_cnt(t): A.s_lshl_b32(s(G_CNT), s(G_MB), 7); A.s_add_u32(s(G_CNT), s(G_CNT), cnt_addr(t))
    def rm_base(base):
        A.s_lshl_b32(s(G_SC), s(G_MB), 20); A.s_lshl_b32(s(C2), s(G_NT), 9); A.s_add_u32(s(G_SC), s(G_SC), s(C2))
        A.s_lshl_b32(s(C2), s(S_W), 6); A.s_add_u32(s(G_SC), s(G_SC), s(C2))
        if base: A.s_add_u32(s(G_SC), s(G_SC), base)
    def mb_nt(qshift, mul):
        A.s_lshr_b32(s(G_MB), s(C0), qshift); A.s_lshl_b32(s(G_MB), s(G_MB), 2); A.s_and_b32(s(C2), s(C1), 3); A.s_add_u32(s(G_MB), s(G_MB), s(C2))
        A.s_and_b32(s(C3), s(C0), (1 << qshift) - 1); A.s_mul_i32(s(G_NT), s(C3), mul); A.s_lshr_b32(s(C2), s(C1), 2); A.s_add_u32(s(G_NT), s(G_NT), s(C2))
    A.label(tKV)
    noz = A.newlabel('noz')
    A.s_cmp_lg_u32(s(S_TASK), 0); A.s_cbranch_scc1(noz)
    lane_id(A, CV); A.s_lshl_b32(s(C2), s(S_W), 10); A.v_lshlrev_b32(v(CV), 4, v(CV)); A.v_add_u32(v(CV), s(C2), v(CV))
    A.v_mov_b64(v(CV+4, 2), 0); A.v_mov_b64(v(CV+6, 2), 0)
    for i in range(CTL_BYTES // 4096):
        A.s_mov_b32(s(C2), WS_CTL + i*4096)
        A.buffer_store_dwordx4(v(CV+4, 4), v(CV), s(S_WS, 4), s(C2), m='offen sc1')
    if 'nochain' in OPTS:
        A.wait(vm=0); A.s_barrier()
        A.v_mov_b32(v(CV+4), 64); A.v_lshlrev_b32(v(CV), 3, v(CV)); A.s_mov_b32(s(C2), WS_CTL + C_PROG)
        q = only_w0(A)
        A.buffer_store_dword(v(CV+4), v(CV), s(S_WS, 4), s(C2), m='offen sc1')
        A.label(q)
    A.wait(vm=0); A.s_barrier()
    q = only_w0(A); dbg_atomic(A, D_INIT, ret=False); A.label(q)
    A.label(noz)
    mb_nt(2, 8); x_operand(); set_cnt(T_KV)
    tV = A.newlabel('tv')
    A.s_cmp_ge_u32(s(G_NT), 16); A.s_cbranch_scc1(tV)
    b_operand(P_WK, 1024*8192, 8192, G_NT); rm_base(WS_KX); A.s_mov_b32(s(G_EPI), 0); A.s_branch(GEMM)
    A.label(tV)
    A.s_sub_u32(s(G_NT), s(G_NT), 16)
    b_operand(P_WV, 1024*8192, 8192, G_NT)
    A.s_lshl_b32(s(G_SC), s(G_MB), 20); A.s_lshl_b32(s(C2), s(G_NT), 14); A.s_add_u32(s(G_SC), s(G_SC), s(C2))
    A.s_lshl_b32(s(C2), s(S_W), 11); A.s_add_u32(s(G_SC), s(G_SC), s(C2)); A.s_add_u32(s(G_SC), s(G_SC), WS_VT)
    gemm_consts(A); gemm_main(A, True); epi_vt(A); A.s_branch(DONE)
    A.label(tQ)
    A.s_sub_u32(s(C0), s(C0), 34); mb_nt(1, 8); x_operand(); set_cnt(T_Q)
    b_operand(P_WQ, 1024*8192, 8192, G_NT); rm_base(WS_QX); A.s_mov_b32(s(G_EPI), 0); A.s_branch(GEMM)
    A.label(tGU)
    tG = A.newlabel('tg')
    A.s_sub_u32(s(C0), s(C0), 16); mb_nt(2, 7)
    A.s_cmp_ge_u32(s(C1), 28); A.s_cbranch_scc1(tG)
    x_operand(); set_cnt(T_GU)
    srd(A, SRD_B0, P_WG, 1024*7168); srd(A, SRD_B1, P_WU, 1024*7168)
    A.s_lshl_b32(s(G_SB0), s(G_NT), 8); A.s_mov_b32(s(G_SB1), s(G_SB0)); A.s_mov_b32(s(G_STB), 7168); A.s_mov_b32(s(G_BSTEP), 64*7168)
    A.s_mul_i32(s(G_SC), s(G_MB), 128*7168); A.s_add_u32(s(G_SC), s(G_SC), s(G_SB0))
    A.s_lshl_b32(s(C2), s(S_W), 6); A.s_add_u32(s(G_SC), s(G_SC), s(C2)); A.s_add_u32(s(G_SC), s(G_SC), WS_H)
    A.s_mov_b32(s(G_EPI), 2); A.s_branch(GEMM)
    A.label(tG)
    A.s_cmp_lg_u32(s(C3), 0); A.s_cbranch_scc1(NEXT)
    set_cnt(T_DN); task_g(A); A.s_branch(DONE)
    A.label(tDN)
    A.s_sub_u32(s(C0), s(C0), 32); A.s_lshl_b32(s(G_MB), s(C0), 3); A.s_and_b32(s(C2), s(C1), 7); A.s_add_u32(s(G_MB), s(G_MB), s(C2))
    A.s_lshr_b32(s(G_NT), s(C1), 3)
    dep_wait(A, dep_cnt(A, T_GU, 28), SPECIAL)
    set_cnt(T_DN)
    ws_srd(A, SRD_A); A.s_mul_i32(s(G_SA), s(G_MB), 128*7168); A.s_add_u32(s(G_SA), s(G_SA), WS_H); A.s_mov_b32(s(G_STA), 7168); A.s_mov_b32(s(G_N), 56)
    b_operand(P_WD, 3584*2048, 2048, G_NT)
    A.s_lshl_b32(s(G_SC), s(G_MB), 2); A.s_add_u32(s(G_SC), s(G_SC), s(G_NT)); A.s_lshl_b32(s(G_SC), s(G_SC), 2); A.s_add_u32(s(G_SC), s(G_SC), s(S_W))
    A.s_lshl_b32(s(G_SC), s(G_SC), 14); A.s_add_u32(s(G_SC), s(G_SC), WS_B)
    A.s_mov_b32(s(G_EPI), 3); A.s_branch(GEMM)
    A.label(tAO)
    tOP = A.newlabel('top')
    A.s_sub_u32(s(G_MB), s(C0), 42)
    A.s_cmp_ge_u32(s(C1), 20); A.s_cbranch_scc1(NEXT)
    A.s_cmp_ge_u32(s(C1), 16); A.s_cbranch_scc1(tOP)
    A.s_mov_b32(s(G_NT), s(C1)); set_cnt(T_AT)
    def d_kvq():
        A.s_lshl_b32(s(C2), s(G_MB), 7); A.s_add_u32(s(C2), s(C2), cnt_addr(T_KV))
        lane_id(A, CV+3); A.v_and_b32(v(CV+3), 1, v(CV+3))
        A.v_lshlrev_b32(v(CV+2), 11, v(CV+3)); A.v_add_u32(v(CV+2), s(C2), v(CV+2))
        A.v_lshlrev_b32(v(CV+3), 4, v(CV+3)); A.v_sub_u32(v(CV+3), 32, v(CV+3))
        assert T_Q == T_KV + 1
    dep_wait(A, d_kvq, SPECIAL)
    task_at_pre(A)
    def d_prog():
        lane_id(A, CV+3)
        A.v_and_b32(v(CV+2), 1, v(CV+3)); A.v_lshlrev_b32(v(CV+2), 12, v(CV+2))
        A.v_bfe_u32(v(CV+3), v(CV+3), 1, 1); A.v_lshl_add_u32(v(CV+2), v(CV+3), 7, v(CV+2))
        A.s_lshl_b32(s(C2), s(G_NT), 8); A.s_add_u32(s(C2), s(C2), WS_CTL + C_PROG); A.v_add_u32(v(CV+2), s(C2), v(CV+2))
        A.s_lshl_b32(s(C2), s(G_MB), 2); A.s_add_u32(s(C2), s(C2), 4); A.v_mov_b32(v(CV+3), s(C2))
    dep_wait(A, d_prog, SPECIAL)
    task_at_post(A); A.s_branch(DONE)
    A.label(tOP)
    A.s_sub_u32(s(G_NT), s(C1), 16)
    dep_wait(A, dep_cnt(A, T_AT, 16), SPECIAL)
    ws_srd(A, SRD_A); A.s_lshl_b32(s(G_SA), s(G_MB), 20); A.s_add_u32(s(G_SA), s(G_SA), WS_O); A.s_mov_b32(s(G_STA), 8192); A.s_mov_b32(s(G_N), 64)
    b_operand(P_WO, 4096*2048, 2048, G_NT)
    A.s_lshl_b32(s(G_SC), s(G_MB), 18); A.s_lshl_b32(s(C2), s(G_NT), 9); A.s_add_u32(s(G_SC), s(G_SC), s(C2))
    A.s_lshl_b32(s(C2), s(S_W), 6); A.s_add_u32(s(G_SC), s(G_SC), s(C2))
    A.s_mov_b32(s(G_EPI), 4)
    A.label(GEMM)
    gemm_consts(A); gemm_main(A, False)
    eGU, eDN, eOP = A.newlabel('egu'), A.newlabel('edn'), A.newlabel('eop')
    A.s_cmp_eq_u32(s(G_EPI), 2); A.s_cbranch_scc1(eGU)
    A.s_cmp_eq_u32(s(G_EPI), 3); A.s_cbranch_scc1(eDN)
    A.s_cmp_eq_u32(s(G_EPI), 4); A.s_cbranch_scc1(eOP)
    epi_rm(A); A.s_branch(DONE)
    A.label(eGU); epi_gu(A); A.s_branch(DONE)
    A.label(eDN); epi_dn(A); A.s_branch(DONE)
    A.label(eOP)
    dep_wait(A, dep_cnt(A, T_DN, 5), SPECIAL)
    A.s_lshl_b32(s(G_T2), s(G_MB), 2); A.s_add_u32(s(G_T2), s(G_T2), s(G_NT)); A.s_lshl_b32(s(G_T2), s(G_T2), 2); A.s_add_u32(s(G_T2), s(G_T2), s(S_W))
    A.s_lshl_b32(s(G_T2), s(G_T2), 14); A.s_add_u32(s(G_T2), s(G_T2), WS_B)
    A.s_lshl_b32(s(G_T3), s(G_MB), 9); A.s_add_u32(s(G_T3), s(G_T3), WS_G)
    srd(A, SRD_C, P_OUT, 2048*2048)
    epi_op_loads(A); epi_op(A)
    A.wait(vm=0); A.s_branch(NEXT)
    A.label(DONE)
    A.wait(vm=0); A.s_barrier()
    A.s_cmp_lg_u32(s(S_W), 0); A.s_cbranch_scc1(NEXT)
    ensure_init(A, NEXT)
    A.v_mov_b32(v(CV), 1); A.v_mov_b32(v(CV+1), 0)
    A.s_mov_b64('exec', 1)
    A.buffer_atomic_add(v(CV), v(CV+1), s(S_WS, 4), s(G_CNT), m='offen sc1')
    A.s_mov_b64('exec', -1)
    A.s_branch(NEXT)
    if 'nochain' not in OPTS:
        CSP = '.cspecial'
        def handshake(dw, timed):
            A.wait(vm=0); A.s_barrier()
            sk = only_w0(A)
            out, lp, nx = A.newlabel('hso'), A.newlabel('hsl'), A.newlabel('hsn')
            dbg_atomic(A, dw, ret=False)
            A.s_mov_b32(s(C2), 300 if 'forcefb' not in OPTS else 20)
            A.label(lp)
            A.buffer_load_dwordx4(v(CV+4, 4), v(CV+1), s(S_DBG, 4), 0, m=f'offen offset:{D_READY*4} sc1')
            A.wait(vm=0)
            A.v_readfirstlane_b32(s(C1), v(CV+4 + dw - D_READY)); A.v_readfirstlane_b32(s(C3), v(CV+7))
            A.s_or_b32(s(S_INIT), s(S_INIT), s(C3))
            A.s_mov_b32(s(C0), 0)
            A.s_cmp_lg_u32(s(C1), 64); A.s_cbranch_scc1(nx)
            A.s_bitcmp1_b32(s(S_INIT), 0); A.s_cbranch_scc1(out)
            A.label(nx)
            if timed:
                np_, wk = A.newlabel('hsp'), A.newlabel('hsw')
                A.s_bitcmp0_b32(s(C1), POISON); A.s_cbranch_scc1(np_)
                take_fb(A, out, wk)
                A.label(wk); A.s_mov_b32(s(C0), 1); A.s_branch(out)
                A.label(np_)
                g = A.newlabel('hsg')
                A.s_sub_u32(s(C2), s(C2), 1); A.s_cbranch_scc0(g)
                A.s_mov_b32(s(C2), 0)
                A.s_cmp_ge_u32(s(C1), 64); A.s_cbranch_scc1(g)
                A.s_or_b32(s(C3), s(C1), 1 << POISON)
                A.v_mov_b32(v(CV+2), s(C3)); A.v_mov_b32(v(CV+3), s(C1))
                A.s_mov_b64('exec', 1)
                A.buffer_atomic_cmpswap(v(CV+2, 2), v(CV+1), s(S_DBG, 4), 0, m=f'offen offset:{D_READY*4} sc1')
                A.s_mov_b64('exec', -1)
                A.label(g)
            guard(A, lp, out)
            A.label(out)
            bcast(A, sk)
            A.s_cmp_lg_u32(s(C0), 0); A.s_cbranch_scc1(CSP)
        A.label(CHAINP)
        A.s_mov_b32(s(S_X), s(S_XCC)); A.s_mov_b32(s(S_H), s(C0))
        chain_setup(A, CABORT, False)
        handshake(D_READY, True)
        if 'tim' in OPTS:
            A.s_memtime(s(C0, 2)); A.wait(lgkm=0); A.s_sub_u32(s(C0), s(C0), s(100))
            A.v_mov_b32(v(CV), s(C0)); A.v_mov_b32(v(CV+1), 0); A.s_mov_b64('exec', 1)
            A.buffer_atomic_umax(v(CV), v(CV+1), s(S_DBG, 4), 0, m='offen offset:132 sc1'); A.s_mov_b64('exec', -1)
        chain_loop(A, CABORT, CDONE, False)
        A.label(CSP)
        A.s_cmp_eq_u32(s(C0), 1); A.s_cbranch_scc1(NEXT)
        A.s_branch(SPECIAL)
        A.label(CHAINF)
        A.s_and_b32(s(S_X), s(C0), 1); A.s_lshr_b32(s(S_H), s(C0), 1)
        A.wait(vm=0, lgkm=0); A.s_barrier()
        chain_setup(A, CABORT, True)
        handshake(D_READY2, False)
        chain_loop(A, CABORT, CDONE, True)
        A.label(CDONE)
        if 'tim' in OPTS:
            A.s_memtime(s(C0, 2)); A.wait(lgkm=0); A.s_sub_u32(s(C0), s(C0), s(100))
            A.v_mov_b32(v(CV), s(C0)); A.v_mov_b32(v(CV+1), 0); A.s_mov_b64('exec', 1)
            A.buffer_atomic_umax(v(CV), v(CV+1), s(S_DBG, 4), 0, m='offen offset:136 sc1'); A.s_mov_b64('exec', -1)
        A.s_cmp_eq_u32(s(S_TASK), -1); A.s_cbranch_scc1(NEXT)
        A.s_branch(DECODE)
        A.label(CABORT)
        A.s_mov_b64('exec', -1)
        A.v_mov_b32(v(CV), '0xdead'); A.v_mov_b32(v(CV+1), 0)
        A.buffer_store_dword(v(CV), v(CV+1), s(S_DBG, 4), 0, m=f'offen offset:{D_ABORT*4} sc1')
        A.wait(vm=0)
        A.s_endpgm()
    else:
        A.label(CHAINF); A.s_endpgm()
    n = A.fix_hazards()
    errs = A.check_waits()
    for e in errs[:20]: print('WAITERR', e)
    code, desc = kernel_wrap(KNAME + '_kernel', A.text())
    return header([f'; @launch grid=(256,1,1) block=(256,1,1) lds={LDS_BYTES}']) + code + '.section .rodata,"a"\n' + desc

if __name__ == '__main__':
    for spec in sys.argv[1:]:
        OPTS = set(spec.split('+')) - {'base'}
        import asmcheck
        p = 'mega_%s.s' % spec.replace('+', '_')
        open(p, 'w').write(build())
        asmcheck.assemble(p)
```

```python
import re

def _r(pfx, i, n=1):
    return f"{pfx}{i}" if n == 1 else f"{pfx}[{i}:{i+n-1}]"
def v(i, n=1):
    assert 0 <= i and i+n <= 256, (i, n)
    return _r('v', i, n)
def a(i, n=1):
    assert 0 <= i and i+n <= 256, (i, n)
    return _r('a', i, n)
def s(i, n=1):
    assert 0 <= i and i+n <= 102, (i, n)
    return _r('s', i, n)
def r(i, n=1):
    return v(i, n) if i < 256 else a(i-256, n)

_re_reg = re.compile(r'^(-|\|)?([vas])(\d+)\|?$')
_re_rng = re.compile(r'^(-)?([vas])\[(\d+):(\d+)\]$')
def regs_of(op):
    op = str(op).strip()
    m = _re_reg.match(op)
    if m:
        k, i = m.group(2), int(m.group(3))
        return {('v', i)} if k == 'v' else ({('v', 256+i)} if k == 'a' else {('s', i)})
    m = _re_rng.match(op)
    if m:
        k, lo, hi = m.group(2), int(m.group(3)), int(m.group(4))
        if k == 'v': return {('v', i) for i in range(lo, hi+1)}
        if k == 'a': return {('v', 256+i) for i in range(lo, hi+1)}
        return {('s', i) for i in range(lo, hi+1)}
    if op in ('vcc',): return {('s', 'vcc_lo'), ('s', 'vcc_hi')}
    if op in ('vcc_lo', 'vcc_hi'): return {('s', op)}
    if op == 'exec': return {('s', 'exec_lo'), ('s', 'exec_hi')}
    if op in ('exec_lo', 'exec_hi'): return {('s', op)}
    if op == 'm0': return {('s', 'm0')}
    return set()

TRANS = ('v_exp_f32', 'v_log_f32', 'v_rcp_f32', 'v_rsq_f32', 'v_sqrt_f32', 'v_sin_f32', 'v_cos_f32')

class Ins:
    __slots__ = ('op', 'ops', 'mods', 'cm', 'kind', 'rd', 'wr', 'passes', 'srcc', 'ab', 'tag', 'nochk')
    def __init__(self, op, ops, mods='', cm=''):
        self.op, self.ops, self.mods, self.cm = op, [str(o) for o in ops], mods, cm
        self.passes = 0; self.srcc = set(); self.ab = set(); self.tag = None; self.nochk = False
        self.classify()
    def text(self):
        t = '  ' + self.op
        if self.ops: t += ' ' + ', '.join(self.ops)
        if self.mods: t += ' ' + self.mods
        if self.cm: t += '   ; ' + self.cm
        return t
    def classify(self):
        op, o = self.op, self.ops
        R = lambda idx: set().union(*[regs_of(o[i]) for i in idx if i < len(o)]) if idx else set()
        n = len(o)
        rd, wr = set(), set()
        if op.startswith('v_mfma') or op.startswith('v_smfmac'):
            self.kind = 'mfma'
            self.passes = 8 if '32x32' in op else 4
            wr = R([0])
            if op.startswith('v_smfmac'):
                self.srcc = R([0]); self.ab = R([1, 2, 3])
            else:
                self.srcc = R([3]); self.ab = R([1, 2])
            rd = self.srcc | self.ab
        elif op.startswith('v_'):
            self.kind = 'valu'
            if op.startswith('v_permlane') and 'swap' in op:
                wr = R([0, 1]); rd = R([0, 1])
            elif op.startswith('v_cmp'):
                wr = R([0]); rd = R(range(1, n))
                assert not op.startswith('v_cmpx')
            elif op.startswith('v_fmac') or op.startswith('v_pk_fmac') or op.startswith('v_dot2c') or op.startswith('v_writelane'):
                wr = R([0]); rd = R(range(0, n))
            elif op.startswith('v_add_co') or op.startswith('v_sub_co') or op.startswith('v_addc_co') or op.startswith('v_subb_co'):
                wr = R([0, 1]); rd = R(range(2, n))
            elif op.startswith('v_cndmask') and n == 3:
                wr = R([0]); rd = R([1, 2]) | regs_of('vcc')
            elif op == 'v_nop':
                pass
            else:
                wr = R([0]); rd = R(range(1, n))
                if 'dpp' in op or 'row_' in self.mods or 'quad_perm' in self.mods:
                    if 'bound_ctrl' not in self.mods: rd |= R([0])
        elif op.startswith('buffer_') or op.startswith('global_'):
            self.kind = 'vmem'
            if 'load' in op:
                if re.search(r'\blds\b', self.mods) or 'load_lds' in op:
                    rd = R(range(0, n)) | regs_of('m0'); self.tag = 'dma'
                else:
                    wr = R([0]); rd = R(range(1, n)); self.tag = 'load'
            elif 'store' in op:
                rd = R(range(0, n)); self.tag = 'store'
            elif 'atomic' in op:
                rd = R(range(0, n)); self.tag = 'store'
                if 'sc0' in self.mods:
                    self.tag = 'load'
                    w = regs_of(o[0])
                    if 'cmpswap' in op: w = {min(w)} if 'x2' not in op else set(sorted(w)[:2])
                    wr = w
            else: raise ValueError(op)
        elif op.startswith('ds_'):
            self.kind = 'ds'
            if op.startswith('ds_read') or op.startswith('ds_bpermute') or op.startswith('ds_permute') or op.startswith('ds_swizzle') or 'rtn' in op:
                wr = R([0]); rd = R(range(1, n)); self.tag = 'load'
            else:
                rd = R(range(0, n)); self.tag = 'store'
        elif op.startswith('s_load') or op.startswith('s_buffer_load') or op in ('s_memtime', 's_memrealtime'):
            self.kind = 'smem'; wr = R([0]); rd = R(range(1, n)); self.tag = 'load'
        elif op.startswith('s_'):
            self.kind = 'salu'
            if op in ('s_waitcnt', 's_nop', 's_barrier', 's_endpgm', 's_setprio', 's_sleep', 's_branch') or op.startswith('s_cbranch'):
                self.kind = 'ctl'
                if 'vcc' in op: rd = regs_of('vcc')
                if 'exec' in op: rd = regs_of('exec')
            elif op.startswith('s_cmp') or op.startswith('s_bitcmp'):
                rd = R(range(0, n))
            elif op in ('s_setpc_b64',):
                self.kind = 'ctl'; rd = R([0])
            elif op in ('s_swappc_b64',):
                self.kind = 'ctl'; wr = R([0]); rd = R([1])
            elif 'saveexec' in op:
                wr = R([0]) | regs_of('exec'); rd = R([1]) | regs_of('exec')
            else:
                wr = R([0]); rd = R(range(1, n))
                if op.startswith('s_cselect') or op.startswith('s_cmov') or op.startswith('s_addk') or op.startswith('s_mulk') or op.startswith('s_bitset'):
                    rd |= R([0])
        else:
            raise ValueError('unknown op ' + op)
        self.rd, self.wr = rd, wr
    def states(self):
        if self.op == 's_nop': return int(self.ops[0], 0) + 1
        return 1
    def is_branch(self): return self.op == 's_branch' or self.op.startswith('s_cbranch')
    def is_dpp(self): return self.kind == 'valu' and ('row_' in self.mods or 'quad_perm' in self.mods or 'dpp' in self.op)
    def is_wide_store(self): return (self.kind == 'vmem' and self.tag == 'store' and ('x4' in self.op or 'x3' in self.op)) or self.op == 'ds_write_b128'

class Label:
    def __init__(self, name): self.name = name
    def text(self): return self.name + ':'
class Raw:
    def __init__(self, t): self.t = t
    def text(self): return self.t

def vonly(st): return {x for x in st if x[0] == 'v'}
def sonly(st): return {x for x in st if x[0] == 's'}

def need(p, c):
    n = 0
    if p.kind == 'valu':
        pv, ps = vonly(p.wr), sonly(p.wr)
        if pv:
            if c.kind == 'mfma' and pv & c.rd: n = max(n, 2)
            if c.kind == 'valu':
                if c.op.startswith('v_permlane') and pv & c.rd: n = max(n, 2)
                if c.is_dpp() and pv & set().union(*[regs_of(o_) for o_ in c.ops[1:]]): n = max(n, 2)
                if (c.op.startswith('v_readlane') or c.op.startswith('v_readfirstlane')) and pv & c.rd: n = max(n, 1)
                if p.op in TRANS and pv & c.rd: n = max(n, 1)
                if (('op_sel' in p.mods and not p.op.startswith('v_pk')) or 'dst_sel' in p.mods) and pv & (c.rd | c.wr): n = max(n, 1)
            if p.op in TRANS and c.kind in ('vmem', 'ds') and pv & c.rd: n = max(n, 1)
            if p.op.startswith('v_dot') and pv & (c.rd | c.wr):
                if not (c.op == p.op and not (pv & (regs_of(c.ops[1]) | regs_of(c.ops[2])))): n = max(n, 3)
        if ps:
            if c.kind == 'vmem' and ps & c.rd: n = max(n, 5)
            if c.kind == 'valu' and ps & c.rd:
                n = max(n, 4 if (c.op.startswith('v_readlane') or c.op.startswith('v_writelane')) else 2)
            if c.kind in ('salu', 'smem', 'ctl') and ps & c.rd: n = max(n, 0)
    if p.kind == 'mfma':
        big = p.passes == 8
        if c.kind == 'mfma':
            if p.wr & c.ab: n = max(n, 12 if big else 8)
            if p.wr & c.srcc:
                if not (p.wr == c.srcc and occ(p) == occ(c)): n = max(n, 10 if big else 6)
                elif occ(p) == 2: n = max(n, 2)
            elif p.wr & c.wr: n = max(n, 12 if big else 8)
        elif c.kind == 'valu':
            if p.wr & (c.rd | c.wr): n = max(n, 12 if big else 8)
            if p.srcc & c.wr: n = max(n, 7 if big else 3)
        elif c.kind in ('vmem', 'ds'):
            if p.wr & (c.rd | c.wr): n = max(n, 12 if big else 8)
            if p.srcc & c.wr: n = max(n, 7 if big else 3)
    if p.kind == 'salu' and ('s', 'm0') in p.wr and c.kind == 'vmem' and c.tag == 'dma': n = max(n, 1)
    if p.is_wide_store():
        d = vonly(regs_of(p.ops[0]) if p.op.startswith('buffer') else regs_of(p.ops[1]))
        if d & c.wr: n = max(n, 2 if c.kind in ('valu', 'mfma') else 1)
    return n

MAXW = 13
def occ(p):
    if '16x16x16' in p.op or '4x4' in p.op: return 2
    if '32x32x8' in p.op: return 4
    return p.passes
def path_missing(path, c):
    worst = 0
    for k, p in enumerate(path):
        nn = need(p, c)
        if nn <= 0: continue
        t = 0; lastm = (0, occ(p)) if p.kind == 'mfma' else None
        prev = p
        for x in reversed(path[:k]):
            t += prev.states()
            if x.kind == 'mfma':
                if lastm: t = max(t, lastm[0] + lastm[1])
                lastm = (t, occ(x))
            prev = x
        t += prev.states()
        if c.kind == 'mfma' and lastm: t = max(t, lastm[0] + lastm[1])
        d = t - p.states()
        if nn > d: worst = max(worst, nn - d)
    return worst
class Asm:
    def __init__(self):
        self.items = []
        self.uid = 0
    def I(self, op, *ops, m='', cm=''):
        ins = Ins(op, ops, m, cm); self.items.append(ins); return ins
    def __getattr__(self, name):
        if name.startswith(('v_', 's_', 'ds_', 'buffer_', 'global_')):
            return lambda *ops, m='', cm='': self.I(name, *ops, m=m, cm=cm)
        raise AttributeError(name)
    def label(self, name): self.items.append(Label(name)); return name
    def newlabel(self, base='L'):
        self.uid += 1; return f".{base}_{self.uid}"
    def raw(self, t): self.items.append(Raw(t))
    def c(self, t): self.items.append(Raw('  ; ' + t))
    def wait(self, vm=None, lgkm=None):
        parts = []
        if vm is not None: assert 0 <= vm <= 63; parts.append(f'vmcnt({vm})')
        if lgkm is not None: assert 0 <= lgkm <= 15; parts.append(f'lgkmcnt({lgkm})')
        self.I('s_waitcnt', ' '.join(parts))
    def nop(self, n):
        while n > 0:
            k = min(n, 16); self.I('s_nop', k-1); n -= k

    def _preds(self, idx, labels, branches):
        out = []
        def walk2(i, acc, st, depth, via):
            while i >= 0 and st < MAXW:
                it = self.items[i]
                if isinstance(it, Label):
                    if depth < 3:
                        for b in branches.get(it.name, []):
                            walk2(b, list(acc), st, depth+1, True)
                elif isinstance(it, Ins):
                    if it.op in ('s_branch', 's_endpgm', 's_setpc_b64') and not via:
                        out.append(acc); return
                    acc.append(it); st += it.states()
                via = False
                i -= 1
            out.append(acc)
        walk2(idx-1, [], 0, 0, False)
        return out
    def fix_hazards(self):
        total = 0
        changed = True
        while changed:
            changed = False
            branches = {}
            for i, it in enumerate(self.items):
                if isinstance(it, Ins) and it.is_branch(): branches.setdefault(it.ops[0], []).append(i)
            new = []
            inserts = {}
            for i, it in enumerate(self.items):
                if not isinstance(it, Ins) or it.kind == 'ctl': continue
                worst = 0
                for path in self._preds(i, None, branches):
                    worst = max(worst, path_missing(path, it))
                if worst > 0:
                    inserts[i] = worst
                    break
            if inserts:
                (i, w), = inserts.items()
                self.items.insert(i, Ins('s_nop', [w-1], '', 'hz'))
                total += 1
                changed = True
                self._fix_from(i+1)
        return total
    def _fix_from(self, i):
        def mk():
            b = {}
            for j, it in enumerate(self.items):
                if isinstance(it, Ins) and it.is_branch(): b.setdefault(it.ops[0], []).append(j)
            return b
        branches = mk()
        while i < len(self.items):
            it = self.items[i]
            if isinstance(it, Ins) and it.kind != 'ctl':
                worst = 0
                for path in self._preds(i, None, branches):
                    worst = max(worst, path_missing(path, it))
                if worst > 0:
                    self.items.insert(i, Ins('s_nop', [worst-1], '', 'hz'))
                    for k in branches: branches[k] = [j+1 if j >= i else j for j in branches[k]]
                    i += 1
            i += 1

    def check_waits(self):
        errs = []
        lab = {it.name: i for i, it in enumerate(self.items) if isinstance(it, Label)}
        def run(seq, vm, lg):
            for i in seq:
                it = self.items[i]
                if not isinstance(it, Ins): continue
                if it.op == 's_waitcnt':
                    t = it.ops[0]
                    m = re.search(r'vmcnt\((\d+)\)', t)
                    if m:
                        k = int(m.group(1));
                        if len(vm) > k: del vm[:len(vm)-k]
                    m = re.search(r'lgkmcnt\((\d+)\)', t)
                    if m:
                        k = int(m.group(1))
                        if k == 0: lg.clear()
                        else:
                            if any(x[0] == 'smem' for x in lg):
                                pass
                            elif len(lg) > k: del lg[:len(lg)-k]
                    continue
                if it.op in ('s_branch', 's_endpgm', 's_setpc_b64'):
                    vm.clear(); lg.clear(); continue
                use = it.rd | it.wr
                for q in (vm, lg):
                    for (kind, w, src) in q:
                        if w & use:
                            errs.append(f"pending {src.text().strip()}  <-- used by [{i}] {it.text().strip()}")
                if it.kind == 'vmem': vm.append(('vmem', set() if it.nochk else it.wr, it))
                elif it.kind == 'ds': lg.append(('ds', it.wr, it))
                elif it.kind == 'smem': lg.append(('smem', it.wr, it))
            return vm, lg
        run(range(len(self.items)), [], [])
        for i, it in enumerate(self.items):
            if isinstance(it, Ins) and it.is_branch() and it.ops[0] in lab and lab[it.ops[0]] < i:
                body = [j for j in range(lab[it.ops[0]], i)]
                if any(isinstance(self.items[j], Ins) and self.items[j].op in ('s_branch', 's_endpgm') for j in body):
                    continue
                vm, lg = run(body, [], [])
                run(body, vm, lg)
        return sorted(set(errs))
    def text(self):
        return '\n'.join(it.text() for it in self.items) + '\n'

class LQ:
    def __init__(self, A, init=()): self.A, self.q = A, list(init)
    def issue(self, tag): self.q.append(tag)
    def need(self, tags):
        idx = max([i for i, t in enumerate(self.q) if t in tags], default=-1)
        if idx >= 0:
            self.A.wait(lgkm=min(15, len(self.q) - 1 - idx)); del self.q[:idx+1]
```

```python
from asmlib import *
from layout import *
import struct

OPT = set()
PAR0 = dict(pj=0x2000, xre=0, nm=2, nx=2, np=2, swz=0, md=0, pd=0, xb=0, ack=3, hv=0, sg=0, drop=1, xa=0)
PAR = dict(PAR0)
S_WS, S_DBG, S_TMP = 4, 8, 12
S_PUBD = 12
S_X, S_H, S_W, S_STEP, S_TO = 16, 17, 18, 19, 20
S_MEMLD, S_MEMST = 21, 23
S_XQO, S_XQI = 25, 27
S_PST, S_PLD = 29, 31
S_KX, S_VT, S_PUB, S_PUBV, S_PRG, S_KVR, S_POL = 33, 34, 35, 36, 37, 38, 39
S_C = 40
S_T0, S_T1, S_T2, S_T3 = 42, 43, 44, 45
S_TMP2 = 48
S_ACC = 47
S_PTR = 64
def ptr(i): return S_PTR + 2*i

V_A = 0
V_MW, V_L8, V_WO, V_PST, V_PLD, V_MST, V_IDX = 0, 4, 5, 6, 7, 8, 9
V_E, V_ONE, V_HALF = 10, 12, 14
KP, VP = 16, 24
WVR, WOR = 128, 192
def WQK(tau, jj): return 256 + (tau*16 + jj)*8
O_FO, O_KX = L_FO - L_MEMB, L_KXB - L_MEMB

def srd(A, d, p, nbytes):
    A.s_mov_b32(s(d), s(ptr(p))); A.s_mov_b32(s(d+1), s(ptr(p)+1))
    A.s_mov_b32(s(d+2), hex(nbytes)); A.s_mov_b32(s(d+3), '0x20000')

def load_ptrs(A):
    for i in range(0, 14, 2):
        A.s_load_dwordx4(s(ptr(i), 4), s(0, 2), i*8)
    A.s_load_dwordx2(s(ptr(14), 2), s(0, 2), 112)

def spin_guard(A, retry, abort):
    A.s_sub_u32(s(S_TO), s(S_TO), 1)
    A.s_cbranch_scc0(retry)
    A.s_branch(abort)

PB = [32, 40]
def AF(jj):
    assert jj not in (0, 2)
    return 48 + 4*([1, 3] + list(range(4, 16))).index(jj)

def xq_base(A, fb):
    A.s_lshl_b32(s(S_T0), s(S_X), 5); A.s_add_u32(s(S_T0), s(S_T0), s(S_H)); A.s_lshl_b32(s(S_T0), s(S_T0), 15)
    A.s_add_u32(s(S_T0), s(S_T0), WS_XQ + (FB_XQ if fb else 0) - L_MEMB)

def chain_setup(A, abort, fb=False):
    L, G, N16, T1, T2, T3, T4 = 16, 17, 18, 19, 20, 21, 22
    WS_PART_, WS_MEM_ = WS_PART + (FB_PART if fb else 0), WS_MEM + (FB_MEM if fb else 0)
    A.c('---- chain setup: lane constants ----')
    A.v_mbcnt_lo_u32_b32(v(L), -1, 0); A.v_mbcnt_hi_u32_b32(v(L), -1, v(L))
    A.v_lshrrev_b32(v(G), 4, v(L)); A.v_and_b32(v(N16), 15, v(L))
    A.v_lshrrev_b32(v(T1), 3, v(N16)); A.v_lshlrev_b32(v(T1), 9, v(T1)); A.v_lshl_add_u32(v(T1), v(G), 7, v(T1))
    A.v_and_b32(v(T2), 7, v(L)); A.v_lshl_add_u32(v(T1), v(T2), 4, v(T1))
    A.s_lshl_b32(s(S_T0), s(S_W), 11); A.s_add_u32(s(S_T0), s(S_T0), L_MEMB)
    A.v_add_u32(v(V_MW), s(S_T0), v(T1))
    for a_ in range(1, 4): A.v_xor_b32(v(V_A+a_), a_*2048, v(V_MW))
    A.v_lshlrev_b32(v(T1), 3, v(L)); A.v_add_u32(v(V_L8), s(S_T0), v(T1))
    A.s_lshl_b32(s(S_T3), s(S_W), 15)
    A.v_lshlrev_b32(v(T1), 4, v(L)); A.v_add_u32(v(V_WO), s(S_T3), v(T1))
    A.v_and_b32(v(T3), 1, v(G)); A.v_lshlrev_b32(v(T3), 1, v(T3)); A.v_lshrrev_b32(v(T4), 1, v(G)); A.v_add_u32(v(T3), v(T3), v(T4))
    A.v_lshlrev_b32(v(T3), 13, v(T3)); A.v_lshl_add_u32(v(T3), v(N16), 4, v(T3))
    A.s_lshl_b32(s(S_T0), s(S_W), 16); A.v_add_u32(v(T3), s(S_T0), v(T3))
    if PAR['swz']:
        A.v_lshrrev_b32(v(T4), 13, v(T3)); A.v_xor_b32(v(T4), s(S_H), v(T4)); A.v_lshl_add_u32(v(V_PST), v(T4), 8, v(T3))
    else:
        A.s_lshl_b32(s(S_T1), s(S_H), 8); A.v_add_u32(v(V_PST), s(S_T1), v(T3))
    A.v_lshrrev_b32(v(T3), 2, v(L)); A.v_lshlrev_b32(v(T3), 8, v(T3))
    A.v_and_b32(v(T4), 3, v(L)); A.v_lshl_add_u32(v(T3), v(T4), 4, v(T3))
    A.s_lshl_b32(s(S_T0), s(S_H), 13); A.s_lshl_b32(s(S_T1), s(S_W), 6); A.s_add_u32(s(S_T0), s(S_T0), s(S_T1))
    A.v_add_u32(v(V_PLD), s(S_T0), v(T3))
    A.v_lshrrev_b32(v(T3), 3, v(L)); A.v_lshlrev_b32(v(T3), 4, v(T3))
    A.v_and_b32(v(T4), 2, v(L)); A.v_lshl_add_u32(v(T3), v(T4), 1, v(T3))
    A.s_lshl_b32(s(S_T0), s(S_H), 8); A.s_lshr_b32(s(S_T1), s(S_W), 1); A.s_lshl_b32(s(S_T1), s(S_T1), 7); A.s_add_u32(s(S_T0), s(S_T0), s(S_T1))
    A.s_and_b32(s(S_T1), s(S_W), 1); A.s_lshl_b32(s(S_T1), s(S_T1), 3); A.s_add_u32(s(S_T0), s(S_T0), s(S_T1))
    A.v_add_u32(v(T3), s(S_T0), v(T3))
    A.v_and_b32(v(T4), 5, v(L)); A.v_cmp_eq_u32('vcc', 0, v(T4)); A.v_bfrev_b32(v(T4), 1)
    A.v_cndmask_b32(v(V_MST), v(T4), v(T3))
    A.v_mov_b32(v(T3), '0x4444'); A.v_mov_b32(v(T4), '0xeeee')
    A.v_cmp_lt_u32('vcc', 7, v(N16)); A.v_cndmask_b32(v(V_IDX), v(T3), v(T4))
    A.v_lshlrev_b32(v(T1), 2, v(G)); A.v_sub_u32(v(T1), v(N16), v(T1))
    A.v_and_b32(v(T2), 1, v(L)); A.v_lshlrev_b32(v(T2), 4, v(T2)); A.v_mov_b32(v(T3), '0x3f80'); A.v_lshlrev_b32(v(T2), v(T2), v(T3))
    A.v_lshrrev_b32(v(T1), 1, v(T1))
    A.v_cmp_eq_u32('vcc', 0, v(T1)); A.v_cndmask_b32(v(V_E), 0, v(T2), 'vcc')
    A.v_cmp_eq_u32('vcc', 1, v(T1)); A.v_cndmask_b32(v(V_E+1), 0, v(T2), 'vcc')
    for i in range(2): A.v_mov_b32(v(V_ONE+i), '0x3f803f80'); A.v_mov_b32(v(V_HALF+i), '0x3f003f00')
    A.c('---- scalar constants ----')
    cbits = struct.unpack('<I', struct.pack('<f', (128 ** -0.5) * 1.4426950408889634))[0]
    A.s_mov_b32(s(S_C), hex(cbits)); A.s_mov_b32(s(S_C+1), hex(cbits))
    A.s_lshl_b32(s(S_T0), s(S_X), 14)
    for par in range(2):
        A.s_add_u32(s(S_MEMST+par), s(S_T0), WS_MEM_ + par*8192)
        A.s_add_u32(s(S_MEMLD+par), s(S_T0), WS_MEM_ + par*8192 - L_MEMB)
    A.s_lshl_b32(s(S_PRG), s(S_X), 5); A.s_add_u32(s(S_PRG), s(S_PRG), s(S_H)); A.s_lshl_b32(s(S_PRG), s(S_PRG), 7); A.s_add_u32(s(S_PRG), s(S_PRG), WS_CTL + C_PROG)
    A.s_lshl_b32(s(S_T0), s(S_X), 18)
    for i in range(2):
        A.s_add_u32(s(S_PST+i), s(S_T0), WS_PART_ + i*32768)
        A.s_add_u32(s(S_PLD+i), s(S_T0), WS_PART_ + i*4096)
    if PAR['swz']:
        A.s_and_b32(s(S_T1), s(S_H), 4); A.s_lshl_b32(s(S_T1), s(S_T1), 9); A.s_add_u32(s(S_PST+1), s(S_PST+1), 1024); A.s_sub_u32(s(S_PST+1), s(S_PST+1), s(S_T1))
    A.s_lshl_b32(s(S_T0), s(S_H), 13)
    A.s_add_u32(s(S_KX), s(S_T0), WS_KX - L_MEMB); A.s_add_u32(s(S_VT), s(S_T0), WS_VT - L_MEMB)
    A.s_add_u32(s(S_PUB), s(S_T0), WS_PUB - L_MEMB); A.s_lshl_b32(s(S_T1), s(S_X), 9); A.s_add_u32(s(S_PUBV), s(S_PUB), s(S_T1))
    A.c('---- init hand-off buffers (write-through) ----')
    for i in range(4): A.v_mov_b32(v(32+i), 1)
    A.v_mov_b32(v(36), -1)
    xq_base(A, fb)
    for k in range(4):
        A.buffer_store_dwordx4(v(32, 4), v(V_MW), s(S_WS, 4), s(S_T0), m='offen sc1')
        A.buffer_store_dwordx2(v(32, 2), v(V_L8), s(S_WS, 4), s(S_T0), m='offen offset:1024 sc1')
        if k < 3: A.s_add_u32(s(S_T0), s(S_T0), 8192)
    for q in range(2):
        A.buffer_store_dwordx4(v(32, 4), v(V_PLD), s(S_WS, 4), s(S_PLD+q), m='offen sc1')
    for par in range(2):
        A.buffer_store_dword(v(36), v(V_MST), s(S_WS, 4), s(S_MEMST+par), m='offen sc1')
    A.c('---- weight load ----')
    VD, VDO, VRQ, VRQB, VRV, VRVB, VRO, VM0, R_ = 23, 24, 25, 26, 27, 28, 29, 30, 31
    A.v_lshrrev_b32(v(T1), 2, v(L)); A.v_and_b32(v(T2), 3, v(L))
    A.v_lshlrev_b32(v(T3), 4, v(T2))
    A.v_lshl_add_u32(v(VD), v(T1), 13, v(T3)); A.v_lshl_add_u32(v(VDO), v(T1), 11, v(T3))
    A.s_lshl_b32(s(S_T0), s(S_X), 22); A.s_lshl_b32(s(S_T1), s(S_H), 8); A.s_add_u32(s(S_T0), s(S_T0), s(S_T1))
    A.s_lshl_b32(s(S_T1), s(S_W), 6); A.s_add_u32(s(S_T0), s(S_T0), s(S_T1)); A.v_add_u32(v(VD), s(S_T0), v(VD))
    A.s_lshl_b32(s(S_T0), s(S_H), 18); A.s_lshl_b32(s(S_T1), s(S_X), 10); A.s_add_u32(s(S_T0), s(S_T0), s(S_T1))
    A.s_lshl_b32(s(S_T1), s(S_W), 8); A.s_add_u32(s(S_T0), s(S_T0), s(S_T1)); A.v_add_u32(v(VDO), s(S_T0), v(VDO))
    A.v_bfe_u32(v(R_), v(L), 3, 1)
    A.v_bfe_u32(v(T1), v(L), 2, 1)
    A.v_lshl_add_u32(v(T4), v(G), 2, v(T1)); A.v_lshlrev_b32(v(T4), 6, v(T4)); A.v_add_u32(v(T4), s(S_T3), v(T4))
    A.v_mul_u32_u24(v(VRQ), 6144, v(R_)); A.v_add3_u32(v(VRQ), v(VRQ), v(T4), v(T3)); A.v_xor_b32(v(VRQB), 4096, v(VRQ))
    A.v_mul_u32_u24(v(VRV), 2080, v(R_)); A.v_lshl_add_u32(v(VRV), v(T2), 3, v(VRV)); A.v_add_u32(v(VRV), v(VRV), v(T4)); A.v_xor_b32(v(VRVB), 2048, v(VRV))
    A.v_and_b32(v(T3), 1, v(G)); A.v_lshlrev_b32(v(T3), 4, v(T3)); A.v_lshrrev_b32(v(T4), 1, v(G)); A.v_lshl_add_u32(v(T3), v(T4), 2, v(T3))
    A.v_add_u32(v(T3), v(T3), v(T1)); A.v_lshlrev_b32(v(T3), 6, v(T3)); A.v_lshl_add_u32(v(T3), v(R_), 5, v(T3)); A.v_lshl_add_u32(v(T3), v(T2), 3, v(T3))
    A.v_add_u32(v(VRO), s(S_T3), v(T3))
    A.v_and_b32(v(T1), 7, v(L)); A.v_lshlrev_b32(v(T1), 11, v(T1)); A.v_lshl_add_u32(v(T1), v(G), 4, v(T1))
    A.v_lshl_add_u32(v(T1), v(R_), 6, v(T1))
    A.s_lshl_b32(s(S_T0), s(S_X), 10); A.s_lshl_b32(s(S_T1), s(S_W), 8); A.s_add_u32(s(S_T0), s(S_T0), s(S_T1)); A.v_add_u32(v(VM0), s(S_T0), v(T1))
    groups = [('qk', a_, i) for a_ in range(4) for i in range(2)] + [('v', 0), ('v', 1)] + [('o', T) for T in range(4)] + [('v', 2), ('v', 3)]
    cur = [None]
    def setsrd(p, n):
        if cur[0] != p: srd(A, S_TMP, p, n); cur[0] = p
    srd(A, S_TMP2, P_WK, 1024*4096*2)
    def issue(g):
        slot, gr = g % 4, groups[g]
        setsrd(*{'qk': (P_WQ, 1 << 23), 'v': (P_WV, 1 << 23), 'o': (P_WO, 1 << 23)}[gr[0]])
        if gr[0] != 'o': A.s_xor_b32(s(S_T1), s(S_W), gr[1]); A.s_lshl_b32(s(S_T1), s(S_T1), 20)
        for b in range(8):
            sr = S_TMP
            if gr[0] == 'qk':
                j2, mat, hf = b // 4, (b // 2) % 2, b % 2
                A.s_add_u32(s(S_T0), s(S_T1), hex((64*gr[2] + 32*j2 + 16*hf) << 13))
                if mat: sr = S_TMP2
            elif gr[0] == 'v': A.s_add_u32(s(S_T0), s(S_T1), hex((16*b) << 13))
            else:
                if b % 2 == 0: A.s_xor_b32(s(S_T1), s(S_W), b // 2); A.s_lshl_b32(s(S_T1), s(S_T1), 16)
                A.s_add_u32(s(S_T0), s(S_T1), hex((b % 2)*32768 + gr[1]*64))
            A.s_add_u32('m0', s(S_T3), slot*8192 + b*1024)
            A.buffer_load_dwordx4(v(VDO if gr[0] == 'o' else VD), s(sr, 4), s(S_T0), m='offen lds')
    def wr_frag(src, f):
        for u in range(2): A.ds_write_b128(v(V_WO), v(src + 4*u, 4), m=f'offset:{f*2048 + u*1024}')
    for g in range(4): issue(g)
    for g in range(16):
        A.wait(vm=min(3, 15-g) * 8)
        slot, gr = g % 4, groups[g]
        cnt = 0
        for k in range(4):
            for m in range(4):
                ro = (16*(m//2) + 2*(m % 2))*64
                if gr[0] == 'qk':
                    f, tau = k // 2, k % 2
                    A.ds_read_b64_tr_b16(r(WQK(tau, 4*gr[1] + 2*gr[2] + f) + 2*m, 2), v(VRQB if f else VRQ), m=f'offset:{slot*8192 + ro + tau*8}')
                elif gr[0] == 'v':
                    i, f = k // 2, k % 2
                    dst = WVR + (4*gr[1] + k)*8 if gr[1] < 2 else 96 + 8*k
                    A.ds_read_b64_tr_b16(v(dst + 2*m, 2), v(VRVB if f else VRV), m=f'offset:{slot*8192 + i*4096 + ro}')
                else:
                    dst = {0: 32 + 8*gr[1], 3: 64 + 8*gr[1], 1: WOR + 8*gr[1], 2: WOR + 32 + 8*gr[1]}[k]
                    A.ds_read_b64_tr_b16(v(dst + 2*m, 2), v(VRO), m=f'offset:{slot*8192 + (32*k + 8*(m//2) + 2*(m % 2))*64}')
            if k == 2: A.wait(lgkm=4)
        A.wait(lgkm=0)
        if g+4 < 16: issue(g+4)
        if g >= 14:
            for k in range(4): wr_frag(96 + 8*k, 4*(g-14) + k)
            A.wait(lgkm=0)
    for k in range(8): wr_frag(32 + 8*k, 8 + k)
    A.wait(lgkm=0)
    srd(A, S_TMP, P_MEM0, 8*1024*2)
    for i in range(2):
        A.buffer_load_dwordx4(v(PB[0]+4*i, 4), v(VM0), s(S_TMP, 4), 0, m=f'offen offset:{i*128}')

def kv_wait(A, abort, blk_sreg, t):
    lp, ok = A.newlabel('kvw'), A.newlabel('kvok')
    A.s_cmp_lt_u32(s(blk_sreg), s(S_KVR)); A.s_cbranch_scc1(ok)
    A.v_bfe_u32(v(t), v(V_WO), 4, 4); A.v_lshlrev_b32(v(t), 7, v(t))
    A.s_mov_b32(s(S_T0), WS_CTL + C_CNT + T_KV*2048)
    A.label(lp)
    A.buffer_load_dword(v(t+1), v(t), s(S_WS, 4), s(S_T0), m='offen sc1')
    A.wait(vm=0)
    A.v_cmp_gt_u32('vcc', KV_TARGET, v(t+1))
    A.s_or_b32(s(S_KVR), 'vcc_lo', 0x10000); A.s_ff1_i32_b32(s(S_KVR), s(S_KVR))
    A.s_cmp_lt_u32(s(blk_sreg), s(S_KVR)); A.s_cbranch_scc1(ok)
    spin_guard(A, lp, abort)
    A.label(ok)
KV_TARGET = 32

def kv_prefetch(A):
    ops = []
    for t in range(2): ops.append(lambda t=t: A.buffer_load_dwordx4(v(KP+4*t, 4), v(V_MW), s(S_WS, 4), s(S_KX), m=f'offen offset:{1024*t} sc1'))
    for t in range(2): ops.append(lambda t=t: A.buffer_load_dwordx4(v(VP+4*t, 4), v(V_MW), s(S_WS, 4), s(S_VT), m=f'offen offset:{1024*t} sc1'))
    return ops
def kv_advance(A): A.s_add_u32(s(S_KX), s(S_KX), 262144); A.s_add_u32(s(S_VT), s(S_VT), 262144)

TIMERS = False
NTM = 14
def TM(A, i):
    if TIMERS: (A.s_memrealtime if PAR.get('raw') else A.s_memtime)(s(64+2*i, 2))
def TMACC(A):
    if TIMERS:
        A.wait(lgkm=0)
        if PAR.get('raw'):
            A.s_cmp_eq_u32(s(S_STEP), PAR['raw'])
            for i in range(NTM): A.s_cselect_b32(s(S_ACC+i), s(64+2*i), s(S_ACC+i))
        for i in range(NTM-1):
            if PAR.get('raw'): break
            A.s_sub_u32(s(S_T0), s(66+2*i), s(64+2*i)); A.s_add_u32(s(S_ACC+i), s(S_ACC+i), s(S_T0))
        A.s_mov_b32(s(64), s(64+2*(NTM-1)))
def cvt(A, d, a_, b): return lambda: A.v_cvt_pk_bf16_f32(v(d), v(a_), v(b))
def tagop(A, d, tag): return (lambda: A.v_or_b32(v(d), 1, v(d))) if tag else (lambda: A.v_and_b32(v(d), -2, v(d)))
def run(ops):
    for f in ops: f()

Q0, Q1, VA = 104, 108, 112
BB, TC = 116, 120
def zero_qk(A):
    for i in range(4): A.v_mov_b64(v(Q0+2*i, 2), 0)
def pre_mem(A):
    for t in range(2): A.ds_write_b128(v(V_MW), v(KP+4*t, 4), m=f'offset:{O_KX + 1024*t}')
    zero_qk(A)
    for i in range(2): A.v_mov_b64(v(VA+2*i, 2), 0)
    for a_ in range(4): A.v_xor_b32(v(BB+a_), 512, v(V_A+a_))

def chain_step(A, u, abort, fb, cold, first_entry=None, last=False, done=None):
    par, xtag, ptag = u % 2, (u // 2) % 2, u % 2
    st = 'offen sc1' if fb else 'offen'
    A.c(f'======== chain step u={u} last={last} ========')
    sm = lambda acc, af, W: A.v_smfmac_f32_16x16x64_bf16(v(acc, 4), v(af, 4), r(W, 8), v(V_IDX))
    def poll(check, loads, nfl, name):
        lp, rt = A.newlabel(name + 'l'), A.newlabel(name + 'r')
        A.label(lp); check(); A.s_cbranch_vccnz(rt)
        def emit():
            A.label(rt); A.s_mov_b64('exec', 'vcc')
            k = len(A.items); loads(); k = len(A.items) - k
            A.s_mov_b64('exec', -1)
            A.s_sub_u32(s(S_TO), s(S_TO), 1); A.s_cbranch_scc1(abort)
            A.wait(vm=k*(nfl-1)); A.s_branch(lp)
        cold.append(emit)
        return lp
    p = PB[0]
    def memld():
        for i in range(2): A.buffer_load_dwordx4(v(p+4*i, 4), v(V_MW), s(S_WS, 4), s(S_MEMLD+par), m=f'offen offset:{1024*i} sc1').nochk = True
    late = PAR['md'] or PAR['ack'] & 2
    if not late: memld()
    TMACC(A)
    pre_mem(A)
    if PAR['ack'] & 2: A.wait(vm=0)
    if late: A.nop(PAR['md']); memld()
    A.wait(vm=0)
    others = [(a_, i, f) for a_ in range(1, 4) for i in range(2) for f in range(2)]
    def ord_(k, q):
        a_, i, f = others[k]
        A.ds_read_b128(v(AF(4*a_+2*i+f), 4), v((BB if f else V_A) + a_), m=f'offset:{1024*i}'); q.issue(4*a_+2*i+f)
    def mchk():
        A.v_max3_u32(v(TC), v(p), v(p+1), v(p+2)); A.v_max3_u32(v(TC+1), v(p+3), v(p+4), v(p+5))
        A.v_max3_u32(v(TC), v(TC), v(p+6), v(p+7)); A.v_max_u32(v(TC), v(TC), v(TC+1))
        A.v_cmp_eq_u32('vcc', -1, v(TC))
    top = poll(mchk, memld, PAR['nm'], 'm')
    if first_entry:
        def emit_entry():
            A.label(first_entry); A.wait(vm=0)
            for i in range(8): A.v_min_u32(v(PB[0]+i), -2, v(PB[0]+i))
            pre_mem(A)
            for i in range(NTM): TM(A, i)
            A.s_branch(top)
        cold.append(emit_entry)
    q = LQ(A)
    TM(A, 1)
    if PAR['xb']: return xb_rest(A, u, abort, fb, cold, last, done, poll)
    A.ds_write_b128(v(V_MW), v(p, 4)); A.ds_write_b128(v(V_MW), v(p+4, 4), m='offset:1024'); q.issue('w0'); q.issue('w1')
    sm(Q0, p, WQK(0, 0))
    A.ds_read_b128(v(AF(1), 4), v(BB)); A.ds_read_b128(v(AF(3), 4), v(BB), m='offset:1024'); q.issue(1); q.issue(3)
    sm(Q1, p, WQK(1, 0))
    sm(Q0, p+4, WQK(0, 2))
    q.need(['w1']); A.s_barrier()
    TM(A, 2)
    ord_(0, q); ord_(1, q)
    sm(Q1, p+4, WQK(1, 2))
    ord_(2, q); ord_(3, q)
    sm(VA, p, WVR)
    sm(VA, p+4, WVR+16)
    VF = [32, 40, 48, 56, 64, 72, 80, 88]
    def vrd(k, uu):
        A.ds_read_b128(v(VF[k]+4*uu, 4), v(V_WO), m=f'offset:{k*2048 + uu*1024}'); q.issue(('v', k, uu))
    k = 4
    seq = [1, 3] + list(range(4, 16))
    for n, jj in enumerate(seq):
        q.need([jj])
        for tau in range(2):
            sm(Q1 if tau else Q0, AF(jj), WQK(tau, jj))
            for _ in range(2):
                if k < 12: ord_(k, q); k += 1
            if jj == 13 and tau == 1: A.wait(vm=0)
            if jj >= 14: vrd(jj-14, tau)
    PK = Q0
    PJ = 116
    PKV, VR = 124, 126
    def xld(): A.buffer_load_dwordx4(v(PJ, 4), v(V_MW), s(S_WS, 4), s(S_XQI+par), m='offen sc1').nochk = True
    side = {0: [cvt(A, PK, Q0, Q0+1), cvt(A, PK+1, Q0+2, Q0+3), tagop(A, PK, xtag)],
            1: [cvt(A, PK+2, Q1, Q1+1), cvt(A, PK+3, Q1+2, Q1+3),
                lambda: A.buffer_store_dwordx4(v(PK, 4), v(V_MW), s(S_WS, 4), s(S_XQO+par), m='offen sc1'), lambda: TM(A, 3)],
            2: [lambda: vrd(2, 0), lambda: vrd(2, 1)], 3: [lambda: vrd(3, 0), lambda: vrd(3, 1)],
            5: [lambda: vrd(4, 0), lambda: vrd(4, 1)], 7: [lambda: vrd(5, 0), lambda: vrd(5, 1)],
            9: [lambda: vrd(6, 0), lambda: vrd(6, 1)], 11: [lambda: vrd(7, 0), lambda: vrd(7, 1)]}
    vq = []
    for n, jj in enumerate(seq):
        if jj >= 8: q.need([('v', jj-8, 0), ('v', jj-8, 1)])
        sm(VA, AF(jj), WVR + 8*jj if jj < 8 else VF[jj-8])
        run(side.get(n, []))
        if (PAR['pj'] >> n) & 1: xld(); vq.append(n)
    KR, VTC, QF, KF = 32, 64, 72, 88
    CO, DD = KF+4, KF+12
    if not last:
        for a_ in range(3):
            for t in range(2): A.ds_read_b128(v(KR+8*a_+4*t, 4), v(V_A+a_), m=f'offset:{O_KX + 1024*t}')
    run([cvt(A, PKV, VA, VA+1), cvt(A, PKV+1, VA+2, VA+3), tagop(A, PKV, xtag)])
    A.buffer_store_dwordx2(v(PKV, 2), v(V_L8), s(S_WS, 4), s(S_XQO+par), m='offen offset:1024 sc1'); vq.append('st')
    TM(A, 4)
    if PAR['xa'] or vq[0] == 'st': xld(); vq.append('p')
    for tau in range(2): A.v_mfma_f32_16x16x16_bf16(v(CO+4*tau, 4), v(PK+2*tau, 2), v(V_E, 2), 0)
    if not last:
        for t in range(2): A.ds_read_b128(v(KR+24+4*t, 4), v(V_A+3), m=f'offset:{O_KX + 1024*t}')
        for i in range(4): A.v_mov_b64(v(VTC+2*i, 2), v(VP+2*i, 2))
        for a_ in range(4): A.v_and_b32(v(DD+a_), -513, v(V_A+a_))
        if u == 3:
            A.s_add_u32(s(S_T1), s(S_STEP), 1); A.s_lshr_b32(s(S_T1), s(S_T1), 2)
    DP, F = Q0, VA
    def xchk(): A.v_and_b32(v(F), 1, v(PJ)); A.v_cmp_ne_u32('vcc', xtag, v(F))
    ok = A.newlabel('xok')
    while vq[0] != 'st':
        A.wait(vm=len(vq) - 1); del vq[0]
        xchk(); A.s_cbranch_vccz(ok)
        if PAR['xre']: xld(); vq.append('p')
    if len(vq) == 1: xld(); vq.append('p')
    A.wait(vm=len(vq) - 2)
    poll(xchk, xld, PAR['nx'], 'x')
    A.label(ok)
    for tau in range(2): A.v_mfma_f32_16x16x16_bf16(v(DP+4*tau, 4), v(PJ+2*tau, 2), v(V_E, 2), v(CO+4*tau, 4))
    TM(A, 5)
    vld = lambda: A.buffer_load_dwordx2(v(VR, 2), v(V_L8), s(S_WS, 4), s(S_XQI+par), m='offen offset:1024 sc1')
    pubv = lambda: A.buffer_store_dwordx2(v(PKV, 2), v(V_L8), s(S_WS, 4), s(S_PUBV), m='offen offset:1024 sc1')
    pubf = lambda: A.buffer_store_dwordx4(v(F, 4), v(V_MW), s(S_PUBD, 4), s(S_PUB), m='offen sc1')
    def progress(val, t):
        A.v_mov_b32(v(t), val)
        A.buffer_store_dword(v(t), 'off', s(S_WS, 4), s(S_PRG), m='sc1')
    fcv = [cvt(A, F+i, DP+2*i, DP+2*i+1) for i in range(4)]
    if last:
        pubv(); run(fcv); pubf()
        A.wait(vm=0); A.s_barrier()
        progress(64, 32)
        A.s_branch(done)
        return
    if PAR['drop']: A.buffer_store_dwordx4(v(PJ, 4), v(V_MW), s(S_WS, 4), s(S_XQI+par), m='offen sc1')
    pubv()
    run(fcv)
    q = LQ(A, ['k'])
    A.ds_write_b128(v(V_MW), v(F, 4), m=f'offset:{O_FO}'); q.issue('w')
    def qrd(a_): A.ds_read_b128(v(QF+4*a_, 4), v(DD+a_), m=f'offset:{O_FO}'); q.issue(('q', a_))
    def krd(a_): A.ds_read_b128(v(KF+4*a_, 4), v(DD+a_), m=f'offset:{O_FO + 512}'); q.issue(('k', a_))
    qrd(0); krd(0)
    pubf()
    if u == 3: kv_wait(A, abort, S_T1, QF+4)
    pf = kv_prefetch(A)
    q.need(['w']); A.s_barrier()
    TM(A, 6)
    for a_ in range(1, 4): qrd(a_)
    vld()
    for a_ in range(1, 4): krd(a_)
    run(pf[:2])
    SX0, SX1, SM = 104, 108, 112
    mf = lambda d, a_, b_, c_: A.v_mfma_f32_16x16x32_bf16(v(d, 4), v(a_, 4), v(b_, 4), c_)
    q.need([('q', 0)])
    mf(SX0, KR, QF, 0); pf[2](); mf(SX1, KR+4, QF, 0); pf[3]()
    q.need([('k', 0)])
    mf(SM, KF, QF, 0)
    progress(s(S_STEP), 38)
    A.s_add_u32(s(S_PUB), s(S_PUB), 262144); A.s_add_u32(s(S_PUBV), s(S_PUBV), 262144); kv_advance(A)
    for a_ in range(1, 4):
        q.need([('q', a_)])
        mf(SX0, KR+8*a_, QF+4*a_, v(SX0, 4)); mf(SX1, KR+8*a_+4, QF+4*a_, v(SX1, 4))
    WF = [40, 48, 56, 72, 80, 88, 40, 48]
    WI = [8, 9, 10, 11, 12, 13, 14, 15]
    def wrd(k, uu): A.ds_read_b128(v(WF[k]+4*uu, 4), v(V_WO), m=f'offset:{WI[k]*2048 + uu*1024}'); q.issue(('w', k, uu))
    wl = [lambda k=k, uu=uu: wrd(k, uu) for k in range(6) for uu in range(2)]
    M, T = 38, 39
    PX, PM = 32, 36
    q.need([('k', 1)]); mf(SM, KF+4, QF+4, v(SM, 4)); run(wl[0:2])
    q.need([('k', 2)]); mf(SM, KF+8, QF+8, v(SM, 4)); A.v_max3_f32(v(M), v(104), v(105), v(106)); run(wl[2:3])
    q.need([('k', 3)]); mf(SM, KF+12, QF+12, v(SM, 4))
    TM(A, 7)
    A.v_max3_f32(v(M), v(M), v(107), v(108)); A.v_max3_f32(v(T), v(109), v(110), v(111)); A.v_max_f32(v(M), v(M), v(T))
    A.v_mov_b32(v(T), v(M)); run(wl[3:5]); A.v_permlane32_swap_b32(v(M), v(T)); A.v_max_f32(v(M), v(M), v(T))
    A.v_max3_f32(v(M), v(M), v(112), v(113)); A.v_max3_f32(v(M), v(M), v(114), v(115))
    A.v_mov_b32(v(T), v(M)); run(wl[5:7]); A.v_permlane16_swap_b32(v(M), v(T)); A.v_max_f32(v(M), v(M), v(T))
    A.v_mul_f32(v(M), s(S_C), v(M))
    fm = lambda i: A.v_pk_fma_f32(v(104+2*i, 2), v(104+2*i, 2), s(S_C, 2), v(M, 2), m='op_sel_hi:[1,1,0] neg_lo:[0,0,1] neg_hi:[0,0,1]')
    ex = lambda i: A.v_exp_f32(v(104+i), v(104+i))
    for i in range(4): fm(i)
    ex(0); run(wl[7:8]); ex(1); run(wl[8:9]); ex(2); cvt(A, PX, 104, 105)(); ex(3); run(wl[9:10]); ex(4); cvt(A, PX+1, 106, 107)()
    ex(5); run(wl[10:11]); ex(6); cvt(A, PX+2, 108, 109)(); ex(7); run(wl[11:12]); fm(4); cvt(A, PX+3, 110, 111)(); fm(5)
    O0, O1, LS, OP = 96, 100, VTC, VTC+4
    ex(8)
    mf(O0, VTC, PX, 0); ex(9); ex(10)
    mf(O1, VTC+4, PX, 0); ex(11); cvt(A, PM, 112, 113)()
    m16 = lambda d, a_, b_, c_: A.v_mfma_f32_16x16x16_bf16(v(d, 4), v(a_, 2), v(b_, 2), c_)
    m16(LS, V_ONE, PX, 0); cvt(A, PM+1, 114, 115)()
    A.wait(vm=5)
    vs, vc = A.newlabel('vs'), A.newlabel('vc')
    A.v_and_b32(v(T), 1, v(VR))
    m16(LS, V_ONE, PX+2, v(LS, 4))
    A.v_cmp_ne_u32('vcc', xtag, v(T)); A.s_cbranch_vccnz(vs); A.label(vc)
    def emit_vs():
        A.label(vs); vld(); A.wait(vm=0)
        A.v_and_b32(v(T), 1, v(VR)); A.v_cmp_ne_u32('vcc', xtag, v(T))
        A.s_cbranch_vccz(vc); spin_guard(A, vs, abort)
    cold.append(emit_vs)
    if PAR['drop']: A.buffer_store_dwordx2(v(VR, 2), v(V_L8), s(S_WS, 4), s(S_XQI+par), m='offen offset:1024 sc1')
    A.v_permlane32_swap_b32(v(PKV), v(VR)); A.v_permlane32_swap_b32(v(PKV+1), v(VR+1))
    m16(LS, V_HALF, PM, v(LS, 4))
    WA = 104
    zl = [lambda i=i: A.v_mov_b64(v(WA+2*i, 2), 0) for i in range(8)]
    zl[0]()
    m16(O0, PKV, PM, v(O0, 4)); zl[1](); m16(O1, VR, PM, v(O1, 4))
    run(zl[2:7])
    A.v_rcp_f32(v(LS), v(LS))
    zl[7]()
    for o in (O0, O0+2, O1, O1+2): A.v_pk_mul_f32(v(o, 2), v(o, 2), v(LS, 2), m='op_sel_hi:[1,0]')
    for i in range(4): cvt(A, OP+i, O0+2*i, O0+2*i+1)()
    A.ds_write_b128(v(V_MW), v(OP, 4), m=f'offset:{O_FO + 1024}'); q.issue('ow')
    TM(A, 8)
    OF = [OP, 96, 100, 32]
    def wo(T_, a_):
        if a_ in (0, 3):
            k = T_ if a_ == 0 else 4 + T_
            q.need([('w', k, 0), ('w', k, 1)]); W = WF[k]
        else: W = WOR + 32*(a_-1) + 8*T_
        if a_: q.need([('o', a_)])
        sm(WA+4*T_, OF[a_], W)
    wo(0, 0); wo(1, 0); wo(2, 0)
    q.need(['ow']); A.s_barrier()
    TM(A, 9)
    for a_ in range(1, 4):
        A.ds_read_b128(v(OF[a_], 4), v(V_A+a_), m=f'offset:{O_FO + 1024}'); q.issue(('o', a_))
        if a_ == 1: wo(3, 0)
    for k in (6, 7):
        for uu in range(2): wrd(k, uu)
    def post(b, k):
        return [cvt(A, b, b, b+1), cvt(A, b+1, b+2, b+3), cvt(A, b+2, b+4, b+5), cvt(A, b+3, b+6, b+7),
                lambda: A.v_permlane16_swap_b32(v(b), v(b+2)), lambda: A.v_permlane16_swap_b32(v(b+1), v(b+3)), tagop(A, b, ptag),
                lambda: A.buffer_store_dwordx4(v(b, 4), v(V_PST), s(S_WS, 4), s(S_PST+k), m=st)]
    for a_ in (1, 2, 3): wo(0, a_); wo(1, a_)
    p0 = post(WA, 0)
    n = 0
    for a_ in (1, 2, 3):
        for T_ in (2, 3):
            wo(T_, a_)
            if n: run(p0[2*n-2:2*n])
            n += 1
    run(post(WA+8, 1))
    TM(A, 10)
    reducer(A, u, fb, poll)

def reducer(A, u, fb, poll):
    par, ptag = u % 2, u % 2
    st = 'offen sc1' if fb else 'offen'
    mf = lambda d, a_, b_, c_: A.v_mfma_f32_16x16x32_bf16(v(d, 4), v(a_, 4), v(b_, 4), c_)
    RB_, SEL, X = 64, 48, 56
    def pld():
        for qq in range(2): A.buffer_load_dwordx4(v(RB_+4*qq, 4), v(V_PLD), s(S_WS, 4), s(S_PLD+qq), m='offen sc1').nochk = True
    skp = A.newlabel('skp')
    if PAR['hv']: A.s_cmp_ge_u32(s(S_W), 2); A.s_cbranch_scc1(skp)
    late = PAR['pd'] or PAR['ack'] & 1
    if not late: pld()
    A.v_and_b32(v(SEL+4), 16, v(V_WO)); A.v_mov_b32(v(SEL+5), '0x3f80'); A.v_lshlrev_b32(v(SEL+4), v(SEL+4), v(SEL+5))
    for i in range(4):
        A.s_mov_b32('vcc_lo', hex(0x00030003 << (4*i))); A.s_mov_b32('vcc_hi', hex(0x00030003 << (4*i)))
        A.v_cndmask_b32(v(SEL+i), 0, v(SEL+4), 'vcc')
    A.v_mov_b32(v(SEL+4), -1)
    if PAR['ack'] & 1: A.wait(vm=0)
    if late: A.nop(PAR['pd']); pld()
    A.wait(vm=0)
    def pchk():
        A.v_bitop3_b32(v(X+4), v(RB_), v(RB_+4), 1, m='bitop3:' + ('0x80' if ptag else '0xa8'))
        A.v_cmp_ne_u32('vcc', ptag, v(X+4))
    poll(pchk, pld, PAR['np'], 'p')
    if PAR['hv']: A.label(skp); A.v_mov_b32(v(SEL+4), -1)
    mf(X, SEL, RB_, 0); mf(X, SEL, RB_+4, v(X, 4))
    TM(A, 11)
    Y = X+4
    A.v_add_f32_dpp(v(Y), v(X), v(X), m='row_ror:8 row_mask:0xf bank_mask:0x3')
    A.v_add_f32_dpp(v(Y), v(X+1), v(X+1), m='row_ror:8 row_mask:0xf bank_mask:0xc')
    A.v_add_f32_dpp(v(Y), v(Y), v(Y), m='row_shl:4 row_mask:0xf bank_mask:0xf')
    A.v_mov_b32_dpp(v(Y+1), v(Y), m='quad_perm:[1,1,3,3] row_mask:0xf bank_mask:0xf')
    A.v_cvt_pk_bf16_f32(v(Y+2), v(Y), v(Y+1))
    A.v_min_u32(v(Y+2), -2, v(Y+2))
    A.buffer_store_dword(v(Y+2), v(V_MST), s(S_WS, 4), s(S_MEMST+1-par), m=st)
    TM(A, 12)
    A.buffer_store_dword(v(SEL+4), v(V_MST), s(S_WS, 4), s(S_MEMST+par), m=st)
    A.s_add_u32(s(S_STEP), s(S_STEP), 1)
    TM(A, 13)

def xb_rest(A, u, abort, fb, cold, last, done, poll):
    par, ptag = u % 2, u % 2
    st = 'offen sc1' if fb else 'offen'
    A.s_barrier()
    for i in range(2, 10): TM(A, i)
    if last: A.wait(vm=0); A.s_branch(done); return
    A.nop(PAR['xb'])
    if PAR['hv']: A.s_mov_b32('exec_lo', '0x00ff00ff'); A.s_mov_b32('exec_hi', '0x00ff00ff')
    for k in range(2):
        for i in range(4): A.v_mov_b32(v(104+8*k+i), ptag)
        if k: A.nop(PAR['sg'])
        A.buffer_store_dwordx4(v(104+8*k, 4), v(V_PST), s(S_WS, 4), s(S_PST+k), m=st)
    A.s_mov_b64('exec', -1)
    TM(A, 10)
    reducer(A, u, fb, poll)

def chain_loop(A, abort, done, fb):
    top, ent, lastl = A.newlabel('ctop'), A.newlabel('cent'), A.newlabel('clast')
    cold = []
    xq_base(A, fb); A.s_add_u32(s(S_T0), s(S_T0), s(S_POL))
    A.s_lshl_b32(s(S_T1), s(S_X), 21); A.s_sub_u32(s(S_T1), 1 << 20, s(S_T1))
    for par in range(2):
        A.s_add_u32(s(S_XQI+par), s(S_T0), par*16384); A.s_add_u32(s(S_XQO+par), s(S_XQI+par), s(S_T1))
    A.wait(vm=0)
    srd(A, S_PUBD, P_WS, WS_SIZE)
    A.s_cmp_lg_u32(s(S_X), 0); A.s_cselect_b32(s(S_PUBD+2), 0, s(S_PUBD+2))
    A.s_mov_b32(s(S_STEP), 0); A.s_mov_b32(s(S_KVR), 0)
    if TIMERS:
        for i in range(NTM): A.s_mov_b32(s(S_ACC+i), 0)
    kv_wait(A, abort, S_STEP, 48)
    run(kv_prefetch(A)); kv_advance(A)
    A.s_branch(ent)
    A.label(top)
    chain_step(A, 0, abort, fb, cold, first_entry=ent)
    chain_step(A, 1, abort, fb, cold)
    chain_step(A, 2, abort, fb, cold)
    A.s_cmp_eq_u32(s(S_STEP), 63); A.s_cbranch_scc1(lastl)
    chain_step(A, 3, abort, fb, cold)
    A.s_branch(top)
    A.label(lastl)
    chain_step(A, 3, abort, fb, cold, last=True, done=done)
    for e in cold: e()
```

```python
from asmlib import *
from layout import *
from chain import S_WS, S_DBG, S_TMP, S_X, S_H, S_W, S_TO, ptr, srd, spin_guard

S_XCC, S_INIT, S_TASK = 2, 3, 46
SRD_A, SRD_B0, SRD_B1, SRD_C = 24, 28, 32, 36
G_SA, G_SB0, G_SB1, G_BSTEP, G_N, G_M0, G_DELTA, G_BUF, G_REM = 40, 41, 42, 43, 44, 45, 47, 48, 49
G_SC, G_MB, G_NT, G_EPI, G_CNT = 50, 51, 52, 53, 54
G_T0, G_T1, G_T2, G_T3 = 56, 57, 58, 59
G_STA, G_STB = 60, 61
G_ASTEP = 55
V_LANE, V_C, V_T = 16, 17, 18
FSET = [32, 56]
V_DA, V_DB, V_RA, V_RB = 80, 84, 88, 92
ACC = 128
STG = 49152
def acc(mt, nf): return ACC + (mt*2 + nf)*16

def lane_id(A, d):
    A.v_mbcnt_lo_u32_b32(v(d), -1, 0); A.v_mbcnt_hi_u32_b32(v(d), -1, v(d))

def gemm_consts(A):
    L, T0, T1, T2, T3 = V_LANE, V_T, V_T+1, V_T+2, V_T+3
    lane_id(A, L)
    A.v_lshrrev_b32(v(T0), 3, v(L)); A.s_lshl_b32(s(G_T0), s(S_W), 5); A.v_add_u32(v(T0), s(G_T0), v(T0))
    A.v_mul_u32_u24(v(T0), s(G_STA), v(T0))
    A.v_lshrrev_b32(v(T1), 4, v(L))
    A.v_and_b32(v(T2), 7, v(L)); A.v_xor_b32(v(T2), v(T2), v(T1))
    A.s_lshl_b32(s(G_T1), s(G_STA), 3); A.s_sub_u32(s(G_T1), s(G_T1), 1024)
    A.v_lshl_add_u32(v(V_DA), v(T2), 4, v(T0))
    A.v_xor_b32(v(T2), 4, v(T2)); A.v_lshl_add_u32(v(V_DA+1), v(T2), 4, v(T0)); A.v_add_u32(v(V_DA+1), s(G_T1), v(V_DA+1))
    A.s_lshl_b32(s(G_T1), s(G_T1), 1)
    A.v_add_u32(v(V_DA+2), s(G_T1), v(V_DA)); A.v_add_u32(v(V_DA+3), s(G_T1), v(V_DA+1))
    A.s_lshl_b32(s(G_T0), s(S_W), 4); A.v_add_u32(v(T0), s(G_T0), v(T1)); A.v_mul_u32_u24(v(T0), s(G_STB), v(T0))
    A.v_and_b32(v(T2), 15, v(L)); A.v_lshlrev_b32(v(T3), 2, v(T1)); A.v_xor_b32(v(T2), v(T2), v(T3))
    A.v_lshl_add_u32(v(V_DB), v(T2), 4, v(T0))
    A.s_lshl_b32(s(G_T1), s(G_STB), 2); A.s_sub_u32(s(G_T1), s(G_T1), 1024)
    for j in range(1, 4): A.v_add_u32(v(V_DB+j), s(G_T1), v(V_DB+j-1))
    A.v_and_b32(v(T0), 31, v(L)); A.v_bfe_u32(v(T2), v(L), 1, 3); A.v_lshrrev_b32(v(T3), 5, v(L)); A.v_xor_b32(v(T2), v(T2), v(T3))
    A.v_lshlrev_b32(v(T0), 7, v(T0)); A.v_lshl_add_u32(v(V_RA), v(T2), 4, v(T0))
    for kk in range(1, 4): A.v_xor_b32(v(V_RA+kk), 32*kk, v(V_RA))
    A.v_bfe_u32(v(T0), v(L), 2, 2)
    A.v_lshl_add_u32(v(T2), v(T3), 3, v(T0)); A.v_lshlrev_b32(v(T2), 8, v(T2))
    A.v_xor_b32(v(T0), s(S_W), v(T0)); A.v_lshl_add_u32(v(T2), v(T0), 6, v(T2))
    A.v_and_b32(v(T0), 1, v(T1)); A.v_lshl_add_u32(v(T2), v(T0), 5, v(T2))
    A.v_and_b32(v(T0), 3, v(L)); A.v_lshl_add_u32(v(T2), v(T0), 3, v(T2))
    A.v_add_u32(v(V_RB), 16384, v(T2))
    rm = A.newlabel('rm')
    A.s_cmp_eq_u32(s(G_ASTEP), 128); A.s_cbranch_scc1(rm)
    A.s_mul_i32(s(G_T0), s(G_STA), s(S_W))
    A.v_lshlrev_b32(v(V_RA), 4, v(L))
    for j in range(4): A.v_add_u32(v(V_DA+j), s(G_T0), v(V_RA))
    for kk in range(1, 4): A.v_add_u32(v(V_RA+kk), 1024*kk, v(V_RA))
    A.label(rm)

def store_lane(A, stride_shift=None, stride=None):
    L, T0, T1 = V_LANE, V_T, V_T+1
    A.v_bfe_u32(v(T0), v(L), 4, 1); A.v_lshlrev_b32(v(T0), 5, v(T0)); A.v_lshrrev_b32(v(T1), 5, v(L)); A.v_lshl_add_u32(v(T0), v(T1), 4, v(T0))
    A.v_and_b32(v(T1), 15, v(L))
    if stride_shift is not None: A.v_lshl_add_u32(v(V_C), v(T1), stride_shift, v(T0))
    else: A.v_mul_u32_u24(v(T1), stride, v(T1)); A.v_add_u32(v(V_C), v(T0), v(T1))

class LQ:
    def __init__(self, A, init=()): self.A, self.q = A, list(init)
    def issue(self, tag): self.q.append(tag)
    def need(self, tags):
        idx = max([i for i, t in enumerate(self.q) if t in tags], default=-1)
        if idx >= 0:
            self.A.wait(lgkm=len(self.q) - 1 - idx); del self.q[:idx+1]

RORD = ['A0', 'B0a', 'B0b', 'A1', 'B1a', 'B1b', 'A2', 'A3']
MORD = [(0, 0), (1, 0), (0, 1), (1, 1), (2, 0), (2, 1), (3, 0), (3, 1)]
def frag_read(A, st, kk, name):
    f = FSET[st]
    if name[0] == 'A':
        mt = int(name[1]); A.ds_read_b128(v(f+4*mt, 4), v(V_RA+kk), m=f'offset:{mt*4096}')
    else:
        nf, u = int(name[1]), 'ab'.index(name[2])
        A.ds_read_b64_tr_b16(v(f+16+4*nf+2*u, 2), v(V_RB), m=f'offset:{nf*16384 + kk*4096 + u*1024}')

def dma(A, i, asc):
    g, j = i // 4, i % 4
    if j == 0: A.s_add_u32('m0', s(G_M0), g*16384)
    if g == 0: A.buffer_load_dwordx4(v(V_DA+j), s(SRD_A, 4), s(G_SA), m=f'offen offset:{1024*j} {asc} lds')
    else: A.buffer_load_dwordx4(v(V_DB+j), s(SRD_B0 if g == 1 else SRD_B1, 4), s(G_SB0 if g == 1 else G_SB1), m=f'offen offset:{1024*j} lds')
def dma_advance(A):
    A.s_add_u32(s(G_SA), s(G_SA), s(G_ASTEP)); A.s_add_u32(s(G_SB0), s(G_SB0), s(G_BSTEP)); A.s_add_u32(s(G_SB1), s(G_SB1), s(G_BSTEP))
    A.s_add_u32(s(G_M0), s(G_M0), STG); A.s_cmp_ge_u32(s(G_M0), 3*STG); A.s_cselect_b32(s(G_T0), 3*STG, 0); A.s_sub_u32(s(G_M0), s(G_M0), s(G_T0))
    A.s_sub_u32(s(G_REM), s(G_REM), 1); A.s_cmp_gt_i32(s(G_REM), 0)
    for r_ in (SRD_A, SRD_B0, SRD_B1): A.s_cselect_b32(s(r_+2), s(r_+2), 0)

def gemm_main(A, swap):
    asc = 'sc1'
    A.s_lshl_b32(s(G_M0), s(S_W), 12); A.s_mov_b32(s(G_REM), s(G_N)); A.s_mov_b32(s(G_BUF), 0)
    for st in range(2):
        for i in range(12): dma(A, i, asc)
        dma_advance(A)
    for i in range(3): dma(A, i, asc)
    for i in range(64): A.v_mov_b64(v(ACC+2*i, 2), 0)
    A.wait(vm=15); A.s_barrier()
    for n in RORD: frag_read(A, 0, 0, n)
    top = A.newlabel('gl'); A.label(top)
    q = LQ(A, [(0, n) for n in RORD])
    for kk in range(4):
        st = kk % 2
        f = FSET[st]
        nxt = [(1-st, (kk+1) % 4, n) for n in RORD]
        def rd(lst):
            for (s_, k_, n) in lst: frag_read(A, s_, k_, n); q.issue((s_, n))
        for i, (mt, nf) in enumerate(MORD):
            q.need([(st, f'A{mt}'), (st, f'B{nf}a'), (st, f'B{nf}b')])
            fa, fb = v(f+4*mt, 4), v(f+16+4*nf, 4)
            c = v(acc(mt, nf), 16)
            if swap: A.v_mfma_f32_32x32x16_bf16(c, fa, fb, c)
            else: A.v_mfma_f32_32x32x16_bf16(c, fb, fa, c)
            if kk < 3:
                if i == 0: rd(nxt[0:3])
                if i == 1: rd(nxt[3:6])
                if i == 2: rd(nxt[6:8])
                if i in (3, 5, 7): dma(A, 3 + 3*kk + (i-3)//2, asc)
                if kk == 2 and i == 7: pass
            else:
                if i == 0:
                    dma_advance(A)
                    A.s_add_u32(s(G_BUF), s(G_BUF), 1); A.s_cmp_eq_u32(s(G_BUF), 3)
                    A.s_mov_b32(s(G_DELTA), STG); A.s_cmov_b32(s(G_DELTA), -2*STG); A.s_cmov_b32(s(G_BUF), 0)
                if i == 1:
                    q.need([(st, n) for n in RORD])
                    A.wait(vm=12); A.s_barrier()
                    for r_ in (V_RA, V_RB): A.v_add_u32(v(r_), s(G_DELTA), v(r_))
                if i == 2: rd(nxt[0:3])
                if i == 3: rd(nxt[3:6])
                if i == 4:
                    rd(nxt[6:8])
                    for r_ in (V_RA+1, V_RA+2, V_RA+3): A.v_add_u32(v(r_), s(G_DELTA), v(r_))
                if i in (5, 6, 7): dma(A, i-5, asc)
    assert q.q == [(0, n) for n in RORD], q.q
    A.s_sub_u32(s(G_N), s(G_N), 1); A.s_cmp_lg_u32(s(G_N), 0); A.s_cbranch_scc1(top)
    A.wait(lgkm=0)

def pack_ops(A, T):
    return [lambda i=i: A.v_cvt_pk_bf16_f32(v(T+i), v(T+2*i), v(T+2*i+1)) for i in range(8)]
def shuf32(A, T):
    return [lambda a_=a_: A.v_permlane32_swap_b32(v(T+a_), v(T+a_+2)) for a_ in (0, 1, 4, 5)]
def shuf16(A, T):
    return [lambda i=i: A.v_permlane16_swap_b32(v(T+i), v(T+4+i)) for i in range(4)]
def tile_stores(A, T, off, yoff, srd_, mods):
    def f():
        A.s_add_u32(s(G_T0), s(G_SC), hex(off)); A.s_add_u32(s(G_T1), s(G_SC), hex(off + yoff))
        A.buffer_store_dwordx4(v(T, 4), v(V_C), s(srd_, 4), s(G_T0), m='offen ' + mods)
        A.buffer_store_dwordx4(v(T+4, 4), v(V_C), s(srd_, 4), s(G_T1), m='offen ' + mods)
    return [f]
def epi_tiles(A, tiles, yoff, srd_, mods, pre=None):
    n = len(tiles)
    for k in range(n+2):
        ops = []
        if k < n: ops += (pre(k) if pre else []) + pack_ops(A, tiles[k][0])
        if 0 <= k-2 < n: ops += shuf16(A, tiles[k-2][0])
        if 0 <= k-1 < n: ops += shuf32(A, tiles[k-1][0])
        if 0 <= k-2 < n: ops += tile_stores(A, tiles[k-2][0], tiles[k-2][1], yoff, srd_, mods)
        for f in ops: f()

def epi_native(A, tiles, pre=None):
    A.v_lshlrev_b32(v(V_C), 4, v(V_LANE))
    n = len(tiles)
    for k in range(n+1):
        ops = []
        if k < n: ops += (pre(k) if pre else []) + pack_ops(A, tiles[k][0])
        if k >= 1:
            T, off = tiles[k-1]
            ops += shuf32(A, T)
            ops.append(lambda off=off: A.s_add_u32(s(G_T0), s(G_SC), hex(off)))
            for hh in range(2): ops.append(lambda T=T, hh=hh: A.buffer_store_dwordx4(v(T+4*hh, 4), v(V_C), s(S_WS, 4), s(G_T0), m=f'offen offset:{1024*hh} sc1'))
        for f in ops: f()
ALLT = [(mt, nf) for mt in range(4) for nf in range(2)]
def epi_q(A): epi_native(A, [(acc(mt, nf), mt*262144 + nf*8192) for mt, nf in ALLT])
def chunk128(A):
    L, T0, T1 = V_LANE, V_T, V_T+1
    A.v_bfe_u32(v(T0), v(L), 4, 1); A.v_lshlrev_b32(v(T0), 8, v(T0)); A.v_lshrrev_b32(v(T1), 5, v(L)); A.v_lshl_add_u32(v(T0), v(T1), 7, v(T0))
def epi_vt(A):
    L, T0, T1 = V_LANE, V_T, V_T+1
    chunk128(A)
    A.v_bfe_u32(v(T1), v(L), 3, 1); A.v_lshl_add_u32(v(T0), v(T1), 9, v(T0))
    A.v_and_b32(v(T1), 7, v(L)); A.v_lshl_add_u32(v(V_C), v(T1), 4, v(T0))
    epi_tiles(A, [(acc(mt, nf), mt*262144 + nf*8192) for mt, nf in ALLT], 1024, S_WS, 'sc1')
def epi_k(A):
    L, T0, T1 = V_LANE, V_T, V_T+1
    chunk128(A)
    A.v_bfe_u32(v(T1), v(L), 2, 1); A.v_lshl_add_u32(v(T0), v(T1), 10, v(T0))
    A.v_bfe_u32(v(T1), v(L), 3, 1); A.v_lshl_add_u32(v(T0), v(T1), 6, v(T0))
    A.v_and_b32(v(T1), 3, v(L)); A.v_lshl_add_u32(v(V_C), v(T1), 4, v(T0))
    epi_tiles(A, [(acc(mt, nf), mt*262144 + nf*8192) for mt, nf in ALLT], 512, S_WS, 'sc1')
def epi_gu(A):
    A.s_mov_b32(s(G_T2), '0xbfb8aa3b'); A.s_mov_b32(s(G_T3), '0xbfb8aa3b')
    E = 32
    def pre(k):
        g, u = acc(k, 0), acc(k, 1)
        ops = [lambda i=i: A.v_pk_mul_f32(v(E+2*i, 2), v(g+2*i, 2), s(G_T2, 2)) for i in range(8)]
        ops += [lambda i=i: A.v_exp_f32(v(E+i), v(E+i)) for i in range(16)]
        ops += [lambda i=i: A.v_pk_mul_f32(v(g+2*i, 2), v(g+2*i, 2), v(u+2*i, 2)) for i in range(8)]
        ops += [lambda i=i: A.v_pk_add_f32(v(E+2*i, 2), v(E+2*i, 2), 1.0, m='op_sel_hi:[1,0]') for i in range(8)]
        ops += [lambda i=i: A.v_rcp_f32(v(E+i), v(E+i)) for i in range(16)]
        ops += [lambda i=i: A.v_pk_mul_f32(v(g+2*i, 2), v(g+2*i, 2), v(E+2*i, 2)) for i in range(8)]
        return ops
    epi_native(A, [(acc(mt, 0), mt*32*7168) for mt in range(4)], pre)
def epi_dn(A):
    A.v_lshlrev_b32(v(V_C), 4, v(V_LANE))
    for k, (mt, nf) in enumerate(ALLT):
        T = acc(mt, nf)
        for f in pack_ops(A, T): f()
        if k % 2 == 0: A.s_add_u32(s(G_T0), s(G_SC), k*2048)
        for hh in range(2):
            A.buffer_store_dwordx4(v(T+4*hh, 4), v(V_C), s(S_WS, 4), s(G_T0), m=f'offen offset:{(k % 2)*2048 + hh*1024} sc1')
def epi_op_loads(A):
    A.v_lshlrev_b32(v(V_T), 4, v(V_LANE)); A.v_and_b32(v(V_T+1), 31, v(V_LANE)); A.v_lshlrev_b32(v(V_T+1), 2, v(V_T+1))
    for mt in range(4): A.buffer_load_dword(v(24+mt), v(V_T+1), s(S_WS, 4), s(G_T3), m=f'offen offset:{mt*128} sc1')
    for k in range(8):
        if k % 2 == 0 and k: A.s_add_u32(s(G_T2), s(G_T2), 4096)
        for hh in range(2):
            A.buffer_load_dwordx4(v(32+8*k+4*hh, 4), v(V_T), s(S_WS, 4), s(G_T2), m=f'offen offset:{(k % 2)*2048 + hh*1024} sc1')
def epi_op(A):
    store_lane(A, stride_shift=11)
    E = 96
    A.wait(vm=0)
    def pre(k):
        mt, T, B = k // 2, ACC + 16*k, 32 + 8*k
        ops = []
        for i in range(8):
            ops.append(lambda i=i: A.v_lshlrev_b32(v(E+2*i), 16, v(B+i)))
            ops.append(lambda i=i: A.v_and_b32(v(E+2*i+1), '0xffff0000', v(B+i)))
        ops += [lambda i=i: A.v_pk_add_f32(v(T+2*i, 2), v(T+2*i, 2), v(E+2*i, 2), m='neg_lo:[0,1] neg_hi:[0,1]') for i in range(8)]
        sel = 'op_sel:[0,1,0] op_sel_hi:[1,1,1]' if mt % 2 else 'op_sel_hi:[1,0,1]'
        ops += [lambda i=i: A.v_pk_fma_f32(v(T+2*i, 2), v(T+2*i, 2), v(24 + (mt & 2), 2), v(E+2*i, 2), m=sel) for i in range(8)]
        return ops
    epi_tiles(A, [(acc(mt, nf), mt*32*2048 + nf*256) for mt, nf in ALLT], 16*2048, SRD_C, '', pre)
```

```python
WS_KX   = 0x2000000
WS_VT   = 0x1000000
WS_QX   = 0x0000000
WS_H    = 0x3000000
WS_O    = 0x4000000
WS_B    = 0x5000000
WS_G    = 0x5800000
WS_PUB  = 0x6000000
WS_XQ   = 0x7000000
WS_PART = 0x7400000
WS_MEM  = 0x7500000
FB_XQ, FB_PART, FB_MEM = 0x200000, 0x80000, 0x8000
WS_CTL  = 0x7600000
C_CNT   = 0x0000
C_TAB   = 0x4000
C_PROG  = 0x5000
C_HEAD  = 0x7000
CTL_BYTES = 0x8000
T_KV, T_Q, T_GU, T_DN, T_AT = range(5)
WS_TIM  = 0x7800000
WS_CTIM = 0x7820000
WS_SIZE = 0x10000000
D_CNT0, D_CNT1, D_READY, D_READY2, D_GHEAD, D_INIT, D_FBT, D_ABORT = range(8)
D_LH   = 8
D_SLOT0 = 16
L_WO   = 0
L_MEMB = 131072
L_FO   = 139264
L_KXB  = 147456
L_X    = 155648
L_MISC = 163776
LDS_BYTES = 163840
P_X, P_MEM0, P_WQ, P_WK, P_WV, P_WO, P_SEG, P_BX, P_WG, P_WU, P_WD, P_GW, P_OUT, P_DBG, P_WS = range(15)
KNAME = 'gated_mix__memory_aug_recurrent_mem_tr__swiglu_ffn__prompt'
```

```python
from gemm import *
import struct
def f2u(x): return struct.unpack('<I', struct.pack('<f', x))[0]

def poll_sleep(A): A.s_sleep(4)

def task_g(A):
    L, T0, T1, AC = V_LANE, V_T, V_T+1, 24
    lane_id(A, L)
    srd(A, SRD_A, P_X, 2048*2048); srd(A, SRD_B0, P_GW, 2048)
    A.v_and_b32(v(T0), 31, v(L)); A.v_lshrrev_b32(v(T1), 5, v(L)); A.v_lshlrev_b32(v(T1), 10, v(T1))
    A.v_lshl_add_u32(v(T0), v(T0), 11, v(T1))
    A.s_lshl_b32(s(G_T0), s(G_MB), 2); A.s_add_u32(s(G_T0), s(G_T0), s(S_W)); A.s_lshl_b32(s(G_T1), s(G_T0), 16)
    for i in range(4): A.v_mov_b32(v(AC+i), 0)
    for blk in range(4):
        for c in range(16):
            A.buffer_load_dwordx4(v(32+4*c, 4), v(T0), s(SRD_A, 4), s(G_T1), m=f'offen offset:{blk*256 + c*16}')
            A.buffer_load_dwordx4(v(128+4*c, 4), v(T1), s(SRD_B0, 4), 0, m=f'offen offset:{blk*256 + c*16}')
        for c in range(16):
            A.wait(vm=30-2*c)
            for i in range(4): A.v_dot2c_f32_bf16(v(AC+i), v(32+4*c+i), v(128+4*c+i))
    A.v_add_f32(v(AC), v(AC), v(AC+1)); A.v_add_f32(v(AC+2), v(AC+2), v(AC+3)); A.v_add_f32(v(AC), v(AC), v(AC+2))
    A.v_mov_b32(v(AC+1), v(AC)); A.v_permlane32_swap_b32(v(AC), v(AC+1)); A.v_add_f32(v(AC), v(AC), v(AC+1))
    A.v_mul_f32(v(AC), '0xbfb8aa3b', v(AC)); A.v_exp_f32(v(AC), v(AC)); A.v_add_f32(v(AC), 1.0, v(AC)); A.v_rcp_f32(v(AC), v(AC))
    A.v_lshlrev_b32(v(T0), 2, v(L))
    A.s_lshl_b32(s(G_T0), s(G_T0), 7); A.s_add_u32(s(G_T0), s(G_T0), WS_G)
    A.s_mov_b64('exec', '0xffffffff')
    A.buffer_store_dword(v(AC), v(T0), s(S_WS, 4), s(G_T0), m='offen sc1')
    A.s_mov_b64('exec', -1)

def task_at_pre(A):
    L, T0, T1, T2 = V_LANE, V_T, V_T+1, V_T+2
    VQ, VK, VV, VM, VKM, VZ = 21, 22, 23, 24, 25, 26
    lane_id(A, L)
    A.v_and_b32(v(T0), 31, v(L)); A.v_lshrrev_b32(v(T1), 5, v(L))
    A.v_lshlrev_b32(v(VQ), 4, v(L))
    A.v_lshlrev_b32(v(VZ), 3, v(T1)); A.v_sub_u32(v(VZ), v(T0), v(VZ))
    A.v_and_b32(v(T2), 7, v(L)); A.v_lshlrev_b32(v(T2), 4, v(T2)); A.v_lshl_add_u32(v(VKM), v(T1), 7, v(T2))
    A.v_lshrrev_b32(v(T2), 3, v(T0)); A.v_lshl_add_u32(v(VV), v(T2), 9, v(VKM))
    A.v_bfe_u32(v(T2), v(L), 3, 1); A.v_lshl_add_u32(v(VK), v(T2), 10, v(VKM))
    A.v_bfe_u32(v(T2), v(L), 4, 1); A.v_lshl_add_u32(v(VK), v(T2), 9, v(VK))
    A.v_lshlrev_b32(v(VM), 8, v(T2)); A.v_lshl_add_u32(v(VM), v(T1), 7, v(VM))
    A.v_and_b32(v(T2), 15, v(L)); A.v_lshl_add_u32(v(VM), v(T2), 3, v(VM))
    A.s_lshl_b32(s(G_T0), s(G_MB), 2); A.s_add_u32(s(G_T0), s(G_T0), s(G_NT)); A.s_lshl_b32(s(G_T0), s(G_T0), 2); A.s_add_u32(s(G_T0), s(G_T0), s(S_W))
    A.s_lshl_b32(s(G_T0), s(G_T0), 14)
    A.s_add_u32(s(G_SA), s(G_T0), WS_QX); A.s_add_u32(s(G_SC), s(G_T0), WS_O)
    A.s_add_u32(s(G_SB0), s(G_T0), WS_KX); A.s_add_u32(s(G_SB1), s(G_T0), WS_VT); A.s_add_u32(s(G_BSTEP), s(G_T0), WS_PUB)
    for hd in range(2):
        b = 96*hd
        for j in range(8):
            if j % 4 == 0: A.s_add_u32(s(G_T0), s(G_SB0), hd*8192 + (j//4)*4096); A.s_add_u32(s(G_T1), s(G_SA), hd*8192 + (j//4)*4096)
            A.buffer_load_dwordx4(a(b+32+4*j, 4), v(VK), s(S_WS, 4), s(G_T0), m=f'offen offset:{((j//2) % 2)*2048 + (j % 2)*256} sc1')
            A.buffer_load_dwordx4(a(b+4*j, 4), v(VQ), s(S_WS, 4), s(G_T1), m=f'offen offset:{(j % 4)*1024} sc1')
    for hd in range(2):
        b = 96*hd + 64
        for et in range(4):
            if et % 2 == 0: A.s_add_u32(s(G_T0), s(G_SB1), hd*8192 + et*2048)
            for t in range(2):
                A.buffer_load_dwordx4(a(b+8*et+4*t, 4), v(VV), s(S_WS, 4), s(G_T0), m=f'offen offset:{(et % 2)*2048 + t*256} sc1')
    A.v_mov_b32(v(T0), hex(f2u(-1e9 * 128 ** 0.5)))
    for hd in range(2):
        b, S = 96*hd, 32 + 16*hd
        for j in range(8):
            A.wait(vm=46 - 16*hd - 2*j)
            A.v_mfma_f32_32x32x16_bf16(v(S, 16), a(b+32+4*j, 4), a(b+4*j, 4), v(S, 16) if j else 0)
    for hd in range(2):
        S = 32 + 16*hd
        for i in range(16):
            g = i // 4
            kap = 16*(g//2) + 4*(g % 2) + i % 4
            A.v_cmp_le_i32('vcc', kap, v(VZ)); A.v_cndmask_b32(v(S+i), v(T0), v(S+i), 'vcc')

def task_at_post(A):
    L, T0, T1, T2 = V_LANE, V_T, V_T+1, V_T+2
    VM, VKM = 24, 25
    KF, VMF = 128, 192
    for hd in range(2):
        for j in range(8):
            if j % 4 == 0: A.s_add_u32(s(G_T0), s(G_BSTEP), hd*8192 + (j//4)*4096)
            A.buffer_load_dwordx4(v(KF+32*hd+4*j, 4), v(VKM), s(S_WS, 4), s(G_T0), m=f'offen offset:{((j//2) % 2)*2048 + 512 + (j % 2)*256} sc1')
    for hd in range(2):
        for et in range(4):
            if et % 2 == 0: A.s_add_u32(s(G_T0), s(G_BSTEP), hd*8192 + et*2048)
            for X in range(2):
                A.buffer_load_dwordx2(a(VMF+16*hd+4*et+2*X, 2), v(VM), s(S_WS, 4), s(G_T0), m=f'offen offset:{(et % 2)*2048 + 1024 + X*512} sc1')
    c = hex(f2u(128 ** -0.5 * 1.4426950408889634))
    A.s_mov_b32(s(G_T2), c); A.s_mov_b32(s(G_T3), c)
    for hd in range(2):
        SM = 64 + 16*hd
        for j in range(8):
            A.wait(vm=31 - 8*hd - j)
            A.v_mfma_f32_32x32x16_bf16(v(SM, 16), v(KF+32*hd+4*j, 4), a(96*hd+4*j, 4), v(SM, 16) if j else 0)
    A.wait(vm=0)
    for hd in range(2):
        S, SM = 32 + 16*hd, 64 + 16*hd
        M, T = 112, 113
        A.v_max3_f32(v(M), v(S), v(S+1), v(S+2))
        for i in range(3, 15, 2): A.v_max3_f32(v(M), v(M), v(S+i), v(S+i+1))
        A.v_max3_f32(v(M), v(M), v(S+15), v(SM)); A.v_max3_f32(v(M), v(M), v(SM+1), v(SM+2)); A.v_max_f32(v(M), v(M), v(SM+3))
        A.v_mov_b32(v(T), v(M)); A.v_permlane32_swap_b32(v(M), v(T)); A.v_max_f32(v(M), v(M), v(T))
        A.v_mul_f32(v(M), s(G_T2), v(M))
        regs = [S+2*i for i in range(8)] + [SM, SM+2]
        for r_ in regs: A.v_pk_fma_f32(v(r_, 2), v(r_, 2), s(G_T2, 2), v(M, 2), m='op_sel_hi:[1,1,0] neg_lo:[0,0,1] neg_hi:[0,0,1]')
        for r_ in regs: A.v_exp_f32(v(r_), v(r_)); A.v_exp_f32(v(r_+1), v(r_+1))
        P = 116
        for k, r_ in enumerate(regs): A.v_cvt_pk_bf16_f32(v(P+k), v(r_), v(r_+1))
        A.v_mov_b64(v(P+10, 2), v(P+8, 2))
        O = 128 + 64*hd
        for et in range(4):
            va = 96*hd + 64 + 8*et
            A.v_mfma_f32_32x32x16_bf16(v(O+16*et, 16), a(va, 4), v(P, 4), 0)
            A.v_mfma_f32_32x32x16_bf16(v(O+16*et, 16), a(va+4, 4), v(P+4, 4), v(O+16*et, 16))
            A.v_mfma_f32_32x32x16_bf16(v(O+16*et, 16), a(VMF+16*hd+4*et, 4), v(P+8, 4), v(O+16*et, 16))
        for r_ in regs[1:]: A.v_pk_add_f32(v(S, 2), v(S, 2), v(r_, 2))
        LS = 114 + hd
        A.v_add_f32(v(LS), v(S), v(S+1)); A.v_mov_b32(v(T), v(LS)); A.v_permlane32_swap_b32(v(LS), v(T)); A.v_add_f32(v(LS), v(LS), v(T))
        A.v_rcp_f32(v(LS), v(LS))
    def pre(k):
        T_, hd = 128 + 16*k, k // 4
        sel = 'op_sel:[0,1] op_sel_hi:[1,1]' if hd else 'op_sel_hi:[1,0]'
        return [lambda i=i: A.v_pk_mul_f32(v(T_+2*i, 2), v(T_+2*i, 2), v(114, 2), m=sel) for i in range(8)]
    epi_native(A, [(128+16*k, k*2048) for k in range(8)], pre)

def task_ops_pre(A):
    L, T0, T1, VD, VR = V_LANE, V_T, V_T+1, 21, 22
    lane_id(A, L)
    srd(A, SRD_B0, P_WO, 4096*2048)
    A.v_lshrrev_b32(v(T0), 2, v(L)); A.v_and_b32(v(T1), 3, v(L)); A.v_lshlrev_b32(v(VD), 11, v(T0)); A.v_lshl_add_u32(v(VD), v(T1), 4, v(VD))
    A.v_and_b32(v(T0), 3, v(T0)); A.v_lshlrev_b32(v(VR), 6, v(T0)); A.v_lshl_add_u32(v(VR), v(T1), 3, v(VR))
    A.v_lshrrev_b32(v(T0), 5, v(L)); A.v_lshl_add_u32(v(VR), v(T0), 9, v(VR))
    A.v_bfe_u32(v(T0), v(L), 4, 1); A.v_lshl_add_u32(v(VR), v(T0), 5, v(VR))
    A.s_lshl_b32(s(G_M0), s(S_W), 15); A.v_add_u32(v(VR), s(G_M0), v(VR))
    A.s_lshl_b32(s(G_SB0), s(S_W), 21); A.s_lshl_b32(s(G_T0), s(G_NT), 6); A.s_add_u32(s(G_SB0), s(G_SB0), s(G_T0))
    def ld(f):
        A.s_add_u32('m0', s(G_M0), (f % 32)*1024)
        A.buffer_load_dwordx4(v(VD), s(SRD_B0, 4), s(G_SB0), m='offen lds')
        A.s_add_u32(s(G_SB0), s(G_SB0), 32768)
    for f in range(32): ld(f)
    for g in range(8):
        A.wait(vm=24 if g < 4 else 8*(7-g))
        for f in range(8*g, 8*g+8):
            for u in range(2): A.ds_read_b64_tr_b16(a(4*f+2*u, 2), v(VR), m=f'offset:{(f % 32)*1024 + u*256}')
            if f % 4 == 3: A.wait(lgkm=8 if f % 8 == 3 else 0)
        if g < 4:
            for f in range(8*g+32, 8*g+40): ld(f)

def task_ops_seg(A):
    L, T0, T1, VO, VB, VG, VS = V_LANE, V_T, V_T+1, 21, 22, 23, 24
    BV, GV, C0_, C1_, BUF, NB = 26, 28, 224, 240, 32, 48
    lane_id(A, L)
    A.v_lshlrev_b32(v(VO), 4, v(L))
    A.s_lshl_b32(s(G_SA), s(G_MB), 2); A.s_add_u32(s(G_SA), s(G_SA), s(S_W)); A.s_lshl_b32(s(G_SA), s(G_SA), 16); A.s_add_u32(s(G_SA), s(G_SA), WS_O)
    def ld(f):
        A.buffer_load_dwordx4(v(BUF+4*(f % NB), 4), v(VO), s(S_WS, 4), s(G_SA), m=f'offen offset:{(f % 4)*1024} sc1')
        if f % 4 == 3: A.s_add_u32(s(G_SA), s(G_SA), 4096)
    for f in range(NB): ld(f)
    A.s_lshr_b32(s(G_T0), s(G_MB), 2); A.s_lshl_b32(s(G_T0), s(G_T0), 2); A.s_lshr_b32(s(G_T1), s(G_NT), 3); A.s_add_u32(s(G_T0), s(G_T0), s(G_T1))
    A.s_lshl_b32(s(G_T0), s(G_T0), 2); A.s_and_b32(s(G_T1), s(G_NT), 3); A.s_add_u32(s(G_T0), s(G_T0), s(G_T1)); A.s_lshl_b32(s(G_T0), s(G_T0), 2)
    A.s_and_b32(s(G_T1), s(G_MB), 3); A.s_add_u32(s(G_T0), s(G_T0), s(G_T1)); A.s_lshl_b32(s(G_T0), s(G_T0), 1)
    A.s_bfe_u32(s(G_T1), s(G_NT), 0x10002); A.s_add_u32(s(G_T0), s(G_T0), s(G_T1)); A.s_lshl_b32(s(G_T0), s(G_T0), 1)
    A.s_lshr_b32(s(G_T1), s(S_W), 1); A.s_add_u32(s(G_T0), s(G_T0), s(G_T1)); A.s_lshl_b32(s(G_T0), s(G_T0), 10)
    A.s_and_b32(s(G_T1), s(S_W), 1); A.s_lshl_b32(s(G_T1), s(G_T1), 3); A.s_add_u32(s(G_T0), s(G_T0), s(G_T1)); A.s_add_u32(s(G_T0), s(G_T0), WS_B)
    A.v_and_b32(v(T0), 31, v(L)); A.v_lshlrev_b32(v(VG), 2, v(T0))
    A.s_lshl_b32(s(G_T1), s(G_MB), 7); A.s_add_u32(s(G_T1), s(G_T1), WS_G)
    A.v_lshrrev_b32(v(T1), 5, v(L)); A.v_lshlrev_b32(v(T1), 3, v(T1)); A.v_lshl_add_u32(v(VS), v(T0), 11, v(T1))
    A.s_lshl_b32(s(G_SC), s(G_MB), 16); A.s_lshl_b32(s(G_T2), s(G_NT), 6); A.s_add_u32(s(G_SC), s(G_SC), s(G_T2))
    A.s_lshl_b32(s(G_T2), s(S_W), 4); A.s_add_u32(s(G_SC), s(G_SC), s(G_T2))
    srd(A, SRD_C, P_OUT, 2048*2048)
    A.s_lshl_b32(s(G_T2), s(S_W), 12); A.v_add_u32(v(VB), s(G_T2), v(VO))
    A.s_lshl_b32(s(G_T2), s(S_W), 10); A.v_add_u32(v(T1), s(G_T2), v(VO))
    for f in range(64):
        nq = min(63, f + NB - 1) - f + (2 if f >= 64 - NB else 0)
        A.wait(vm=nq)
        c = C1_ if f % 2 else C0_
        A.v_mfma_f32_32x32x16_bf16(v(c, 16), a(4*f, 4), v(BUF+4*(f % NB), 4), v(c, 16) if f >= 2 else 0)
        if f + NB < 64: ld(f + NB)
        if f + NB == 63:
            A.buffer_load_dwordx2(v(BV, 2), v(VO), s(S_WS, 4), s(G_T0), m='offen sc1')
            A.buffer_load_dword(v(GV), v(VG), s(S_WS, 4), s(G_T1), m='offen sc1')
    for i in range(8): A.v_pk_add_f32(v(C0_+2*i, 2), v(C0_+2*i, 2), v(C1_+2*i, 2))
    for i in range(4): A.ds_write_b128(v(VB), v(C0_+4*i, 4), m=f'offset:{1024*i}')
    A.wait(lgkm=0); A.s_barrier()
    for i in range(4): A.ds_read_b128(v(BUF+4*i, 4), v(T1), m=f'offset:{4096*i}')
    E = BUF + 16
    A.wait(vm=0)
    for i in range(2): A.v_lshlrev_b32(v(E+2*i), 16, v(BV+i)); A.v_and_b32(v(E+2*i+1), '0xffff0000', v(BV+i))
    A.wait(lgkm=2)
    for i in range(2): A.v_pk_add_f32(v(BUF+2*i, 2), v(BUF+2*i, 2), v(BUF+4+2*i, 2))
    A.wait(lgkm=0)
    for i in range(2): A.v_pk_add_f32(v(BUF+8+2*i, 2), v(BUF+8+2*i, 2), v(BUF+12+2*i, 2))
    for i in range(2): A.v_pk_add_f32(v(BUF+2*i, 2), v(BUF+2*i, 2), v(BUF+8+2*i, 2))
    for i in range(2): A.v_pk_add_f32(v(BUF+2*i, 2), v(BUF+2*i, 2), v(E+2*i, 2), m='neg_lo:[0,1] neg_hi:[0,1]')
    for i in range(2): A.v_pk_fma_f32(v(BUF+2*i, 2), v(BUF+2*i, 2), v(GV, 2), v(E+2*i, 2), m='op_sel_hi:[1,0,1]')
    for i in range(2): A.v_cvt_pk_bf16_f32(v(BUF+i), v(BUF+2*i), v(BUF+2*i+1))
    A.buffer_store_dwordx2(v(BUF, 2), v(VS), s(SRD_C, 4), s(G_SC), m='offen')
```

```python
import sys
from asmlib import *
from layout import *
import chain
from chain import S_WS, S_DBG, S_X, S_H, S_W, S_TO, ptr, srd, load_ptrs, chain_setup, chain_loop
from gemm import *
from tasks import *

C0, C1, C2, C3, C4, C5 = 94, 95, 96, 97, 98, 99
CV = 120
K_EXIT, K_FB = 0xFFFF, 0x10000
POISON = 16
S0 = 48
NG = 2
def order():
    nop = S0 // 4
    return [('KV', 0, 16), ('GU', 0, 16), ('DN', 0, 2), ('Q', 0, 8), ('AT', 0, 4), ('OP', 0, 1), ('AT', 4, S0//8 - 4), ('OP', 1, 1), ('AT', S0//8, 8 - S0//8), ('OPS', 0, NG)]
OPTS = set()

def header(launch_lines):
    ref = open('cdna_kernels/%s.s.ref' % KNAME).read().split('\n')
    hd = [l for l in ref if l.startswith(';') and '@launch' not in l]
    return '\n'.join(hd + launch_lines) + '\n.amdgcn_target "amdgcn-amd-amdhsa--gfx950"\n.text\n'
def kernel_wrap(name, body, vgpr=512, accum=256):
    return (f".globl {name}\n.p2align 8\n.type {name},@function\n{name}:\n" + body,
            f".p2align 6\n.amdhsa_kernel {name}\n  .amdhsa_next_free_vgpr {vgpr}\n  .amdhsa_next_free_sgpr 102\n  .amdhsa_accum_offset {accum}\n"
            f"  .amdhsa_group_segment_fixed_size 0\n  .amdhsa_kernarg_size 120\n  .amdhsa_user_sgpr_count 2\n  .amdhsa_user_sgpr_kernarg_segment_ptr 1\n"
            f"  .amdhsa_system_sgpr_workgroup_id_x 1\n.end_amdhsa_kernel\n")

def stamp(A, d):
    if 'log' in OPTS:
        A.s_memrealtime(s(12, 2)); A.wait(lgkm=0); A.s_mov_b32(s(d), s(12))
S_WG = 63
def rts(A, k):
    if 'log' in OPTS:
        A.s_memrealtime(s(C4, 2)); A.wait(lgkm=0); A.v_mov_b32(v(CV), s(C4)); A.v_mov_b32(v(CV+1), 0); A.s_mov_b64('exec', 1)
        A.buffer_store_dword(v(CV), v(CV+1), s(S_WS, 4), s(S_WG), m=f'offen offset:{4*k}'); A.s_mov_b64('exec', -1)
def only_w0(A):
    sk = A.newlabel('w0'); A.s_cmp_lg_u32(s(S_W), 0); A.s_cbranch_scc1(sk); return sk
def dbg_atomic(A, dw, soff=0, ret=True, val=1):
    A.v_mov_b32(v(CV), val); A.v_mov_b32(v(CV+1), 0)
    A.s_mov_b64('exec', 1)
    A.buffer_atomic_add(v(CV), v(CV+1), s(S_DBG, 4), soff, m=f'offen offset:{dw*4} ' + ('sc0 sc1' if ret else 'sc1'))
    A.s_mov_b64('exec', -1)
    if ret: A.wait(vm=0); A.v_readfirstlane_b32(s(C0), v(CV))
def bcast(A, sk):
    A.v_mov_b32(v(CV), s(C0)); A.v_mov_b32(v(CV+1), L_MISC)
    A.ds_write_b32(v(CV+1), v(CV)); A.wait(lgkm=0)
    A.label(sk)
    A.s_barrier()
    A.v_mov_b32(v(CV+1), L_MISC); A.ds_read_b32(v(CV), v(CV+1)); A.wait(lgkm=0)
    A.v_readfirstlane_b32(s(C0), v(CV))
    A.s_barrier()
def guard(A, retry, out):
    A.s_sub_u32(s(S_TO), s(S_TO), 1); A.s_cbranch_scc0(retry)
    A.v_mov_b32(v(CV), '0xdead'); A.v_mov_b32(v(CV+1), 0)
    A.buffer_store_dword(v(CV), v(CV+1), s(S_DBG, 4), 0, m=f'offen offset:{D_ABORT*4} sc1')
    A.s_mov_b32(s(S_TO), 0); A.s_mov_b32(s(C0), K_EXIT); A.s_branch(out)
def ensure_init(A, out):
    ok, lp = A.newlabel('ini'), A.newlabel('inl')
    A.s_bitcmp1_b32(s(S_INIT), 0); A.s_cbranch_scc1(ok)
    A.v_mov_b32(v(CV+1), 0)
    A.label(lp)
    A.buffer_load_dword(v(CV), v(CV+1), s(S_DBG, 4), 0, m=f'offen offset:{D_INIT*4} sc1')
    A.wait(vm=0); A.v_readfirstlane_b32(s(C1), v(CV)); A.s_or_b32(s(S_INIT), s(S_INIT), s(C1))
    A.s_bitcmp1_b32(s(S_INIT), 0); A.s_cbranch_scc1(ok)
    A.s_sleep(2)
    guard(A, lp, out)
    A.label(ok)
def take_fb(A, out, cont):
    dbg_atomic(A, D_FBT)
    A.s_or_b32(s(S_INIT), s(S_INIT), 2)
    A.s_cmp_ge_u32(s(C0), 64); A.s_cbranch_scc1(cont)
    A.s_or_b32(s(C0), s(C0), K_FB); A.s_branch(out)
def dep_wait(A, setup, special):
    sk = only_w0(A)
    out, lp, sl = A.newlabel('dwo'), A.newlabel('dwl'), A.newlabel('dws')
    ensure_init(A, out)
    setup()
    A.v_mov_b32(v(CV+6), 0)
    A.label(lp)
    A.buffer_load_dword(v(CV+4), v(CV+2), s(S_WS, 4), 0, m='offen sc1')
    A.buffer_load_dword(v(CV+5), v(CV+6), s(S_DBG, 4), 0, m=f'offen offset:{D_READY*4} sc1')
    A.wait(vm=0)
    A.s_mov_b32(s(C0), 0)
    A.v_cmp_lt_u32('vcc', v(CV+4), v(CV+3)); A.s_cbranch_vccz(out)
    A.v_readfirstlane_b32(s(C1), v(CV+5))
    A.s_bitcmp0_b32(s(C1), POISON); A.s_cbranch_scc1(sl)
    A.s_bitcmp1_b32(s(S_INIT), 1); A.s_cbranch_scc1(sl)
    take_fb(A, out, sl)
    A.label(sl)
    A.s_sleep(4)
    guard(A, lp, out)
    A.label(out)
    bcast(A, sk)
    A.s_cmp_lg_u32(s(C0), 0); A.s_cbranch_scc1(special)
def cnt_addr(t): return WS_CTL + C_CNT + t*2048
def dep_cnt(A, t, target):
    def f():
        A.s_lshl_b32(s(C2), s(G_MB), 7); A.s_add_u32(s(C2), s(C2), cnt_addr(t))
        A.v_mov_b32(v(CV+2), s(C2)); A.v_mov_b32(v(CV+3), target)
    return f

def ws_srd(A, d):
    A.s_mov_b32(s(d), s(ptr(P_WS))); A.s_mov_b32(s(d+1), s(ptr(P_WS)+1)); A.s_mov_b32(s(d+2), hex(WS_SIZE)); A.s_mov_b32(s(d+3), '0x20000')

def build():
    A = Asm()
    END, NEXT, DECODE, SPECIAL, DONE, CABORT = '.end', '.next', '.decode', '.special', '.done', '.cabort'
    GEMM, GEMMV, CHAINP, CHAINF, CDONE = '.gemm', '.gemmv', '.chainp', '.chainf', '.cdone'
    A.s_cmp_ge_u32(s(2), 256); A.s_cbranch_scc1('.end0')
    load_ptrs(A)
    if 'log' in OPTS: A.s_lshl_b32(s(S_WG), s(2), 6); A.s_add_u32(s(S_WG), s(S_WG), WS_TIM + 0x10000)
    A.v_lshrrev_b32(v(1), 6, v(0)); A.v_readfirstlane_b32(s(S_W), v(1))
    A.s_getreg_b32(s(S_XCC), 'hwreg(HW_REG_XCC_ID, 0, 3)')
    A.s_mov_b32(s(S_TO), 1 << 17); A.s_mov_b32(s(S_INIT), 0); A.s_mov_b32(s(S_TASK), -1)
    A.wait(lgkm=0)
    srd(A, S_WS, P_WS, WS_SIZE); srd(A, S_DBG, P_DBG, 256)
    if 'tim' in OPTS: A.s_memtime(s(100, 2))
    rts(A, 0)
    if 'nochain' not in OPTS:
        A.s_cmp_gt_u32(s(S_XCC), 0 if 'forcefb' in OPTS else 1); A.s_cbranch_scc1(NEXT)
        sk = only_w0(A)
        A.s_lshl_b32(s(C1), s(S_XCC), 2)
        dbg_atomic(A, D_CNT0, s(C1))
        bcast(A, sk)
        A.s_cmp_lt_u32(s(C0), 32); A.s_cbranch_scc1(CHAINP)
    A.label(NEXT)
    if 'chainonly' in OPTS: A.s_branch(END)
    A.s_sub_u32(s(S_TO), s(S_TO), 32); A.s_cbranch_scc1(END)
    if 'log' in OPTS:
        nl = A.newlabel('nl')
        A.s_cmp_lg_u32(s(S_W), 0); A.s_cbranch_scc1(nl)
        A.s_cmp_ge_u32(s(S_TASK), 2048); A.s_cbranch_scc1(nl)
        A.s_memrealtime(s(C0, 2)); A.wait(lgkm=0)
        A.v_mov_b32(v(CV+4), s(21)); A.v_mov_b32(v(CV+5), s(22)); A.v_mov_b32(v(CV+6), s(23)); A.v_mov_b32(v(CV+7), s(C0))
        A.v_mov_b32(v(CV), s(S_XCC)); A.v_mov_b32(v(CV+1), s(14)); A.v_mov_b32(v(CV+2), s(15)); A.v_mov_b32(v(CV+3), 0)
        A.s_lshl_b32(s(C0), s(S_TASK), 5); A.s_add_u32(s(C0), s(C0), WS_TIM)
        A.s_mov_b64('exec', 1)
        A.buffer_store_dwordx4(v(CV+4, 4), v(CV+3), s(S_WS, 4), s(C0), m='offen')
        A.buffer_store_dwordx4(v(CV, 4), v(CV+3), s(S_WS, 4), s(C0), m='offen offset:16')
        A.s_mov_b64('exec', -1)
        A.label(nl)
        stamp(A, 14)
    sk = only_w0(A)
    out, lead, got, lp = A.newlabel('dqo'), A.newlabel('dqlead'), A.newlabel('dqgot'), A.newlabel('dql')
    A.s_lshl_b32(s(C1), s(S_XCC), 2)
    A.v_mov_b32(v(CV), 1); A.v_mov_b32(v(CV+1), 0)
    A.s_mov_b64('exec', 1)
    A.buffer_atomic_add(v(CV), v(CV+1), s(S_DBG, 4), s(C1), m=f'offen offset:{D_LH*4} sc0 sc1')
    A.buffer_load_dwordx4(v(CV+4, 4), v(CV+1), s(S_DBG, 4), 0, m=f'offen offset:{D_READY*4} sc1')
    A.s_mov_b64('exec', -1)
    A.wait(vm=0)
    A.v_readfirstlane_b32(s(C2), v(CV)); A.v_readfirstlane_b32(s(C5), v(CV+4)); A.v_readfirstlane_b32(s(C1), v(CV+7))
    A.s_or_b32(s(S_INIT), s(S_INIT), s(C1))
    A.s_lshr_b32(s(C3), s(C2), 5); A.s_and_b32(s(C2), s(C2), 31)
    A.s_mov_b32(s(C0), K_EXIT); A.s_cmp_ge_u32(s(C3), 128); A.s_cbranch_scc1(out)
    z = A.newlabel('dqz')
    A.s_cmp_eq_u32(s(C3), 0); A.s_cbranch_scc1(z)
    ensure_init(A, out)
    A.label(z)
    A.s_lshl_b32(s(C4), s(S_XCC), 7); A.s_add_u32(s(C4), s(C4), s(C3)); A.s_lshl_b32(s(C4), s(C4), 2); A.s_add_u32(s(C4), s(C4), WS_CTL + C_TAB)
    A.s_cmp_eq_u32(s(C2), 0); A.s_cbranch_scc1(lead)
    A.v_mov_b32(v(CV+1), 0)
    A.label(lp)
    l0, l1 = A.newlabel('dq0'), A.newlabel('dq1')
    A.s_cmp_eq_u32(s(C3), 0); A.s_cbranch_scc1(l0)
    A.buffer_load_dword(v(CV), v(CV+1), s(S_WS, 4), s(C4), m='offen sc1'); A.s_branch(l1)
    A.label(l0)
    A.s_lshl_b32(s(C1), s(S_XCC), 2)
    A.buffer_load_dword(v(CV), v(CV+1), s(S_DBG, 4), s(C1), m=f'offen offset:{D_SLOT0*4} sc1')
    A.label(l1)
    A.wait(vm=0); A.v_readfirstlane_b32(s(C0), v(CV))
    A.s_sub_u32(s(C0), s(C0), 1); A.s_cbranch_scc0(got)
    guard(A, lp, out)
    A.label(lead)
    dbg_atomic(A, D_GHEAD)
    A.s_add_u32(s(C1), s(C0), 1); A.v_mov_b32(v(CV), s(C1))
    l0 = A.newlabel('dq0')
    A.s_mov_b64('exec', 1)
    A.s_cmp_eq_u32(s(C3), 0); A.s_cbranch_scc1(l0)
    A.buffer_store_dword(v(CV), v(CV+1), s(S_WS, 4), s(C4), m='offen sc1'); A.s_mov_b64('exec', -1); A.s_branch(got)
    A.label(l0)
    A.s_lshl_b32(s(C1), s(S_XCC), 2)
    A.buffer_store_dword(v(CV), v(CV+1), s(S_DBG, 4), s(C1), m=f'offen offset:{D_SLOT0*4} sc1'); A.s_mov_b64('exec', -1)
    A.label(got)
    A.s_min_u32(s(C0), s(C0), 1023)
    A.s_lshl_b32(s(C0), s(C0), 5); A.s_or_b32(s(C0), s(C0), s(C2))
    A.s_bitcmp0_b32(s(C5), POISON); A.s_cbranch_scc1(out)
    A.s_bitcmp1_b32(s(S_INIT), 1); A.s_cbranch_scc1(out)
    A.s_cmp_lt_u32(s(C0), 16*32); A.s_cbranch_scc1(out)
    A.s_mov_b32(s(C5), s(C0))
    back = A.newlabel('dqb')
    dbg_atomic(A, D_FBT)
    A.s_or_b32(s(S_INIT), s(S_INIT), 2)
    A.s_cmp_ge_u32(s(C0), 64); A.s_cbranch_scc1(back)
    A.s_lshl_b32(s(C0), s(C0), 17); A.s_or_b32(s(C0), s(C0), K_FB); A.s_or_b32(s(C0), s(C0), s(C5)); A.s_branch(out)
    A.label(back); A.s_mov_b32(s(C0), s(C5))
    A.label(out)
    bcast(A, sk)
    A.s_and_b32(s(S_TASK), s(C0), 0xFFFF)
    dec0 = A.newlabel('dec0')
    A.s_bitcmp0_b32(s(C0), 16); A.s_cbranch_scc1(DECODE)
    A.s_lshr_b32(s(C0), s(C0), 17); A.s_branch(CHAINF)
    A.label(SPECIAL)
    A.s_bitcmp0_b32(s(C0), 16); A.s_cbranch_scc1(END)
    A.s_and_b32(s(C0), s(C0), 63); A.s_branch(CHAINF)
    A.label(DECODE)
    stamp(A, 21); stamp(A, 22); stamp(A, 23); stamp(A, 15)
    A.s_lshr_b32(s(C0), s(S_TASK), 5); A.s_and_b32(s(C1), s(S_TASK), 31)
    TL = {n: A.newlabel('t' + n) for n in ('KV', 'GU', 'DN', 'Q', 'AT', 'OP', 'OPS')}
    tKV, tGU, tDN, tQ, tAT, tOP, tOPS = TL.values()
    pos = 0
    A.s_mov_b32(s(C2), s(C0))
    for ty, first, cnt in order():
        if not cnt: continue
        A.s_sub_u32(s(C0), s(C2), pos - first)
        pos += cnt
        A.s_cmp_lt_u32(s(C2), pos); A.s_cbranch_scc1(TL[ty])
    A.label(END)
    rts(A, 5); A.wait(vm=0)
    if 'tim' in OPTS:
        A.s_memtime(s(C0, 2)); A.wait(lgkm=0); A.s_sub_u32(s(C0), s(C0), s(100))
        A.v_mov_b32(v(CV), s(C0)); A.v_mov_b32(v(CV+1), 0); A.s_mov_b64('exec', 1)
        A.buffer_atomic_umax(v(CV), v(CV+1), s(S_DBG, 4), 0, m='offen offset:128 sc1'); A.wait(vm=0)
    A.label('.end0')
    A.s_endpgm()

    def x_operand():
        srd(A, SRD_A, P_X, 2048*2048); A.s_lshl_b32(s(G_SA), s(G_MB), 18); A.s_mov_b32(s(G_STA), 2048); A.s_mov_b32(s(G_N), 16); A.s_mov_b32(s(G_ASTEP), 128)
    def b_operand(p, nbytes, stride, ntreg):
        srd(A, SRD_B0, p, nbytes); srd(A, SRD_B1, p, nbytes)
        A.s_lshl_b32(s(G_SB0), s(ntreg), 9); A.s_add_u32(s(G_SB1), s(G_SB0), 256)
        A.s_mov_b32(s(G_STB), stride); A.s_mov_b32(s(G_BSTEP), 64*stride)
    def set_cnt(t): A.s_lshl_b32(s(G_CNT), s(G_MB), 7); A.s_add_u32(s(G_CNT), s(G_CNT), cnt_addr(t))
    def mb_nt(qshift, mul):
        A.s_lshr_b32(s(G_MB), s(C0), qshift); A.s_lshl_b32(s(G_MB), s(G_MB), 2); A.s_and_b32(s(C2), s(C1), 3); A.s_add_u32(s(G_MB), s(G_MB), s(C2))
        A.s_and_b32(s(C3), s(C0), (1 << qshift) - 1); A.s_mul_i32(s(G_NT), s(C3), mul); A.s_lshr_b32(s(C2), s(C1), 2); A.s_add_u32(s(G_NT), s(G_NT), s(C2))
    A.label(tKV)
    noz = A.newlabel('noz')
    A.s_cmp_lg_u32(s(S_TASK), 0); A.s_cbranch_scc1(noz)
    lane_id(A, CV); A.s_lshl_b32(s(C2), s(S_W), 10); A.v_lshlrev_b32(v(CV), 4, v(CV)); A.v_add_u32(v(CV), s(C2), v(CV))
    A.v_mov_b64(v(CV+4, 2), 0); A.v_mov_b64(v(CV+6, 2), 0)
    for i in range(CTL_BYTES // 4096):
        A.s_mov_b32(s(C2), WS_CTL + i*4096)
        A.buffer_store_dwordx4(v(CV+4, 4), v(CV), s(S_WS, 4), s(C2), m='offen sc1')
    if 'nochain' in OPTS:
        A.wait(vm=0); A.s_barrier()
        A.v_mov_b32(v(CV+4), 64); A.v_lshlrev_b32(v(CV), 3, v(CV)); A.s_mov_b32(s(C2), WS_CTL + C_PROG)
        q = only_w0(A)
        A.buffer_store_dword(v(CV+4), v(CV), s(S_WS, 4), s(C2), m='offen sc1')
        A.label(q)
    A.wait(vm=0); A.s_barrier()
    q = only_w0(A); dbg_atomic(A, D_INIT, ret=False); A.label(q)
    A.label(noz)
    mb_nt(2, 8); x_operand(); set_cnt(T_KV)
    tV = A.newlabel('tv')
    A.s_cmp_ge_u32(s(G_NT), 16); A.s_cbranch_scc1(tV)
    def kv_base(base):
        A.s_lshl_b32(s(G_SC), s(G_MB), 20); A.s_lshl_b32(s(C2), s(G_NT), 14); A.s_add_u32(s(G_SC), s(G_SC), s(C2))
        A.s_lshl_b32(s(C2), s(S_W), 11); A.s_add_u32(s(G_SC), s(G_SC), s(C2)); A.s_add_u32(s(G_SC), s(G_SC), base)
    b_operand(P_WK, 1024*8192, 8192, G_NT); kv_base(WS_KX); A.s_mov_b32(s(G_EPI), 1); A.s_branch(GEMM)
    A.label(tV)
    A.s_sub_u32(s(G_NT), s(G_NT), 16)
    b_operand(P_WV, 1024*8192, 8192, G_NT)
    kv_base(WS_VT)
    stamp(A, 22); gemm_consts(A); gemm_main(A, True); stamp(A, 23); epi_vt(A); stamp(A, 15); A.s_branch(DONE)
    A.label(tQ)
    mb_nt(1, 8); x_operand(); set_cnt(T_Q)
    b_operand(P_WQ, 1024*8192, 8192, G_NT); kv_base(WS_QX); A.s_mov_b32(s(G_EPI), 0); A.s_branch(GEMM)
    A.label(tGU)
    tG = A.newlabel('tg')
    mb_nt(2, 7)
    A.s_cmp_ge_u32(s(C1), 28); A.s_cbranch_scc1(tG)
    x_operand(); set_cnt(T_GU)
    srd(A, SRD_B0, P_WG, 1024*7168); srd(A, SRD_B1, P_WU, 1024*7168)
    A.s_lshl_b32(s(G_SB0), s(G_NT), 8); A.s_mov_b32(s(G_SB1), s(G_SB0)); A.s_mov_b32(s(G_STB), 7168); A.s_mov_b32(s(G_BSTEP), 64*7168)
    A.s_mul_i32(s(G_SC), s(G_MB), 128*7168); A.s_lshl_b32(s(C2), s(G_NT), 13); A.s_add_u32(s(G_SC), s(G_SC), s(C2))
    A.s_lshl_b32(s(C2), s(S_W), 11); A.s_add_u32(s(G_SC), s(G_SC), s(C2)); A.s_add_u32(s(G_SC), s(G_SC), WS_H)
    A.s_mov_b32(s(G_EPI), 2); A.s_branch(GEMM)
    A.label(tG)
    A.s_cmp_lg_u32(s(C3), 0); A.s_cbranch_scc1(NEXT)
    set_cnt(T_DN); task_g(A); A.s_branch(DONE)
    A.label(tDN)
    A.s_lshl_b32(s(G_MB), s(C0), 3); A.s_and_b32(s(C2), s(C1), 7); A.s_add_u32(s(G_MB), s(G_MB), s(C2))
    A.s_lshr_b32(s(G_NT), s(C1), 3)
    dep_wait(A, dep_cnt(A, T_GU, 28), SPECIAL)
    set_cnt(T_DN)
    ws_srd(A, SRD_A); A.s_mul_i32(s(G_SA), s(G_MB), 128*7168); A.s_add_u32(s(G_SA), s(G_SA), WS_H); A.s_mov_b32(s(G_STA), 32*7168); A.s_mov_b32(s(G_N), 56); A.s_mov_b32(s(G_ASTEP), 4096)
    b_operand(P_WD, 3584*2048, 2048, G_NT)
    A.s_lshl_b32(s(G_SC), s(G_MB), 2); A.s_add_u32(s(G_SC), s(G_SC), s(G_NT)); A.s_lshl_b32(s(G_SC), s(G_SC), 2); A.s_add_u32(s(G_SC), s(G_SC), s(S_W))
    A.s_lshl_b32(s(G_SC), s(G_SC), 14); A.s_add_u32(s(G_SC), s(G_SC), WS_B)
    A.s_mov_b32(s(G_EPI), 3); A.s_branch(GEMM)
    A.label(tAT)
    A.s_lshl_b32(s(G_MB), s(C0), 3); A.s_lshr_b32(s(C2), s(C1), 2); A.s_add_u32(s(G_MB), s(G_MB), s(C2)); A.s_and_b32(s(G_NT), s(C1), 3)
    set_cnt(T_AT)
    def d_kvq():
        A.s_lshr_b32(s(C2), s(G_MB), 2); A.s_lshl_b32(s(C2), s(C2), 7); A.s_add_u32(s(C2), s(C2), cnt_addr(T_KV))
        lane_id(A, CV+3); A.v_and_b32(v(CV+3), 1, v(CV+3))
        A.v_lshlrev_b32(v(CV+2), 11, v(CV+3)); A.v_add_u32(v(CV+2), s(C2), v(CV+2))
        A.v_lshlrev_b32(v(CV+3), 4, v(CV+3)); A.v_sub_u32(v(CV+3), 32, v(CV+3))
        assert T_Q == T_KV + 1
    dep_wait(A, d_kvq, SPECIAL)
    stamp(A, 22); task_at_pre(A)
    def d_prog():
        lane_id(A, CV+3)
        A.v_and_b32(v(CV+2), 1, v(CV+3)); A.v_lshlrev_b32(v(CV+2), 12, v(CV+2))
        A.v_bfe_u32(v(CV+3), v(CV+3), 1, 3); A.v_lshl_add_u32(v(CV+2), v(CV+3), 7, v(CV+2))
        A.s_lshl_b32(s(C2), s(G_NT), 10); A.s_add_u32(s(C2), s(C2), WS_CTL + C_PROG); A.v_add_u32(v(CV+2), s(C2), v(CV+2))
        A.s_add_u32(s(C2), s(G_MB), 1); A.v_mov_b32(v(CV+3), s(C2))
    dep_wait(A, d_prog, SPECIAL)
    stamp(A, 23); task_at_post(A); stamp(A, 15); A.s_branch(DONE)
    A.label(tOPS)
    A.s_mov_b32(s(G_NT), s(C1)); A.s_add_u32(s(G_MB), s(C0), S0)
    task_ops_pre(A)
    stamp(A, 22)
    opl = A.newlabel('opsl'); A.label(opl)
    def d_ops():
        lane_id(A, CV+3); A.v_and_b32(v(CV+3), 1, v(CV+3))
        A.s_lshl_b32(s(C2), s(G_MB), 7); A.s_add_u32(s(C2), s(C2), cnt_addr(T_AT))
        A.s_lshr_b32(s(C3), s(G_MB), 2); A.s_lshl_b32(s(C3), s(C3), 7); A.s_add_u32(s(C3), s(C3), cnt_addr(T_DN)); A.s_sub_u32(s(C3), s(C2), s(C3))
        A.v_mul_u32_u24(v(CV+2), s(C3), v(CV+3)); A.v_sub_u32(v(CV+2), s(C2), v(CV+2))
        A.v_add_u32(v(CV+3), 4, v(CV+3))
    dep_wait(A, d_ops, SPECIAL)
    stamp(A, 23)
    task_ops_seg(A)
    A.s_add_u32(s(G_MB), s(G_MB), NG); A.s_cmp_lt_u32(s(G_MB), 64); A.s_cbranch_scc1(opl)
    stamp(A, 15)
    A.wait(vm=0); A.s_branch(NEXT)
    A.label(tOP)
    A.s_lshl_b32(s(G_MB), s(C0), 3); A.s_lshr_b32(s(C2), s(C1), 2); A.s_add_u32(s(G_MB), s(G_MB), s(C2)); A.s_and_b32(s(G_NT), s(C1), 3)
    A.s_cmp_ge_u32(s(G_MB), S0 // 4); A.s_cbranch_scc1(NEXT)
    def d_at():
        lane_id(A, CV+3); A.v_and_b32(v(CV+3), 3, v(CV+3))
        A.s_lshl_b32(s(C2), s(G_MB), 9); A.s_add_u32(s(C2), s(C2), cnt_addr(T_AT))
        A.v_lshlrev_b32(v(CV+2), 7, v(CV+3)); A.v_add_u32(v(CV+2), s(C2), v(CV+2)); A.v_mov_b32(v(CV+3), 4)
    dep_wait(A, d_at, SPECIAL)
    ws_srd(A, SRD_A); A.s_lshl_b32(s(G_SA), s(G_MB), 20); A.s_add_u32(s(G_SA), s(G_SA), WS_O); A.s_mov_b32(s(G_STA), 262144); A.s_mov_b32(s(G_N), 64)
    A.s_mov_b32(s(G_ASTEP), 4096)
    b_operand(P_WO, 4096*2048, 2048, G_NT)
    A.s_lshl_b32(s(G_SC), s(G_MB), 18); A.s_lshl_b32(s(C2), s(G_NT), 9); A.s_add_u32(s(G_SC), s(G_SC), s(C2))
    A.s_lshl_b32(s(C2), s(S_W), 6); A.s_add_u32(s(G_SC), s(G_SC), s(C2))
    A.s_mov_b32(s(G_EPI), 4)
    A.label(GEMM)
    stamp(A, 22); gemm_consts(A); gemm_main(A, False); stamp(A, 23)
    eGU, eDN, eOP, eK = A.newlabel('egu'), A.newlabel('edn'), A.newlabel('eop'), A.newlabel('ek')
    A.s_cmp_eq_u32(s(G_EPI), 1); A.s_cbranch_scc1(eK)
    A.s_cmp_eq_u32(s(G_EPI), 2); A.s_cbranch_scc1(eGU)
    A.s_cmp_eq_u32(s(G_EPI), 3); A.s_cbranch_scc1(eDN)
    A.s_cmp_eq_u32(s(G_EPI), 4); A.s_cbranch_scc1(eOP)
    epi_q(A); stamp(A, 15); A.s_branch(DONE)
    A.label(eK); epi_k(A); stamp(A, 15); A.s_branch(DONE)
    A.label(eGU); epi_gu(A); stamp(A, 15); A.s_branch(DONE)
    A.label(eDN); epi_dn(A); stamp(A, 15); A.s_branch(DONE)
    A.label(eOP)
    dep_wait(A, dep_cnt(A, T_DN, 5), SPECIAL)
    A.s_lshl_b32(s(G_T2), s(G_MB), 2); A.s_add_u32(s(G_T2), s(G_T2), s(G_NT)); A.s_lshl_b32(s(G_T2), s(G_T2), 2); A.s_add_u32(s(G_T2), s(G_T2), s(S_W))
    A.s_lshl_b32(s(G_T2), s(G_T2), 14); A.s_add_u32(s(G_T2), s(G_T2), WS_B)
    A.s_lshl_b32(s(G_T3), s(G_MB), 9); A.s_add_u32(s(G_T3), s(G_T3), WS_G)
    srd(A, SRD_C, P_OUT, 2048*2048)
    stamp(A, 15); epi_op_loads(A); epi_op(A)
    A.wait(vm=0); A.s_branch(NEXT)
    A.label(DONE)
    A.wait(vm=0); A.s_barrier()
    A.s_cmp_lg_u32(s(S_W), 0); A.s_cbranch_scc1(NEXT)
    ensure_init(A, NEXT)
    A.v_mov_b32(v(CV), 1); A.v_mov_b32(v(CV+1), 0)
    A.s_mov_b64('exec', 1)
    A.buffer_atomic_add(v(CV), v(CV+1), s(S_WS, 4), s(G_CNT), m='offen sc1')
    A.s_mov_b64('exec', -1)
    A.s_branch(NEXT)
    if 'nochain' not in OPTS:
        CSP = '.cspecial'
        def handshake(dw, timed):
            A.wait(vm=0); A.s_barrier()
            sk = only_w0(A)
            out, lp, nx, nc = A.newlabel('hso'), A.newlabel('hsl'), A.newlabel('hsn'), A.newlabel('hsc')
            dbg_atomic(A, dw)
            A.s_and_b32(s(C0), s(C0), 255); A.s_cbranch_scc1(nc)
            chain.xq_base(A, not timed); A.s_add_u32(s(C0), s(chain.S_T0), L_MEMB + 1536)
            lane_id(A, CV+2); A.v_lshlrev_b32(v(CV+2), 4, v(CV+2))
            A.s_mov_b32(s(C1), -1); A.s_mov_b32(s(C2), -1)
            A.s_mov_b64('exec', '0xffffffff')
            for i in range(3):
                for pol in range(2):
                    A.s_memtime(s(C4, 2)); A.wait(lgkm=0); A.s_mov_b32(s(C3), s(C4))
                    A.buffer_store_dwordx4(v(CV+4, 4), v(CV+2), s(S_WS, 4), s(C0), m='offen sc1')
                    A.wait(vm=0); A.s_memtime(s(C4, 2)); A.wait(lgkm=0); A.s_sub_u32(s(C3), s(C4), s(C3))
                    A.s_min_u32(s(C1+pol), s(C1+pol), s(C3)); A.s_xor_b32(s(C0), s(C0), 8192)
            A.s_mov_b64('exec', -1)
            A.s_cmp_lt_u32(s(C2), s(C1)); A.s_cselect_b32(s(C3), 257, 1)
            if 'pol0' in OPTS or 'pol1' in OPTS: A.s_mov_b32(s(C3), 257 if 'pol1' in OPTS else 1)
            if 'polx' in OPTS: A.s_cselect_b32(s(C3), 1, 257)
            dbg_atomic(A, dw, ret=False, val=s(C3))
            A.label(nc)
            A.s_mov_b32(s(C2), 300 if 'forcefb' not in OPTS else 20)
            A.label(lp)
            A.buffer_load_dwordx4(v(CV+4, 4), v(CV+1), s(S_DBG, 4), 0, m=f'offen offset:{D_READY*4} sc1')
            A.wait(vm=0)
            A.v_readfirstlane_b32(s(C1), v(CV+4 + dw - D_READY)); A.v_readfirstlane_b32(s(C3), v(CV+7))
            A.s_or_b32(s(S_INIT), s(S_INIT), s(C3))
            A.s_and_b32(s(C0), s(C1), 256); A.s_lshl_b32(s(C0), s(C0), 5)
            A.s_and_b32(s(C3), s(C1), 0x100ff)
            A.s_cmp_lg_u32(s(C3), 65); A.s_cbranch_scc1(nx)
            A.s_bitcmp1_b32(s(S_INIT), 0); A.s_cbranch_scc1(out)
            A.label(nx)
            if timed:
                np_, wk = A.newlabel('hsp'), A.newlabel('hsw')
                A.s_bitcmp0_b32(s(C1), POISON); A.s_cbranch_scc1(np_)
                take_fb(A, out, wk)
                A.label(wk); A.s_mov_b32(s(C0), 1); A.s_branch(out)
                A.label(np_)
                g = A.newlabel('hsg')
                A.s_sub_u32(s(C2), s(C2), 1); A.s_cbranch_scc0(g)
                A.s_mov_b32(s(C2), 0)
                A.s_cmp_ge_u32(s(C3), 65); A.s_cbranch_scc1(g)
                A.s_or_b32(s(C3), s(C1), 1 << POISON)
                A.v_mov_b32(v(CV+2), s(C3)); A.v_mov_b32(v(CV+3), s(C1))
                A.s_mov_b64('exec', 1)
                A.buffer_atomic_cmpswap(v(CV+2, 2), v(CV+1), s(S_DBG, 4), 0, m=f'offen offset:{D_READY*4} sc1')
                A.s_mov_b64('exec', -1)
                A.label(g)
            guard(A, lp, out)
            A.label(out)
            bcast(A, sk)
            A.s_and_b32(s(chain.S_POL), s(C0), 8192)
            A.s_cmp_lg_u32(s(C0), s(chain.S_POL)); A.s_cbranch_scc1(CSP)
        A.label(CHAINP)
        A.s_mov_b32(s(S_X), s(S_XCC)); A.s_mov_b32(s(S_H), s(C0))
        rts(A, 1)
        chain_setup(A, CABORT, False)
        rts(A, 2)
        handshake(D_READY, True)
        if 'tim' in OPTS:
            A.s_memtime(s(C0, 2)); A.wait(lgkm=0); A.s_sub_u32(s(C0), s(C0), s(100))
            A.v_mov_b32(v(CV), s(C0)); A.v_mov_b32(v(CV+1), 0); A.s_mov_b64('exec', 1)
            A.buffer_atomic_umax(v(CV), v(CV+1), s(S_DBG, 4), 0, m='offen offset:132 sc1'); A.s_mov_b64('exec', -1)
        rts(A, 3)
        chain_loop(A, CABORT, CDONE, False)
        A.label(CSP)
        A.s_cmp_eq_u32(s(C0), 1); A.s_cbranch_scc1(NEXT)
        A.s_branch(SPECIAL)
        A.label(CHAINF)
        A.s_and_b32(s(S_X), s(C0), 1); A.s_lshr_b32(s(S_H), s(C0), 1)
        A.wait(vm=0, lgkm=0); A.s_barrier()
        chain_setup(A, CABORT, True)
        handshake(D_READY2, False)
        chain_loop(A, CABORT, CDONE, True)
        A.label(CDONE)
        if chain.TIMERS:
            for i in range(16): A.v_mov_b32(v(32+i), s(chain.S_ACC+i) if i < 14 else 0)
            A.s_lshl_b32(s(C0), s(S_X), 5); A.s_add_u32(s(C0), s(C0), s(S_H)); A.s_lshl_b32(s(C0), s(C0), 2); A.s_add_u32(s(C0), s(C0), s(S_W))
            A.s_lshl_b32(s(C0), s(C0), 6); A.s_add_u32(s(C0), s(C0), WS_CTIM); A.v_mov_b32(v(48), 0)
            A.s_mov_b64('exec', 1)
            for i in range(4): A.buffer_store_dwordx4(v(32+4*i, 4), v(48), s(S_WS, 4), s(C0), m=f'offen offset:{16*i}')
            A.s_mov_b64('exec', -1)
            load_ptrs(A); A.wait(vm=0, lgkm=0)
        rts(A, 4)
        if 'tim' in OPTS:
            A.s_memtime(s(C0, 2)); A.wait(lgkm=0); A.s_sub_u32(s(C0), s(C0), s(100))
            A.v_mov_b32(v(CV), s(C0)); A.v_mov_b32(v(CV+1), 0); A.s_mov_b64('exec', 1)
            A.buffer_atomic_umax(v(CV), v(CV+1), s(S_DBG, 4), 0, m='offen offset:136 sc1'); A.s_mov_b64('exec', -1)
        A.s_cmp_eq_u32(s(S_TASK), -1); A.s_cbranch_scc1(NEXT)
        A.s_branch(DECODE)
        A.label(CABORT)
        A.s_mov_b64('exec', -1)
        A.v_mov_b32(v(CV), '0xdead'); A.v_mov_b32(v(CV+1), 0)
        A.buffer_store_dword(v(CV), v(CV+1), s(S_DBG, 4), 0, m=f'offen offset:{D_ABORT*4} sc1')
        A.wait(vm=0)
        A.s_endpgm()
    else:
        A.label(CHAINF); A.s_endpgm()
    n = A.fix_hazards()
    errs = A.check_waits()
    for e in errs[:20]: print('WAITERR', e)
    code, desc = kernel_wrap(KNAME + '_kernel', A.text())
    ol = ['; ORDER ' + ' '.join(f'{ty}{first+i}' for ty, first, cnt in order() for i in range(cnt))] if 'log' in OPTS else []
    return header(ol + [f'; @launch grid=(256,1,1) block=(256,1,1) lds={LDS_BYTES}']) + code + '.section .rodata,"a"\n' + desc

if __name__ == '__main__':
    for spec in sys.argv[1:]:
        OPTS = set(spec.split('+')) - {'base'}
        chain.TIMERS = 'ct' in OPTS; S0, NG = 48, 2
        chain.PAR.clear(); chain.PAR.update(chain.PAR0)
        for o in OPTS:
            if '=' in o:
                k_, v_ = o.split('=')
                if k_ == 'S0': S0 = int(v_)
                elif k_ == 'NG': NG = int(v_)
                else: chain.PAR[k_] = int(v_)
        import asmcheck
        p = 'mega_%s.s' % spec.replace('+', '_').replace('=', '')
        open(p, 'w').write(build())
        asmcheck.assemble(p)
```

```python
from asmlib import *
from layout import *
import struct

OPT = set()
PAR0 = dict(nm=2, np=2, swz=0, md=0, pd=0, ack=3, hv=0, vo=2, qa=18, ka=34, km=4, vp=2, nr=2, rd=16, dp=2, sp=0, x4=0, at=0, nd=0, kq=0, bo=0, rp=0)
PAR = dict(PAR0)
S_WS, S_DBG, S_TMP = 4, 8, 12
S_LO8 = 12
S_X, S_H, S_W, S_STEP, S_TO = 16, 17, 18, 19, 20
S_MEMLD, S_MEMST = 21, 23
S_XQO, S_XQI = 25, 27
S_PST, S_PLD = 29, 31
S_KX, S_VT, S_PUB, S_PUBV, S_PRG, S_KVR, S_POL = 33, 34, 35, 36, 37, 38, 39
S_C = 40
S_T0, S_T1, S_T2, S_T3 = 42, 43, 44, 45
S_TMP2 = 48
S_ACC = 47
S_PTR = 64
def ptr(i): return S_PTR + 2*i

V_A = 0
V_MW, V_L8, V_WO, V_PST, V_PLD, V_MST, V_IDX = 0, 4, 5, 6, 7, 8, 9
V_TB, V_TK, V_ONE, V_HALF = 10, 11, 12, 14
KP, VP = 16, 24
WVR, WOR = 128, 192
def WQ(jj): return 256 + 8*jj
def WK(jj): return 384 + 8*jj
O_FO, O_KX, O_X = L_FO - L_MEMB, L_KXB - L_MEMB, L_X - L_MEMB
def QPO(): return 576 if PAR['x4'] else 544

def srd(A, d, p, nbytes):
    A.s_mov_b32(s(d), s(ptr(p))); A.s_mov_b32(s(d+1), s(ptr(p)+1))
    A.s_mov_b32(s(d+2), hex(nbytes)); A.s_mov_b32(s(d+3), '0x20000')

def load_ptrs(A):
    for i in range(0, 14, 2):
        A.s_load_dwordx4(s(ptr(i), 4), s(0, 2), i*8)
    A.s_load_dwordx2(s(ptr(14), 2), s(0, 2), 112)

def spin_guard(A, retry, abort):
    A.s_sub_u32(s(S_TO), s(S_TO), 1)
    A.s_cbranch_scc0(retry)
    A.s_branch(abort)

PB = [32, 40]
def AF(jj):
    assert jj not in (0, 2)
    return 48 + 4*([1, 3] + list(range(4, 16))).index(jj)

def xq_base(A, fb):
    A.s_lshl_b32(s(S_T0), s(S_X), 5); A.s_add_u32(s(S_T0), s(S_T0), s(S_H)); A.s_lshl_b32(s(S_T0), s(S_T0), 15)
    A.s_add_u32(s(S_T0), s(S_T0), WS_XQ + (FB_XQ if fb else 0) - L_MEMB)

def chain_setup(A, abort, fb=False):
    L, G, N16, T1, T2, T3, T4 = 16, 17, 18, 19, 20, 21, 22
    WS_PART_, WS_MEM_ = WS_PART + (FB_PART if fb else 0), WS_MEM + (FB_MEM if fb else 0)
    A.c('---- chain setup: lane constants ----')
    A.v_mbcnt_lo_u32_b32(v(L), -1, 0); A.v_mbcnt_hi_u32_b32(v(L), -1, v(L))
    A.v_lshrrev_b32(v(G), 4, v(L)); A.v_and_b32(v(N16), 15, v(L))
    A.v_lshrrev_b32(v(T1), 3, v(N16)); A.v_lshlrev_b32(v(T1), 9, v(T1)); A.v_lshl_add_u32(v(T1), v(G), 7, v(T1))
    A.v_and_b32(v(T2), 7, v(L)); A.v_lshl_add_u32(v(T1), v(T2), 4, v(T1))
    A.s_lshl_b32(s(S_T0), s(S_W), 11); A.s_add_u32(s(S_T0), s(S_T0), L_MEMB)
    A.v_add_u32(v(V_MW), s(S_T0), v(T1))
    for a_ in range(1, 4): A.v_xor_b32(v(V_A+a_), a_*2048, v(V_MW))
    A.v_lshlrev_b32(v(T1), 3, v(L)); A.v_add_u32(v(V_L8), s(S_T0), v(T1))
    A.s_lshl_b32(s(S_T3), s(S_W), 15)
    A.v_lshlrev_b32(v(T1), 4, v(L)); A.v_add_u32(v(V_WO), s(S_T3), v(T1))
    A.v_and_b32(v(T3), 1, v(G)); A.v_lshlrev_b32(v(T3), 1, v(T3)); A.v_lshrrev_b32(v(T4), 1, v(G)); A.v_add_u32(v(T3), v(T3), v(T4))
    A.v_lshlrev_b32(v(T3), 13, v(T3)); A.v_lshl_add_u32(v(T3), v(N16), 4, v(T3))
    A.s_lshl_b32(s(S_T0), s(S_W), 16); A.v_add_u32(v(T3), s(S_T0), v(T3))
    if PAR['swz']:
        A.v_lshrrev_b32(v(T4), 13, v(T3)); A.v_xor_b32(v(T4), s(S_H), v(T4)); A.v_lshl_add_u32(v(V_PST), v(T4), 8, v(T3))
    else:
        A.s_lshl_b32(s(S_T1), s(S_H), 8); A.v_add_u32(v(V_PST), s(S_T1), v(T3))
    A.v_lshrrev_b32(v(T3), 2, v(L)); A.v_lshlrev_b32(v(T3), 8, v(T3))
    A.v_and_b32(v(T4), 3, v(L)); A.v_lshl_add_u32(v(T3), v(T4), 4, v(T3))
    A.s_lshl_b32(s(S_T0), s(S_H), 13); A.s_lshl_b32(s(S_T1), s(S_W), 6); A.s_add_u32(s(S_T0), s(S_T0), s(S_T1))
    A.v_add_u32(v(V_PLD), s(S_T0), v(T3))
    A.v_lshrrev_b32(v(T3), 3, v(L)); A.v_lshlrev_b32(v(T3), 4, v(T3))
    A.v_and_b32(v(T4), 2, v(L)); A.v_lshl_add_u32(v(T3), v(T4), 1, v(T3))
    A.s_lshl_b32(s(S_T0), s(S_H), 8); A.s_lshr_b32(s(S_T1), s(S_W), 1); A.s_lshl_b32(s(S_T1), s(S_T1), 7); A.s_add_u32(s(S_T0), s(S_T0), s(S_T1))
    A.s_and_b32(s(S_T1), s(S_W), 1); A.s_lshl_b32(s(S_T1), s(S_T1), 3); A.s_add_u32(s(S_T0), s(S_T0), s(S_T1))
    A.v_add_u32(v(T3), s(S_T0), v(T3))
    A.v_and_b32(v(T4), 5, v(L)); A.v_cmp_eq_u32('vcc', 0, v(T4)); A.v_bfrev_b32(v(T4), 1)
    A.v_cndmask_b32(v(V_MST), v(T4), v(T3))
    A.v_mov_b32(v(T3), '0x4444'); A.v_mov_b32(v(T4), '0xeeee')
    A.v_cmp_lt_u32('vcc', 7, v(N16)); A.v_cndmask_b32(v(V_IDX), v(T3), v(T4))
    A.v_lshrrev_b32(v(T1), 1, v(G)); A.v_lshlrev_b32(v(T1), 8, v(T1))
    A.v_and_b32(v(T2), 1, v(L)); A.v_lshl_add_u32(v(T1), v(T2), 7, v(T1))
    A.v_and_b32(v(T2), 1, v(G)); A.v_lshl_add_u32(v(T1), v(T2), 3 if PAR['x4'] else 6, v(T1))
    A.v_bfe_u32(v(T2), v(L), 2, 2); A.v_lshl_add_u32(v(T1), v(T2), 4 if PAR['x4'] else 3, v(T1))
    A.v_add_u32(v(V_TK), L_FO, v(T1))
    A.v_bfe_u32(v(T2), v(L), 1, 1); A.v_mul_u32_u24(v(T2), QPO(), v(T2)); A.v_add_u32(v(T1), v(T1), v(T2))
    A.v_add_u32(v(V_TB), L_X, v(T1))
    for i in range(2): A.v_mov_b32(v(V_ONE+i), '0x3f803f80'); A.v_mov_b32(v(V_HALF+i), '0x3f003f00')
    A.c('---- scalar constants ----')
    cbits = struct.unpack('<I', struct.pack('<f', (128 ** -0.5) * 1.4426950408889634))[0]
    A.s_mov_b32(s(S_C), hex(cbits)); A.s_mov_b32(s(S_C+1), hex(cbits))
    A.s_lshl_b32(s(S_T0), s(S_X), 14)
    for par in range(2):
        A.s_add_u32(s(S_MEMST+par), s(S_T0), WS_MEM_ + par*8192)
        A.s_add_u32(s(S_MEMLD+par), s(S_T0), WS_MEM_ + par*8192 - L_MEMB)
    A.s_lshl_b32(s(S_PRG), s(S_X), 5); A.s_add_u32(s(S_PRG), s(S_PRG), s(S_H)); A.s_lshl_b32(s(S_PRG), s(S_PRG), 7); A.s_add_u32(s(S_PRG), s(S_PRG), WS_CTL + C_PROG)
    A.s_lshl_b32(s(S_T0), s(S_X), 18)
    for i in range(2):
        A.s_add_u32(s(S_PST+i), s(S_T0), WS_PART_ + i*32768)
        A.s_add_u32(s(S_PLD+i), s(S_T0), WS_PART_ + i*4096)
    if PAR['swz']:
        A.s_and_b32(s(S_T1), s(S_H), 4); A.s_lshl_b32(s(S_T1), s(S_T1), 9); A.s_add_u32(s(S_PST+1), s(S_PST+1), 1024); A.s_sub_u32(s(S_PST+1), s(S_PST+1), s(S_T1))
    A.s_lshl_b32(s(S_T0), s(S_H), 13)
    A.s_add_u32(s(S_KX), s(S_T0), WS_KX - L_MEMB); A.s_add_u32(s(S_VT), s(S_T0), WS_VT - L_MEMB)
    A.s_add_u32(s(S_PUBV), s(S_T0), WS_PUB - L_MEMB); A.s_lshl_b32(s(S_T1), s(S_X), 9); A.s_add_u32(s(S_PUBV), s(S_PUBV), s(S_T1))
    A.c('---- init hand-off buffers (write-through) ----')
    for i in range(4): A.v_mov_b32(v(32+i), 1)
    A.v_mov_b32(v(36), -1)
    xq_base(A, fb)
    for k in range(4):
        A.buffer_store_dwordx4(v(32, 4), v(V_MW), s(S_WS, 4), s(S_T0), m='offen sc1')
        A.buffer_store_dwordx4(v(32, 4), v(V_MW), s(S_WS, 4), s(S_T0), m='offen offset:1024 sc1')
        if k < 3: A.s_add_u32(s(S_T0), s(S_T0), 8192)
    for q in range(2):
        A.buffer_store_dwordx4(v(32, 4), v(V_PLD), s(S_WS, 4), s(S_PLD+q), m='offen sc1')
    for par in range(2):
        A.buffer_store_dword(v(36), v(V_MST), s(S_WS, 4), s(S_MEMST+par), m='offen sc1')
    A.c('---- weight load ----')
    VD, VDO, VRQ, VRQB, VRV, VRVB, VRO, VM0, R_ = 23, 24, 25, 26, 27, 28, 29, 30, 31
    A.v_lshrrev_b32(v(T1), 2, v(L)); A.v_and_b32(v(T2), 3, v(L))
    A.v_lshlrev_b32(v(T3), 4, v(T2))
    A.v_lshl_add_u32(v(VD), v(T1), 13, v(T3)); A.v_lshl_add_u32(v(VDO), v(T1), 11, v(T3))
    A.s_lshl_b32(s(S_T0), s(S_X), 22); A.s_lshl_b32(s(S_T1), s(S_H), 8); A.s_add_u32(s(S_T0), s(S_T0), s(S_T1))
    A.s_lshl_b32(s(S_T1), s(S_W), 6); A.s_add_u32(s(S_T0), s(S_T0), s(S_T1)); A.v_add_u32(v(VD), s(S_T0), v(VD))
    A.s_lshl_b32(s(S_T0), s(S_H), 18); A.s_lshl_b32(s(S_T1), s(S_X), 10); A.s_add_u32(s(S_T0), s(S_T0), s(S_T1))
    A.s_lshl_b32(s(S_T1), s(S_W), 8); A.s_add_u32(s(S_T0), s(S_T0), s(S_T1)); A.v_add_u32(v(VDO), s(S_T0), v(VDO))
    A.v_bfe_u32(v(R_), v(L), 3, 1)
    A.v_bfe_u32(v(T1), v(L), 2, 1)
    A.v_lshl_add_u32(v(T4), v(G), 2, v(T1)); A.v_lshlrev_b32(v(T4), 6, v(T4)); A.v_add_u32(v(T4), s(S_T3), v(T4))
    A.v_mul_u32_u24(v(VRV), 2080, v(R_)); A.v_lshl_add_u32(v(VRV), v(T2), 3, v(VRV)); A.v_add_u32(v(VRV), v(VRV), v(T4)); A.v_xor_b32(v(VRVB), 2048, v(VRV))
    A.v_and_b32(v(T3), 1, v(G)); A.v_lshlrev_b32(v(T3), 4, v(T3)); A.v_lshrrev_b32(v(T4), 1, v(G)); A.v_lshl_add_u32(v(T3), v(T4), 2, v(T3))
    A.v_add_u32(v(T3), v(T3), v(T1)); A.v_lshlrev_b32(v(T3), 6, v(T3)); A.v_lshl_add_u32(v(T3), v(R_), 5, v(T3)); A.v_lshl_add_u32(v(T3), v(T2), 3, v(T3))
    A.v_add_u32(v(VRO), s(S_T3), v(T3))
    A.v_and_b32(v(T1), 7, v(L)); A.v_lshlrev_b32(v(T1), 11, v(T1)); A.v_lshl_add_u32(v(T1), v(G), 4, v(T1))
    A.v_lshl_add_u32(v(T1), v(R_), 6, v(T1))
    A.s_lshl_b32(s(S_T0), s(S_X), 10); A.s_lshl_b32(s(S_T1), s(S_W), 8); A.s_add_u32(s(S_T0), s(S_T0), s(S_T1)); A.v_add_u32(v(VM0), s(S_T0), v(T1))
    groups = [('q', a_) for a_ in range(4)] + [('k', a_) for a_ in range(4)] + [('v', 0), ('v', 1)] + [('o', T) for T in range(4)] + [('v', 2), ('v', 3)]
    cur = [None]
    def setsrd(p, n):
        if cur[0] != p: srd(A, S_TMP, p, n); cur[0] = p
    def issue(g):
        slot, gr = g % 4, groups[g]
        setsrd(*{'q': (P_WQ, 1 << 23), 'k': (P_WK, 1 << 23), 'v': (P_WV, 1 << 23), 'o': (P_WO, 1 << 23)}[gr[0]])
        if gr[0] != 'o': A.s_xor_b32(s(S_T1), s(S_W), gr[1]); A.s_lshl_b32(s(S_T1), s(S_T1), 20)
        for b in range(8):
            sr = S_TMP
            if gr[0] != 'o': A.s_add_u32(s(S_T0), s(S_T1), hex((16*b) << 13))
            else:
                if b % 2 == 0: A.s_xor_b32(s(S_T1), s(S_W), b // 2); A.s_lshl_b32(s(S_T1), s(S_T1), 16)
                A.s_add_u32(s(S_T0), s(S_T1), hex((b % 2)*32768 + gr[1]*64))
            A.s_add_u32('m0', s(S_T3), slot*8192 + b*1024)
            A.buffer_load_dwordx4(v(VDO if gr[0] == 'o' else VD), s(sr, 4), s(S_T0), m='offen lds')
    def wr_frag(src, f):
        for u in range(2): A.ds_write_b128(v(V_WO), v(src + 4*u, 4), m=f'offset:{f*2048 + u*1024}')
    for g in range(4): issue(g)
    for g in range(16):
        A.wait(vm=min(3, 15-g) * 8)
        slot, gr = g % 4, groups[g]
        cnt = 0
        for k in range(4):
            for m in range(4):
                ro = (16*(m//2) + 2*(m % 2))*64
                if gr[0] != 'o':
                    i, f = k // 2, k % 2
                    if gr[0] == 'v': dst = WVR + (4*gr[1] + k)*8 if gr[1] < 2 else 96 + 8*k
                    else: dst = (WQ if gr[0] == 'q' else WK)(4*gr[1] + k)
                    A.ds_read_b64_tr_b16(r(dst + 2*m, 2), v(VRVB if f else VRV), m=f'offset:{slot*8192 + i*4096 + ro}')
                else:
                    dst = {0: 32 + 8*gr[1], 3: 64 + 8*gr[1], 1: WOR + 8*gr[1], 2: WOR + 32 + 8*gr[1]}[k]
                    A.ds_read_b64_tr_b16(v(dst + 2*m, 2), v(VRO), m=f'offset:{slot*8192 + (32*k + 8*(m//2) + 2*(m % 2))*64}')
            if k == 2: A.wait(lgkm=4)
        A.wait(lgkm=0)
        if g+4 < 16: issue(g+4)
        if g >= 14:
            for k in range(4): wr_frag(96 + 8*k, 4*(g-14) + k)
            A.wait(lgkm=0)
    for k in range(8): wr_frag(32 + 8*k, 8 + k)
    A.wait(lgkm=0)
    srd(A, S_TMP, P_MEM0, 8*1024*2)
    for i in range(2):
        A.buffer_load_dwordx4(v(PB[0]+4*i, 4), v(VM0), s(S_TMP, 4), 0, m=f'offen offset:{i*128}')

def kv_wait(A, abort, blk_sreg, t):
    lp, ok = A.newlabel('kvw'), A.newlabel('kvok')
    A.s_cmp_lt_u32(s(blk_sreg), s(S_KVR)); A.s_cbranch_scc1(ok)
    A.v_bfe_u32(v(t), v(V_WO), 4, 4); A.v_lshlrev_b32(v(t), 7, v(t))
    A.s_mov_b32(s(S_T0), WS_CTL + C_CNT + T_KV*2048)
    A.label(lp)
    A.buffer_load_dword(v(t+1), v(t), s(S_WS, 4), s(S_T0), m='offen sc1')
    A.wait(vm=0)
    A.v_cmp_gt_u32('vcc', KV_TARGET, v(t+1))
    A.s_or_b32(s(S_KVR), 'vcc_lo', 0x10000); A.s_ff1_i32_b32(s(S_KVR), s(S_KVR))
    A.s_cmp_lt_u32(s(blk_sreg), s(S_KVR)); A.s_cbranch_scc1(ok)
    spin_guard(A, lp, abort)
    A.label(ok)
KV_TARGET = 32

def kv_prefetch(A):
    ops = []
    for t in range(2): ops.append(lambda t=t: A.buffer_load_dwordx4(v(KP+4*t, 4), v(V_MW), s(S_WS, 4), s(S_KX), m=f'offen offset:{1024*t} sc1'))
    for t in range(2): ops.append(lambda t=t: A.buffer_load_dwordx4(v(VP+4*t, 4), v(V_MW), s(S_WS, 4), s(S_VT), m=f'offen offset:{1024*t} sc1'))
    return ops
def kv_advance(A): A.s_add_u32(s(S_KX), s(S_KX), 262144); A.s_add_u32(s(S_VT), s(S_VT), 262144)

TIMERS = False
NTM = 14
def TM(A, i):
    if TIMERS: (A.s_memrealtime if PAR.get('raw') else A.s_memtime)(s(64+2*i, 2))
def TMACC(A):
    if TIMERS:
        A.wait(lgkm=0)
        if PAR.get('raw'):
            A.s_cmp_eq_u32(s(S_STEP), PAR['raw'])
            for i in range(NTM): A.s_cselect_b32(s(S_ACC+i), s(64+2*i), s(S_ACC+i))
        for i in range(NTM-1):
            if PAR.get('raw'): break
            A.s_sub_u32(s(S_T0), s(66+2*i), s(64+2*i)); A.s_add_u32(s(S_ACC+i), s(S_ACC+i), s(S_T0))
        A.s_mov_b32(s(64), s(64+2*(NTM-1)))
def CNT(A, k):
    if TIMERS: A.s_add_u32(s(61 + k//3), s(61 + k//3), 1 << (10*(k % 3)))
def cvt(A, d, a_, b): return lambda: A.v_cvt_pk_bf16_f32(v(d), v(a_), v(b))
def tagop(A, d, tag): return (lambda: A.v_or_b32(v(d), 1, v(d))) if tag else (lambda: A.v_and_b32(v(d), -2, v(d)))
def run(ops):
    for f in ops: f()

QA, KA, VA = 104, 108, 112
BB, TC = 116, 120
def pre_mem(A):
    for t in range(2): A.ds_write_b128(v(V_MW), v(KP+4*t, 4), m=f'offset:{O_KX + 1024*t}')
    for i in range(6): A.v_mov_b64(v(QA+2*i, 2), 0)
    for a_ in range(4): A.v_xor_b32(v(BB+a_), 512, v(V_A+a_))

def chain_step(A, u, abort, fb, cold, first_entry=None, last=False, done=None):
    par, xtag, ptag = u % 2, (u // 2) % 2, u % 2
    st = 'offen sc1' if fb else 'offen'
    A.c(f'======== chain step u={u} last={last} ========')
    sm = lambda acc, af, W: A.v_smfmac_f32_16x16x64_bf16(v(acc, 4), v(af, 4), r(W, 8), v(V_IDX))
    def poll(check, loads, nfl, name):
        lp, rt = A.newlabel(name + 'l'), A.newlabel(name + 'r')
        A.label(lp); check(); A.s_cbranch_vccnz(rt)
        def emit():
            A.label(rt); A.s_mov_b64('exec', 'vcc')
            if name == 'q': CNT(A, 0)
            k = len(A.items); loads(); k = len(A.items) - k
            A.s_mov_b64('exec', -1)
            A.s_sub_u32(s(S_TO), s(S_TO), 1); A.s_cbranch_scc1(abort)
            A.wait(vm=k*(nfl-1)); A.s_branch(lp)
        cold.append(emit)
        return lp
    p = PB[0]
    def memld():
        for i in range(2): A.buffer_load_dwordx4(v(p+4*i, 4), v(V_MW), s(S_WS, 4), s(S_MEMLD+par), m=f'offen offset:{1024*i} sc1').nochk = True
    late = PAR['md'] or PAR['ack'] & 2
    if not late: memld()
    TMACC(A)
    pre_mem(A)
    if PAR['dp'] < 0: A.v_mov_b32(v(124), ((u + 3) // 2) % 2); A.v_mov_b32(v(125), s(S_STEP))
    if PAR['ack'] & 2: A.wait(vm=0)
    if late: A.nop(PAR['md']); memld()
    A.wait(vm=0)
    others = [(a_, i, f) for a_ in range(1, 4) for i in range(2) for f in range(2)]
    def ord_(k, q):
        a_, i, f = others[k]
        A.ds_read_b128(v(AF(4*a_+2*i+f), 4), v((BB if f else V_A) + a_), m=f'offset:{1024*i}'); q.issue(4*a_+2*i+f)
    def mchk():
        A.v_max3_u32(v(TC), v(p), v(p+1), v(p+2)); A.v_max3_u32(v(TC+1), v(p+3), v(p+4), v(p+5))
        A.v_max3_u32(v(TC), v(TC), v(p+6), v(p+7)); A.v_max_u32(v(TC), v(TC), v(TC+1))
        A.v_cmp_eq_u32('vcc', -1, v(TC))
    top = poll(mchk, memld, PAR['nm'], 'm')
    if first_entry:
        def emit_entry():
            A.label(first_entry); A.wait(vm=0)
            for i in range(8): A.v_min_u32(v(PB[0]+i), -2, v(PB[0]+i))
            pre_mem(A)
            A.v_mov_b32(v(124), 1); A.v_mov_b32(v(125), 0)
            for i in range(NTM): TM(A, i)
            A.s_branch(top)
        cold.append(emit_entry)
    q = LQ(A)
    TM(A, 1)
    vq = []
    def vwait(tag):
        i = vq.index(tag); A.wait(vm=len(vq) - 1 - i); del vq[:i+1]
    full = lambda: A.s_mov_b64('exec', -1)
    X4 = PAR['x4']; US, XN = (64, 4) if X4 else (32, 2)
    lo8 = (lambda: A.s_mov_b64('exec', s(S_LO8, 2))) if X4 else (lambda: None)
    ful8 = full if X4 else (lambda: None)
    def xw(src, lds): (A.ds_write_b128 if X4 else A.ds_write_b64)(v(V_MW if X4 else V_L8), v(src, XN), m=f'offset:{lds}')
    def xo(src, off, n): (A.buffer_store_dwordx4 if n == 4 else A.buffer_store_dwordx2)(v(src, n), v(V_MW if n == 4 else V_L8), s(S_WS, 4), s(S_XQO+par), m=f'offen offset:{off} sc1')
    def xi(dst, off, n):
      if PAR['at'] & {0: 1, 512: 2, 1024: 4}[off]:
        A.v_mov_b64(v(dst, 2), 0)
        A.buffer_atomic_or_x2(v(dst, 2), v(V_L8), s(S_WS, 4), s(S_XQI+par), m=f'offen offset:{off} sc0 sc1').nochk = True
      else: (A.buffer_load_dwordx4 if n == 4 else A.buffer_load_dwordx2)(v(dst, n), v(V_MW if n == 4 else V_L8), s(S_WS, 4), s(S_XQI+par), m=f'offen offset:{off} sc1').nochk = True
    def progress(val, t):
        A.buffer_store_dword(v(t), 'off', s(S_WS, 4), s(S_PRG), m='sc1'); vq.append('prog')
    def late_drop():
        ot = ((u + 3) // 2) % 2
        dr = lambda i: (A.buffer_store_dword(v(124), v(V_MW), s(S_WS, 4), s(S_XQI+1-par), m=f'offen offset:{1024*i} sc1'), vq.append(f'ld{i}'))
        m8 = lambda: (A.s_mov_b32('exec_lo', '0x01010101'), A.s_mov_b32('exec_hi', '0x01010101'))
        return [lambda: (A.v_mov_b32(v(124), ot), A.v_mov_b32(v(125), s(S_STEP)))] + ([] if last or PAR['nd'] else [lambda: (m8(), dr(0), full()), lambda: (m8(), dr(1), full())]) + [
                lambda: (A.s_mov_b64('exec', 1), progress(0, 125), full())]
    A.ds_write_b128(v(V_MW), v(p, 4)); A.ds_write_b128(v(V_MW), v(p+4, 4), m='offset:1024'); q.issue('w0'); q.issue('w1')
    if not last: sm(QA, p, WQ(0))
    A.ds_read_b128(v(AF(1), 4), v(BB)); A.ds_read_b128(v(AF(3), 4), v(BB), m='offset:1024'); q.issue(1); q.issue(3)
    if not last: sm(QA, p+4, WQ(2))
    sm(KA, p, WK(0))
    q.need(['w1']); A.s_barrier()
    TM(A, 2)
    vown = [(VA, p, WVR, None), (VA, p+4, WVR+16, None), (VA, AF(1), WVR+8, 1), (VA, AF(3), WVR+24, 3)]
    vo = PAR['vo']
    fill = [(KA, p+4, WK(2), None)] + ([] if last else [(QA, AF(1), WQ(1), 1), (QA, AF(3), WQ(3), 3)]) + [(KA, AF(1), WK(1), 1), (KA, AF(3), WK(3), 3)] + vown[:vo]
    k = 0
    ld_ = late_drop()
    if PAR['dp'] < 0 and not last:
        ot = ((u + 3) // 2) % 2
        A.s_mov_b32('exec_lo', '0x01010101'); A.s_mov_b32('exec_hi', '0x01010101')
        for i in range(2): A.buffer_store_dword(v(124), v(V_MW), s(S_WS, 4), s(S_XQI+1-par), m=f'offen offset:{1024*i} sc1'); vq.append(f'ld{i}')
        if PAR['dp'] == -2: progress(0, 125); ld_ = []
        else: ld_ = ld_[3:]
        full()
    for acc_, af, W, nd in fill:
        for _ in range(2):
            if k < 12: ord_(k, q); k += 1
        if nd: q.need([nd])
        sm(acc_, af, W)
    while k < 12: ord_(k, q); k += 1
    if last: run(ld_)
    QR, PKV, KRA, VR, XT = QA, VA, KP+4, 118, 114
    VKB, VTW = 116, 117
    KR, BP, K0, VTC, TK = 56, 88, 32, 48, 120
    VF = [40, 120, 32, 48, 40, 120, 32, 48]
    def vrd(k):
        for uu in range(2): A.ds_read_b128(v(VF[k]+4*uu, 4), v(V_WO), m=f'offset:{k*2048 + uu*1024}'); q.issue(('v', k, uu))
    def send(acc_, off, lds, tag, tm):
        o1 = [cvt(A, acc_, acc_, acc_+1), cvt(A, acc_+1, acc_+2, acc_+3)]
        if lds is None: return o1 + ([] if last else [tagop(A, acc_, xtag), lambda: (xo(acc_, off, 2), vq.append(tag))]) + [lambda: TM(A, tm)]
        o2 = [lambda i=i: A.v_mov_b32_dpp(v(acc_+2+i), v(acc_+i), m='row_ror:8 row_mask:0xf bank_mask:0xf') for i in range(2 if X4 else 0)]
        if not last: o2 += [tagop(A, acc_, xtag)]
        o3 = [lo8] + ([] if last else [lambda: (xo(acc_, off, XN), vq.append(tag))])
        o3 += [lambda: (xw(acc_, lds), q.issue(tag)), ful8, lambda: TM(A, tm)]
        return [[o1 + o2 + o3], [o1, o2 + o3], [o1, o2, o3]][PAR['sp']]
    if not last:
        for n, jj in enumerate(range(4, 16)):
            q.need([jj]); sm(QA, AF(jj), WQ(jj))
            if n >= (PAR['dp'] if PAR['dp'] >= 0 else 2) and ld_: ld_.pop(0)()
        assert not ld_
    side = {n: [] for n in range(12)}
    if not last:
        for i, o_ in enumerate(send(QA, 0, O_X, 'qs', 3)): side[1+i] += o_
    side[4] += [lambda: vrd(0)]; side[5] += [lambda: vrd(1)]
    side[7] += [lambda: A.v_and_b32(v(VKB), ~0x1800, v(V_MW)), lambda: A.s_lshl_b32(s(S_T1), s(S_W), 11), lambda: A.v_add_u32(v(VTW), s(S_T1), v(V_TK))]
    flush = lambda: A.wait(vm=len(vq))
    if vo >= 2: side[8] += [flush, lambda: vrd(2)]
    if vo >= 4: side[10] += [lambda: vrd(3)]
    polls = {}
    if not last:
        for key, dst, off in (('qa', QR, 0), ('ka', KRA, 512)):
            polls.setdefault(PAR[key], []).append(lambda key=key, dst=dst, off=off: (lo8(), xi(dst, off, XN), vq.append(key), ful8()))
    for n, jj in enumerate(range(4, 16)):
        q.need([jj]); sm(KA, AF(jj), WK(jj)); run(side.get(n, []) + polls.pop(n, []))
    vseq = vown[vo:] + [(VA, AF(jj), WVR + 8*jj if jj < 8 else VF[jj-8], jj) for jj in (8, 9, 10, 4, 5, 11, 6, 7, 12, 13, 14, 15)]
    nd_ = 4 - vo
    side = {n: [] for n in range(len(vseq))}
    for i, o_ in enumerate(send(KA, 512, O_FO, 'ks', 4)): side[1+i] += o_
    if vo < 2: side[nd_-3] += [flush, lambda: vrd(2)]
    if vo < 4: side[nd_-1] += [lambda: vrd(3)]
    for i, n in enumerate((0, 1, 2, 5)): side[nd_+n] += [lambda i=i: vrd(4+i)]
    def krd(b, t): A.ds_read_b128(v(KR+8*b+4*t, 4), v(VKB), m=f'offset:{O_KX + 2048*b + 1024*t}'); q.issue(('K', b, t))
    if not last:
        for i in range(4): side[nd_+8+i] += [lambda i=i: krd(i, 0), lambda i=i: krd(i, 1)]
    for n, (acc_, af, W, jj) in enumerate(vseq):
        if n >= nd_ and jj >= 8: q.need([('v', jj-8, 0), ('v', jj-8, 1)])
        sm(acc_, af, W); run(side[n] + polls.pop(12+n, []))
    tr = lambda d, a_, off, tag: (A.ds_read_b64_tr_b16(v(d, 2), v(a_), m=f'offset:{off}'), q.issue(tag))
    pubv = lambda: (A.buffer_store_dwordx2(v(PKV, 2), v(V_L8), s(S_WS, 4), s(S_PUBV), m='offen offset:1024 sc1'), vq.append('pv'))
    def pubk():
        q.need([('t', 1)])
        A.s_mov_b64('exec', s(S_LO8, 2))
        A.buffer_store_dwordx4(v(TK, 4), v(V_MW), s(S_WS, 4), s(S_PUBV), m='offen sc1'); vq.append('pk')
        A.s_mov_b64('exec', -1)
    for uu in range(2): tr(TK+2*uu, VTW, US*uu, ('t', uu))
    if last:
        run(send(VA, 1024, None, 'vs', 5)); pubv(); pubk()
        A.wait(vm=0); A.s_barrier()
        A.v_mov_b32(v(32), 64); progress(64, 32)
        A.s_branch(done)
        return
    q.need(['ks']); A.s_barrier()
    def krd2(off):
        for b in range(4):
            for uu in range(2): tr(K0+4*b+2*uu, V_TK, 2048*b + off + US*uu, ('k', b, uu))
    run(polls.pop(30, []))
    if 'ld1' in vq: vwait('ld1')
    run(send(VA, 1024, None, 'vs', 5))
    run(polls.pop(31, []))
    krd2(0)
    for i in range(4): A.v_mov_b64(v(VTC+2*i, 2), v(VP+2*i, 2))
    if u == 3: A.s_add_u32(s(S_T1), s(S_STEP), 1); A.s_lshr_b32(s(S_T1), s(S_T1), 2)
    run(polls.pop(32, []))
    if 33 in polls: vwait('ks'); run(polls.pop(33))
    vpoll = lambda: (xi(VR, 1024, 2), vq.append('vp'))
    if PAR['vp'] == 0: vpoll()
    def xchk(r_): A.v_and_b32(v(XT), 1, v(r_)); A.v_cmp_ne_u32('vcc', xtag, v(XT))
    def train(m_, RA, off, lds, c0):
        rot = [24, 28][:PAR['nr']]
        lo8(); vwait(m_ + 'a')
        kx, kok = A.newlabel('kx'), A.newlabel('kok')
        xchk(RA); A.s_cbranch_vccnz(kx); A.label(kok)
        def emit():
            lp = A.newlabel('kxl')
            kk = A.newlabel('kxk') if m_ == 'q' and PAR['kq'] else kok
            A.label(kx); CNT(A, c0); A.nop(PAR['bo'])
            for n, rg in enumerate(rot):
                if n: A.nop(PAR['rd'])
                xi(rg, off, XN)
            A.label(lp)
            for rg in rot:
                CNT(A, c0+1); A.wait(vm=len(rot)-1)
                for i in range(XN//2): A.v_mov_b64(v(RA+2*i, 2), v(rg+2*i, 2))
                xchk(RA); A.s_cbranch_vccz(kk); A.nop(PAR['rp']); xi(rg, off, XN)
            spin_guard(A, lp, abort)
            if kk != kok: A.label(kk); xi(KRA, 512, XN); A.s_branch(kok)
        cold.append(emit)
        xw(RA, lds); q.issue(m_ + 'w'); ful8()
    train('q', QR, 0, O_X + QPO(), 0)
    TM(A, 6)
    if PAR['vp'] == 1: vpoll()
    run(polls.pop(34, []))
    q.need(['qw']); A.s_barrier()
    for b in range(4):
        for uu in range(2): tr(BP+4*b+2*uu, V_TB, 2048*b + US*uu, ('b', b, uu))
    SX0, SX1, SM = 104, 108, 124
    mf = lambda d, a_, b_, c_: A.v_mfma_f32_16x16x32_bf16(v(d, 4), v(a_, 4), v(b_, 4), c_)
    ml = [(SM, K0+4*b, b) for b in range(4)] + [(sx, KR+8*b+4*t, b) for b in range(4) for t, sx in enumerate((SX0, SX1))]
    def smf(i):
        d, a_, b = ml[i]
        q.need([('b', b, 1)]); mf(d, a_, BP+4*b, v(d, 4) if b else 0)
    kc = PAR['km']
    for i in range(kc): smf(i)
    if PAR['vp'] == 2: vpoll()
    assert not polls
    train('k', KRA, 512, O_FO + 512, 2)
    TM(A, 7)
    if PAR['vp'] == 3: vpoll()
    pf = [lambda f=f: (f(), vq.append('pf')) for f in kv_prefetch(A)]
    M = 120
    sl = [pubv, pubk]
    nb = max(kc + 4, 4)
    for i in range(kc, nb):
        smf(i)
        if sl: sl.pop(0)()
    run(sl)
    q.need(['kw']); A.s_barrier()
    krd2(512)
    if u == 3: kv_wait(A, abort, S_T1, M)
    for i in range(nb, 12):
        smf(i)
        if pf: pf.pop(0)()
    run(pf)
    A.s_add_u32(s(S_PUBV), s(S_PUBV), 262144); kv_advance(A)
    WF = [56, 64, 72, 80, 40, 88, 56, 64]
    WI = [8, 9, 10, 11, 12, 13, 14, 15]
    def wrd(k, uu): A.ds_read_b128(v(WF[k]+4*uu, 4), v(V_WO), m=f'offset:{WI[k]*2048 + uu*1024}'); q.issue(('w', k, uu))
    wl = [lambda k=k, uu=uu: wrd(k, uu) for k in range(6) for uu in range(2)]
    T = M + 1
    PX, PM = 32, 36
    dadd = lambda r_: A.v_add_f32_dpp(v(r_), v(r_), v(r_), m='row_ror:8 row_mask:0xf bank_mask:0xf')
    def sm1(b): q.need([('k', b, 1)]); mf(SM, K0+4*b, BP+4*b, v(SM, 4))
    run(wl[0:2])
    sm1(0); dadd(104); dadd(105); dadd(106)
    sm1(1); dadd(107); dadd(108); dadd(109)
    sm1(2); dadd(110); dadd(111); A.v_max3_f32(v(M), v(104), v(105), v(106))
    sm1(3)
    TM(A, 8)
    A.v_max3_f32(v(M), v(M), v(107), v(108)); A.v_max3_f32(v(T), v(109), v(110), v(111)); A.v_max_f32(v(M), v(M), v(T))
    A.v_mov_b32(v(T), v(M)); run(wl[2:4]); A.v_permlane32_swap_b32(v(M), v(T)); A.v_max_f32(v(M), v(M), v(T))
    for i in range(4): dadd(SM+i)
    A.v_max3_f32(v(M), v(M), v(SM), v(SM+1)); A.v_max3_f32(v(M), v(M), v(SM+2), v(SM+3))
    A.v_mov_b32(v(T), v(M)); run(wl[4:6]); A.v_permlane16_swap_b32(v(M), v(T)); A.v_max_f32(v(M), v(M), v(T))
    A.v_mul_f32(v(M), s(S_C), v(M))
    SR = list(range(104, 112)) + list(range(SM, SM+4))
    fm = lambda i: A.v_pk_fma_f32(v(SR[2*i], 2), v(SR[2*i], 2), s(S_C, 2), v(M, 2), m='op_sel_hi:[1,1,0] neg_lo:[0,0,1] neg_hi:[0,0,1]')
    ex = lambda i: A.v_exp_f32(v(SR[i]), v(SR[i]))
    for i in range(4): fm(i)
    ex(0); run(wl[6:7]); ex(1); run(wl[7:8]); ex(2); cvt(A, PX, 104, 105)(); ex(3); run(wl[8:9]); ex(4); cvt(A, PX+1, 106, 107)()
    ex(5); run(wl[9:10]); ex(6); cvt(A, PX+2, 108, 109)(); ex(7); run(wl[10:12]); fm(4); cvt(A, PX+3, 110, 111)(); fm(5)
    O0, O1, LS, OP = 96, 100, VTC, VTC+4
    ex(8)
    mf(O0, VTC, PX, 0); ex(9); ex(10)
    mf(O1, VTC+4, PX, 0); ex(11); cvt(A, PM, SM, SM+1)()
    m16 = lambda d, a_, b_, c_: A.v_mfma_f32_16x16x16_bf16(v(d, 4), v(a_, 2), v(b_, 2), c_)
    m16(LS, V_ONE, PX, 0); cvt(A, PM+1, SM+2, SM+3)()
    vwait('vp')
    vs, vc = A.newlabel('vs'), A.newlabel('vc')
    A.v_and_b32(v(T), 1, v(VR))
    m16(LS, V_ONE, PX+2, v(LS, 4))
    A.v_cmp_ne_u32('vcc', xtag, v(T)); A.s_cbranch_vccnz(vs); A.label(vc)
    def emit_vs():
        A.label(vs); CNT(A, 4); xi(VR, 1024, 2); A.wait(vm=0)
        A.v_and_b32(v(T), 1, v(VR)); A.v_cmp_ne_u32('vcc', xtag, v(T))
        A.s_cbranch_vccz(vc); spin_guard(A, vs, abort)
    cold.append(emit_vs)
    A.v_permlane32_swap_b32(v(PKV), v(VR)); A.v_permlane32_swap_b32(v(PKV+1), v(VR+1))
    m16(LS, V_HALF, PM, v(LS, 4))
    WA = [104, 108, 120, 124]
    zl = [lambda i=i: A.v_mov_b64(v(WA[i//2] + 2*(i % 2), 2), 0) for i in range(8)]
    zl[0]()
    m16(O0, PKV, PM, v(O0, 4)); zl[1](); m16(O1, VR, PM, v(O1, 4))
    run(zl[2:7])
    A.v_rcp_f32(v(LS), v(LS))
    zl[7]()
    for o in (O0, O0+2, O1, O1+2): A.v_pk_mul_f32(v(o, 2), v(o, 2), v(LS, 2), m='op_sel_hi:[1,0]')
    for i in range(4): cvt(A, OP+i, O0+2*i, O0+2*i+1)()
    A.ds_write_b128(v(V_MW), v(OP, 4), m=f'offset:{O_FO + 1024}'); q.issue('ow')
    OF = [OP, 96, 100, 32]
    def wo(T_, a_):
        if a_ in (0, 3):
            k = T_ if a_ == 0 else 4 + T_
            q.need([('w', k, 0), ('w', k, 1)]); W = WF[k]
        else: W = WOR + 32*(a_-1) + 8*T_
        if a_: q.need([('o', a_)])
        sm(WA[T_], OF[a_], W)
    wo(0, 0); wo(1, 0); wo(2, 0)
    q.need(['ow']); A.s_barrier()
    TM(A, 9)
    for a_ in range(1, 4):
        A.ds_read_b128(v(OF[a_], 4), v(V_A+a_), m=f'offset:{O_FO + 1024}'); q.issue(('o', a_))
        if a_ == 1: wo(3, 0)
    for k in (6, 7):
        for uu in range(2): wrd(k, uu)
    def post(b, k):
        return [cvt(A, b, b, b+1), cvt(A, b+1, b+2, b+3), cvt(A, b+2, b+4, b+5), cvt(A, b+3, b+6, b+7),
                lambda: A.v_permlane16_swap_b32(v(b), v(b+2)), lambda: A.v_permlane16_swap_b32(v(b+1), v(b+3)), tagop(A, b, ptag),
                lambda: A.buffer_store_dwordx4(v(b, 4), v(V_PST), s(S_WS, 4), s(S_PST+k), m=st)]
    for a_ in (1, 2, 3): wo(0, a_); wo(1, a_)
    p0 = post(WA[0], 0)
    n = 0
    for a_ in (1, 2, 3):
        for T_ in (2, 3):
            wo(T_, a_)
            if n: run(p0[2*n-2:2*n])
            n += 1
    run(post(WA[2], 1))
    TM(A, 10)
    reducer(A, u, fb, poll)

def reducer(A, u, fb, poll):
    par, ptag = u % 2, u % 2
    st = 'offen sc1' if fb else 'offen'
    mf = lambda d, a_, b_, c_: A.v_mfma_f32_16x16x32_bf16(v(d, 4), v(a_, 4), v(b_, 4), c_)
    RB_, SEL, X = 64, 48, 56
    def pld():
        for qq in range(2): A.buffer_load_dwordx4(v(RB_+4*qq, 4), v(V_PLD), s(S_WS, 4), s(S_PLD+qq), m='offen sc1').nochk = True
    skp = A.newlabel('skp')
    if PAR['hv']: A.s_cmp_ge_u32(s(S_W), 2); A.s_cbranch_scc1(skp)
    late = PAR['pd'] or PAR['ack'] & 1
    if not late: pld()
    A.v_and_b32(v(SEL+4), 16, v(V_WO)); A.v_mov_b32(v(SEL+5), '0x3f80'); A.v_lshlrev_b32(v(SEL+4), v(SEL+4), v(SEL+5))
    for i in range(4):
        A.s_mov_b32('vcc_lo', hex(0x00030003 << (4*i))); A.s_mov_b32('vcc_hi', hex(0x00030003 << (4*i)))
        A.v_cndmask_b32(v(SEL+i), 0, v(SEL+4), 'vcc')
    A.v_mov_b32(v(SEL+4), -1)
    if PAR['ack'] & 1: A.wait(vm=0)
    if late: A.nop(PAR['pd']); pld()
    A.wait(vm=0)
    def pchk():
        A.v_bitop3_b32(v(X+4), v(RB_), v(RB_+4), 1, m='bitop3:' + ('0x80' if ptag else '0xa8'))
        A.v_cmp_ne_u32('vcc', ptag, v(X+4))
    poll(pchk, pld, PAR['np'], 'p')
    if PAR['hv']: A.label(skp); A.v_mov_b32(v(SEL+4), -1)
    mf(X, SEL, RB_, 0); mf(X, SEL, RB_+4, v(X, 4))
    TM(A, 11)
    Y = X+4
    A.v_add_f32_dpp(v(Y), v(X), v(X), m='row_ror:8 row_mask:0xf bank_mask:0x3')
    A.v_add_f32_dpp(v(Y), v(X+1), v(X+1), m='row_ror:8 row_mask:0xf bank_mask:0xc')
    A.v_add_f32_dpp(v(Y), v(Y), v(Y), m='row_shl:4 row_mask:0xf bank_mask:0xf')
    A.v_mov_b32_dpp(v(Y+1), v(Y), m='quad_perm:[1,1,3,3] row_mask:0xf bank_mask:0xf')
    A.v_cvt_pk_bf16_f32(v(Y+2), v(Y), v(Y+1))
    A.v_min_u32(v(Y+2), -2, v(Y+2))
    A.buffer_store_dword(v(Y+2), v(V_MST), s(S_WS, 4), s(S_MEMST+1-par), m=st)
    TM(A, 12)
    A.buffer_store_dword(v(SEL+4), v(V_MST), s(S_WS, 4), s(S_MEMST+par), m=st)
    A.s_add_u32(s(S_STEP), s(S_STEP), 1)
    TM(A, 13)

def chain_loop(A, abort, done, fb):
    top, ent, lastl = A.newlabel('ctop'), A.newlabel('cent'), A.newlabel('clast')
    cold = []
    xq_base(A, fb); A.s_add_u32(s(S_T0), s(S_T0), s(S_POL))
    A.s_lshl_b32(s(S_T1), s(S_X), 21); A.s_sub_u32(s(S_T1), 1 << 20, s(S_T1))
    for par in range(2):
        A.s_add_u32(s(S_XQI+par), s(S_T0), par*16384); A.s_add_u32(s(S_XQO+par), s(S_XQI+par), s(S_T1))
    A.wait(vm=0)
    A.s_mov_b32(s(S_LO8), '0x00ff00ff'); A.s_mov_b32(s(S_LO8+1), '0x00ff00ff')
    A.s_mov_b32(s(S_STEP), 0); A.s_mov_b32(s(S_KVR), 0)
    if TIMERS:
        for i in range(17): A.s_mov_b32(s(S_ACC+i), 0)
    kv_wait(A, abort, S_STEP, 48)
    run(kv_prefetch(A)); kv_advance(A)
    A.s_branch(ent)
    A.label(top)
    chain_step(A, 0, abort, fb, cold, first_entry=ent)
    chain_step(A, 1, abort, fb, cold)
    chain_step(A, 2, abort, fb, cold)
    A.s_cmp_eq_u32(s(S_STEP), 63); A.s_cbranch_scc1(lastl)
    chain_step(A, 3, abort, fb, cold)
    A.s_branch(top)
    A.label(lastl)
    chain_step(A, 3, abort, fb, cold, last=True, done=done)
    for e in cold: e()
```

```python
from asmlib import *
from layout import *
from chain import S_WS, S_DBG, S_TMP, S_X, S_H, S_W, S_TO, ptr, srd, spin_guard

S_XCC, S_INIT, S_TASK = 2, 3, 46
SRD_A, SRD_B0, SRD_B1, SRD_C = 24, 28, 32, 36
G_SA, G_SB0, G_SB1, G_BSTEP, G_N, G_M0, G_DELTA, G_BUF, G_REM = 40, 41, 42, 43, 44, 45, 47, 48, 49
G_SC, G_MB, G_NT, G_EPI, G_CNT = 50, 51, 52, 53, 54
G_T0, G_T1, G_T2, G_T3 = 56, 57, 58, 59
G_STA, G_STB = 60, 61
G_ASTEP = 55
V_LANE, V_C, V_T = 16, 17, 18
FSET = [32, 56]
V_DA, V_DB, V_RA, V_RB = 80, 84, 88, 92
ACC = 128
STG = 49152
def acc(mt, nf): return ACC + (mt*2 + nf)*16

def lane_id(A, d):
    A.v_mbcnt_lo_u32_b32(v(d), -1, 0); A.v_mbcnt_hi_u32_b32(v(d), -1, v(d))

def gemm_consts(A):
    L, T0, T1, T2, T3 = V_LANE, V_T, V_T+1, V_T+2, V_T+3
    lane_id(A, L)
    A.v_lshrrev_b32(v(T0), 3, v(L)); A.s_lshl_b32(s(G_T0), s(S_W), 5); A.v_add_u32(v(T0), s(G_T0), v(T0))
    A.v_mul_u32_u24(v(T0), s(G_STA), v(T0))
    A.v_lshrrev_b32(v(T1), 4, v(L))
    A.v_and_b32(v(T2), 7, v(L)); A.v_xor_b32(v(T2), v(T2), v(T1))
    A.s_lshl_b32(s(G_T1), s(G_STA), 3); A.s_sub_u32(s(G_T1), s(G_T1), 1024)
    A.v_lshl_add_u32(v(V_DA), v(T2), 4, v(T0))
    A.v_xor_b32(v(T2), 4, v(T2)); A.v_lshl_add_u32(v(V_DA+1), v(T2), 4, v(T0)); A.v_add_u32(v(V_DA+1), s(G_T1), v(V_DA+1))
    A.s_lshl_b32(s(G_T1), s(G_T1), 1)
    A.v_add_u32(v(V_DA+2), s(G_T1), v(V_DA)); A.v_add_u32(v(V_DA+3), s(G_T1), v(V_DA+1))
    A.s_lshl_b32(s(G_T0), s(S_W), 4); A.v_add_u32(v(T0), s(G_T0), v(T1)); A.v_mul_u32_u24(v(T0), s(G_STB), v(T0))
    A.v_and_b32(v(T2), 15, v(L)); A.v_lshlrev_b32(v(T3), 2, v(T1)); A.v_xor_b32(v(T2), v(T2), v(T3))
    A.v_lshl_add_u32(v(V_DB), v(T2), 4, v(T0))
    A.s_lshl_b32(s(G_T1), s(G_STB), 2); A.s_sub_u32(s(G_T1), s(G_T1), 1024)
    for j in range(1, 4): A.v_add_u32(v(V_DB+j), s(G_T1), v(V_DB+j-1))
    A.v_and_b32(v(T0), 31, v(L)); A.v_bfe_u32(v(T2), v(L), 1, 3); A.v_lshrrev_b32(v(T3), 5, v(L)); A.v_xor_b32(v(T2), v(T2), v(T3))
    A.v_lshlrev_b32(v(T0), 7, v(T0)); A.v_lshl_add_u32(v(V_RA), v(T2), 4, v(T0))
    for kk in range(1, 4): A.v_xor_b32(v(V_RA+kk), 32*kk, v(V_RA))
    A.v_bfe_u32(v(T0), v(L), 2, 2)
    A.v_lshl_add_u32(v(T2), v(T3), 3, v(T0)); A.v_lshlrev_b32(v(T2), 8, v(T2))
    A.v_xor_b32(v(T0), s(S_W), v(T0)); A.v_lshl_add_u32(v(T2), v(T0), 6, v(T2))
    A.v_and_b32(v(T0), 1, v(T1)); A.v_lshl_add_u32(v(T2), v(T0), 5, v(T2))
    A.v_and_b32(v(T0), 3, v(L)); A.v_lshl_add_u32(v(T2), v(T0), 3, v(T2))
    A.v_add_u32(v(V_RB), 16384, v(T2))
    rm = A.newlabel('rm')
    A.s_cmp_eq_u32(s(G_ASTEP), 128); A.s_cbranch_scc1(rm)
    A.s_mul_i32(s(G_T0), s(G_STA), s(S_W))
    A.v_lshlrev_b32(v(V_RA), 4, v(L))
    for j in range(4): A.v_add_u32(v(V_DA+j), s(G_T0), v(V_RA))
    for kk in range(1, 4): A.v_add_u32(v(V_RA+kk), 1024*kk, v(V_RA))
    A.label(rm)

def store_lane(A, stride_shift=None, stride=None):
    L, T0, T1 = V_LANE, V_T, V_T+1
    A.v_bfe_u32(v(T0), v(L), 4, 1); A.v_lshlrev_b32(v(T0), 5, v(T0)); A.v_lshrrev_b32(v(T1), 5, v(L)); A.v_lshl_add_u32(v(T0), v(T1), 4, v(T0))
    A.v_and_b32(v(T1), 15, v(L))
    if stride_shift is not None: A.v_lshl_add_u32(v(V_C), v(T1), stride_shift, v(T0))
    else: A.v_mul_u32_u24(v(T1), stride, v(T1)); A.v_add_u32(v(V_C), v(T0), v(T1))

class LQ:
    def __init__(self, A, init=()): self.A, self.q = A, list(init)
    def issue(self, tag): self.q.append(tag)
    def need(self, tags):
        idx = max([i for i, t in enumerate(self.q) if t in tags], default=-1)
        if idx >= 0:
            self.A.wait(lgkm=len(self.q) - 1 - idx); del self.q[:idx+1]

RORD = ['A0', 'B0a', 'B0b', 'A1', 'B1a', 'B1b', 'A2', 'A3']
MORD = [(0, 0), (1, 0), (0, 1), (1, 1), (2, 0), (2, 1), (3, 0), (3, 1)]
def frag_read(A, st, kk, name):
    f = FSET[st]
    if name[0] == 'A':
        mt = int(name[1]); A.ds_read_b128(v(f+4*mt, 4), v(V_RA+kk), m=f'offset:{mt*4096}')
    else:
        nf, u = int(name[1]), 'ab'.index(name[2])
        A.ds_read_b64_tr_b16(v(f+16+4*nf+2*u, 2), v(V_RB), m=f'offset:{nf*16384 + kk*4096 + u*1024}')

def dma(A, i, asc):
    g, j = i // 4, i % 4
    if j == 0: A.s_add_u32('m0', s(G_M0), g*16384)
    if g == 0: A.buffer_load_dwordx4(v(V_DA+j), s(SRD_A, 4), s(G_SA), m=f'offen offset:{1024*j} {asc} lds')
    else: A.buffer_load_dwordx4(v(V_DB+j), s(SRD_B0 if g == 1 else SRD_B1, 4), s(G_SB0 if g == 1 else G_SB1), m=f'offen offset:{1024*j} lds')
XP = {}
def dma_advance(A):
    if not XP.get('nostep'):
        A.s_add_u32(s(G_SA), s(G_SA), s(G_ASTEP)); A.s_add_u32(s(G_SB0), s(G_SB0), s(G_BSTEP)); A.s_add_u32(s(G_SB1), s(G_SB1), s(G_BSTEP))
    A.s_add_u32(s(G_M0), s(G_M0), STG); A.s_cmp_ge_u32(s(G_M0), 3*STG); A.s_cselect_b32(s(G_T0), 3*STG, 0); A.s_sub_u32(s(G_M0), s(G_M0), s(G_T0))
    A.s_sub_u32(s(G_REM), s(G_REM), 1); A.s_cmp_gt_i32(s(G_REM), 0)
    for r_ in (SRD_A, SRD_B0, SRD_B1): A.s_cselect_b32(s(r_+2), s(r_+2), 0)

def gemm_main(A, swap):
    asc = 'sc1'
    A.s_lshl_b32(s(G_M0), s(S_W), 12); A.s_mov_b32(s(G_REM), s(G_N)); A.s_mov_b32(s(G_BUF), 0)
    for st in range(2):
        for i in range(12): dma(A, i, asc)
        dma_advance(A)
    for i in range(3): dma(A, i, asc)
    for i in range(64): A.v_mov_b64(v(ACC+2*i, 2), 0)
    A.wait(vm=15); A.s_barrier()
    for n in RORD: frag_read(A, 0, 0, n)
    top = A.newlabel('gl'); A.label(top)
    q = LQ(A, [(0, n) for n in RORD])
    for kk in range(4):
        st = kk % 2
        f = FSET[st]
        nxt = [(1-st, (kk+1) % 4, n) for n in RORD]
        def rd(lst):
            for (s_, k_, n) in lst: frag_read(A, s_, k_, n); q.issue((s_, n))
        for i, (mt, nf) in enumerate(MORD):
            q.need([(st, f'A{mt}'), (st, f'B{nf}a'), (st, f'B{nf}b')])
            fa, fb = v(f+4*mt, 4), v(f+16+4*nf, 4)
            c = v(acc(mt, nf), 16)
            if swap: A.v_mfma_f32_32x32x16_bf16(c, fa, fb, c)
            else: A.v_mfma_f32_32x32x16_bf16(c, fb, fa, c)
            if kk < 3:
                if i == 0: rd(nxt[0:3])
                if i == 1: rd(nxt[3:6])
                if i == 2: rd(nxt[6:8])
                if i in (3, 5, 7): dma(A, 3 + 3*kk + (i-3)//2, asc)
                if kk == 2 and i == 7: pass
            else:
                if i == 0:
                    dma_advance(A)
                    A.s_add_u32(s(G_BUF), s(G_BUF), 1); A.s_cmp_eq_u32(s(G_BUF), 3)
                    A.s_mov_b32(s(G_DELTA), STG); A.s_cmov_b32(s(G_DELTA), -2*STG); A.s_cmov_b32(s(G_BUF), 0)
                if i == 1:
                    q.need([(st, n) for n in RORD])
                    A.wait(vm=12); A.s_barrier()
                    for r_ in (V_RA, V_RB): A.v_add_u32(v(r_), s(G_DELTA), v(r_))
                if i == 2: rd(nxt[0:3])
                if i == 3: rd(nxt[3:6])
                if i == 4:
                    rd(nxt[6:8])
                    for r_ in (V_RA+1, V_RA+2, V_RA+3): A.v_add_u32(v(r_), s(G_DELTA), v(r_))
                if i in (5, 6, 7): dma(A, i-5, asc)
    assert q.q == [(0, n) for n in RORD], q.q
    A.s_sub_u32(s(G_N), s(G_N), 1); A.s_cmp_lg_u32(s(G_N), 0); A.s_cbranch_scc1(top)
    A.wait(lgkm=0)

def pack_ops(A, T):
    return [lambda i=i: A.v_cvt_pk_bf16_f32(v(T+i), v(T+2*i), v(T+2*i+1)) for i in range(8)]
def shuf32(A, T):
    return [lambda a_=a_: A.v_permlane32_swap_b32(v(T+a_), v(T+a_+2)) for a_ in (0, 1, 4, 5)]
def shuf16(A, T):
    return [lambda i=i: A.v_permlane16_swap_b32(v(T+i), v(T+4+i)) for i in range(4)]
def tile_stores(A, T, off, yoff, srd_, mods):
    def f():
        A.s_add_u32(s(G_T0), s(G_SC), hex(off)); A.s_add_u32(s(G_T1), s(G_SC), hex(off + yoff))
        A.buffer_store_dwordx4(v(T, 4), v(V_C), s(srd_, 4), s(G_T0), m='offen ' + mods)
        A.buffer_store_dwordx4(v(T+4, 4), v(V_C), s(srd_, 4), s(G_T1), m='offen ' + mods)
    return [f]
def epi_tiles(A, tiles, yoff, srd_, mods, pre=None):
    n = len(tiles)
    for k in range(n+2):
        ops = []
        if k < n: ops += (pre(k) if pre else []) + pack_ops(A, tiles[k][0])
        if 0 <= k-2 < n: ops += shuf16(A, tiles[k-2][0])
        if 0 <= k-1 < n: ops += shuf32(A, tiles[k-1][0])
        if 0 <= k-2 < n: ops += tile_stores(A, tiles[k-2][0], tiles[k-2][1], yoff, srd_, mods)
        for f in ops: f()

def epi_native(A, tiles, pre=None):
    A.v_lshlrev_b32(v(V_C), 4, v(V_LANE))
    n = len(tiles)
    for k in range(n+1):
        ops = []
        if k < n: ops += (pre(k) if pre else []) + pack_ops(A, tiles[k][0])
        if k >= 1:
            T, off = tiles[k-1]
            ops += shuf32(A, T)
            ops.append(lambda off=off: A.s_add_u32(s(G_T0), s(G_SC), hex(off)))
            for hh in range(2): ops.append(lambda T=T, hh=hh: A.buffer_store_dwordx4(v(T+4*hh, 4), v(V_C), s(S_WS, 4), s(G_T0), m=f'offen offset:{1024*hh} sc1'))
        for f in ops: f()
ALLT = [(mt, nf) for mt in range(4) for nf in range(2)]
def epi_q(A): epi_native(A, [(acc(mt, nf), mt*262144 + nf*8192) for mt, nf in ALLT])
def chunk128(A):
    L, T0, T1 = V_LANE, V_T, V_T+1
    A.v_bfe_u32(v(T0), v(L), 4, 1); A.v_lshlrev_b32(v(T0), 8, v(T0)); A.v_lshrrev_b32(v(T1), 5, v(L)); A.v_lshl_add_u32(v(T0), v(T1), 7, v(T0))
def epi_vt(A):
    L, T0, T1 = V_LANE, V_T, V_T+1
    chunk128(A)
    A.v_bfe_u32(v(T1), v(L), 3, 1); A.v_lshl_add_u32(v(T0), v(T1), 9, v(T0))
    A.v_and_b32(v(T1), 7, v(L)); A.v_lshl_add_u32(v(V_C), v(T1), 4, v(T0))
    epi_tiles(A, [(acc(mt, nf), mt*262144 + nf*8192) for mt, nf in ALLT], 1024, S_WS, 'sc1')
def epi_k(A):
    L, T0, T1 = V_LANE, V_T, V_T+1
    chunk128(A)
    A.v_bfe_u32(v(T1), v(L), 2, 1); A.v_lshl_add_u32(v(T0), v(T1), 10, v(T0))
    A.v_bfe_u32(v(T1), v(L), 3, 1); A.v_lshl_add_u32(v(T0), v(T1), 6, v(T0))
    A.v_and_b32(v(T1), 3, v(L)); A.v_lshl_add_u32(v(V_C), v(T1), 4, v(T0))
    epi_tiles(A, [(acc(mt, nf), mt*262144 + nf*8192) for mt, nf in ALLT], 512, S_WS, 'sc1')
def epi_gu(A):
    A.s_mov_b32(s(G_T2), '0xbfb8aa3b'); A.s_mov_b32(s(G_T3), '0xbfb8aa3b')
    E = 32
    def pre(k):
        g, u = acc(k, 0), acc(k, 1)
        ops = [lambda i=i: A.v_pk_mul_f32(v(E+2*i, 2), v(g+2*i, 2), s(G_T2, 2)) for i in range(8)]
        ops += [lambda i=i: A.v_exp_f32(v(E+i), v(E+i)) for i in range(16)]
        ops += [lambda i=i: A.v_pk_mul_f32(v(g+2*i, 2), v(g+2*i, 2), v(u+2*i, 2)) for i in range(8)]
        ops += [lambda i=i: A.v_pk_add_f32(v(E+2*i, 2), v(E+2*i, 2), 1.0, m='op_sel_hi:[1,0]') for i in range(8)]
        ops += [lambda i=i: A.v_rcp_f32(v(E+i), v(E+i)) for i in range(16)]
        ops += [lambda i=i: A.v_pk_mul_f32(v(g+2*i, 2), v(g+2*i, 2), v(E+2*i, 2)) for i in range(8)]
        return ops
    epi_native(A, [(acc(mt, 0), mt*32*7168) for mt in range(4)], pre)
def epi_dn(A):
    A.v_lshlrev_b32(v(V_C), 4, v(V_LANE))
    for k, (mt, nf) in enumerate(ALLT):
        T = acc(mt, nf)
        for f in pack_ops(A, T): f()
        if k % 2 == 0: A.s_add_u32(s(G_T0), s(G_SC), k*2048)
        for hh in range(2):
            A.buffer_store_dwordx4(v(T+4*hh, 4), v(V_C), s(S_WS, 4), s(G_T0), m=f'offen offset:{(k % 2)*2048 + hh*1024} sc1')
def epi_op_loads(A):
    A.v_lshlrev_b32(v(V_T), 4, v(V_LANE)); A.v_and_b32(v(V_T+1), 31, v(V_LANE)); A.v_lshlrev_b32(v(V_T+1), 2, v(V_T+1))
    for mt in range(4): A.buffer_load_dword(v(24+mt), v(V_T+1), s(S_WS, 4), s(G_T3), m=f'offen offset:{mt*128} sc1')
    for k in range(8):
        if k % 2 == 0 and k: A.s_add_u32(s(G_T2), s(G_T2), 4096)
        for hh in range(2):
            A.buffer_load_dwordx4(v(32+8*k+4*hh, 4), v(V_T), s(S_WS, 4), s(G_T2), m=f'offen offset:{(k % 2)*2048 + hh*1024} sc1')
def epi_op(A):
    store_lane(A, stride_shift=11)
    E = 96
    A.wait(vm=0)
    def pre(k):
        mt, T, B = k // 2, ACC + 16*k, 32 + 8*k
        ops = []
        for i in range(8):
            ops.append(lambda i=i: A.v_lshlrev_b32(v(E+2*i), 16, v(B+i)))
            ops.append(lambda i=i: A.v_and_b32(v(E+2*i+1), '0xffff0000', v(B+i)))
        ops += [lambda i=i: A.v_pk_add_f32(v(T+2*i, 2), v(T+2*i, 2), v(E+2*i, 2), m='neg_lo:[0,1] neg_hi:[0,1]') for i in range(8)]
        sel = 'op_sel:[0,1,0] op_sel_hi:[1,1,1]' if mt % 2 else 'op_sel_hi:[1,0,1]'
        ops += [lambda i=i: A.v_pk_fma_f32(v(T+2*i, 2), v(T+2*i, 2), v(24 + (mt & 2), 2), v(E+2*i, 2), m=sel) for i in range(8)]
        return ops
    epi_tiles(A, [(acc(mt, nf), mt*32*2048 + nf*256) for mt, nf in ALLT], 16*2048, SRD_C, '', pre)
```

```python
from gemm import *
import struct
def f2u(x): return struct.unpack('<I', struct.pack('<f', x))[0]

def poll_sleep(A): A.s_sleep(4)

def task_g(A):
    L, T0, T1, AC = V_LANE, V_T, V_T+1, 24
    lane_id(A, L)
    srd(A, SRD_A, P_X, 2048*2048); srd(A, SRD_B0, P_GW, 2048)
    A.v_and_b32(v(T0), 31, v(L)); A.v_lshrrev_b32(v(T1), 5, v(L)); A.v_lshlrev_b32(v(T1), 10, v(T1))
    A.v_lshl_add_u32(v(T0), v(T0), 11, v(T1))
    A.s_lshl_b32(s(G_T0), s(G_MB), 2); A.s_add_u32(s(G_T0), s(G_T0), s(S_W)); A.s_lshl_b32(s(G_T1), s(G_T0), 16)
    for i in range(4): A.v_mov_b32(v(AC+i), 0)
    for blk in range(4):
        for c in range(16):
            A.buffer_load_dwordx4(v(32+4*c, 4), v(T0), s(SRD_A, 4), s(G_T1), m=f'offen offset:{blk*256 + c*16}')
            A.buffer_load_dwordx4(v(128+4*c, 4), v(T1), s(SRD_B0, 4), 0, m=f'offen offset:{blk*256 + c*16}')
        for c in range(16):
            A.wait(vm=30-2*c)
            for i in range(4): A.v_dot2c_f32_bf16(v(AC+i), v(32+4*c+i), v(128+4*c+i))
    A.v_add_f32(v(AC), v(AC), v(AC+1)); A.v_add_f32(v(AC+2), v(AC+2), v(AC+3)); A.v_add_f32(v(AC), v(AC), v(AC+2))
    A.v_mov_b32(v(AC+1), v(AC)); A.v_permlane32_swap_b32(v(AC), v(AC+1)); A.v_add_f32(v(AC), v(AC), v(AC+1))
    A.v_mul_f32(v(AC), '0xbfb8aa3b', v(AC)); A.v_exp_f32(v(AC), v(AC)); A.v_add_f32(v(AC), 1.0, v(AC)); A.v_rcp_f32(v(AC), v(AC))
    A.v_lshlrev_b32(v(T0), 2, v(L))
    A.s_lshl_b32(s(G_T0), s(G_T0), 7); A.s_add_u32(s(G_T0), s(G_T0), WS_G)
    A.s_mov_b64('exec', '0xffffffff')
    A.buffer_store_dword(v(AC), v(T0), s(S_WS, 4), s(G_T0), m='offen sc1')
    A.s_mov_b64('exec', -1)

def task_at_pre(A):
    L, T0, T1, T2 = V_LANE, V_T, V_T+1, V_T+2
    VQ, VK, VV, VM, VKM, VZ = 21, 22, 23, 24, 25, 26
    lane_id(A, L)
    A.v_and_b32(v(T0), 31, v(L)); A.v_lshrrev_b32(v(T1), 5, v(L))
    A.v_lshlrev_b32(v(VQ), 4, v(L))
    A.v_lshlrev_b32(v(VZ), 3, v(T1)); A.v_sub_u32(v(VZ), v(T0), v(VZ))
    A.v_and_b32(v(T2), 7, v(L)); A.v_lshlrev_b32(v(T2), 4, v(T2)); A.v_lshl_add_u32(v(VKM), v(T1), 7, v(T2))
    A.v_lshrrev_b32(v(T2), 3, v(T0)); A.v_lshl_add_u32(v(VV), v(T2), 9, v(VKM))
    A.v_bfe_u32(v(T2), v(L), 3, 1); A.v_lshl_add_u32(v(VK), v(T2), 10, v(VKM))
    A.v_bfe_u32(v(T2), v(L), 4, 1); A.v_lshl_add_u32(v(VK), v(T2), 9, v(VK))
    A.v_lshlrev_b32(v(VM), 8, v(T2)); A.v_lshl_add_u32(v(VM), v(T1), 7, v(VM))
    A.v_and_b32(v(T2), 15, v(L)); A.v_lshl_add_u32(v(VM), v(T2), 3, v(VM))
    A.s_lshl_b32(s(G_T0), s(G_MB), 2); A.s_add_u32(s(G_T0), s(G_T0), s(G_NT)); A.s_lshl_b32(s(G_T0), s(G_T0), 2); A.s_add_u32(s(G_T0), s(G_T0), s(S_W))
    A.s_lshl_b32(s(G_T0), s(G_T0), 14)
    A.s_add_u32(s(G_SA), s(G_T0), WS_QX); A.s_add_u32(s(E_SC), s(G_T0), WS_O)
    A.s_add_u32(s(G_SB0), s(G_T0), WS_KX); A.s_add_u32(s(G_SB1), s(G_T0), WS_VT); A.s_add_u32(s(G_BSTEP), s(G_T0), WS_PUB)
    for hd in range(2):
        b = 96*hd
        for j in range(8):
            if j % 4 == 0: A.s_add_u32(s(G_T0), s(G_SB0), hd*8192 + (j//4)*4096); A.s_add_u32(s(G_T1), s(G_SA), hd*8192 + (j//4)*4096)
            A.buffer_load_dwordx4(a(b+32+4*j, 4), v(VK), s(S_WS, 4), s(G_T0), m=f'offen offset:{((j//2) % 2)*2048 + (j % 2)*256} sc1')
            A.buffer_load_dwordx4(a(b+4*j, 4), v(VQ), s(S_WS, 4), s(G_T1), m=f'offen offset:{(j % 4)*1024} sc1')
    for hd in range(2):
        b = 96*hd + 64
        for et in range(4):
            if et % 2 == 0: A.s_add_u32(s(G_T0), s(G_SB1), hd*8192 + et*2048)
            for t in range(2):
                A.buffer_load_dwordx4(a(b+8*et+4*t, 4), v(VV), s(S_WS, 4), s(G_T0), m=f'offen offset:{(et % 2)*2048 + t*256} sc1')
    A.v_mov_b32(v(T0), hex(f2u(-1e9 * 128 ** 0.5)))
    for hd in range(2):
        b, S = 96*hd, 32 + 16*hd
        for j in range(8):
            A.wait(vm=46 - 16*hd - 2*j)
            A.v_mfma_f32_32x32x16_bf16(v(S, 16), a(b+32+4*j, 4), a(b+4*j, 4), v(S, 16) if j else 0)
    for hd in range(2):
        S = 32 + 16*hd
        for i in range(16):
            g = i // 4
            kap = 16*(g//2) + 4*(g % 2) + i % 4
            A.v_cmp_le_i32('vcc', kap, v(VZ)); A.v_cndmask_b32(v(S+i), v(T0), v(S+i), 'vcc')

def task_at_post(A):
    L, T0, T1, T2 = V_LANE, V_T, V_T+1, V_T+2
    VM, VKM = 24, 25
    KF, VMF = 128, 192
    for hd in range(2):
        for j in range(8):
            if j % 4 == 0: A.s_add_u32(s(G_T0), s(G_BSTEP), hd*8192 + (j//4)*4096)
            for X in range(2):
                A.buffer_load_dwordx4(v(KF+64*hd+8*j+4*X, 4), v(VKM), s(S_WS, 4), s(G_T0), m=f'offen offset:{((j//2) % 2)*2048 + X*512 + (j % 2)*256} sc1')
    for hd in range(2):
        for et in range(4):
            if et % 2 == 0: A.s_add_u32(s(G_T0), s(G_BSTEP), hd*8192 + et*2048)
            for X in range(2):
                A.buffer_load_dwordx2(a(VMF+16*hd+4*et+2*X, 2), v(VM), s(S_WS, 4), s(G_T0), m=f'offen offset:{(et % 2)*2048 + 1024 + X*512} sc1')
    c = hex(f2u(128 ** -0.5 * 1.4426950408889634))
    A.s_mov_b32(s(G_T2), c); A.s_mov_b32(s(G_T3), c)
    for hd in range(2):
        SM = 64 + 16*hd
        for j in range(8):
            for X in range(2):
                A.wait(vm=47 - 16*hd - 2*j - X)
                A.v_mfma_f32_32x32x16_bf16(v(SM, 16), v(KF+64*hd+8*j+4*X, 4), a(96*hd+4*j, 4), v(SM, 16) if j or X else 0)
    A.wait(vm=0)
    for hd in range(2):
        S, SM = 32 + 16*hd, 64 + 16*hd
        M, T = 112, 113
        A.v_max3_f32(v(M), v(S), v(S+1), v(S+2))
        for i in range(3, 15, 2): A.v_max3_f32(v(M), v(M), v(S+i), v(S+i+1))
        A.v_max3_f32(v(M), v(M), v(S+15), v(SM)); A.v_max3_f32(v(M), v(M), v(SM+1), v(SM+2)); A.v_max_f32(v(M), v(M), v(SM+3))
        A.v_mov_b32(v(T), v(M)); A.v_permlane32_swap_b32(v(M), v(T)); A.v_max_f32(v(M), v(M), v(T))
        A.v_mul_f32(v(M), s(G_T2), v(M))
        regs = [S+2*i for i in range(8)] + [SM, SM+2]
        for r_ in regs: A.v_pk_fma_f32(v(r_, 2), v(r_, 2), s(G_T2, 2), v(M, 2), m='op_sel_hi:[1,1,0] neg_lo:[0,0,1] neg_hi:[0,0,1]')
        for r_ in regs: A.v_exp_f32(v(r_), v(r_)); A.v_exp_f32(v(r_+1), v(r_+1))
        P = 116
        for k, r_ in enumerate(regs): A.v_cvt_pk_bf16_f32(v(P+k), v(r_), v(r_+1))
        A.v_mov_b64(v(P+10, 2), v(P+8, 2))
        O = 128 + 64*hd
        for et in range(4):
            va = 96*hd + 64 + 8*et
            A.v_mfma_f32_32x32x16_bf16(v(O+16*et, 16), a(va, 4), v(P, 4), 0)
            A.v_mfma_f32_32x32x16_bf16(v(O+16*et, 16), a(va+4, 4), v(P+4, 4), v(O+16*et, 16))
            A.v_mfma_f32_32x32x16_bf16(v(O+16*et, 16), a(VMF+16*hd+4*et, 4), v(P+8, 4), v(O+16*et, 16))
        for r_ in regs[1:]: A.v_pk_add_f32(v(S, 2), v(S, 2), v(r_, 2))
        LS = 114 + hd
        A.v_add_f32(v(LS), v(S), v(S+1)); A.v_mov_b32(v(T), v(LS)); A.v_permlane32_swap_b32(v(LS), v(T)); A.v_add_f32(v(LS), v(LS), v(T))
        A.v_rcp_f32(v(LS), v(LS))
    def pre(k):
        T_, hd = 128 + 16*k, k // 4
        sel = 'op_sel:[0,1] op_sel_hi:[1,1]' if hd else 'op_sel_hi:[1,0]'
        return [lambda i=i: A.v_pk_mul_f32(v(T_+2*i, 2), v(T_+2*i, 2), v(114, 2), m=sel) for i in range(8)]
    epi_native(A, [(128+16*k, k*2048) for k in range(8)], pre)

def task_ops_pre(A):
    L, T0, T1, VD, VR = V_LANE, V_T, V_T+1, 21, 22
    lane_id(A, L)
    srd(A, SRD_B0, P_WO, 4096*2048)
    A.v_lshrrev_b32(v(T0), 2, v(L)); A.v_and_b32(v(T1), 3, v(L)); A.v_lshlrev_b32(v(VD), 11, v(T0)); A.v_lshl_add_u32(v(VD), v(T1), 4, v(VD))
    A.v_and_b32(v(T0), 3, v(T0)); A.v_lshlrev_b32(v(VR), 6, v(T0)); A.v_lshl_add_u32(v(VR), v(T1), 3, v(VR))
    A.v_lshrrev_b32(v(T0), 5, v(L)); A.v_lshl_add_u32(v(VR), v(T0), 9, v(VR))
    A.v_bfe_u32(v(T0), v(L), 4, 1); A.v_lshl_add_u32(v(VR), v(T0), 5, v(VR))
    A.s_lshl_b32(s(G_M0), s(S_W), 15); A.v_add_u32(v(VR), s(G_M0), v(VR))
    A.s_lshl_b32(s(G_SB0), s(S_W), 21); A.s_lshl_b32(s(G_T0), s(G_NT), 6); A.s_add_u32(s(G_SB0), s(G_SB0), s(G_T0))
    def ld(f):
        A.s_add_u32('m0', s(G_M0), (f % 32)*1024)
        A.buffer_load_dwordx4(v(VD), s(SRD_B0, 4), s(G_SB0), m='offen lds')
        A.s_add_u32(s(G_SB0), s(G_SB0), 32768)
    for f in range(32): ld(f)
    for g in range(8):
        A.wait(vm=24 if g < 4 else 8*(7-g))
        for f in range(8*g, 8*g+8):
            for u in range(2): A.ds_read_b64_tr_b16(a(4*f+2*u, 2), v(VR), m=f'offset:{(f % 32)*1024 + u*256}')
            if f % 4 == 3: A.wait(lgkm=8 if f % 8 == 3 else 0)
        if g < 4:
            for f in range(8*g+32, 8*g+40): ld(f)

def task_ops_seg(A):
    L, T0, T1, VO, VB, VG, VS = V_LANE, V_T, V_T+1, 21, 22, 23, 24
    BV, GV, C0_, C1_, BUF, NB = 26, 28, 224, 240, 32, 48
    lane_id(A, L)
    A.v_lshlrev_b32(v(VO), 4, v(L))
    A.s_lshl_b32(s(G_SA), s(G_MB), 2); A.s_add_u32(s(G_SA), s(G_SA), s(S_W)); A.s_lshl_b32(s(G_SA), s(G_SA), 16); A.s_add_u32(s(G_SA), s(G_SA), WS_O)
    def ld(f):
        A.buffer_load_dwordx4(v(BUF+4*(f % NB), 4), v(VO), s(S_WS, 4), s(G_SA), m=f'offen offset:{(f % 4)*1024} sc1')
        if f % 4 == 3: A.s_add_u32(s(G_SA), s(G_SA), 4096)
    for f in range(NB): ld(f)
    A.s_lshr_b32(s(G_T0), s(G_MB), 2); A.s_lshl_b32(s(G_T0), s(G_T0), 2); A.s_lshr_b32(s(G_T1), s(G_NT), 3); A.s_add_u32(s(G_T0), s(G_T0), s(G_T1))
    A.s_lshl_b32(s(G_T0), s(G_T0), 2); A.s_and_b32(s(G_T1), s(G_NT), 3); A.s_add_u32(s(G_T0), s(G_T0), s(G_T1)); A.s_lshl_b32(s(G_T0), s(G_T0), 2)
    A.s_and_b32(s(G_T1), s(G_MB), 3); A.s_add_u32(s(G_T0), s(G_T0), s(G_T1)); A.s_lshl_b32(s(G_T0), s(G_T0), 1)
    A.s_bfe_u32(s(G_T1), s(G_NT), 0x10002); A.s_add_u32(s(G_T0), s(G_T0), s(G_T1)); A.s_lshl_b32(s(G_T0), s(G_T0), 1)
    A.s_lshr_b32(s(G_T1), s(S_W), 1); A.s_add_u32(s(G_T0), s(G_T0), s(G_T1)); A.s_lshl_b32(s(G_T0), s(G_T0), 10)
    A.s_and_b32(s(G_T1), s(S_W), 1); A.s_lshl_b32(s(G_T1), s(G_T1), 3); A.s_add_u32(s(G_T0), s(G_T0), s(G_T1)); A.s_add_u32(s(G_T0), s(G_T0), WS_B)
    A.v_and_b32(v(T0), 31, v(L)); A.v_lshlrev_b32(v(VG), 2, v(T0))
    A.s_lshl_b32(s(G_T1), s(G_MB), 7); A.s_add_u32(s(G_T1), s(G_T1), WS_G)
    A.v_lshrrev_b32(v(T1), 5, v(L)); A.v_lshlrev_b32(v(T1), 3, v(T1)); A.v_lshl_add_u32(v(VS), v(T0), 11, v(T1))
    A.s_lshl_b32(s(G_SC), s(G_MB), 16); A.s_lshl_b32(s(G_T2), s(G_NT), 6); A.s_add_u32(s(G_SC), s(G_SC), s(G_T2))
    A.s_lshl_b32(s(G_T2), s(S_W), 4); A.s_add_u32(s(G_SC), s(G_SC), s(G_T2))
    srd(A, SRD_C, P_OUT, 2048*2048)
    A.s_lshl_b32(s(G_T2), s(S_W), 12); A.v_add_u32(v(VB), s(G_T2), v(VO))
    A.s_lshl_b32(s(G_T2), s(S_W), 10); A.v_add_u32(v(T1), s(G_T2), v(VO))
    for f in range(64):
        nq = min(63, f + NB - 1) - f + (2 if f >= 64 - NB else 0)
        A.wait(vm=nq)
        c = C1_ if f % 2 else C0_
        A.v_mfma_f32_32x32x16_bf16(v(c, 16), a(4*f, 4), v(BUF+4*(f % NB), 4), v(c, 16) if f >= 2 else 0)
        if f + NB < 64: ld(f + NB)
        if f + NB == 63:
            A.buffer_load_dwordx2(v(BV, 2), v(VO), s(S_WS, 4), s(G_T0), m='offen sc1')
            A.buffer_load_dword(v(GV), v(VG), s(S_WS, 4), s(G_T1), m='offen sc1')
    for i in range(8): A.v_pk_add_f32(v(C0_+2*i, 2), v(C0_+2*i, 2), v(C1_+2*i, 2))
    for i in range(4): A.ds_write_b128(v(VB), v(C0_+4*i, 4), m=f'offset:{1024*i}')
    A.wait(lgkm=0); A.s_barrier()
    for i in range(4): A.ds_read_b128(v(BUF+4*i, 4), v(T1), m=f'offset:{4096*i}')
    E = BUF + 16
    A.wait(vm=0)
    for i in range(2): A.v_lshlrev_b32(v(E+2*i), 16, v(BV+i)); A.v_and_b32(v(E+2*i+1), '0xffff0000', v(BV+i))
    A.wait(lgkm=2)
    for i in range(2): A.v_pk_add_f32(v(BUF+2*i, 2), v(BUF+2*i, 2), v(BUF+4+2*i, 2))
    A.wait(lgkm=0)
    for i in range(2): A.v_pk_add_f32(v(BUF+8+2*i, 2), v(BUF+8+2*i, 2), v(BUF+12+2*i, 2))
    for i in range(2): A.v_pk_add_f32(v(BUF+2*i, 2), v(BUF+2*i, 2), v(BUF+8+2*i, 2))
    for i in range(2): A.v_pk_add_f32(v(BUF+2*i, 2), v(BUF+2*i, 2), v(E+2*i, 2), m='neg_lo:[0,1] neg_hi:[0,1]')
    for i in range(2): A.v_pk_fma_f32(v(BUF+2*i, 2), v(BUF+2*i, 2), v(GV, 2), v(E+2*i, 2), m='op_sel_hi:[1,0,1]')
    for i in range(2): A.v_cvt_pk_bf16_f32(v(BUF+i), v(BUF+2*i), v(BUF+2*i+1))
    A.buffer_store_dwordx2(v(BUF, 2), v(VS), s(SRD_C, 4), s(G_SC), m='offen')
```

```python
import sys
from asmlib import *
from layout import *
import chain
from chain import S_WS, S_DBG, S_X, S_H, S_W, S_TO, ptr, srd, load_ptrs, chain_setup, chain_loop
from gemm import *
from tasks import *

C0, C1, C2, C3, C4, C5 = 94, 95, 96, 97, 98, 99
CV = 120
K_EXIT, K_FB = 0xFFFF, 0x10000
POISON = 16
S0 = 48
NG = 2
def order():
    nop = S0 // 4
    return [('KV', 0, 16), ('GU', 0, 16), ('DN', 0, 2), ('Q', 0, 8), ('AT', 0, 4), ('OP', 0, 1), ('AT', 4, S0//8 - 4), ('OP', 1, 1), ('AT', S0//8, 8 - S0//8), ('OPS', 0, NG)]
OPTS = set()

def header(launch_lines):
    ref = open('cdna_kernels/%s.s.ref' % KNAME).read().split('\n')
    hd = [l for l in ref if l.startswith(';') and '@launch' not in l]
    return '\n'.join(hd + launch_lines) + '\n.amdgcn_target "amdgcn-amd-amdhsa--gfx950"\n.text\n'
def kernel_wrap(name, body, vgpr=512, accum=256):
    return (f".globl {name}\n.p2align 8\n.type {name},@function\n{name}:\n" + body,
            f".p2align 6\n.amdhsa_kernel {name}\n  .amdhsa_next_free_vgpr {vgpr}\n  .amdhsa_next_free_sgpr 102\n  .amdhsa_accum_offset {accum}\n"
            f"  .amdhsa_group_segment_fixed_size 0\n  .amdhsa_kernarg_size 120\n  .amdhsa_user_sgpr_count 2\n  .amdhsa_user_sgpr_kernarg_segment_ptr 1\n"
            f"  .amdhsa_system_sgpr_workgroup_id_x 1\n.end_amdhsa_kernel\n")

def stamp(A, d):
    if 'log' in OPTS:
        A.s_memrealtime(s(12, 2)); A.wait(lgkm=0); A.s_mov_b32(s(d), s(12))
S_WG = 63
def rts(A, k):
    if 'log' in OPTS:
        A.s_memrealtime(s(C4, 2)); A.wait(lgkm=0); A.v_mov_b32(v(CV), s(C4)); A.v_mov_b32(v(CV+1), 0); A.s_mov_b64('exec', 1)
        A.buffer_store_dword(v(CV), v(CV+1), s(S_WS, 4), s(S_WG), m=f'offen offset:{4*k}'); A.s_mov_b64('exec', -1)
def only_w0(A):
    sk = A.newlabel('w0'); A.s_cmp_lg_u32(s(S_W), 0); A.s_cbranch_scc1(sk); return sk
def dbg_atomic(A, dw, soff=0, ret=True, val=1):
    A.v_mov_b32(v(CV), val); A.v_mov_b32(v(CV+1), 0)
    A.s_mov_b64('exec', 1)
    A.buffer_atomic_add(v(CV), v(CV+1), s(S_DBG, 4), soff, m=f'offen offset:{dw*4} ' + ('sc0 sc1' if ret else 'sc1'))
    A.s_mov_b64('exec', -1)
    if ret: A.wait(vm=0); A.v_readfirstlane_b32(s(C0), v(CV))
def bcast(A, sk):
    A.v_mov_b32(v(CV), s(C0)); A.v_mov_b32(v(CV+1), L_MISC)
    A.ds_write_b32(v(CV+1), v(CV)); A.wait(lgkm=0)
    A.label(sk)
    A.s_barrier()
    A.v_mov_b32(v(CV+1), L_MISC); A.ds_read_b32(v(CV), v(CV+1)); A.wait(lgkm=0)
    A.v_readfirstlane_b32(s(C0), v(CV))
    A.s_barrier()
def guard(A, retry, out):
    A.s_sub_u32(s(S_TO), s(S_TO), 1); A.s_cbranch_scc0(retry)
    A.v_mov_b32(v(CV), '0xdead'); A.v_mov_b32(v(CV+1), 0)
    A.buffer_store_dword(v(CV), v(CV+1), s(S_DBG, 4), 0, m=f'offen offset:{D_ABORT*4} sc1')
    A.s_mov_b32(s(S_TO), 0); A.s_mov_b32(s(C0), K_EXIT); A.s_branch(out)
def ensure_init(A, out):
    ok, lp = A.newlabel('ini'), A.newlabel('inl')
    A.s_bitcmp1_b32(s(S_INIT), 0); A.s_cbranch_scc1(ok)
    A.v_mov_b32(v(CV+1), 0)
    A.label(lp)
    A.buffer_load_dword(v(CV), v(CV+1), s(S_DBG, 4), 0, m=f'offen offset:{D_INIT*4} sc1')
    A.wait(vm=0); A.v_readfirstlane_b32(s(C1), v(CV)); A.s_or_b32(s(S_INIT), s(S_INIT), s(C1))
    A.s_bitcmp1_b32(s(S_INIT), 0); A.s_cbranch_scc1(ok)
    A.s_sleep(2)
    guard(A, lp, out)
    A.label(ok)
def take_fb(A, out, cont):
    dbg_atomic(A, D_FBT)
    A.s_or_b32(s(S_INIT), s(S_INIT), 2)
    A.s_cmp_ge_u32(s(C0), 64); A.s_cbranch_scc1(cont)
    A.s_or_b32(s(C0), s(C0), K_FB); A.s_branch(out)
def dep_wait(A, setup, special):
    sk = only_w0(A)
    out, lp, sl = A.newlabel('dwo'), A.newlabel('dwl'), A.newlabel('dws')
    ensure_init(A, out)
    setup()
    A.v_mov_b32(v(CV+6), 0)
    A.label(lp)
    A.buffer_load_dword(v(CV+4), v(CV+2), s(S_WS, 4), 0, m='offen sc1')
    A.buffer_load_dword(v(CV+5), v(CV+6), s(S_DBG, 4), 0, m=f'offen offset:{D_READY*4} sc1')
    A.wait(vm=0)
    A.s_mov_b32(s(C0), 0)
    A.v_cmp_lt_u32('vcc', v(CV+4), v(CV+3)); A.s_cbranch_vccz(out)
    A.v_readfirstlane_b32(s(C1), v(CV+5))
    A.s_bitcmp0_b32(s(C1), POISON); A.s_cbranch_scc1(sl)
    A.s_bitcmp1_b32(s(S_INIT), 1); A.s_cbranch_scc1(sl)
    take_fb(A, out, sl)
    A.label(sl)
    A.s_sleep(4)
    guard(A, lp, out)
    A.label(out)
    bcast(A, sk)
    A.s_cmp_lg_u32(s(C0), 0); A.s_cbranch_scc1(special)
def cnt_addr(t): return WS_CTL + C_CNT + t*2048
def dep_cnt(A, t, target):
    def f():
        A.s_lshl_b32(s(C2), s(G_MB), 7); A.s_add_u32(s(C2), s(C2), cnt_addr(t))
        A.v_mov_b32(v(CV+2), s(C2)); A.v_mov_b32(v(CV+3), target)
    return f

def ws_srd(A, d):
    A.s_mov_b32(s(d), s(ptr(P_WS))); A.s_mov_b32(s(d+1), s(ptr(P_WS)+1)); A.s_mov_b32(s(d+2), hex(WS_SIZE)); A.s_mov_b32(s(d+3), '0x20000')

def build():
    A = Asm()
    END, NEXT, DECODE, SPECIAL, DONE, CABORT = '.end', '.next', '.decode', '.special', '.done', '.cabort'
    GEMM, GEMMV, CHAINP, CHAINF, CDONE = '.gemm', '.gemmv', '.chainp', '.chainf', '.cdone'
    A.s_cmp_ge_u32(s(2), 256); A.s_cbranch_scc1('.end0')
    load_ptrs(A)
    if 'log' in OPTS: A.s_lshl_b32(s(S_WG), s(2), 6); A.s_add_u32(s(S_WG), s(S_WG), WS_TIM + 0x10000)
    A.v_lshrrev_b32(v(1), 6, v(0)); A.v_readfirstlane_b32(s(S_W), v(1))
    A.s_getreg_b32(s(S_XCC), 'hwreg(HW_REG_XCC_ID, 0, 3)')
    A.s_mov_b32(s(S_TO), 1 << 17); A.s_mov_b32(s(S_INIT), 0); A.s_mov_b32(s(S_TASK), -1)
    A.wait(lgkm=0)
    srd(A, S_WS, P_WS, WS_SIZE); srd(A, S_DBG, P_DBG, 256)
    if 'tim' in OPTS: A.s_memtime(s(100, 2))
    rts(A, 0)
    if 'nochain' not in OPTS:
        A.s_cmp_gt_u32(s(S_XCC), 0 if 'forcefb' in OPTS else 1); A.s_cbranch_scc1(NEXT)
        sk = only_w0(A)
        A.s_lshl_b32(s(C1), s(S_XCC), 2)
        dbg_atomic(A, D_CNT0, s(C1))
        bcast(A, sk)
        A.s_cmp_lt_u32(s(C0), 32); A.s_cbranch_scc1(CHAINP)
    A.label(NEXT)
    if 'chainonly' in OPTS: A.s_branch(END)
    A.s_sub_u32(s(S_TO), s(S_TO), 32); A.s_cbranch_scc1(END)
    if 'log' in OPTS:
        nl = A.newlabel('nl')
        A.s_cmp_lg_u32(s(S_W), 0); A.s_cbranch_scc1(nl)
        A.s_cmp_ge_u32(s(S_TASK), 2048); A.s_cbranch_scc1(nl)
        A.s_memrealtime(s(C0, 2)); A.wait(lgkm=0)
        A.v_mov_b32(v(CV+4), s(21)); A.v_mov_b32(v(CV+5), s(22)); A.v_mov_b32(v(CV+6), s(23)); A.v_mov_b32(v(CV+7), s(C0))
        A.v_mov_b32(v(CV), s(S_XCC)); A.v_mov_b32(v(CV+1), s(14)); A.v_mov_b32(v(CV+2), s(15)); A.v_mov_b32(v(CV+3), 0)
        A.s_lshl_b32(s(C0), s(S_TASK), 5); A.s_add_u32(s(C0), s(C0), WS_TIM)
        A.s_mov_b64('exec', 1)
        A.buffer_store_dwordx4(v(CV+4, 4), v(CV+3), s(S_WS, 4), s(C0), m='offen')
        A.buffer_store_dwordx4(v(CV, 4), v(CV+3), s(S_WS, 4), s(C0), m='offen offset:16')
        A.s_mov_b64('exec', -1)
        A.label(nl)
        stamp(A, 14)
    sk = only_w0(A)
    out, lead, got, lp = A.newlabel('dqo'), A.newlabel('dqlead'), A.newlabel('dqgot'), A.newlabel('dql')
    A.s_lshl_b32(s(C1), s(S_XCC), 2)
    A.v_mov_b32(v(CV), 1); A.v_mov_b32(v(CV+1), 0)
    A.s_mov_b64('exec', 1)
    A.buffer_atomic_add(v(CV), v(CV+1), s(S_DBG, 4), s(C1), m=f'offen offset:{D_LH*4} sc0 sc1')
    A.buffer_load_dwordx4(v(CV+4, 4), v(CV+1), s(S_DBG, 4), 0, m=f'offen offset:{D_READY*4} sc1')
    A.s_mov_b64('exec', -1)
    A.wait(vm=0)
    A.v_readfirstlane_b32(s(C2), v(CV)); A.v_readfirstlane_b32(s(C5), v(CV+4)); A.v_readfirstlane_b32(s(C1), v(CV+7))
    A.s_or_b32(s(S_INIT), s(S_INIT), s(C1))
    A.s_lshr_b32(s(C3), s(C2), 5); A.s_and_b32(s(C2), s(C2), 31)
    A.s_mov_b32(s(C0), K_EXIT); A.s_cmp_ge_u32(s(C3), 128); A.s_cbranch_scc1(out)
    z = A.newlabel('dqz')
    A.s_cmp_eq_u32(s(C3), 0); A.s_cbranch_scc1(z)
    ensure_init(A, out)
    A.label(z)
    A.s_lshl_b32(s(C4), s(S_XCC), 7); A.s_add_u32(s(C4), s(C4), s(C3)); A.s_lshl_b32(s(C4), s(C4), 2); A.s_add_u32(s(C4), s(C4), WS_CTL + C_TAB)
    A.s_cmp_eq_u32(s(C2), 0); A.s_cbranch_scc1(lead)
    A.v_mov_b32(v(CV+1), 0)
    A.label(lp)
    l0, l1 = A.newlabel('dq0'), A.newlabel('dq1')
    A.s_cmp_eq_u32(s(C3), 0); A.s_cbranch_scc1(l0)
    A.buffer_load_dword(v(CV), v(CV+1), s(S_WS, 4), s(C4), m='offen sc1'); A.s_branch(l1)
    A.label(l0)
    A.s_lshl_b32(s(C1), s(S_XCC), 2)
    A.buffer_load_dword(v(CV), v(CV+1), s(S_DBG, 4), s(C1), m=f'offen offset:{D_SLOT0*4} sc1')
    A.label(l1)
    A.wait(vm=0); A.v_readfirstlane_b32(s(C0), v(CV))
    A.s_sub_u32(s(C0), s(C0), 1); A.s_cbranch_scc0(got)
    guard(A, lp, out)
    A.label(lead)
    dbg_atomic(A, D_GHEAD)
    A.s_add_u32(s(C1), s(C0), 1); A.v_mov_b32(v(CV), s(C1))
    l0 = A.newlabel('dq0')
    A.s_mov_b64('exec', 1)
    A.s_cmp_eq_u32(s(C3), 0); A.s_cbranch_scc1(l0)
    A.buffer_store_dword(v(CV), v(CV+1), s(S_WS, 4), s(C4), m='offen sc1'); A.s_mov_b64('exec', -1); A.s_branch(got)
    A.label(l0)
    A.s_lshl_b32(s(C1), s(S_XCC), 2)
    A.buffer_store_dword(v(CV), v(CV+1), s(S_DBG, 4), s(C1), m=f'offen offset:{D_SLOT0*4} sc1'); A.s_mov_b64('exec', -1)
    A.label(got)
    A.s_min_u32(s(C0), s(C0), 1023)
    A.s_lshl_b32(s(C0), s(C0), 5); A.s_or_b32(s(C0), s(C0), s(C2))
    A.s_bitcmp0_b32(s(C5), POISON); A.s_cbranch_scc1(out)
    A.s_bitcmp1_b32(s(S_INIT), 1); A.s_cbranch_scc1(out)
    A.s_cmp_lt_u32(s(C0), 16*32); A.s_cbranch_scc1(out)
    A.s_mov_b32(s(C5), s(C0))
    back = A.newlabel('dqb')
    dbg_atomic(A, D_FBT)
    A.s_or_b32(s(S_INIT), s(S_INIT), 2)
    A.s_cmp_ge_u32(s(C0), 64); A.s_cbranch_scc1(back)
    A.s_lshl_b32(s(C0), s(C0), 17); A.s_or_b32(s(C0), s(C0), K_FB); A.s_or_b32(s(C0), s(C0), s(C5)); A.s_branch(out)
    A.label(back); A.s_mov_b32(s(C0), s(C5))
    A.label(out)
    bcast(A, sk)
    A.s_and_b32(s(S_TASK), s(C0), 0xFFFF)
    dec0 = A.newlabel('dec0')
    A.s_bitcmp0_b32(s(C0), 16); A.s_cbranch_scc1(DECODE)
    A.s_lshr_b32(s(C0), s(C0), 17); A.s_branch(CHAINF)
    A.label(SPECIAL)
    A.s_bitcmp0_b32(s(C0), 16); A.s_cbranch_scc1(END)
    A.s_and_b32(s(C0), s(C0), 63); A.s_branch(CHAINF)
    A.label(DECODE)
    stamp(A, 21); stamp(A, 22); stamp(A, 23); stamp(A, 15)
    A.s_lshr_b32(s(C0), s(S_TASK), 5); A.s_and_b32(s(C1), s(S_TASK), 31)
    TL = {n: A.newlabel('t' + n) for n in ('KV', 'GU', 'DN', 'Q', 'AT', 'OP', 'OPS')}
    tKV, tGU, tDN, tQ, tAT, tOP, tOPS = TL.values()
    pos = 0
    A.s_mov_b32(s(C2), s(C0))
    for ty, first, cnt in order():
        if not cnt: continue
        A.s_sub_u32(s(C0), s(C2), pos - first)
        pos += cnt
        A.s_cmp_lt_u32(s(C2), pos); A.s_cbranch_scc1(TL[ty])
    A.label(END)
    rts(A, 5); A.wait(vm=0)
    if 'tim' in OPTS:
        A.s_memtime(s(C0, 2)); A.wait(lgkm=0); A.s_sub_u32(s(C0), s(C0), s(100))
        A.v_mov_b32(v(CV), s(C0)); A.v_mov_b32(v(CV+1), 0); A.s_mov_b64('exec', 1)
        A.buffer_atomic_umax(v(CV), v(CV+1), s(S_DBG, 4), 0, m='offen offset:128 sc1'); A.wait(vm=0)
    A.label('.end0')
    A.s_endpgm()

    def x_operand():
        srd(A, SRD_A, P_X, 2048*2048); A.s_lshl_b32(s(G_SA), s(G_MB), 18); A.s_mov_b32(s(G_STA), 2048); A.s_mov_b32(s(G_N), 16); A.s_mov_b32(s(G_ASTEP), 128)
    def b_operand(p, nbytes, stride, ntreg):
        srd(A, SRD_B0, p, nbytes); srd(A, SRD_B1, p, nbytes)
        A.s_lshl_b32(s(G_SB0), s(ntreg), 9); A.s_add_u32(s(G_SB1), s(G_SB0), 256)
        A.s_mov_b32(s(G_STB), stride); A.s_mov_b32(s(G_BSTEP), 64*stride)
    def set_cnt(t): A.s_lshl_b32(s(G_CNT), s(G_MB), 7); A.s_add_u32(s(G_CNT), s(G_CNT), cnt_addr(t))
    def mb_nt(qshift, mul):
        A.s_lshr_b32(s(G_MB), s(C0), qshift); A.s_lshl_b32(s(G_MB), s(G_MB), 2); A.s_and_b32(s(C2), s(C1), 3); A.s_add_u32(s(G_MB), s(G_MB), s(C2))
        A.s_and_b32(s(C3), s(C0), (1 << qshift) - 1); A.s_mul_i32(s(G_NT), s(C3), mul); A.s_lshr_b32(s(C2), s(C1), 2); A.s_add_u32(s(G_NT), s(G_NT), s(C2))
    A.label(tKV)
    noz = A.newlabel('noz')
    A.s_cmp_lg_u32(s(S_TASK), 0); A.s_cbranch_scc1(noz)
    lane_id(A, CV); A.s_lshl_b32(s(C2), s(S_W), 10); A.v_lshlrev_b32(v(CV), 4, v(CV)); A.v_add_u32(v(CV), s(C2), v(CV))
    A.v_mov_b64(v(CV+4, 2), 0); A.v_mov_b64(v(CV+6, 2), 0)
    for i in range(CTL_BYTES // 4096):
        A.s_mov_b32(s(C2), WS_CTL + i*4096)
        A.buffer_store_dwordx4(v(CV+4, 4), v(CV), s(S_WS, 4), s(C2), m='offen sc1')
    if 'nochain' in OPTS:
        A.wait(vm=0); A.s_barrier()
        A.v_mov_b32(v(CV+4), 64); A.v_lshlrev_b32(v(CV), 3, v(CV)); A.s_mov_b32(s(C2), WS_CTL + C_PROG)
        q = only_w0(A)
        A.buffer_store_dword(v(CV+4), v(CV), s(S_WS, 4), s(C2), m='offen sc1')
        A.label(q)
    A.wait(vm=0); A.s_barrier()
    q = only_w0(A); dbg_atomic(A, D_INIT, ret=False); A.label(q)
    A.label(noz)
    mb_nt(2, 8); x_operand(); set_cnt(T_KV)
    tV = A.newlabel('tv')
    A.s_cmp_ge_u32(s(G_NT), 16); A.s_cbranch_scc1(tV)
    def kv_base(base):
        A.s_lshl_b32(s(G_SC), s(G_MB), 20); A.s_lshl_b32(s(C2), s(G_NT), 14); A.s_add_u32(s(G_SC), s(G_SC), s(C2))
        A.s_lshl_b32(s(C2), s(S_W), 11); A.s_add_u32(s(G_SC), s(G_SC), s(C2)); A.s_add_u32(s(G_SC), s(G_SC), base)
    b_operand(P_WK, 1024*8192, 8192, G_NT); kv_base(WS_KX); A.s_mov_b32(s(G_EPI), 1); A.s_branch(GEMM)
    A.label(tV)
    A.s_sub_u32(s(G_NT), s(G_NT), 16)
    b_operand(P_WV, 1024*8192, 8192, G_NT)
    kv_base(WS_VT)
    stamp(A, 22); gemm_consts(A); gemm_main(A, True); stamp(A, 23); epi_vt(A); stamp(A, 15); A.s_branch(DONE)
    A.label(tQ)
    mb_nt(1, 8); x_operand(); set_cnt(T_Q)
    b_operand(P_WQ, 1024*8192, 8192, G_NT); kv_base(WS_QX); A.s_mov_b32(s(G_EPI), 0); A.s_branch(GEMM)
    A.label(tGU)
    tG = A.newlabel('tg')
    mb_nt(2, 7)
    A.s_cmp_ge_u32(s(C1), 28); A.s_cbranch_scc1(tG)
    x_operand(); set_cnt(T_GU)
    srd(A, SRD_B0, P_WG, 1024*7168); srd(A, SRD_B1, P_WU, 1024*7168)
    A.s_lshl_b32(s(G_SB0), s(G_NT), 8); A.s_mov_b32(s(G_SB1), s(G_SB0)); A.s_mov_b32(s(G_STB), 7168); A.s_mov_b32(s(G_BSTEP), 64*7168)
    A.s_mul_i32(s(G_SC), s(G_MB), 128*7168); A.s_lshl_b32(s(C2), s(G_NT), 13); A.s_add_u32(s(G_SC), s(G_SC), s(C2))
    A.s_lshl_b32(s(C2), s(S_W), 11); A.s_add_u32(s(G_SC), s(G_SC), s(C2)); A.s_add_u32(s(G_SC), s(G_SC), WS_H)
    A.s_mov_b32(s(G_EPI), 2); A.s_branch(GEMM)
    A.label(tG)
    A.s_cmp_lg_u32(s(C3), 0); A.s_cbranch_scc1(NEXT)
    set_cnt(T_DN); task_g(A); A.s_branch(DONE)
    A.label(tDN)
    A.s_lshl_b32(s(G_MB), s(C0), 3); A.s_and_b32(s(C2), s(C1), 7); A.s_add_u32(s(G_MB), s(G_MB), s(C2))
    A.s_lshr_b32(s(G_NT), s(C1), 3)
    dep_wait(A, dep_cnt(A, T_GU, 28), SPECIAL)
    set_cnt(T_DN)
    ws_srd(A, SRD_A); A.s_mul_i32(s(G_SA), s(G_MB), 128*7168); A.s_add_u32(s(G_SA), s(G_SA), WS_H); A.s_mov_b32(s(G_STA), 32*7168); A.s_mov_b32(s(G_N), 56); A.s_mov_b32(s(G_ASTEP), 4096)
    b_operand(P_WD, 3584*2048, 2048, G_NT)
    A.s_lshl_b32(s(G_SC), s(G_MB), 2); A.s_add_u32(s(G_SC), s(G_SC), s(G_NT)); A.s_lshl_b32(s(G_SC), s(G_SC), 2); A.s_add_u32(s(G_SC), s(G_SC), s(S_W))
    A.s_lshl_b32(s(G_SC), s(G_SC), 14); A.s_add_u32(s(G_SC), s(G_SC), WS_B)
    A.s_mov_b32(s(G_EPI), 3); A.s_branch(GEMM)
    A.label(tAT)
    A.s_lshl_b32(s(G_MB), s(C0), 3); A.s_lshr_b32(s(C2), s(C1), 2); A.s_add_u32(s(G_MB), s(G_MB), s(C2)); A.s_and_b32(s(G_NT), s(C1), 3)
    set_cnt(T_AT)
    def d_kvq():
        A.s_lshr_b32(s(C2), s(G_MB), 2); A.s_lshl_b32(s(C2), s(C2), 7); A.s_add_u32(s(C2), s(C2), cnt_addr(T_KV))
        lane_id(A, CV+3); A.v_and_b32(v(CV+3), 1, v(CV+3))
        A.v_lshlrev_b32(v(CV+2), 11, v(CV+3)); A.v_add_u32(v(CV+2), s(C2), v(CV+2))
        A.v_lshlrev_b32(v(CV+3), 4, v(CV+3)); A.v_sub_u32(v(CV+3), 32, v(CV+3))
        assert T_Q == T_KV + 1
    dep_wait(A, d_kvq, SPECIAL)
    stamp(A, 22); task_at_pre(A)
    def d_prog():
        lane_id(A, CV+3)
        A.v_and_b32(v(CV+2), 1, v(CV+3)); A.v_lshlrev_b32(v(CV+2), 12, v(CV+2))
        A.v_bfe_u32(v(CV+3), v(CV+3), 1, 3); A.v_lshl_add_u32(v(CV+2), v(CV+3), 7, v(CV+2))
        A.s_lshl_b32(s(C2), s(G_NT), 10); A.s_add_u32(s(C2), s(C2), WS_CTL + C_PROG); A.v_add_u32(v(CV+2), s(C2), v(CV+2))
        A.s_add_u32(s(C2), s(G_MB), 1); A.v_mov_b32(v(CV+3), s(C2))
    dep_wait(A, d_prog, SPECIAL)
    stamp(A, 23); task_at_post(A); stamp(A, 15); A.s_branch(DONE)
    A.label(tOPS)
    A.s_mov_b32(s(G_NT), s(C1)); A.s_add_u32(s(G_MB), s(C0), S0)
    task_ops_pre(A)
    stamp(A, 22)
    opl = A.newlabel('opsl'); A.label(opl)
    def d_ops():
        lane_id(A, CV+3); A.v_and_b32(v(CV+3), 1, v(CV+3))
        A.s_lshl_b32(s(C2), s(G_MB), 7); A.s_add_u32(s(C2), s(C2), cnt_addr(T_AT))
        A.s_lshr_b32(s(C3), s(G_MB), 2); A.s_lshl_b32(s(C3), s(C3), 7); A.s_add_u32(s(C3), s(C3), cnt_addr(T_DN)); A.s_sub_u32(s(C3), s(C2), s(C3))
        A.v_mul_u32_u24(v(CV+2), s(C3), v(CV+3)); A.v_sub_u32(v(CV+2), s(C2), v(CV+2))
        A.v_add_u32(v(CV+3), 4, v(CV+3))
    dep_wait(A, d_ops, SPECIAL)
    stamp(A, 23)
    task_ops_seg(A)
    A.s_add_u32(s(G_MB), s(G_MB), NG); A.s_cmp_lt_u32(s(G_MB), 64); A.s_cbranch_scc1(opl)
    stamp(A, 15)
    A.wait(vm=0); A.s_branch(NEXT)
    A.label(tOP)
    A.s_lshl_b32(s(G_MB), s(C0), 3); A.s_lshr_b32(s(C2), s(C1), 2); A.s_add_u32(s(G_MB), s(G_MB), s(C2)); A.s_and_b32(s(G_NT), s(C1), 3)
    A.s_cmp_ge_u32(s(G_MB), S0 // 4); A.s_cbranch_scc1(NEXT)
    def d_at():
        lane_id(A, CV+3); A.v_and_b32(v(CV+3), 3, v(CV+3))
        A.s_lshl_b32(s(C2), s(G_MB), 9); A.s_add_u32(s(C2), s(C2), cnt_addr(T_AT))
        A.v_lshlrev_b32(v(CV+2), 7, v(CV+3)); A.v_add_u32(v(CV+2), s(C2), v(CV+2)); A.v_mov_b32(v(CV+3), 4)
    dep_wait(A, d_at, SPECIAL)
    ws_srd(A, SRD_A); A.s_lshl_b32(s(G_SA), s(G_MB), 20); A.s_add_u32(s(G_SA), s(G_SA), WS_O); A.s_mov_b32(s(G_STA), 262144); A.s_mov_b32(s(G_N), 64)
    A.s_mov_b32(s(G_ASTEP), 4096)
    b_operand(P_WO, 4096*2048, 2048, G_NT)
    A.s_lshl_b32(s(G_SC), s(G_MB), 18); A.s_lshl_b32(s(C2), s(G_NT), 9); A.s_add_u32(s(G_SC), s(G_SC), s(C2))
    A.s_lshl_b32(s(C2), s(S_W), 6); A.s_add_u32(s(G_SC), s(G_SC), s(C2))
    A.s_mov_b32(s(G_EPI), 4)
    A.label(GEMM)
    stamp(A, 22); gemm_consts(A); gemm_main(A, False); stamp(A, 23)
    eGU, eDN, eOP, eK = A.newlabel('egu'), A.newlabel('edn'), A.newlabel('eop'), A.newlabel('ek')
    A.s_cmp_eq_u32(s(G_EPI), 1); A.s_cbranch_scc1(eK)
    A.s_cmp_eq_u32(s(G_EPI), 2); A.s_cbranch_scc1(eGU)
    A.s_cmp_eq_u32(s(G_EPI), 3); A.s_cbranch_scc1(eDN)
    A.s_cmp_eq_u32(s(G_EPI), 4); A.s_cbranch_scc1(eOP)
    epi_q(A); stamp(A, 15); A.s_branch(DONE)
    A.label(eK); epi_k(A); stamp(A, 15); A.s_branch(DONE)
    A.label(eGU); epi_gu(A); stamp(A, 15); A.s_branch(DONE)
    A.label(eDN); epi_dn(A); stamp(A, 15); A.s_branch(DONE)
    A.label(eOP)
    dep_wait(A, dep_cnt(A, T_DN, 5), SPECIAL)
    A.s_lshl_b32(s(G_T2), s(G_MB), 2); A.s_add_u32(s(G_T2), s(G_T2), s(G_NT)); A.s_lshl_b32(s(G_T2), s(G_T2), 2); A.s_add_u32(s(G_T2), s(G_T2), s(S_W))
    A.s_lshl_b32(s(G_T2), s(G_T2), 14); A.s_add_u32(s(G_T2), s(G_T2), WS_B)
    A.s_lshl_b32(s(G_T3), s(G_MB), 9); A.s_add_u32(s(G_T3), s(G_T3), WS_G)
    srd(A, SRD_C, P_OUT, 2048*2048)
    stamp(A, 15); epi_op_loads(A); epi_op(A)
    A.wait(vm=0); A.s_branch(NEXT)
    A.label(DONE)
    A.wait(vm=0); A.s_barrier()
    A.s_cmp_lg_u32(s(S_W), 0); A.s_cbranch_scc1(NEXT)
    ensure_init(A, NEXT)
    A.v_mov_b32(v(CV), 1); A.v_mov_b32(v(CV+1), 0)
    A.s_mov_b64('exec', 1)
    A.buffer_atomic_add(v(CV), v(CV+1), s(S_WS, 4), s(G_CNT), m='offen sc1')
    A.s_mov_b64('exec', -1)
    A.s_branch(NEXT)
    if 'nochain' not in OPTS:
        CSP = '.cspecial'
        def handshake(dw, timed):
            A.wait(vm=0); A.s_barrier()
            sk = only_w0(A)
            out, lp, nx, nc = A.newlabel('hso'), A.newlabel('hsl'), A.newlabel('hsn'), A.newlabel('hsc')
            dbg_atomic(A, dw)
            A.s_and_b32(s(C0), s(C0), 255); A.s_cbranch_scc1(nc)
            chain.xq_base(A, not timed); A.s_add_u32(s(C0), s(chain.S_T0), L_MEMB + 1536)
            lane_id(A, CV+2); A.v_lshlrev_b32(v(CV+2), 4, v(CV+2))
            for i in range(4): A.v_mov_b32(v(CV+4+i), 1)
            A.s_mov_b32(s(C1), -1); A.s_mov_b32(s(C2), -1)
            A.s_mov_b64('exec', '0xffffffff')
            for i in range(3):
                for pol in range(2):
                    A.s_memtime(s(C4, 2)); A.wait(lgkm=0); A.s_mov_b32(s(C3), s(C4))
                    A.buffer_store_dwordx4(v(CV+4, 4), v(CV+2), s(S_WS, 4), s(C0), m='offen sc1')
                    A.wait(vm=0); A.s_memtime(s(C4, 2)); A.wait(lgkm=0); A.s_sub_u32(s(C3), s(C4), s(C3))
                    A.s_min_u32(s(C1+pol), s(C1+pol), s(C3)); A.s_xor_b32(s(C0), s(C0), 8192)
            A.s_mov_b64('exec', -1)
            A.s_cmp_lt_u32(s(C2), s(C1)); A.s_cselect_b32(s(C3), 257, 1)
            if 'pol0' in OPTS or 'pol1' in OPTS: A.s_mov_b32(s(C3), 257 if 'pol1' in OPTS else 1)
            if 'polx' in OPTS: A.s_cselect_b32(s(C3), 1, 257)
            dbg_atomic(A, dw, ret=False, val=s(C3))
            A.label(nc)
            A.s_mov_b32(s(C2), 300 if 'forcefb' not in OPTS else 20)
            A.label(lp)
            A.buffer_load_dwordx4(v(CV+4, 4), v(CV+1), s(S_DBG, 4), 0, m=f'offen offset:{D_READY*4} sc1')
            A.wait(vm=0)
            A.v_readfirstlane_b32(s(C1), v(CV+4 + dw - D_READY)); A.v_readfirstlane_b32(s(C3), v(CV+7))
            A.s_or_b32(s(S_INIT), s(S_INIT), s(C3))
            A.s_and_b32(s(C0), s(C1), 256); A.s_lshl_b32(s(C0), s(C0), 5)
            A.s_and_b32(s(C3), s(C1), 0x100ff)
            A.s_cmp_lg_u32(s(C3), 65); A.s_cbranch_scc1(nx)
            A.s_bitcmp1_b32(s(S_INIT), 0); A.s_cbranch_scc1(out)
            A.label(nx)
            if timed:
                np_, wk = A.newlabel('hsp'), A.newlabel('hsw')
                A.s_bitcmp0_b32(s(C1), POISON); A.s_cbranch_scc1(np_)
                take_fb(A, out, wk)
                A.label(wk); A.s_mov_b32(s(C0), 1); A.s_branch(out)
                A.label(np_)
                g = A.newlabel('hsg')
                A.s_sub_u32(s(C2), s(C2), 1); A.s_cbranch_scc0(g)
                A.s_mov_b32(s(C2), 0)
                A.s_cmp_ge_u32(s(C3), 65); A.s_cbranch_scc1(g)
                A.s_or_b32(s(C3), s(C1), 1 << POISON)
                A.v_mov_b32(v(CV+2), s(C3)); A.v_mov_b32(v(CV+3), s(C1))
                A.s_mov_b64('exec', 1)
                A.buffer_atomic_cmpswap(v(CV+2, 2), v(CV+1), s(S_DBG, 4), 0, m=f'offen offset:{D_READY*4} sc1')
                A.s_mov_b64('exec', -1)
                A.label(g)
            guard(A, lp, out)
            A.label(out)
            bcast(A, sk)
            A.s_and_b32(s(chain.S_POL), s(C0), 8192)
            A.s_cmp_lg_u32(s(C0), s(chain.S_POL)); A.s_cbranch_scc1(CSP)
        A.label(CHAINP)
        A.s_mov_b32(s(S_X), s(S_XCC)); A.s_mov_b32(s(S_H), s(C0))
        rts(A, 1)
        chain_setup(A, CABORT, False)
        rts(A, 2)
        handshake(D_READY, True)
        if 'tim' in OPTS:
            A.s_memtime(s(C0, 2)); A.wait(lgkm=0); A.s_sub_u32(s(C0), s(C0), s(100))
            A.v_mov_b32(v(CV), s(C0)); A.v_mov_b32(v(CV+1), 0); A.s_mov_b64('exec', 1)
            A.buffer_atomic_umax(v(CV), v(CV+1), s(S_DBG, 4), 0, m='offen offset:132 sc1'); A.s_mov_b64('exec', -1)
        rts(A, 3)
        chain_loop(A, CABORT, CDONE, False)
        A.label(CSP)
        A.s_cmp_eq_u32(s(C0), 1); A.s_cbranch_scc1(NEXT)
        A.s_branch(SPECIAL)
        A.label(CHAINF)
        A.s_and_b32(s(S_X), s(C0), 1); A.s_lshr_b32(s(S_H), s(C0), 1)
        A.wait(vm=0, lgkm=0); A.s_barrier()
        chain_setup(A, CABORT, True)
        handshake(D_READY2, False)
        chain_loop(A, CABORT, CDONE, True)
        A.label(CDONE)
        if chain.TIMERS:
            for i in range(16): A.v_mov_b32(v(32+i), s(chain.S_ACC+i))
            A.s_lshl_b32(s(C0), s(S_X), 5); A.s_add_u32(s(C0), s(C0), s(S_H)); A.s_lshl_b32(s(C0), s(C0), 2); A.s_add_u32(s(C0), s(C0), s(S_W))
            A.s_lshl_b32(s(C0), s(C0), 6); A.s_add_u32(s(C0), s(C0), WS_CTIM); A.v_mov_b32(v(48), 0)
            A.s_mov_b64('exec', 1)
            for i in range(4): A.buffer_store_dwordx4(v(32+4*i, 4), v(48), s(S_WS, 4), s(C0), m=f'offen offset:{16*i}')
            A.s_mov_b64('exec', -1)
            A.wait(vm=0, lgkm=0)
        rts(A, 4)
        if 'tim' in OPTS:
            A.s_memtime(s(C0, 2)); A.wait(lgkm=0); A.s_sub_u32(s(C0), s(C0), s(100))
            A.v_mov_b32(v(CV), s(C0)); A.v_mov_b32(v(CV+1), 0); A.s_mov_b64('exec', 1)
            A.buffer_atomic_umax(v(CV), v(CV+1), s(S_DBG, 4), 0, m='offen offset:136 sc1'); A.s_mov_b64('exec', -1)
        if chain.TIMERS: A.wait(vm=0); A.s_endpgm()
        A.s_cmp_eq_u32(s(S_TASK), -1); A.s_cbranch_scc1(NEXT)
        A.s_branch(DECODE)
        A.label(CABORT)
        A.s_mov_b64('exec', -1)
        A.v_mov_b32(v(CV), '0xdead'); A.v_mov_b32(v(CV+1), 0)
        A.buffer_store_dword(v(CV), v(CV+1), s(S_DBG, 4), 0, m=f'offen offset:{D_ABORT*4} sc1')
        A.wait(vm=0)
        A.s_endpgm()
    else:
        A.label(CHAINF); A.s_endpgm()
    n = A.fix_hazards()
    errs = A.check_waits()
    for e in errs[:20]: print('WAITERR', e)
    code, desc = kernel_wrap(KNAME + '_kernel', A.text())
    ol = ['; ORDER ' + ' '.join(f'{ty}{first+i}' for ty, first, cnt in order() for i in range(cnt))] if 'log' in OPTS else []
    return header(ol + [f'; @launch grid=(256,1,1) block=(256,1,1) lds={LDS_BYTES}']) + code + '.section .rodata,"a"\n' + desc

if __name__ == '__main__':
    for spec in sys.argv[1:]:
        OPTS = set(spec.split('+')) - {'base'}
        chain.TIMERS = 'ct' in OPTS; S0, NG = 48, 2
        chain.PAR.clear(); chain.PAR.update(chain.PAR0)
        import gemm; gemm.XP.clear()
        for o in OPTS:
            if o.startswith('x_'): gemm.XP[o[2:].split('=')[0]] = int(o.split('=')[1]) if '=' in o else 1
        for o in OPTS:
            if '=' in o and not o.startswith('x_'):
                k_, v_ = o.split('=')
                if k_ == 'S0': S0 = int(v_)
                elif k_ == 'NG': NG = int(v_)
                else: chain.PAR[k_] = int(v_)
        import asmcheck
        p = 'mega_%s.s' % spec.replace('+', '_').replace('=', '')
        open(p, 'w').write(build())
        asmcheck.assemble(p)
```

```python
import sys
from asmlib import *
from layout import *
import chain
from chain import S_WS, S_DBG, S_X, S_H, S_W, S_TO, ptr, srd, load_ptrs, chain_setup, chain_loop
from gemm import *
from tasks import *

C0, C1, C2, C3, C4, C5 = 94, 95, 96, 97, 98, 99
CV = 120
K_EXIT, K_FB = 0xFFFF, 0x10000
POISON = 16
S0 = 48
NG = 2
def order():
    nop = S0 // 4
    return [('KV', 0, 16), ('GU', 0, 16), ('DN', 0, 2), ('Q', 0, 8), ('AT', 0, 4), ('OP', 0, 1), ('AT', 4, S0//8 - 4), ('OP', 1, 1), ('AT', S0//8, 8 - S0//8), ('OPS', 0, NG)]
OPTS = set()

def header(launch_lines):
    ref = open('cdna_kernels/%s.s.ref' % KNAME).read().split('\n')
    hd = [l for l in ref if l.startswith(';') and '@launch' not in l]
    return '\n'.join(hd + launch_lines) + '\n.amdgcn_target "amdgcn-amd-amdhsa--gfx950"\n.text\n'
def kernel_wrap(name, body, vgpr=512, accum=256):
    return (f".globl {name}\n.p2align 8\n.type {name},@function\n{name}:\n" + body,
            f".p2align 6\n.amdhsa_kernel {name}\n  .amdhsa_next_free_vgpr {vgpr}\n  .amdhsa_next_free_sgpr 102\n  .amdhsa_accum_offset {accum}\n"
            f"  .amdhsa_group_segment_fixed_size 0\n  .amdhsa_kernarg_size 120\n  .amdhsa_user_sgpr_count 2\n  .amdhsa_user_sgpr_kernarg_segment_ptr 1\n"
            f"  .amdhsa_system_sgpr_workgroup_id_x 1\n.end_amdhsa_kernel\n")

def stamp(A, d):
    if 'log' in OPTS:
        A.s_memrealtime(s(12, 2)); A.wait(lgkm=0); A.s_mov_b32(s(d), s(12))
S_WG = 63
def rts(A, k):
    if 'log' in OPTS:
        A.s_memrealtime(s(C4, 2)); A.wait(lgkm=0); A.v_mov_b32(v(CV), s(C4)); A.v_mov_b32(v(CV+1), 0); A.s_mov_b64('exec', 1)
        A.buffer_store_dword(v(CV), v(CV+1), s(S_WS, 4), s(S_WG), m=f'offen offset:{4*k}'); A.s_mov_b64('exec', -1)
def only_w0(A):
    sk = A.newlabel('w0'); A.s_cmp_lg_u32(s(S_W), 0); A.s_cbranch_scc1(sk); return sk
def dbg_atomic(A, dw, soff=0, ret=True, val=1):
    A.v_mov_b32(v(CV), val); A.v_mov_b32(v(CV+1), 0)
    A.s_mov_b64('exec', 1)
    A.buffer_atomic_add(v(CV), v(CV+1), s(S_DBG, 4), soff, m=f'offen offset:{dw*4} ' + ('sc0 sc1' if ret else 'sc1'))
    A.s_mov_b64('exec', -1)
    if ret: A.wait(vm=0); A.v_readfirstlane_b32(s(C0), v(CV))
def bcast(A, sk):
    A.v_mov_b32(v(CV), s(C0)); A.v_mov_b32(v(CV+1), L_MISC)
    A.ds_write_b32(v(CV+1), v(CV)); A.wait(lgkm=0)
    A.label(sk)
    A.s_barrier()
    A.v_mov_b32(v(CV+1), L_MISC); A.ds_read_b32(v(CV), v(CV+1)); A.wait(lgkm=0)
    A.v_readfirstlane_b32(s(C0), v(CV))
    A.s_barrier()
def guard(A, retry, out):
    A.s_sub_u32(s(S_TO), s(S_TO), 1); A.s_cbranch_scc0(retry)
    A.v_mov_b32(v(CV), '0xdead'); A.v_mov_b32(v(CV+1), 0)
    A.buffer_store_dword(v(CV), v(CV+1), s(S_DBG, 4), 0, m=f'offen offset:{D_ABORT*4} sc1')
    A.s_mov_b32(s(S_TO), 0); A.s_mov_b32(s(C0), K_EXIT); A.s_branch(out)
def ensure_init(A, out):
    ok, lp = A.newlabel('ini'), A.newlabel('inl')
    A.s_bitcmp1_b32(s(S_INIT), 0); A.s_cbranch_scc1(ok)
    A.v_mov_b32(v(CV+1), 0)
    A.label(lp)
    A.buffer_load_dword(v(CV), v(CV+1), s(S_DBG, 4), 0, m=f'offen offset:{D_INIT*4} sc1')
    A.wait(vm=0); A.v_readfirstlane_b32(s(C1), v(CV)); A.s_or_b32(s(S_INIT), s(S_INIT), s(C1))
    A.s_bitcmp1_b32(s(S_INIT), 0); A.s_cbranch_scc1(ok)
    A.s_sleep(2)
    guard(A, lp, out)
    A.label(ok)
def take_fb(A, out, cont):
    dbg_atomic(A, D_FBT)
    A.s_or_b32(s(S_INIT), s(S_INIT), 2)
    A.s_cmp_ge_u32(s(C0), 64); A.s_cbranch_scc1(cont)
    A.s_or_b32(s(C0), s(C0), K_FB); A.s_branch(out)
def dep_wait(A, setup, special):
    sk = only_w0(A)
    out, lp, sl = A.newlabel('dwo'), A.newlabel('dwl'), A.newlabel('dws')
    ensure_init(A, out)
    setup()
    A.v_mov_b32(v(CV+6), 0)
    A.label(lp)
    A.buffer_load_dword(v(CV+4), v(CV+2), s(S_WS, 4), 0, m='offen sc1')
    A.buffer_load_dword(v(CV+5), v(CV+6), s(S_DBG, 4), 0, m=f'offen offset:{D_READY*4} sc1')
    A.wait(vm=0)
    A.s_mov_b32(s(C0), 0)
    A.v_cmp_lt_u32('vcc', v(CV+4), v(CV+3)); A.s_cbranch_vccz(out)
    A.v_readfirstlane_b32(s(C1), v(CV+5))
    A.s_bitcmp0_b32(s(C1), POISON); A.s_cbranch_scc1(sl)
    A.s_bitcmp1_b32(s(S_INIT), 1); A.s_cbranch_scc1(sl)
    take_fb(A, out, sl)
    A.label(sl)
    A.s_sleep(4)
    guard(A, lp, out)
    A.label(out)
    bcast(A, sk)
    A.s_cmp_lg_u32(s(C0), 0); A.s_cbranch_scc1(special)
def cnt_addr(t): return WS_CTL + C_CNT + t*2048
def dep_cnt(A, t, target):
    def f():
        A.s_lshl_b32(s(C2), s(G_MB), 7); A.s_add_u32(s(C2), s(C2), cnt_addr(t))
        A.v_mov_b32(v(CV+2), s(C2)); A.v_mov_b32(v(CV+3), target)
    return f

def ws_srd(A, d):
    A.s_mov_b32(s(d), s(ptr(P_WS))); A.s_mov_b32(s(d+1), s(ptr(P_WS)+1)); A.s_mov_b32(s(d+2), hex(WS_SIZE)); A.s_mov_b32(s(d+3), '0x20000')

def build():
    A = Asm()
    END, NEXT, DECODE, SPECIAL, DONE, CABORT = '.end', '.next', '.decode', '.special', '.done', '.cabort'
    GEMM, GEMMV, CHAINP, CHAINF, CDONE = '.gemm', '.gemmv', '.chainp', '.chainf', '.cdone'
    A.s_cmp_ge_u32(s(2), 256); A.s_cbranch_scc1('.end0')
    load_ptrs(A)
    if 'log' in OPTS: A.s_lshl_b32(s(S_WG), s(2), 6); A.s_add_u32(s(S_WG), s(S_WG), WS_TIM + 0x10000)
    A.v_lshrrev_b32(v(1), 6, v(0)); A.v_readfirstlane_b32(s(S_W), v(1))
    A.s_getreg_b32(s(S_XCC), 'hwreg(HW_REG_XCC_ID, 0, 3)')
    A.s_mov_b32(s(S_TO), 1 << 17); A.s_mov_b32(s(S_INIT), 0); A.s_mov_b32(s(S_TASK), -1)
    A.wait(lgkm=0)
    srd(A, S_WS, P_WS, WS_SIZE); srd(A, S_DBG, P_DBG, 256)
    if 'tim' in OPTS: A.s_memtime(s(100, 2))
    rts(A, 0)
    if 'nochain' not in OPTS:
        A.s_cmp_gt_u32(s(S_XCC), 0 if 'forcefb' in OPTS else 1); A.s_cbranch_scc1(NEXT)
        sk = only_w0(A)
        A.s_lshl_b32(s(C1), s(S_XCC), 2)
        dbg_atomic(A, D_CNT0, s(C1))
        bcast(A, sk)
        A.s_cmp_lt_u32(s(C0), 32); A.s_cbranch_scc1(CHAINP)
    A.label(NEXT)
    if 'chainonly' in OPTS: A.s_branch(END)
    A.s_sub_u32(s(S_TO), s(S_TO), 32); A.s_cbranch_scc1(END)
    if 'log' in OPTS:
        nl = A.newlabel('nl')
        A.s_cmp_lg_u32(s(S_W), 0); A.s_cbranch_scc1(nl)
        A.s_cmp_ge_u32(s(S_TASK), 2048); A.s_cbranch_scc1(nl)
        A.s_memrealtime(s(C0, 2)); A.wait(lgkm=0)
        A.v_mov_b32(v(CV+4), s(21)); A.v_mov_b32(v(CV+5), s(22)); A.v_mov_b32(v(CV+6), s(23)); A.v_mov_b32(v(CV+7), s(C0))
        A.v_mov_b32(v(CV), s(S_XCC)); A.v_mov_b32(v(CV+1), s(14)); A.v_mov_b32(v(CV+2), s(15)); A.v_mov_b32(v(CV+3), 0)
        A.s_lshl_b32(s(C0), s(S_TASK), 5); A.s_add_u32(s(C0), s(C0), WS_TIM)
        A.s_mov_b64('exec', 1)
        A.buffer_store_dwordx4(v(CV+4, 4), v(CV+3), s(S_WS, 4), s(C0), m='offen')
        A.buffer_store_dwordx4(v(CV, 4), v(CV+3), s(S_WS, 4), s(C0), m='offen offset:16')
        A.s_mov_b64('exec', -1)
        A.label(nl)
        stamp(A, 14)
    sk = only_w0(A)
    out, lead, got, lp = A.newlabel('dqo'), A.newlabel('dqlead'), A.newlabel('dqgot'), A.newlabel('dql')
    A.s_lshl_b32(s(C1), s(S_XCC), 2)
    A.v_mov_b32(v(CV), 1); A.v_mov_b32(v(CV+1), 0)
    A.s_mov_b64('exec', 1)
    A.buffer_atomic_add(v(CV), v(CV+1), s(S_DBG, 4), s(C1), m=f'offen offset:{D_LH*4} sc0 sc1')
    A.buffer_load_dwordx4(v(CV+4, 4), v(CV+1), s(S_DBG, 4), 0, m=f'offen offset:{D_READY*4} sc1')
    A.s_mov_b64('exec', -1)
    A.wait(vm=0)
    A.v_readfirstlane_b32(s(C2), v(CV)); A.v_readfirstlane_b32(s(C5), v(CV+4)); A.v_readfirstlane_b32(s(C1), v(CV+7))
    A.s_or_b32(s(S_INIT), s(S_INIT), s(C1))
    A.s_lshr_b32(s(C3), s(C2), 5); A.s_and_b32(s(C2), s(C2), 31)
    A.s_mov_b32(s(C0), K_EXIT); A.s_cmp_ge_u32(s(C3), 128); A.s_cbranch_scc1(out)
    z = A.newlabel('dqz')
    A.s_cmp_eq_u32(s(C3), 0); A.s_cbranch_scc1(z)
    ensure_init(A, out)
    A.label(z)
    A.s_lshl_b32(s(C4), s(S_XCC), 7); A.s_add_u32(s(C4), s(C4), s(C3)); A.s_lshl_b32(s(C4), s(C4), 2); A.s_add_u32(s(C4), s(C4), WS_CTL + C_TAB)
    A.s_cmp_eq_u32(s(C2), 0); A.s_cbranch_scc1(lead)
    A.v_mov_b32(v(CV+1), 0)
    A.label(lp)
    l0, l1 = A.newlabel('dq0'), A.newlabel('dq1')
    A.s_cmp_eq_u32(s(C3), 0); A.s_cbranch_scc1(l0)
    A.buffer_load_dword(v(CV), v(CV+1), s(S_WS, 4), s(C4), m='offen sc1'); A.s_branch(l1)
    A.label(l0)
    A.s_lshl_b32(s(C1), s(S_XCC), 2)
    A.buffer_load_dword(v(CV), v(CV+1), s(S_DBG, 4), s(C1), m=f'offen offset:{D_SLOT0*4} sc1')
    A.label(l1)
    A.wait(vm=0); A.v_readfirstlane_b32(s(C0), v(CV))
    A.s_sub_u32(s(C0), s(C0), 1); A.s_cbranch_scc0(got)
    guard(A, lp, out)
    A.label(lead)
    dbg_atomic(A, D_GHEAD)
    A.s_add_u32(s(C1), s(C0), 1); A.v_mov_b32(v(CV), s(C1))
    l0 = A.newlabel('dq0')
    A.s_mov_b64('exec', 1)
    A.s_cmp_eq_u32(s(C3), 0); A.s_cbranch_scc1(l0)
    A.buffer_store_dword(v(CV), v(CV+1), s(S_WS, 4), s(C4), m='offen sc1'); A.s_mov_b64('exec', -1); A.s_branch(got)
    A.label(l0)
    A.s_lshl_b32(s(C1), s(S_XCC), 2)
    A.buffer_store_dword(v(CV), v(CV+1), s(S_DBG, 4), s(C1), m=f'offen offset:{D_SLOT0*4} sc1'); A.s_mov_b64('exec', -1)
    A.label(got)
    A.s_min_u32(s(C0), s(C0), 1023)
    A.s_lshl_b32(s(C0), s(C0), 5); A.s_or_b32(s(C0), s(C0), s(C2))
    A.s_bitcmp0_b32(s(C5), POISON); A.s_cbranch_scc1(out)
    A.s_bitcmp1_b32(s(S_INIT), 1); A.s_cbranch_scc1(out)
    A.s_cmp_lt_u32(s(C0), 16*32); A.s_cbranch_scc1(out)
    A.s_mov_b32(s(C5), s(C0))
    back = A.newlabel('dqb')
    dbg_atomic(A, D_FBT)
    A.s_or_b32(s(S_INIT), s(S_INIT), 2)
    A.s_cmp_ge_u32(s(C0), 64); A.s_cbranch_scc1(back)
    A.s_lshl_b32(s(C0), s(C0), 17); A.s_or_b32(s(C0), s(C0), K_FB); A.s_or_b32(s(C0), s(C0), s(C5)); A.s_branch(out)
    A.label(back); A.s_mov_b32(s(C0), s(C5))
    A.label(out)
    bcast(A, sk)
    A.s_and_b32(s(S_TASK), s(C0), 0xFFFF)
    dec0 = A.newlabel('dec0')
    A.s_bitcmp0_b32(s(C0), 16); A.s_cbranch_scc1(DECODE)
    A.s_lshr_b32(s(C0), s(C0), 17); A.s_branch(CHAINF)
    A.label(SPECIAL)
    A.s_bitcmp0_b32(s(C0), 16); A.s_cbranch_scc1(END)
    A.s_and_b32(s(C0), s(C0), 63); A.s_branch(CHAINF)
    A.label(DECODE)
    stamp(A, 21); stamp(A, 22); stamp(A, 23); stamp(A, 15)
    A.s_lshr_b32(s(C0), s(S_TASK), 5); A.s_and_b32(s(C1), s(S_TASK), 31)
    TL = {n: A.newlabel('t' + n) for n in ('KV', 'GU', 'DN', 'Q', 'AT', 'OP', 'OPS')}
    tKV, tGU, tDN, tQ, tAT, tOP, tOPS = TL.values()
    pos = 0
    A.s_mov_b32(s(C2), s(C0))
    for ty, first, cnt in order():
        if not cnt: continue
        A.s_sub_u32(s(C0), s(C2), pos - first)
        pos += cnt
        A.s_cmp_lt_u32(s(C2), pos); A.s_cbranch_scc1(TL[ty])
    A.label(END)
    rts(A, 5); A.wait(vm=0)
    if 'tim' in OPTS:
        A.s_memtime(s(C0, 2)); A.wait(lgkm=0); A.s_sub_u32(s(C0), s(C0), s(100))
        A.v_mov_b32(v(CV), s(C0)); A.v_mov_b32(v(CV+1), 0); A.s_mov_b64('exec', 1)
        A.buffer_atomic_umax(v(CV), v(CV+1), s(S_DBG, 4), 0, m=f'offen offset:{28 if "timd" in OPTS else 128} sc1'); A.wait(vm=0)
    A.label('.end0')
    A.s_endpgm()

    def x_operand():
        srd(A, SRD_A, P_X, 2048*2048); A.s_lshl_b32(s(G_SA), s(G_MB), 18); A.s_mov_b32(s(G_STA), 2048); A.s_mov_b32(s(G_N), 16); A.s_mov_b32(s(G_ASTEP), 128)
    def b_operand(p, nbytes, stride, ntreg):
        srd(A, SRD_B0, p, nbytes); srd(A, SRD_B1, p, nbytes)
        A.s_lshl_b32(s(G_SB0), s(ntreg), 9); A.s_add_u32(s(G_SB1), s(G_SB0), 256)
        A.s_mov_b32(s(G_STB), stride); A.s_mov_b32(s(G_BSTEP), 64*stride)
    def set_cnt(t): A.s_lshl_b32(s(G_CNT), s(G_MB), 7); A.s_add_u32(s(G_CNT), s(G_CNT), cnt_addr(t))
    def mb_nt(qshift, mul):
        A.s_lshr_b32(s(G_MB), s(C0), qshift); A.s_lshl_b32(s(G_MB), s(G_MB), 2); A.s_and_b32(s(C2), s(C1), 3); A.s_add_u32(s(G_MB), s(G_MB), s(C2))
        A.s_and_b32(s(C3), s(C0), (1 << qshift) - 1); A.s_mul_i32(s(G_NT), s(C3), mul); A.s_lshr_b32(s(C2), s(C1), 2); A.s_add_u32(s(G_NT), s(G_NT), s(C2))
    A.label(tKV)
    noz = A.newlabel('noz')
    A.s_cmp_lg_u32(s(S_TASK), 0); A.s_cbranch_scc1(noz)
    lane_id(A, CV); A.s_lshl_b32(s(C2), s(S_W), 10); A.v_lshlrev_b32(v(CV), 4, v(CV)); A.v_add_u32(v(CV), s(C2), v(CV))
    A.v_mov_b64(v(CV+4, 2), 0); A.v_mov_b64(v(CV+6, 2), 0)
    for i in range(CTL_BYTES // 4096):
        A.s_mov_b32(s(C2), WS_CTL + i*4096)
        A.buffer_store_dwordx4(v(CV+4, 4), v(CV), s(S_WS, 4), s(C2), m='offen sc1')
    if 'nochain' in OPTS:
        A.wait(vm=0); A.s_barrier()
        A.v_mov_b32(v(CV+4), 64); A.v_lshlrev_b32(v(CV), 3, v(CV)); A.s_mov_b32(s(C2), WS_CTL + C_PROG)
        q = only_w0(A)
        A.buffer_store_dword(v(CV+4), v(CV), s(S_WS, 4), s(C2), m='offen sc1')
        A.label(q)
    A.wait(vm=0); A.s_barrier()
    q = only_w0(A); dbg_atomic(A, D_INIT, ret=False); A.label(q)
    A.label(noz)
    mb_nt(2, 8); x_operand(); set_cnt(T_KV)
    tV = A.newlabel('tv')
    A.s_cmp_ge_u32(s(G_NT), 16); A.s_cbranch_scc1(tV)
    def kv_base(base):
        A.s_lshl_b32(s(G_SC), s(G_MB), 20); A.s_lshl_b32(s(C2), s(G_NT), 14); A.s_add_u32(s(G_SC), s(G_SC), s(C2))
        A.s_lshl_b32(s(C2), s(S_W), 11); A.s_add_u32(s(G_SC), s(G_SC), s(C2)); A.s_add_u32(s(G_SC), s(G_SC), base)
    b_operand(P_WK, 1024*8192, 8192, G_NT); kv_base(WS_KX); A.s_mov_b32(s(G_EPI), 1); A.s_branch(GEMM)
    A.label(tV)
    A.s_sub_u32(s(G_NT), s(G_NT), 16)
    b_operand(P_WV, 1024*8192, 8192, G_NT)
    kv_base(WS_VT)
    stamp(A, 22); gemm_consts(A); gemm_main(A, True); stamp(A, 23); epi_vt(A); stamp(A, 15); A.s_branch(DONE)
    A.label(tQ)
    mb_nt(1, 8); x_operand(); set_cnt(T_Q)
    b_operand(P_WQ, 1024*8192, 8192, G_NT); kv_base(WS_QX); A.s_mov_b32(s(G_EPI), 0); A.s_branch(GEMM)
    A.label(tGU)
    tG = A.newlabel('tg')
    mb_nt(2, 7)
    A.s_cmp_ge_u32(s(C1), 28); A.s_cbranch_scc1(tG)
    x_operand(); set_cnt(T_GU)
    srd(A, SRD_B0, P_WG, 1024*7168); srd(A, SRD_B1, P_WU, 1024*7168)
    A.s_lshl_b32(s(G_SB0), s(G_NT), 8); A.s_mov_b32(s(G_SB1), s(G_SB0)); A.s_mov_b32(s(G_STB), 7168); A.s_mov_b32(s(G_BSTEP), 64*7168)
    A.s_mul_i32(s(G_SC), s(G_MB), 128*7168); A.s_lshl_b32(s(C2), s(G_NT), 13); A.s_add_u32(s(G_SC), s(G_SC), s(C2))
    A.s_lshl_b32(s(C2), s(S_W), 11); A.s_add_u32(s(G_SC), s(G_SC), s(C2)); A.s_add_u32(s(G_SC), s(G_SC), WS_H)
    A.s_mov_b32(s(G_EPI), 2); A.s_branch(GEMM)
    A.label(tG)
    A.s_cmp_lg_u32(s(C3), 0); A.s_cbranch_scc1(NEXT)
    set_cnt(T_DN); task_g(A); A.s_branch(DONE)
    A.label(tDN)
    A.s_lshl_b32(s(G_MB), s(C0), 3); A.s_and_b32(s(C2), s(C1), 7); A.s_add_u32(s(G_MB), s(G_MB), s(C2))
    A.s_lshr_b32(s(G_NT), s(C1), 3)
    dep_wait(A, dep_cnt(A, T_GU, 28), SPECIAL)
    set_cnt(T_DN)
    ws_srd(A, SRD_A); A.s_mul_i32(s(G_SA), s(G_MB), 128*7168); A.s_add_u32(s(G_SA), s(G_SA), WS_H); A.s_mov_b32(s(G_STA), 32*7168); A.s_mov_b32(s(G_N), 56); A.s_mov_b32(s(G_ASTEP), 4096)
    b_operand(P_WD, 3584*2048, 2048, G_NT)
    A.s_lshl_b32(s(G_SC), s(G_MB), 2); A.s_add_u32(s(G_SC), s(G_SC), s(G_NT)); A.s_lshl_b32(s(G_SC), s(G_SC), 2); A.s_add_u32(s(G_SC), s(G_SC), s(S_W))
    A.s_lshl_b32(s(G_SC), s(G_SC), 14); A.s_add_u32(s(G_SC), s(G_SC), WS_B)
    A.s_mov_b32(s(G_EPI), 3); A.s_branch(GEMM)
    A.label(tAT)
    A.s_lshl_b32(s(G_MB), s(C0), 3); A.s_lshr_b32(s(C2), s(C1), 2); A.s_add_u32(s(G_MB), s(G_MB), s(C2)); A.s_and_b32(s(G_NT), s(C1), 3)
    set_cnt(T_AT)
    def d_kvq():
        A.s_lshr_b32(s(C2), s(G_MB), 2); A.s_lshl_b32(s(C2), s(C2), 7); A.s_add_u32(s(C2), s(C2), cnt_addr(T_KV))
        lane_id(A, CV+3); A.v_and_b32(v(CV+3), 1, v(CV+3))
        A.v_lshlrev_b32(v(CV+2), 11, v(CV+3)); A.v_add_u32(v(CV+2), s(C2), v(CV+2))
        A.v_lshlrev_b32(v(CV+3), 4, v(CV+3)); A.v_sub_u32(v(CV+3), 32, v(CV+3))
        assert T_Q == T_KV + 1
    dep_wait(A, d_kvq, SPECIAL)
    stamp(A, 22); task_at_pre(A)
    def d_prog():
        lane_id(A, CV+3)
        A.v_and_b32(v(CV+2), 1, v(CV+3)); A.v_lshlrev_b32(v(CV+2), 12, v(CV+2))
        A.v_bfe_u32(v(CV+3), v(CV+3), 1, 3); A.v_lshl_add_u32(v(CV+2), v(CV+3), 7, v(CV+2))
        A.s_lshl_b32(s(C2), s(G_NT), 10); A.s_add_u32(s(C2), s(C2), WS_CTL + C_PROG); A.v_add_u32(v(CV+2), s(C2), v(CV+2))
        A.s_add_u32(s(C2), s(G_MB), 1); A.v_mov_b32(v(CV+3), s(C2))
    dep_wait(A, d_prog, SPECIAL)
    stamp(A, 23); task_at_post(A); stamp(A, 15); A.s_branch(DONE)
    A.label(tOPS)
    A.s_mov_b32(s(G_NT), s(C1)); A.s_add_u32(s(G_MB), s(C0), S0)
    task_ops_pre(A)
    stamp(A, 22)
    opl = A.newlabel('opsl'); A.label(opl)
    def d_ops():
        lane_id(A, CV+3); A.v_and_b32(v(CV+3), 1, v(CV+3))
        A.s_lshl_b32(s(C2), s(G_MB), 7); A.s_add_u32(s(C2), s(C2), cnt_addr(T_AT))
        A.s_lshr_b32(s(C3), s(G_MB), 2); A.s_lshl_b32(s(C3), s(C3), 7); A.s_add_u32(s(C3), s(C3), cnt_addr(T_DN)); A.s_sub_u32(s(C3), s(C2), s(C3))
        A.v_mul_u32_u24(v(CV+2), s(C3), v(CV+3)); A.v_sub_u32(v(CV+2), s(C2), v(CV+2))
        A.v_add_u32(v(CV+3), 4, v(CV+3))
    dep_wait(A, d_ops, SPECIAL)
    stamp(A, 23)
    task_ops_seg(A)
    A.s_add_u32(s(G_MB), s(G_MB), NG); A.s_cmp_lt_u32(s(G_MB), 64); A.s_cbranch_scc1(opl)
    stamp(A, 15)
    A.wait(vm=0); A.s_branch(NEXT)
    A.label(tOP)
    A.s_lshl_b32(s(G_MB), s(C0), 3); A.s_lshr_b32(s(C2), s(C1), 2); A.s_add_u32(s(G_MB), s(G_MB), s(C2)); A.s_and_b32(s(G_NT), s(C1), 3)
    A.s_cmp_ge_u32(s(G_MB), S0 // 4); A.s_cbranch_scc1(NEXT)
    def d_at():
        lane_id(A, CV+3); A.v_and_b32(v(CV+3), 3, v(CV+3))
        A.s_lshl_b32(s(C2), s(G_MB), 9); A.s_add_u32(s(C2), s(C2), cnt_addr(T_AT))
        A.v_lshlrev_b32(v(CV+2), 7, v(CV+3)); A.v_add_u32(v(CV+2), s(C2), v(CV+2)); A.v_mov_b32(v(CV+3), 4)
    dep_wait(A, d_at, SPECIAL)
    ws_srd(A, SRD_A); A.s_lshl_b32(s(G_SA), s(G_MB), 20); A.s_add_u32(s(G_SA), s(G_SA), WS_O); A.s_mov_b32(s(G_STA), 262144); A.s_mov_b32(s(G_N), 64)
    A.s_mov_b32(s(G_ASTEP), 4096)
    b_operand(P_WO, 4096*2048, 2048, G_NT)
    A.s_lshl_b32(s(G_SC), s(G_MB), 18); A.s_lshl_b32(s(C2), s(G_NT), 9); A.s_add_u32(s(G_SC), s(G_SC), s(C2))
    A.s_lshl_b32(s(C2), s(S_W), 6); A.s_add_u32(s(G_SC), s(G_SC), s(C2))
    A.s_mov_b32(s(G_EPI), 4)
    A.label(GEMM)
    stamp(A, 22); gemm_consts(A); gemm_main(A, False); stamp(A, 23)
    eGU, eDN, eOP, eK = A.newlabel('egu'), A.newlabel('edn'), A.newlabel('eop'), A.newlabel('ek')
    A.s_cmp_eq_u32(s(G_EPI), 1); A.s_cbranch_scc1(eK)
    A.s_cmp_eq_u32(s(G_EPI), 2); A.s_cbranch_scc1(eGU)
    A.s_cmp_eq_u32(s(G_EPI), 3); A.s_cbranch_scc1(eDN)
    A.s_cmp_eq_u32(s(G_EPI), 4); A.s_cbranch_scc1(eOP)
    epi_q(A); stamp(A, 15); A.s_branch(DONE)
    A.label(eK); epi_k(A); stamp(A, 15); A.s_branch(DONE)
    A.label(eGU); epi_gu(A); stamp(A, 15); A.s_branch(DONE)
    A.label(eDN); epi_dn(A); stamp(A, 15); A.s_branch(DONE)
    A.label(eOP)
    dep_wait(A, dep_cnt(A, T_DN, 5), SPECIAL)
    A.s_lshl_b32(s(G_T2), s(G_MB), 2); A.s_add_u32(s(G_T2), s(G_T2), s(G_NT)); A.s_lshl_b32(s(G_T2), s(G_T2), 2); A.s_add_u32(s(G_T2), s(G_T2), s(S_W))
    A.s_lshl_b32(s(G_T2), s(G_T2), 14); A.s_add_u32(s(G_T2), s(G_T2), WS_B)
    A.s_lshl_b32(s(G_T3), s(G_MB), 9); A.s_add_u32(s(G_T3), s(G_T3), WS_G)
    srd(A, SRD_C, P_OUT, 2048*2048)
    stamp(A, 15); epi_op_loads(A); epi_op(A)
    A.wait(vm=0); A.s_branch(NEXT)
    A.label(DONE)
    A.wait(vm=0); A.s_barrier()
    A.s_cmp_lg_u32(s(S_W), 0); A.s_cbranch_scc1(NEXT)
    ensure_init(A, NEXT)
    A.v_mov_b32(v(CV), 1); A.v_mov_b32(v(CV+1), 0)
    A.s_mov_b64('exec', 1)
    A.buffer_atomic_add(v(CV), v(CV+1), s(S_WS, 4), s(G_CNT), m='offen sc1')
    A.s_mov_b64('exec', -1)
    A.s_branch(NEXT)
    if 'nochain' not in OPTS:
        CSP = '.cspecial'
        def handshake(dw, timed):
            A.wait(vm=0); A.s_barrier()
            sk = only_w0(A)
            out, lp, nx, nc = A.newlabel('hso'), A.newlabel('hsl'), A.newlabel('hsn'), A.newlabel('hsc')
            dbg_atomic(A, dw)
            A.s_and_b32(s(C0), s(C0), 255); A.s_cbranch_scc1(nc)
            chain.xq_base(A, not timed); A.s_add_u32(s(C0), s(chain.S_T0), L_MEMB + 1536)
            lane_id(A, CV+2); A.v_lshlrev_b32(v(CV+2), 4, v(CV+2))
            for i in range(4): A.v_mov_b32(v(CV+4+i), 1)
            A.s_mov_b32(s(C1), -1); A.s_mov_b32(s(C2), -1)
            A.s_mov_b64('exec', '0xffffffff')
            for i in range(3):
                for pol in range(2):
                    A.s_memtime(s(C4, 2)); A.wait(lgkm=0); A.s_mov_b32(s(C3), s(C4))
                    A.buffer_store_dwordx4(v(CV+4, 4), v(CV+2), s(S_WS, 4), s(C0), m='offen sc1')
                    A.wait(vm=0); A.s_memtime(s(C4, 2)); A.wait(lgkm=0); A.s_sub_u32(s(C3), s(C4), s(C3))
                    A.s_min_u32(s(C1+pol), s(C1+pol), s(C3)); A.s_xor_b32(s(C0), s(C0), 8192)
            A.s_mov_b64('exec', -1)
            A.s_cmp_lt_u32(s(C2), s(C1)); A.s_cselect_b32(s(C3), 257, 1)
            if 'pol0' in OPTS or 'pol1' in OPTS: A.s_mov_b32(s(C3), 257 if 'pol1' in OPTS else 1)
            if 'polx' in OPTS: A.s_cselect_b32(s(C3), 1, 257)
            dbg_atomic(A, dw, ret=False, val=s(C3))
            A.label(nc)
            A.s_mov_b32(s(C2), 300 if 'forcefb' not in OPTS else 20)
            A.label(lp)
            A.buffer_load_dwordx4(v(CV+4, 4), v(CV+1), s(S_DBG, 4), 0, m=f'offen offset:{D_READY*4} sc1')
            A.wait(vm=0)
            A.v_readfirstlane_b32(s(C1), v(CV+4 + dw - D_READY)); A.v_readfirstlane_b32(s(C3), v(CV+7))
            A.s_or_b32(s(S_INIT), s(S_INIT), s(C3))
            A.s_and_b32(s(C0), s(C1), 256); A.s_lshl_b32(s(C0), s(C0), 5)
            A.s_and_b32(s(C3), s(C1), 0x100ff)
            A.s_cmp_lg_u32(s(C3), 65); A.s_cbranch_scc1(nx)
            A.s_bitcmp1_b32(s(S_INIT), 0); A.s_cbranch_scc1(out)
            A.label(nx)
            if timed:
                np_, wk = A.newlabel('hsp'), A.newlabel('hsw')
                A.s_bitcmp0_b32(s(C1), POISON); A.s_cbranch_scc1(np_)
                take_fb(A, out, wk)
                A.label(wk); A.s_mov_b32(s(C0), 1); A.s_branch(out)
                A.label(np_)
                g = A.newlabel('hsg')
                A.s_sub_u32(s(C2), s(C2), 1); A.s_cbranch_scc0(g)
                A.s_mov_b32(s(C2), 0)
                A.s_cmp_ge_u32(s(C3), 65); A.s_cbranch_scc1(g)
                A.s_or_b32(s(C3), s(C1), 1 << POISON)
                A.v_mov_b32(v(CV+2), s(C3)); A.v_mov_b32(v(CV+3), s(C1))
                A.s_mov_b64('exec', 1)
                A.buffer_atomic_cmpswap(v(CV+2, 2), v(CV+1), s(S_DBG, 4), 0, m=f'offen offset:{D_READY*4} sc1')
                A.s_mov_b64('exec', -1)
                A.label(g)
            guard(A, lp, out)
            A.label(out)
            bcast(A, sk)
            A.s_and_b32(s(chain.S_POL), s(C0), 8192)
            A.s_cmp_lg_u32(s(C0), s(chain.S_POL)); A.s_cbranch_scc1(CSP)
        A.label(CHAINP)
        A.s_mov_b32(s(S_X), s(S_XCC)); A.s_mov_b32(s(S_H), s(C0))
        rts(A, 1)
        chain_setup(A, CABORT, False)
        rts(A, 2)
        handshake(D_READY, True)
        if 'tim' in OPTS:
            A.s_memtime(s(C0, 2)); A.wait(lgkm=0); A.s_sub_u32(s(C0), s(C0), s(100))
            A.v_mov_b32(v(CV), s(C0)); A.v_mov_b32(v(CV+1), 0); A.s_mov_b64('exec', 1)
            A.buffer_atomic_umax(v(CV), v(CV+1), s(S_DBG, 4), 0, m=f'offen offset:{12 if "timd" in OPTS else 132} sc1'); A.s_mov_b64('exec', -1)
        rts(A, 3)
        chain_loop(A, CABORT, CDONE, False)
        A.label(CSP)
        A.s_cmp_eq_u32(s(C0), 1); A.s_cbranch_scc1(NEXT)
        A.s_branch(SPECIAL)
        A.label(CHAINF)
        A.s_and_b32(s(S_X), s(C0), 1); A.s_lshr_b32(s(S_H), s(C0), 1)
        A.wait(vm=0, lgkm=0); A.s_barrier()
        chain_setup(A, CABORT, True)
        handshake(D_READY2, False)
        chain_loop(A, CABORT, CDONE, True)
        A.label(CDONE)
        if chain.TIMERS:
            for i in range(16): A.v_mov_b32(v(32+i), s(chain.S_ACC+i))
            A.s_lshl_b32(s(C0), s(S_X), 5); A.s_add_u32(s(C0), s(C0), s(S_H)); A.s_lshl_b32(s(C0), s(C0), 2); A.s_add_u32(s(C0), s(C0), s(S_W))
            A.s_lshl_b32(s(C0), s(C0), 6); A.s_add_u32(s(C0), s(C0), WS_CTIM); A.v_mov_b32(v(48), 0)
            A.s_mov_b64('exec', 1)
            for i in range(4): A.buffer_store_dwordx4(v(32+4*i, 4), v(48), s(S_WS, 4), s(C0), m=f'offen offset:{16*i}')
            A.s_mov_b64('exec', -1)
            A.wait(vm=0, lgkm=0)
        rts(A, 4)
        if 'tim' in OPTS:
            A.s_memtime(s(C0, 2)); A.wait(lgkm=0); A.s_sub_u32(s(C0), s(C0), s(100))
            A.v_mov_b32(v(CV), s(C0)); A.v_mov_b32(v(CV+1), 0); A.s_mov_b64('exec', 1)
            A.buffer_atomic_umax(v(CV), v(CV+1), s(S_DBG, 4), 0, m=f'offen offset:{24 if "timd" in OPTS else 136} sc1'); A.s_mov_b64('exec', -1)
        if chain.TIMERS: A.wait(vm=0); A.s_endpgm()
        A.s_cmp_eq_u32(s(S_TASK), -1); A.s_cbranch_scc1(NEXT)
        A.s_branch(DECODE)
        A.label(CABORT)
        A.s_mov_b64('exec', -1)
        A.v_mov_b32(v(CV), '0xdead'); A.v_mov_b32(v(CV+1), 0)
        A.buffer_store_dword(v(CV), v(CV+1), s(S_DBG, 4), 0, m=f'offen offset:{D_ABORT*4} sc1')
        A.wait(vm=0)
        A.s_endpgm()
    else:
        A.label(CHAINF); A.s_endpgm()
    n = A.fix_hazards()
    errs = A.check_waits()
    for e in errs[:20]: print('WAITERR', e)
    code, desc = kernel_wrap(KNAME + '_kernel', A.text())
    ol = ['; ORDER ' + ' '.join(f'{ty}{first+i}' for ty, first, cnt in order() for i in range(cnt))] if 'log' in OPTS else []
    return header(ol + [f'; @launch grid=(256,1,1) block=(256,1,1) lds={LDS_BYTES}']) + code + '.section .rodata,"a"\n' + desc

if __name__ == '__main__':
    for spec in sys.argv[1:]:
        OPTS = set(spec.split('+')) - {'base'}
        if 'timd' in OPTS: OPTS.add('tim')
        chain.TIMERS = 'ct' in OPTS; S0, NG = 48, 2
        chain.PAR.clear(); chain.PAR.update(chain.PAR0)
        import gemm; gemm.XP.clear()
        for o in OPTS:
            if o.startswith('x_'): gemm.XP[o[2:].split('=')[0]] = int(o.split('=')[1]) if '=' in o else 1
        for o in OPTS:
            if '=' in o and not o.startswith('x_'):
                k_, v_ = o.split('=')
                if k_ == 'S0': S0 = int(v_)
                elif k_ == 'NG': NG = int(v_)
                else: chain.PAR[k_] = int(v_)
        import asmcheck
        p = 'mega_%s.s' % spec.replace('+', '_').replace('=', '')
        open(p, 'w').write(build())
        asmcheck.assemble(p)
```

```python
from asmlib import *
from layout import *
from chain import S_WS, S_DBG, S_TMP, S_X, S_H, S_W, S_TO, ptr, srd, spin_guard

S_XCC, S_INIT, S_TASK = 2, 3, 46
SRD_A, SRD_B0, SRD_B1, SRD_C = 24, 28, 32, 36
G_SA, G_SB0, G_SB1, G_BSTEP, G_N, G_M0, G_DELTA, G_BUF, G_REM = 40, 41, 42, 43, 44, 45, 47, 48, 49
G_SC, G_MB, G_NT, G_EPI, G_CNT = 50, 51, 52, 53, 54
G_T0, G_T1, G_T2, G_T3 = 56, 57, 58, 59
G_STA, G_STB = 60, 61
G_ASTEP = 55
V_LANE, V_C, V_T = 16, 17, 18
FSET = [32, 56]
V_DA, V_DB, V_RA, V_RB = 80, 84, 88, 92
ACC = 128
STG = 49152
def acc(mt, nf): return ACC + (mt*2 + nf)*16

def lane_id(A, d):
    A.v_mbcnt_lo_u32_b32(v(d), -1, 0); A.v_mbcnt_hi_u32_b32(v(d), -1, v(d))

def gemm_consts(A):
    L, T0, T1, T2, T3 = V_LANE, V_T, V_T+1, V_T+2, V_T+3
    lane_id(A, L)
    A.v_lshrrev_b32(v(T0), 3, v(L)); A.s_lshl_b32(s(G_T0), s(S_W), 5); A.v_add_u32(v(T0), s(G_T0), v(T0))
    A.v_mul_u32_u24(v(T0), s(G_STA), v(T0))
    A.v_lshrrev_b32(v(T1), 4, v(L))
    A.v_and_b32(v(T2), 7, v(L)); A.v_xor_b32(v(T2), v(T2), v(T1))
    A.s_lshl_b32(s(G_T1), s(G_STA), 3); A.s_sub_u32(s(G_T1), s(G_T1), 1024)
    A.v_lshl_add_u32(v(V_DA), v(T2), 4, v(T0))
    A.v_xor_b32(v(T2), 4, v(T2)); A.v_lshl_add_u32(v(V_DA+1), v(T2), 4, v(T0)); A.v_add_u32(v(V_DA+1), s(G_T1), v(V_DA+1))
    A.s_lshl_b32(s(G_T1), s(G_T1), 1)
    A.v_add_u32(v(V_DA+2), s(G_T1), v(V_DA)); A.v_add_u32(v(V_DA+3), s(G_T1), v(V_DA+1))
    A.s_lshl_b32(s(G_T0), s(S_W), 4); A.v_add_u32(v(T0), s(G_T0), v(T1)); A.v_mul_u32_u24(v(T0), s(G_STB), v(T0))
    A.v_and_b32(v(T2), 15, v(L)); A.v_lshlrev_b32(v(T3), 2, v(T1)); A.v_xor_b32(v(T2), v(T2), v(T3))
    A.v_lshl_add_u32(v(V_DB), v(T2), 4, v(T0))
    A.s_lshl_b32(s(G_T1), s(G_STB), 2); A.s_sub_u32(s(G_T1), s(G_T1), 1024)
    for j in range(1, 4): A.v_add_u32(v(V_DB+j), s(G_T1), v(V_DB+j-1))
    A.v_and_b32(v(T0), 31, v(L)); A.v_bfe_u32(v(T2), v(L), 1, 3); A.v_lshrrev_b32(v(T3), 5, v(L)); A.v_xor_b32(v(T2), v(T2), v(T3))
    A.v_lshlrev_b32(v(T0), 7, v(T0)); A.v_lshl_add_u32(v(V_RA), v(T2), 4, v(T0))
    for kk in range(1, 4): A.v_xor_b32(v(V_RA+kk), 32*kk, v(V_RA))
    A.v_bfe_u32(v(T0), v(L), 2, 2)
    A.v_lshl_add_u32(v(T2), v(T3), 3, v(T0)); A.v_lshlrev_b32(v(T2), 8, v(T2))
    A.v_xor_b32(v(T0), s(S_W), v(T0)); A.v_lshl_add_u32(v(T2), v(T0), 6, v(T2))
    A.v_and_b32(v(T0), 1, v(T1)); A.v_lshl_add_u32(v(T2), v(T0), 5, v(T2))
    A.v_and_b32(v(T0), 3, v(L)); A.v_lshl_add_u32(v(T2), v(T0), 3, v(T2))
    A.v_add_u32(v(V_RB), 16384, v(T2))
    rm = A.newlabel('rm')
    A.s_cmp_eq_u32(s(G_ASTEP), 128); A.s_cbranch_scc1(rm)
    A.s_mul_i32(s(G_T0), s(G_STA), s(S_W))
    A.v_lshlrev_b32(v(V_RA), 4, v(L))
    for j in range(4): A.v_add_u32(v(V_DA+j), s(G_T0), v(V_RA))
    for kk in range(1, 4): A.v_add_u32(v(V_RA+kk), 1024*kk, v(V_RA))
    A.label(rm)

def store_lane(A, stride_shift=None, stride=None):
    L, T0, T1 = V_LANE, V_T, V_T+1
    A.v_bfe_u32(v(T0), v(L), 4, 1); A.v_lshlrev_b32(v(T0), 5, v(T0)); A.v_lshrrev_b32(v(T1), 5, v(L)); A.v_lshl_add_u32(v(T0), v(T1), 4, v(T0))
    A.v_and_b32(v(T1), 15, v(L))
    if stride_shift is not None: A.v_lshl_add_u32(v(V_C), v(T1), stride_shift, v(T0))
    else: A.v_mul_u32_u24(v(T1), stride, v(T1)); A.v_add_u32(v(V_C), v(T0), v(T1))

class LQ:
    def __init__(self, A, init=()): self.A, self.q = A, list(init)
    def issue(self, tag): self.q.append(tag)
    def need(self, tags):
        idx = max([i for i, t in enumerate(self.q) if t in tags], default=-1)
        if idx >= 0:
            self.A.wait(lgkm=len(self.q) - 1 - idx); del self.q[:idx+1]

RORD = ['A0', 'B0a', 'B0b', 'A1', 'B1a', 'B1b', 'A2', 'A3']
MORD = [(0, 0), (1, 0), (0, 1), (1, 1), (2, 0), (2, 1), (3, 0), (3, 1)]
def frag_read(A, st, kk, name):
    f = FSET[st]
    if name[0] == 'A':
        mt = int(name[1]); A.ds_read_b128(v(f+4*mt, 4), v(V_RA+kk), m=f'offset:{mt*4096}')
    else:
        nf, u = int(name[1]), 'ab'.index(name[2])
        A.ds_read_b64_tr_b16(v(f+16+4*nf+2*u, 2), v(V_RB), m=f'offset:{nf*16384 + kk*4096 + u*1024}')

def dma(A, i, asc):
    g, j = i // 4, i % 4
    if j == 0: A.s_add_u32('m0', s(G_M0), g*16384)
    if g == 0: A.buffer_load_dwordx4(v(V_DA+j), s(SRD_A, 4), s(G_SA), m=f'offen offset:{1024*j} {asc} lds')
    else: A.buffer_load_dwordx4(v(V_DB+j), s(SRD_B0 if g == 1 else SRD_B1, 4), s(G_SB0 if g == 1 else G_SB1), m=f'offen offset:{1024*j} lds')
XP = {}
def dma_advance(A):
    if not XP.get('nostep'):
        A.s_add_u32(s(G_SA), s(G_SA), s(G_ASTEP)); A.s_add_u32(s(G_SB0), s(G_SB0), s(G_BSTEP)); A.s_add_u32(s(G_SB1), s(G_SB1), s(G_BSTEP))
    A.s_add_u32(s(G_M0), s(G_M0), STG); A.s_cmp_ge_u32(s(G_M0), 3*STG); A.s_cselect_b32(s(G_T0), 3*STG, 0); A.s_sub_u32(s(G_M0), s(G_M0), s(G_T0))
    A.s_sub_u32(s(G_REM), s(G_REM), 1); A.s_cmp_gt_i32(s(G_REM), 0)
    for r_ in (SRD_A, SRD_B0, SRD_B1): A.s_cselect_b32(s(r_+2), s(r_+2), 0)

E_SC, E_EPI, E_CNT, G_HOOK = 16, 17, 19, 62
S_TICK, S_HST, S_NXT, S_RDY = 36, 37, 38, 39
def gemm_pro(A, lo, hi):
    asc = '' if XP.get('nosc') else 'sc1'
    if lo == 0: A.s_lshl_b32(s(G_M0), s(S_W), 12); A.s_mov_b32(s(G_REM), s(G_N)); A.s_mov_b32(s(G_BUF), 0)
    for i in range(lo, hi):
        dma(A, i % 12, asc)
        if i % 12 == 11: dma_advance(A)
def gemm_zero(A):
    for i in range(64): A.v_mov_b64(v(ACC+2*i, 2), 0)
def gemm_loop(A, swap, hook, ret):
    asc = '' if XP.get('nosc') else 'sc1'
    for n in RORD: frag_read(A, 0, 0, n)
    top = A.newlabel('gl'); A.label(top)
    q = LQ(A, [(0, n) for n in RORD])
    for kk in range(4):
        st = kk % 2
        f = FSET[st]
        nxt = [(1-st, (kk+1) % 4, n) for n in RORD]
        def rd(lst):
            for (s_, k_, n) in lst: frag_read(A, s_, k_, n); q.issue((s_, n))
        for i, (mt, nf) in enumerate(MORD):
            q.need([(st, f'A{mt}'), (st, f'B{nf}a'), (st, f'B{nf}b')])
            fa, fb = v(f+4*mt, 4), v(f+16+4*nf, 4)
            c = v(acc(mt, nf), 16)
            if swap: A.v_mfma_f32_32x32x16_bf16(c, fa, fb, c)
            else: A.v_mfma_f32_32x32x16_bf16(c, fb, fa, c)
            if kk < 3:
                if i == 0: rd(nxt[0:3])
                if i == 1: rd(nxt[3:6])
                if i == 2: rd(nxt[6:8])
                if i in (3, 5, 7): dma(A, 3 + 3*kk + (i-3)//2, asc)
                if kk == 2 and i == 7: pass
            else:
                if i == 0:
                    dma_advance(A)
                    A.s_add_u32(s(G_BUF), s(G_BUF), 1); A.s_cmp_eq_u32(s(G_BUF), 3)
                    A.s_mov_b32(s(G_DELTA), STG); A.s_cmov_b32(s(G_DELTA), -2*STG); A.s_cmov_b32(s(G_BUF), 0)
                if i == 1:
                    q.need([(st, n) for n in RORD])
                    A.wait(vm=12); A.s_barrier()
                    for r_ in (V_RA, V_RB): A.v_add_u32(v(r_), s(G_DELTA), v(r_))
                if i == 2: rd(nxt[0:3])
                if i == 3: rd(nxt[3:6])
                if i == 4:
                    rd(nxt[6:8])
                    for r_ in (V_RA+1, V_RA+2, V_RA+3): A.v_add_u32(v(r_), s(G_DELTA), v(r_))
                if i in (5, 6, 7): dma(A, i-5, asc)
    assert q.q == [(0, n) for n in RORD], q.q
    A.s_sub_u32(s(G_N), s(G_N), 1); A.s_cmp_eq_u32(s(G_N), s(G_HOOK)); A.s_cbranch_scc1(hook); A.label(ret)
    A.s_cmp_lg_u32(s(G_N), 0); A.s_cbranch_scc1(top)
    A.wait(lgkm=0)

def pack_ops(A, T):
    return [lambda i=i: A.v_cvt_pk_bf16_f32(v(T+i), v(T+2*i), v(T+2*i+1)) for i in range(8)]
def shuf32(A, T):
    return [lambda a_=a_: A.v_permlane32_swap_b32(v(T+a_), v(T+a_+2)) for a_ in (0, 1, 4, 5)]
def shuf16(A, T):
    return [lambda i=i: A.v_permlane16_swap_b32(v(T+i), v(T+4+i)) for i in range(4)]
def tile_stores(A, T, off, yoff, srd_, mods):
    def f():
        A.s_add_u32(s(G_T0), s(E_SC), hex(off)); A.s_add_u32(s(G_T1), s(E_SC), hex(off + yoff))
        A.buffer_store_dwordx4(v(T, 4), v(V_C), s(srd_, 4), s(G_T0), m='offen ' + mods)
        A.buffer_store_dwordx4(v(T+4, 4), v(V_C), s(srd_, 4), s(G_T1), m='offen ' + mods)
    return [f]
def epi_tiles(A, tiles, yoff, srd_, mods, pre=None):
    n = len(tiles)
    for k in range(n+2):
        ops = []
        if k < n: ops += (pre(k) if pre else []) + pack_ops(A, tiles[k][0])
        if 0 <= k-2 < n: ops += shuf16(A, tiles[k-2][0])
        if 0 <= k-1 < n: ops += shuf32(A, tiles[k-1][0])
        if 0 <= k-2 < n: ops += tile_stores(A, tiles[k-2][0], tiles[k-2][1], yoff, srd_, mods)
        for f in ops: f()

def epi_native(A, tiles, pre=None):
    A.v_lshlrev_b32(v(V_C), 4, v(V_LANE))
    n = len(tiles)
    for k in range(n+1):
        ops = []
        if k < n: ops += (pre(k) if pre else []) + pack_ops(A, tiles[k][0])
        if k >= 1:
            T, off = tiles[k-1]
            ops += shuf32(A, T)
            ops.append(lambda off=off: A.s_add_u32(s(G_T0), s(E_SC), hex(off)))
            for hh in range(2): ops.append(lambda T=T, hh=hh: A.buffer_store_dwordx4(v(T+4*hh, 4), v(V_C), s(S_WS, 4), s(G_T0), m=f'offen offset:{1024*hh} sc1'))
        for f in ops: f()
ALLT = [(mt, nf) for mt in range(4) for nf in range(2)]
def epi_q(A): epi_native(A, [(acc(mt, nf), mt*262144 + nf*8192) for mt, nf in ALLT])
def chunk128(A):
    L, T0, T1 = V_LANE, V_T, V_T+1
    A.v_bfe_u32(v(T0), v(L), 4, 1); A.v_lshlrev_b32(v(T0), 8, v(T0)); A.v_lshrrev_b32(v(T1), 5, v(L)); A.v_lshl_add_u32(v(T0), v(T1), 7, v(T0))
def epi_vt(A):
    L, T0, T1 = V_LANE, V_T, V_T+1
    chunk128(A)
    A.v_bfe_u32(v(T1), v(L), 3, 1); A.v_lshl_add_u32(v(T0), v(T1), 9, v(T0))
    A.v_and_b32(v(T1), 7, v(L)); A.v_lshl_add_u32(v(V_C), v(T1), 4, v(T0))
    epi_tiles(A, [(acc(mt, nf), mt*262144 + nf*8192) for mt, nf in ALLT], 1024, S_WS, 'sc1')
def epi_k(A):
    L, T0, T1 = V_LANE, V_T, V_T+1
    chunk128(A)
    A.v_bfe_u32(v(T1), v(L), 2, 1); A.v_lshl_add_u32(v(T0), v(T1), 10, v(T0))
    A.v_bfe_u32(v(T1), v(L), 3, 1); A.v_lshl_add_u32(v(T0), v(T1), 6, v(T0))
    A.v_and_b32(v(T1), 3, v(L)); A.v_lshl_add_u32(v(V_C), v(T1), 4, v(T0))
    epi_tiles(A, [(acc(mt, nf), mt*262144 + nf*8192) for mt, nf in ALLT], 512, S_WS, 'sc1')
def epi_gu(A):
    A.s_mov_b32(s(G_T2), '0xbfb8aa3b'); A.s_mov_b32(s(G_T3), '0xbfb8aa3b')
    E = 32
    def pre(k):
        g, u = acc(k, 0), acc(k, 1)
        ops = [lambda i=i: A.v_pk_mul_f32(v(E+2*i, 2), v(g+2*i, 2), s(G_T2, 2)) for i in range(8)]
        ops += [lambda i=i: A.v_exp_f32(v(E+i), v(E+i)) for i in range(16)]
        ops += [lambda i=i: A.v_pk_mul_f32(v(g+2*i, 2), v(g+2*i, 2), v(u+2*i, 2)) for i in range(8)]
        ops += [lambda i=i: A.v_pk_add_f32(v(E+2*i, 2), v(E+2*i, 2), 1.0, m='op_sel_hi:[1,0]') for i in range(8)]
        ops += [lambda i=i: A.v_rcp_f32(v(E+i), v(E+i)) for i in range(16)]
        ops += [lambda i=i: A.v_pk_mul_f32(v(g+2*i, 2), v(g+2*i, 2), v(E+2*i, 2)) for i in range(8)]
        return ops
    epi_native(A, [(acc(mt, 0), mt*32*7168) for mt in range(4)], pre)
def epi_dn(A):
    A.v_lshlrev_b32(v(V_C), 4, v(V_LANE))
    for k, (mt, nf) in enumerate(ALLT):
        T = acc(mt, nf)
        for f in pack_ops(A, T): f()
        if k % 2 == 0: A.s_add_u32(s(G_T0), s(E_SC), k*2048)
        for hh in range(2):
            A.buffer_store_dwordx4(v(T+4*hh, 4), v(V_C), s(S_WS, 4), s(G_T0), m=f'offen offset:{(k % 2)*2048 + hh*1024} sc1')
def epi_op_loads(A):
    A.v_lshlrev_b32(v(V_T), 4, v(V_LANE)); A.v_and_b32(v(V_T+1), 31, v(V_LANE)); A.v_lshlrev_b32(v(V_T+1), 2, v(V_T+1))
    for mt in range(4): A.buffer_load_dword(v(24+mt), v(V_T+1), s(S_WS, 4), s(G_T3), m=f'offen offset:{mt*128} sc1')
    for k in range(8):
        if k % 2 == 0 and k: A.s_add_u32(s(G_T2), s(G_T2), 4096)
        for hh in range(2):
            A.buffer_load_dwordx4(v(32+8*k+4*hh, 4), v(V_T), s(S_WS, 4), s(G_T2), m=f'offen offset:{(k % 2)*2048 + hh*1024} sc1')
def epi_op(A):
    store_lane(A, stride_shift=11)
    E = 96
    A.wait(vm=0)
    def pre(k):
        mt, T, B = k // 2, ACC + 16*k, 32 + 8*k
        ops = []
        for i in range(8):
            ops.append(lambda i=i: A.v_lshlrev_b32(v(E+2*i), 16, v(B+i)))
            ops.append(lambda i=i: A.v_and_b32(v(E+2*i+1), '0xffff0000', v(B+i)))
        ops += [lambda i=i: A.v_pk_add_f32(v(T+2*i, 2), v(T+2*i, 2), v(E+2*i, 2), m='neg_lo:[0,1] neg_hi:[0,1]') for i in range(8)]
        sel = 'op_sel:[0,1,0] op_sel_hi:[1,1,1]' if mt % 2 else 'op_sel_hi:[1,0,1]'
        ops += [lambda i=i: A.v_pk_fma_f32(v(T+2*i, 2), v(T+2*i, 2), v(24 + (mt & 2), 2), v(E+2*i, 2), m=sel) for i in range(8)]
        return ops
    epi_tiles(A, [(acc(mt, nf), mt*32*2048 + nf*256) for mt, nf in ALLT], 16*2048, SRD_C, '', pre)
```

```python
import sys
from asmlib import *
from layout import *
import chain
from chain import S_WS, S_DBG, S_X, S_H, S_W, S_TO, ptr, srd, load_ptrs, chain_setup, chain_loop
from gemm import *
from tasks import *

C0, C1, C2, C3, C4, C5 = 94, 95, 96, 97, 98, 99
CV = 120
K_EXIT, K_FB = 0xFFFF, 0x10000
POISON = 16
S0 = 48
NG = 2
def order():
    nop = S0 // 4
    return [('KV', 0, 16), ('GU', 0, 16), ('DN', 0, 2), ('Q', 0, 8), ('AT', 0, 4), ('OP', 0, 1), ('AT', 4, S0//8 - 4), ('OP', 1, 1), ('AT', S0//8, 8 - S0//8), ('OPS', 0, NG)]
OPTS = set()

def header(launch_lines):
    ref = open('cdna_kernels/%s.s.ref' % KNAME).read().split('\n')
    hd = [l for l in ref if l.startswith(';') and '@launch' not in l]
    return '\n'.join(hd + launch_lines) + '\n.amdgcn_target "amdgcn-amd-amdhsa--gfx950"\n.text\n'
def kernel_wrap(name, body, vgpr=512, accum=256):
    return (f".globl {name}\n.p2align 8\n.type {name},@function\n{name}:\n" + body,
            f".p2align 6\n.amdhsa_kernel {name}\n  .amdhsa_next_free_vgpr {vgpr}\n  .amdhsa_next_free_sgpr 102\n  .amdhsa_accum_offset {accum}\n"
            f"  .amdhsa_group_segment_fixed_size 0\n  .amdhsa_kernarg_size 120\n  .amdhsa_user_sgpr_count 2\n  .amdhsa_user_sgpr_kernarg_segment_ptr 1\n"
            f"  .amdhsa_system_sgpr_workgroup_id_x 1\n.end_amdhsa_kernel\n")

def stamp(A, d):
    if 'log' in OPTS:
        A.s_memrealtime(s(12, 2)); A.wait(lgkm=0); A.s_mov_b32(s(d), s(12))
        if d in (22, 23):
            A.s_memtime(s(12, 2)); A.wait(lgkm=0)
            if d == 22: A.s_mov_b32(s(100), s(12))
            else: A.s_sub_u32(s(101), s(12), s(100))
S_WG = 63
def rts(A, k):
    if 'log' in OPTS:
        A.s_memrealtime(s(C4, 2)); A.wait(lgkm=0); A.v_mov_b32(v(CV), s(C4)); A.v_mov_b32(v(CV+1), 0); A.s_mov_b64('exec', 1)
        A.buffer_store_dword(v(CV), v(CV+1), s(S_WS, 4), s(S_WG), m=f'offen offset:{4*k}'); A.s_mov_b64('exec', -1)
def only_w0(A):
    sk = A.newlabel('w0'); A.s_cmp_lg_u32(s(S_W), 0); A.s_cbranch_scc1(sk); return sk
def dbg_atomic(A, dw, soff=0, ret=True, val=1):
    A.v_mov_b32(v(CV), val); A.v_mov_b32(v(CV+1), 0)
    A.s_mov_b64('exec', 1)
    A.buffer_atomic_add(v(CV), v(CV+1), s(S_DBG, 4), soff, m=f'offen offset:{dw*4} ' + ('sc0 sc1' if ret else 'sc1'))
    A.s_mov_b64('exec', -1)
    if ret: A.wait(vm=0); A.v_readfirstlane_b32(s(C0), v(CV))
def bcast(A, sk, tail=True):
    A.v_mov_b32(v(CV), s(C0)); A.v_mov_b32(v(CV+1), L_MISC)
    A.ds_write_b32(v(CV+1), v(CV)); A.wait(lgkm=0)
    A.label(sk)
    A.s_barrier()
    A.v_mov_b32(v(CV+1), L_MISC); A.ds_read_b32(v(CV), v(CV+1)); A.wait(lgkm=0)
    A.v_readfirstlane_b32(s(C0), v(CV))
    if tail: A.s_barrier()
def guard(A, retry, out):
    A.s_sub_u32(s(S_TO), s(S_TO), 1); A.s_cbranch_scc0(retry)
    A.v_mov_b32(v(CV), '0xdead'); A.v_mov_b32(v(CV+1), 0)
    A.buffer_store_dword(v(CV), v(CV+1), s(S_DBG, 4), 0, m=f'offen offset:{D_ABORT*4} sc1')
    A.s_mov_b32(s(S_TO), 0); A.s_mov_b32(s(C0), K_EXIT); A.s_branch(out)
def ensure_init(A, out):
    ok, lp = A.newlabel('ini'), A.newlabel('inl')
    A.s_bitcmp1_b32(s(S_INIT), 0); A.s_cbranch_scc1(ok)
    A.v_mov_b32(v(CV+1), 0)
    A.label(lp)
    A.buffer_load_dword(v(CV), v(CV+1), s(S_DBG, 4), 0, m=f'offen offset:{D_INIT*4} sc1')
    A.wait(vm=0); A.v_readfirstlane_b32(s(C1), v(CV)); A.s_or_b32(s(S_INIT), s(S_INIT), s(C1))
    A.s_bitcmp1_b32(s(S_INIT), 0); A.s_cbranch_scc1(ok)
    A.s_sleep(2)
    guard(A, lp, out)
    A.label(ok)
def take_fb(A, out, cont):
    dbg_atomic(A, D_FBT)
    A.s_or_b32(s(S_INIT), s(S_INIT), 2)
    A.s_cmp_ge_u32(s(C0), 64); A.s_cbranch_scc1(cont)
    A.s_or_b32(s(C0), s(C0), K_FB); A.s_branch(out)
def settled(A, r_):
    A.s_and_b32(s(C0), s(r_), 0x100ff); A.s_cmp_eq_u32(s(C0), 65); A.s_cselect_b32(s(C0), 2, 0); A.s_or_b32(s(S_INIT), s(S_INIT), s(C0))
def dep_wait(A, setup, special):
    sk = only_w0(A)
    out, lp, sl = A.newlabel('dwo'), A.newlabel('dwl'), A.newlabel('dws')
    ensure_init(A, out)
    setup()
    A.v_mov_b32(v(CV+6), 0)
    A.label(lp)
    nr = A.newlabel('dwn')
    A.buffer_load_dword(v(CV+4), v(CV+2), s(S_WS, 4), 0, m='offen sc1')
    A.s_bitcmp1_b32(s(S_INIT), 1); A.s_cbranch_scc1(nr)
    A.buffer_load_dword(v(CV+5), v(CV+6), s(S_DBG, 4), 0, m=f'offen offset:{D_READY*4} sc1')
    A.label(nr)
    A.wait(vm=0)
    A.s_mov_b32(s(C0), 0)
    A.v_cmp_lt_u32('vcc', v(CV+4), v(CV+3)); A.s_cbranch_vccz(out)
    A.s_bitcmp1_b32(s(S_INIT), 1); A.s_cbranch_scc1(sl)
    A.v_readfirstlane_b32(s(C1), v(CV+5))
    settled(A, C1)
    A.s_bitcmp0_b32(s(C1), POISON); A.s_cbranch_scc1(sl)
    take_fb(A, out, sl)
    A.label(sl)
    A.s_sleep(4)
    guard(A, lp, out)
    A.label(out)
    bcast(A, sk)
    A.s_cmp_lg_u32(s(C0), 0); A.s_cbranch_scc1(special)
def cnt_addr(t): return WS_CTL + C_CNT + t*2048
def dep_cnt(A, t, target):
    def f():
        A.s_lshl_b32(s(C2), s(G_MB), 7); A.s_add_u32(s(C2), s(C2), cnt_addr(t))
        A.v_mov_b32(v(CV+2), s(C2)); A.v_mov_b32(v(CV+3), target)
    return f

def status_ld(A):
    A.s_lshl_b32(s(C1), s(S_XCC), 2); A.v_mov_b32(v(CV+1), 0)
    A.s_mov_b64('exec', 1)
    A.buffer_load_dwordx4(v(CV+4, 4), v(CV+1), s(S_DBG, 4), 0, m=f'offen offset:{D_READY*4} sc1').nochk = True
    A.buffer_load_dword(v(CV+2), v(CV+1), s(S_DBG, 4), s(C1), m=f'offen offset:{D_LH*4} sc1').nochk = True
    A.s_mov_b64('exec', -1)
def status_rd(A):
    A.v_readfirstlane_b32(s(C5), v(CV+4)); A.v_readfirstlane_b32(s(C1), v(CV+7)); A.v_readfirstlane_b32(s(C0), v(CV+2))
    A.s_or_b32(s(S_INIT), s(S_INIT), s(C1))
    A.s_cmp_ge_u32(s(C0), 32); A.s_cselect_b32(s(C0), 16, 0); A.s_or_b32(s(S_INIT), s(S_INIT), s(C0))
    settled(A, C5)
def ticket(A):
    A.s_lshl_b32(s(C1), s(S_XCC), 7); A.s_add_u32(s(C1), s(C1), WS_CTL + C_HEAD)
    A.v_mov_b32(v(CV), 1); A.v_mov_b32(v(CV+1), 0)
    A.s_mov_b64('exec', 1)
    A.buffer_atomic_add(v(CV), v(CV+1), s(S_WS, 4), s(C1), m='offen sc0 sc1').nochk = True
    A.s_mov_b64('exec', -1)
def tab_addr(A):
    A.s_lshl_b32(s(C4), s(S_XCC), 7); A.s_add_u32(s(C4), s(C4), s(C3)); A.s_lshl_b32(s(C4), s(C4), 2); A.s_add_u32(s(C4), s(C4), WS_CTL + C_TAB)
def ws_srd(A, d):
    A.s_mov_b32(s(d), s(ptr(P_WS))); A.s_mov_b32(s(d+1), s(ptr(P_WS)+1)); A.s_mov_b32(s(d+2), hex(WS_SIZE)); A.s_mov_b32(s(d+3), '0x20000')

def build():
    A = Asm()
    END, NEXT, DECODE, SPECIAL, DONE, CABORT = '.end', '.next', '.decode', '.special', '.done', '.cabort'
    GEMM, GEMMV, CHAINP, CHAINF, CDONE = '.gemm', '.gemmv', '.chainp', '.chainf', '.cdone'
    A.s_cmp_ge_u32(s(2), 256); A.s_cbranch_scc1('.end0')
    load_ptrs(A)
    if 'log' in OPTS: A.s_lshl_b32(s(S_WG), s(2), 6); A.s_add_u32(s(S_WG), s(S_WG), WS_TIM + 0x10000)
    A.v_lshrrev_b32(v(1), 6, v(0)); A.v_readfirstlane_b32(s(S_W), v(1))
    A.s_getreg_b32(s(S_XCC), 'hwreg(HW_REG_XCC_ID, 0, 3)')
    A.s_mov_b32(s(S_TO), 1 << 17); A.s_mov_b32(s(S_INIT), 0); A.s_mov_b32(s(S_TASK), -1)
    A.wait(lgkm=0)
    srd(A, S_WS, P_WS, WS_SIZE); srd(A, S_DBG, P_DBG, 256)
    if 'tim' in OPTS: A.s_memtime(s(100, 2))
    rts(A, 0)
    if 'nochain' not in OPTS:
        A.s_cmp_gt_u32(s(S_XCC), 0 if 'forcefb' in OPTS else 1); A.s_cbranch_scc1(NEXT)
        sk = only_w0(A)
        A.s_lshl_b32(s(C1), s(S_XCC), 2)
        dbg_atomic(A, D_CNT0, s(C1))
        bcast(A, sk)
        A.s_cmp_lt_u32(s(C0), 32); A.s_cbranch_scc1(CHAINP)
    A.label(NEXT)
    if 'chainonly' in OPTS: A.s_branch(END)
    A.s_sub_u32(s(S_TO), s(S_TO), 32); A.s_cbranch_scc1(END)
    if 'log' in OPTS:
        nl = A.newlabel('nl')
        A.s_cmp_lg_u32(s(S_W), 0); A.s_cbranch_scc1(nl)
        A.s_cmp_ge_u32(s(S_TASK), 2048); A.s_cbranch_scc1(nl)
        A.s_memrealtime(s(C0, 2)); A.wait(lgkm=0)
        A.v_mov_b32(v(CV+4), s(21)); A.v_mov_b32(v(CV+5), s(22)); A.v_mov_b32(v(CV+6), s(23)); A.v_mov_b32(v(CV+7), s(C0))
        A.v_mov_b32(v(CV), s(S_XCC)); A.v_mov_b32(v(CV+1), s(14)); A.v_mov_b32(v(CV+2), s(15)); A.v_mov_b32(v(CV+3), s(101)); A.v_mov_b32(v(112), 0)
        A.s_lshl_b32(s(C0), s(S_TASK), 5); A.s_add_u32(s(C0), s(C0), WS_TIM)
        A.s_mov_b64('exec', 1)
        A.buffer_store_dwordx4(v(CV+4, 4), v(112), s(S_WS, 4), s(C0), m='offen')
        A.buffer_store_dwordx4(v(CV, 4), v(112), s(S_WS, 4), s(C0), m='offen offset:16')
        A.s_mov_b64('exec', -1)
        A.label(nl)
        stamp(A, 14)
    sk = only_w0(A)
    out, lead, got, lp = A.newlabel('dqo'), A.newlabel('dqlead'), A.newlabel('dqgot'), A.newlabel('dql')
    pre, tk, t2, t3 = A.newlabel('dqp'), A.newlabel('dqt'), A.newlabel('dqs'), A.newlabel('dqu')
    A.s_bitcmp1_b32(s(S_INIT), 2); A.s_cbranch_scc1(pre)
    A.s_bitcmp1_b32(s(S_INIT), 4); A.s_cbranch_scc1(t2)
    A.s_lshl_b32(s(C1), s(S_XCC), 2)
    A.v_mov_b32(v(CV), 1); A.v_mov_b32(v(CV+1), 0)
    A.s_mov_b64('exec', 1)
    A.buffer_atomic_add(v(CV), v(CV+1), s(S_DBG, 4), s(C1), m=f'offen offset:{D_LH*4} sc0 sc1')
    status_ld(A)
    A.wait(vm=0)
    status_rd(A)
    A.v_readfirstlane_b32(s(C2), v(CV))
    A.s_cmp_lt_u32(s(C2), 32); A.s_cbranch_scc1(tk)
    A.label(t2)
    ensure_init(A, out)
    ticket(A)
    A.s_mov_b32(s(C5), 0)
    A.s_bitcmp1_b32(s(S_INIT), 1); A.s_cbranch_scc1(t3)
    status_ld(A); A.wait(vm=0); status_rd(A)
    A.label(t3)
    A.wait(vm=0)
    A.v_readfirstlane_b32(s(C2), v(CV)); A.s_add_u32(s(C2), s(C2), 32)
    A.label(tk)
    A.s_lshr_b32(s(C3), s(C2), 5); A.s_and_b32(s(C2), s(C2), 31)
    A.s_mov_b32(s(C0), K_EXIT); A.s_cmp_ge_u32(s(C3), 128); A.s_cbranch_scc1(out)
    tab_addr(A)
    A.s_bitcmp1_b32(s(S_INIT), 2); A.s_bitset0_b32(s(S_INIT), 2); A.s_cselect_b32(s(C1), 1, s(C2))
    A.s_cmp_eq_u32(s(C1), 0); A.s_cbranch_scc1(lead)
    A.v_mov_b32(v(CV+1), 0)
    A.label(lp)
    l0, l1 = A.newlabel('dq0'), A.newlabel('dq1')
    A.s_cmp_eq_u32(s(C3), 0); A.s_cbranch_scc1(l0)
    A.buffer_load_dword(v(CV), v(CV+1), s(S_WS, 4), s(C4), m='offen sc1'); A.s_branch(l1)
    A.label(l0)
    A.s_lshl_b32(s(C1), s(S_XCC), 2)
    A.buffer_load_dword(v(CV), v(CV+1), s(S_DBG, 4), s(C1), m=f'offen offset:{D_SLOT0*4} sc1')
    A.label(l1)
    A.wait(vm=0); A.v_readfirstlane_b32(s(C0), v(CV))
    A.s_sub_u32(s(C0), s(C0), 1); A.s_cbranch_scc0(got)
    guard(A, lp, out)
    A.label(pre)
    A.s_mov_b32(s(C2), s(S_TICK)); A.s_mov_b32(s(C5), s(S_RDY))
    A.s_sub_u32(s(C0), s(S_NXT), 1); A.s_cbranch_scc1(tk)
    A.s_bitset0_b32(s(S_INIT), 2); A.s_and_b32(s(C2), s(C2), 31); A.s_branch(got)
    A.label(lead)
    dbg_atomic(A, D_GHEAD)
    A.s_add_u32(s(C1), s(C0), 1); A.v_mov_b32(v(CV), s(C1))
    l0 = A.newlabel('dq0')
    A.s_mov_b64('exec', 1)
    A.s_cmp_eq_u32(s(C3), 0); A.s_cbranch_scc1(l0)
    A.buffer_store_dword(v(CV), v(CV+1), s(S_WS, 4), s(C4), m='offen sc1'); A.s_mov_b64('exec', -1); A.s_branch(got)
    A.label(l0)
    A.s_lshl_b32(s(C1), s(S_XCC), 2)
    A.buffer_store_dword(v(CV), v(CV+1), s(S_DBG, 4), s(C1), m=f'offen offset:{D_SLOT0*4} sc1'); A.s_mov_b64('exec', -1)
    A.label(got)
    A.s_min_u32(s(C0), s(C0), 1023)
    A.s_lshl_b32(s(C0), s(C0), 5); A.s_or_b32(s(C0), s(C0), s(C2))
    A.s_bitcmp0_b32(s(C5), POISON); A.s_cbranch_scc1(out)
    A.s_bitcmp1_b32(s(S_INIT), 1); A.s_cbranch_scc1(out)
    A.s_cmp_lt_u32(s(C0), 16*32); A.s_cbranch_scc1(out)
    A.s_mov_b32(s(C5), s(C0))
    back = A.newlabel('dqb')
    dbg_atomic(A, D_FBT)
    A.s_or_b32(s(S_INIT), s(S_INIT), 2)
    A.s_cmp_ge_u32(s(C0), 64); A.s_cbranch_scc1(back)
    A.s_lshl_b32(s(C0), s(C0), 17); A.s_or_b32(s(C0), s(C0), K_FB); A.s_or_b32(s(C0), s(C0), s(C5)); A.s_branch(out)
    A.label(back); A.s_mov_b32(s(C0), s(C5))
    A.label(out)
    bcast(A, sk)
    A.s_and_b32(s(S_TASK), s(C0), 0xFFFF)
    dec0 = A.newlabel('dec0')
    A.s_bitcmp0_b32(s(C0), 16); A.s_cbranch_scc1(DECODE)
    A.s_lshr_b32(s(C0), s(C0), 17); A.s_branch(CHAINF)
    A.label(SPECIAL)
    A.s_bitcmp0_b32(s(C0), 16); A.s_cbranch_scc1(END)
    A.s_and_b32(s(C0), s(C0), 63); A.s_branch(CHAINF)
    A.label(DECODE)
    stamp(A, 21); stamp(A, 22); stamp(A, 23); stamp(A, 15)
    A.s_lshr_b32(s(C0), s(S_TASK), 5); A.s_and_b32(s(C1), s(S_TASK), 31)
    TL = {n: A.newlabel('t' + n) for n in ('KV', 'GU', 'DN', 'Q', 'AT', 'OP', 'OPS')}
    tKV, tGU, tDN, tQ, tAT, tOP, tOPS = TL.values()
    pos = 0
    A.s_mov_b32(s(C2), s(C0))
    for ty, first, cnt in order():
        if not cnt: continue
        A.s_sub_u32(s(C0), s(C2), pos - first)
        pos += cnt
        A.s_cmp_lt_u32(s(C2), pos); A.s_cbranch_scc1(TL[ty])
    A.label(END)
    rts(A, 5); A.wait(vm=0)
    if 'tim' in OPTS:
        A.s_memtime(s(C0, 2)); A.wait(lgkm=0); A.s_sub_u32(s(C0), s(C0), s(100))
        A.v_mov_b32(v(CV), s(C0)); A.v_mov_b32(v(CV+1), 0); A.s_mov_b64('exec', 1)
        A.buffer_atomic_umax(v(CV), v(CV+1), s(S_DBG, 4), 0, m=f'offen offset:{28 if "timd" in OPTS else 128} sc1'); A.wait(vm=0)
    A.label('.end0')
    A.s_endpgm()

    def x_operand():
        srd(A, SRD_A, P_X, 2048*2048); A.s_lshl_b32(s(G_SA), s(G_MB), 18); A.s_mov_b32(s(G_STA), 2048); A.s_mov_b32(s(G_N), 16); A.s_mov_b32(s(G_ASTEP), 128)
    def b_operand(p, nbytes, stride, ntreg):
        srd(A, SRD_B0, p, nbytes); srd(A, SRD_B1, p, nbytes)
        A.s_lshl_b32(s(G_SB0), s(ntreg), 9); A.s_add_u32(s(G_SB1), s(G_SB0), 256)
        A.s_mov_b32(s(G_STB), stride); A.s_mov_b32(s(G_BSTEP), 64*stride)
    def set_cnt(t): A.s_lshl_b32(s(G_CNT), s(G_MB), 7); A.s_add_u32(s(G_CNT), s(G_CNT), cnt_addr(t))
    def mb_nt(qshift, mul):
        A.s_lshr_b32(s(G_MB), s(C0), qshift); A.s_lshl_b32(s(G_MB), s(G_MB), 2); A.s_and_b32(s(C2), s(C1), 3); A.s_add_u32(s(G_MB), s(G_MB), s(C2))
        A.s_and_b32(s(C3), s(C0), (1 << qshift) - 1); A.s_mul_i32(s(G_NT), s(C3), mul); A.s_lshr_b32(s(C2), s(C1), 2); A.s_add_u32(s(G_NT), s(G_NT), s(C2))
    A.label(tKV)
    noz = A.newlabel('noz')
    A.s_cmp_lg_u32(s(S_TASK), 0); A.s_cbranch_scc1(noz)
    lane_id(A, CV); A.s_lshl_b32(s(C2), s(S_W), 10); A.v_lshlrev_b32(v(CV), 4, v(CV)); A.v_add_u32(v(CV), s(C2), v(CV))
    A.v_mov_b64(v(CV+4, 2), 0); A.v_mov_b64(v(CV+6, 2), 0)
    for i in range(CTL_BYTES // 4096):
        A.s_mov_b32(s(C2), WS_CTL + i*4096)
        A.buffer_store_dwordx4(v(CV+4, 4), v(CV), s(S_WS, 4), s(C2), m='offen sc1')
    if 'nochain' in OPTS:
        A.wait(vm=0); A.s_barrier()
        A.v_mov_b32(v(CV+4), 64); A.v_lshlrev_b32(v(CV), 3, v(CV)); A.s_mov_b32(s(C2), WS_CTL + C_PROG)
        q = only_w0(A)
        A.buffer_store_dword(v(CV+4), v(CV), s(S_WS, 4), s(C2), m='offen sc1')
        A.label(q)
    A.wait(vm=0); A.s_barrier()
    q = only_w0(A); dbg_atomic(A, D_INIT, ret=False); A.label(q)
    A.label(noz)
    mb_nt(2, 8); x_operand(); set_cnt(T_KV)
    tV = A.newlabel('tv')
    A.s_cmp_ge_u32(s(G_NT), 16); A.s_cbranch_scc1(tV)
    def kv_base(base):
        A.s_lshl_b32(s(G_SC), s(G_MB), 20); A.s_lshl_b32(s(C2), s(G_NT), 14); A.s_add_u32(s(G_SC), s(G_SC), s(C2))
        A.s_lshl_b32(s(C2), s(S_W), 11); A.s_add_u32(s(G_SC), s(G_SC), s(C2)); A.s_add_u32(s(G_SC), s(G_SC), base)
    b_operand(P_WK, 1024*8192, 8192, G_NT); kv_base(WS_KX); A.s_mov_b32(s(G_EPI), 1); A.s_branch(GEMM)
    A.label(tV)
    A.s_sub_u32(s(G_NT), s(G_NT), 16)
    b_operand(P_WV, 1024*8192, 8192, G_NT)
    kv_base(WS_VT)
    A.s_and_b32(s(G_EPI), s(G_N), 0); A.s_add_u32(s(G_EPI), s(G_EPI), 5); A.s_branch(GEMM)
    A.label(tQ)
    mb_nt(1, 8); x_operand(); set_cnt(T_Q)
    b_operand(P_WQ, 1024*8192, 8192, G_NT); kv_base(WS_QX); A.s_mov_b32(s(G_EPI), 0); A.s_branch(GEMM)
    A.label(tGU)
    tG = A.newlabel('tg')
    mb_nt(2, 7)
    A.s_cmp_ge_u32(s(C1), 28); A.s_cbranch_scc1(tG)
    x_operand(); set_cnt(T_GU)
    srd(A, SRD_B0, P_WG, 1024*7168); srd(A, SRD_B1, P_WU, 1024*7168)
    A.s_lshl_b32(s(G_SB0), s(G_NT), 8); A.s_mov_b32(s(G_SB1), s(G_SB0)); A.s_mov_b32(s(G_STB), 7168); A.s_mov_b32(s(G_BSTEP), 64*7168)
    A.s_mul_i32(s(G_SC), s(G_MB), 128*7168); A.s_lshl_b32(s(C2), s(G_NT), 13); A.s_add_u32(s(G_SC), s(G_SC), s(C2))
    A.s_lshl_b32(s(C2), s(S_W), 11); A.s_add_u32(s(G_SC), s(G_SC), s(C2)); A.s_add_u32(s(G_SC), s(G_SC), WS_H)
    A.s_mov_b32(s(G_EPI), 2); A.s_branch(GEMM)
    A.label(tG)
    A.s_cmp_lg_u32(s(C3), 0); A.s_cbranch_scc1(NEXT)
    set_cnt(T_DN); task_g(A); A.s_branch(DONE)
    A.label(tDN)
    A.s_lshl_b32(s(G_MB), s(C0), 3); A.s_and_b32(s(C2), s(C1), 7); A.s_add_u32(s(G_MB), s(G_MB), s(C2))
    A.s_lshr_b32(s(G_NT), s(C1), 3)
    dep_wait(A, dep_cnt(A, T_GU, 28), SPECIAL)
    set_cnt(T_DN)
    ws_srd(A, SRD_A); A.s_mul_i32(s(G_SA), s(G_MB), 128*7168); A.s_add_u32(s(G_SA), s(G_SA), WS_H); A.s_mov_b32(s(G_STA), 32*7168); A.s_mov_b32(s(G_N), 56); A.s_mov_b32(s(G_ASTEP), 4096)
    b_operand(P_WD, 3584*2048, 2048, G_NT)
    A.s_lshl_b32(s(G_SC), s(G_MB), 2); A.s_add_u32(s(G_SC), s(G_SC), s(G_NT)); A.s_lshl_b32(s(G_SC), s(G_SC), 2); A.s_add_u32(s(G_SC), s(G_SC), s(S_W))
    A.s_lshl_b32(s(G_SC), s(G_SC), 14); A.s_add_u32(s(G_SC), s(G_SC), WS_B)
    A.s_mov_b32(s(G_EPI), 3); A.s_branch(GEMM)
    A.label(tAT)
    A.s_lshl_b32(s(G_MB), s(C0), 3); A.s_lshr_b32(s(C2), s(C1), 2); A.s_add_u32(s(G_MB), s(G_MB), s(C2)); A.s_and_b32(s(G_NT), s(C1), 3)
    set_cnt(T_AT)
    def d_kvq():
        A.s_lshr_b32(s(C2), s(G_MB), 2); A.s_lshl_b32(s(C2), s(C2), 7); A.s_add_u32(s(C2), s(C2), cnt_addr(T_KV))
        lane_id(A, CV+3); A.v_and_b32(v(CV+3), 1, v(CV+3))
        A.v_lshlrev_b32(v(CV+2), 11, v(CV+3)); A.v_add_u32(v(CV+2), s(C2), v(CV+2))
        A.v_lshlrev_b32(v(CV+3), 4, v(CV+3)); A.v_sub_u32(v(CV+3), 32, v(CV+3))
        assert T_Q == T_KV + 1
    dep_wait(A, d_kvq, SPECIAL)
    stamp(A, 22); task_at_pre(A)
    def d_prog():
        lane_id(A, CV+3)
        A.v_and_b32(v(CV+2), 1, v(CV+3)); A.v_lshlrev_b32(v(CV+2), 12, v(CV+2))
        A.v_bfe_u32(v(CV+3), v(CV+3), 1, 3); A.v_lshl_add_u32(v(CV+2), v(CV+3), 7, v(CV+2))
        A.s_lshl_b32(s(C2), s(G_NT), 10); A.s_add_u32(s(C2), s(C2), WS_CTL + C_PROG); A.v_add_u32(v(CV+2), s(C2), v(CV+2))
        A.s_add_u32(s(C2), s(G_MB), 1); A.v_mov_b32(v(CV+3), s(C2))
    dep_wait(A, d_prog, SPECIAL)
    stamp(A, 23); task_at_post(A); stamp(A, 15); A.s_branch(DONE)
    A.label(tOPS)
    A.s_mov_b32(s(G_NT), s(C1)); A.s_add_u32(s(G_MB), s(C0), S0)
    task_ops_pre(A)
    stamp(A, 22)
    opl = A.newlabel('opsl'); A.label(opl)
    def d_ops():
        lane_id(A, CV+3); A.v_and_b32(v(CV+3), 1, v(CV+3))
        A.s_lshl_b32(s(C2), s(G_MB), 7); A.s_add_u32(s(C2), s(C2), cnt_addr(T_AT))
        A.s_lshr_b32(s(C3), s(G_MB), 2); A.s_lshl_b32(s(C3), s(C3), 7); A.s_add_u32(s(C3), s(C3), cnt_addr(T_DN)); A.s_sub_u32(s(C3), s(C2), s(C3))
        A.v_mul_u32_u24(v(CV+2), s(C3), v(CV+3)); A.v_sub_u32(v(CV+2), s(C2), v(CV+2))
        A.v_add_u32(v(CV+3), 4, v(CV+3))
    dep_wait(A, d_ops, SPECIAL)
    stamp(A, 23)
    task_ops_seg(A)
    A.s_add_u32(s(G_MB), s(G_MB), NG); A.s_cmp_lt_u32(s(G_MB), 64); A.s_cbranch_scc1(opl)
    stamp(A, 15)
    A.wait(vm=0); A.s_branch(NEXT)
    A.label(tOP)
    A.s_lshl_b32(s(G_MB), s(C0), 3); A.s_lshr_b32(s(C2), s(C1), 2); A.s_add_u32(s(G_MB), s(G_MB), s(C2)); A.s_and_b32(s(G_NT), s(C1), 3)
    A.s_cmp_ge_u32(s(G_MB), S0 // 4); A.s_cbranch_scc1(NEXT)
    def d_at():
        lane_id(A, CV+3); A.v_and_b32(v(CV+3), 3, v(CV+3))
        A.s_lshl_b32(s(C2), s(G_MB), 9); A.s_add_u32(s(C2), s(C2), cnt_addr(T_AT))
        A.v_lshlrev_b32(v(CV+2), 7, v(CV+3)); A.v_add_u32(v(CV+2), s(C2), v(CV+2)); A.v_mov_b32(v(CV+3), 4)
    dep_wait(A, d_at, SPECIAL)
    ws_srd(A, SRD_A); A.s_lshl_b32(s(G_SA), s(G_MB), 20); A.s_add_u32(s(G_SA), s(G_SA), WS_O); A.s_mov_b32(s(G_STA), 262144); A.s_mov_b32(s(G_N), 64)
    A.s_mov_b32(s(G_ASTEP), 4096)
    b_operand(P_WO, 4096*2048, 2048, G_NT)
    A.s_lshl_b32(s(G_SC), s(G_MB), 18); A.s_lshl_b32(s(C2), s(G_NT), 9); A.s_add_u32(s(G_SC), s(G_SC), s(C2))
    A.s_lshl_b32(s(C2), s(S_W), 6); A.s_add_u32(s(G_SC), s(G_SC), s(C2))
    A.s_mov_b32(s(G_EPI), 4)
    A.label(GEMM)
    EPI, EPIRET, LEND, HOOK, RET, RETV, go = '.epi', '.epiret', '.lend', '.hook', '.hret', '.hretv', A.newlabel('go')
    stamp(A, 22); gemm_consts(A)
    A.s_or_b32(s(G_HOOK), s(G_N), -1)
    nh = A.newlabel('nh')
    A.s_cmp_lg_u32(s(S_W), 0); A.s_cbranch_scc1(nh)
    A.s_cmp_lg_u32(s(G_N), 16); A.s_cbranch_scc1(nh)
    if 'nopf' not in OPTS:
        A.s_mov_b32(s(G_HOOK), 14); A.s_and_b32(s(S_HST), s(G_N), 0)
        A.s_and_b32(s(C0), s(S_INIT), 17); A.s_cmp_eq_u32(s(C0), 17); A.s_cbranch_scc1(nh)
        status_ld(A)
    A.label(nh)
    NPRE = XP.get('npre', 12)
    gemm_pro(A, 0, NPRE)
    A.s_bitcmp1_b32(s(S_INIT), 3); A.s_cbranch_scc1(EPI)
    A.s_mov_b32(s(E_CNT), 0)
    gemm_pro(A, max(NPRE, 1) if not NPRE else NPRE, 27) if NPRE else [dma(A, 0, 'sc1'), gemm_pro(A, 1, 27)]
    gemm_zero(A); A.wait(vm=15)
    A.label(go)
    A.s_barrier()
    A.s_cmp_eq_u32(s(G_EPI), 5); A.s_cbranch_scc1(GEMMV)
    gemm_loop(A, False, HOOK, RET)
    A.label(LEND)
    stamp(A, 23)
    A.s_mov_b32(s(E_SC), s(G_SC)); A.s_mov_b32(s(E_EPI), s(G_EPI)); A.s_mov_b32(s(E_CNT), s(G_CNT))
    A.s_cmp_lg_u32(s(G_ASTEP), 128); A.s_cbranch_scc1(EPI)
    sk = only_w0(A)
    sl = A.newlabel('slow')
    A.s_mov_b32(s(C0), -1)
    A.s_cmp_lg_u32(s(G_HOOK), -2); A.s_cbranch_scc1(sl)
    np_ = A.newlabel('np')
    A.v_readfirstlane_b32(s(S_NXT), v(CV))
    A.s_bitcmp1_b32(s(S_INIT), 1); A.s_cbranch_scc1(np_)
    status_rd(A); A.s_mov_b32(s(S_RDY), s(C5)); A.s_mov_b32(s(C0), -1)
    A.s_bitcmp1_b32(s(S_RDY), POISON); A.s_cbranch_scc1(sl)
    A.label(np_)
    A.s_sub_u32(s(C1), s(S_NXT), 1); A.s_cmp_ge_u32(s(C1), 64); A.s_cbranch_scc1(sl)
    seq = [ty for ty, first, cnt in order() for i in range(cnt)]
    m_all = sum(1 << i for i, ty in enumerate(seq) if ty in ('KV', 'Q', 'GU')); m_ng = sum(1 << i for i, ty in enumerate(seq) if ty in ('KV', 'Q'))
    A.s_and_b32(s(C2), s(S_TICK), 31); A.s_cmp_ge_u32(s(C2), 28)
    for i in range(2):
        A.s_mov_b32(s(C4+i), hex((m_all >> 32*i) & 0xffffffff)); A.s_cmov_b32(s(C4+i), hex((m_ng >> 32*i) & 0xffffffff))
    A.s_bitcmp0_b64(s(C4, 2), s(C1)); A.s_cbranch_scc1(sl)
    A.s_lshl_b32(s(C0), s(C1), 5); A.s_or_b32(s(C0), s(C0), s(C2)); A.s_bitset0_b32(s(S_INIT), 2)
    A.label(sl)
    bcast(A, sk, False)
    A.s_cmp_eq_u32(s(C0), -1); A.s_cbranch_scc1(EPI)
    if 'log' in OPTS:
        A.s_lshl_b32(s(C1), s(S_TASK), 5); A.s_add_u32(s(C1), s(C1), WS_TIM); A.v_mov_b32(v(104), s(C1))
        for i, k in enumerate((21, 22, 23)): A.v_mov_b32(v(96+i), s(k))
        A.v_mov_b32(v(100), s(S_XCC)); A.v_mov_b32(v(101), s(14)); A.s_mov_b32(s(14), s(23)); A.v_mov_b32(v(103), s(101))
    A.s_mov_b32(s(S_TASK), s(C0)); A.s_bitset1_b32(s(S_INIT), 3); A.s_branch(DECODE)
    A.label(GEMMV)
    gemm_loop(A, True, HOOK, RETV)
    A.s_branch(LEND)
    A.label(HOOK)
    h1, h2, h3, h4, hx, hn, hoff, hk, hm = (A.newlabel(n_) for n_ in ('ha', 'hb', 'hc', 'hd', 'hx', 'hn', 'hoff', 'hk', 'hm'))
    for i, l_ in enumerate((h1, h2, h3)): A.s_cmp_eq_u32(s(S_HST), i+1); A.s_cbranch_scc1(l_)
    A.s_cmp_eq_u32(s(E_CNT), 0); A.s_cbranch_scc1(hn)
    A.v_mov_b32(v(CV), 1); A.v_mov_b32(v(CV+1), 0)
    A.s_mov_b64('exec', 1)
    A.buffer_atomic_add(v(CV), v(CV+1), s(S_WS, 4), s(E_CNT), m='offen sc1')
    A.s_mov_b64('exec', -1)
    A.s_mov_b32(s(E_CNT), 0)
    A.label(hn)
    A.s_and_b32(s(C0), s(S_INIT), 17); A.s_cmp_eq_u32(s(C0), 17); A.s_cbranch_scc1(hk)
    status_rd(A)
    A.s_and_b32(s(C0), s(S_INIT), 17); A.s_cmp_eq_u32(s(C0), 17); A.s_cbranch_scc1(hk)
    A.s_cmp_le_u32(s(G_HOOK), 8); A.s_cbranch_scc1(hoff)
    status_ld(A); A.s_branch(hm)
    A.label(hk)
    ticket(A)
    A.s_mov_b32(s(S_HST), 1); A.s_branch(hm)
    A.label(h1)
    A.v_readfirstlane_b32(s(S_TICK), v(CV)); A.s_add_u32(s(S_TICK), s(S_TICK), 32)
    A.s_bitset1_b32(s(S_INIT), 2); A.s_mov_b32(s(S_NXT), 0); A.s_mov_b32(s(S_RDY), 0)
    A.s_cmp_ge_u32(s(S_TICK), 128*32); A.s_cbranch_scc1(hoff)
    A.s_mov_b32(s(S_HST), 3); A.s_mov_b32(s(C0), s(G_HOOK)); A.s_mov_b32(s(G_HOOK), 3)
    A.s_and_b32(s(C2), s(S_TICK), 31); A.s_cbranch_scc1(hx)
    A.v_mov_b32(v(CV), 1); A.v_mov_b32(v(CV+1), 0)
    A.s_mov_b64('exec', 1)
    A.buffer_atomic_add(v(CV), v(CV+1), s(S_DBG, 4), 0, m=f'offen offset:{D_GHEAD*4} sc0 sc1').nochk = True
    A.s_mov_b64('exec', -1)
    A.s_mov_b32(s(S_HST), 2); A.s_sub_u32(s(G_HOOK), s(C0), 2); A.s_branch(hx)
    A.label(h2)
    A.s_lshr_b32(s(C3), s(S_TICK), 5); tab_addr(A)
    A.v_add_u32(v(CV), 1, v(CV)); A.v_mov_b32(v(CV+1), 0)
    A.s_mov_b64('exec', 1)
    A.buffer_store_dword(v(CV), v(CV+1), s(S_WS, 4), s(C4), m='offen sc1')
    A.s_branch(h4)
    A.label(h3)
    A.s_lshr_b32(s(C3), s(S_TICK), 5); tab_addr(A)
    A.v_mov_b32(v(CV+1), 0)
    A.s_mov_b64('exec', 1)
    A.buffer_load_dword(v(CV), v(CV+1), s(S_WS, 4), s(C4), m='offen sc1').nochk = True
    A.label(h4)
    A.s_mov_b64('exec', -1)
    A.s_mov_b32(s(G_HOOK), -2)
    A.s_bitcmp1_b32(s(S_INIT), 1); A.s_cbranch_scc1(hx)
    status_ld(A); A.s_branch(hx)
    A.label(hm)
    A.s_sub_u32(s(G_HOOK), s(G_HOOK), 2); A.s_branch(hx)
    A.label(hoff)
    A.s_mov_b32(s(G_HOOK), -1)
    A.label(hx)
    A.s_cmp_eq_u32(s(G_EPI), 5); A.s_cbranch_scc1(RETV)
    A.s_branch(RET)
    A.label(EPIRET)
    A.s_bitcmp0_b32(s(S_INIT), 3); A.s_cbranch_scc1(DONE)
    A.s_bitset0_b32(s(S_INIT), 3)
    if 'log' in OPTS:
        nl = only_w0(A)
        A.v_mov_b32(v(99), s(15)); A.v_mov_b32(v(102), s(15))
        A.s_mov_b64('exec', 1)
        A.buffer_store_dwordx4(v(96, 4), v(104), s(S_WS, 4), 0, m='offen')
        A.buffer_store_dwordx4(v(100, 4), v(104), s(S_WS, 4), 0, m='offen offset:16')
        A.s_mov_b64('exec', -1)
        A.label(nl)
    gemm_pro(A, NPRE, 27) if NPRE else [dma(A, 0, 'sc1'), gemm_pro(A, 1, 27)]
    gemm_zero(A); A.wait(vm=23 if NPRE >= 12 else 15); A.s_branch(go)
    A.label(EPI)
    eGU, eDN, eOP, eK, eV = A.newlabel('egu'), A.newlabel('edn'), A.newlabel('eop'), A.newlabel('ek'), A.newlabel('ev')
    A.s_cmp_eq_u32(s(E_EPI), 1); A.s_cbranch_scc1(eK)
    A.s_cmp_eq_u32(s(E_EPI), 2); A.s_cbranch_scc1(eGU)
    A.s_cmp_eq_u32(s(E_EPI), 3); A.s_cbranch_scc1(eDN)
    A.s_cmp_eq_u32(s(E_EPI), 4); A.s_cbranch_scc1(eOP)
    A.s_cmp_eq_u32(s(E_EPI), 5); A.s_cbranch_scc1(eV)
    epi_q(A); stamp(A, 15); A.s_branch(EPIRET)
    A.label(eK); epi_k(A); stamp(A, 15); A.s_branch(EPIRET)
    A.label(eV); epi_vt(A); stamp(A, 15); A.s_branch(EPIRET)
    A.label(eGU); epi_gu(A); stamp(A, 15); A.s_branch(EPIRET)
    A.label(eDN); epi_dn(A); stamp(A, 15); A.s_branch(DONE)
    A.label(eOP)
    dep_wait(A, dep_cnt(A, T_DN, 5), SPECIAL)
    A.s_lshl_b32(s(G_T2), s(G_MB), 2); A.s_add_u32(s(G_T2), s(G_T2), s(G_NT)); A.s_lshl_b32(s(G_T2), s(G_T2), 2); A.s_add_u32(s(G_T2), s(G_T2), s(S_W))
    A.s_lshl_b32(s(G_T2), s(G_T2), 14); A.s_add_u32(s(G_T2), s(G_T2), WS_B)
    A.s_lshl_b32(s(G_T3), s(G_MB), 9); A.s_add_u32(s(G_T3), s(G_T3), WS_G)
    srd(A, SRD_C, P_OUT, 2048*2048)
    stamp(A, 15); epi_op_loads(A); epi_op(A)
    A.wait(vm=0); A.s_branch(NEXT)
    A.label(DONE)
    A.wait(vm=0); A.s_barrier()
    A.s_cmp_lg_u32(s(S_W), 0); A.s_cbranch_scc1(NEXT)
    ensure_init(A, NEXT)
    A.v_mov_b32(v(CV), 1); A.v_mov_b32(v(CV+1), 0)
    A.s_mov_b64('exec', 1)
    A.buffer_atomic_add(v(CV), v(CV+1), s(S_WS, 4), s(G_CNT), m='offen sc1')
    A.s_mov_b64('exec', -1)
    A.s_branch(NEXT)
    if 'nochain' not in OPTS:
        CSP = '.cspecial'
        def handshake(dw, timed):
            A.wait(vm=0); A.s_barrier()
            sk = only_w0(A)
            out, lp, nx, nc = A.newlabel('hso'), A.newlabel('hsl'), A.newlabel('hsn'), A.newlabel('hsc')
            dbg_atomic(A, dw)
            A.s_and_b32(s(C0), s(C0), 255); A.s_cbranch_scc1(nc)
            chain.xq_base(A, not timed); A.s_add_u32(s(C0), s(chain.S_T0), L_MEMB + 1536)
            lane_id(A, CV+2); A.v_lshlrev_b32(v(CV+2), 4, v(CV+2))
            for i in range(4): A.v_mov_b32(v(CV+4+i), 1)
            A.s_mov_b32(s(C1), -1); A.s_mov_b32(s(C2), -1)
            A.s_mov_b64('exec', '0xffffffff')
            for i in range(3):
                for pol in range(2):
                    A.s_memtime(s(C4, 2)); A.wait(lgkm=0); A.s_mov_b32(s(C3), s(C4))
                    A.buffer_store_dwordx4(v(CV+4, 4), v(CV+2), s(S_WS, 4), s(C0), m='offen sc1')
                    A.wait(vm=0); A.s_memtime(s(C4, 2)); A.wait(lgkm=0); A.s_sub_u32(s(C3), s(C4), s(C3))
                    A.s_min_u32(s(C1+pol), s(C1+pol), s(C3)); A.s_xor_b32(s(C0), s(C0), 8192)
            A.s_mov_b64('exec', -1)
            A.s_cmp_lt_u32(s(C2), s(C1)); A.s_cselect_b32(s(C3), 257, 1)
            if 'pol0' in OPTS or 'pol1' in OPTS: A.s_mov_b32(s(C3), 257 if 'pol1' in OPTS else 1)
            if 'polx' in OPTS: A.s_cselect_b32(s(C3), 1, 257)
            dbg_atomic(A, dw, ret=False, val=s(C3))
            A.label(nc)
            A.s_mov_b32(s(C2), 300 if 'forcefb' not in OPTS else 20)
            A.label(lp)
            A.buffer_load_dwordx4(v(CV+4, 4), v(CV+1), s(S_DBG, 4), 0, m=f'offen offset:{D_READY*4} sc1')
            A.wait(vm=0)
            A.v_readfirstlane_b32(s(C1), v(CV+4 + dw - D_READY)); A.v_readfirstlane_b32(s(C3), v(CV+7))
            A.s_or_b32(s(S_INIT), s(S_INIT), s(C3))
            A.s_and_b32(s(C0), s(C1), 256); A.s_lshl_b32(s(C0), s(C0), 5)
            A.s_and_b32(s(C3), s(C1), 0x100ff)
            A.s_cmp_lg_u32(s(C3), 65); A.s_cbranch_scc1(nx)
            A.s_bitcmp1_b32(s(S_INIT), 0); A.s_cbranch_scc1(out)
            A.label(nx)
            if timed:
                np_, wk = A.newlabel('hsp'), A.newlabel('hsw')
                A.s_bitcmp0_b32(s(C1), POISON); A.s_cbranch_scc1(np_)
                take_fb(A, out, wk)
                A.label(wk); A.s_mov_b32(s(C0), 1); A.s_branch(out)
                A.label(np_)
                g = A.newlabel('hsg')
                A.s_sub_u32(s(C2), s(C2), 1); A.s_cbranch_scc0(g)
                A.s_mov_b32(s(C2), 0)
                A.s_cmp_ge_u32(s(C3), 65); A.s_cbranch_scc1(g)
                A.s_or_b32(s(C3), s(C1), 1 << POISON)
                A.v_mov_b32(v(CV+2), s(C3)); A.v_mov_b32(v(CV+3), s(C1))
                A.s_mov_b64('exec', 1)
                A.buffer_atomic_cmpswap(v(CV+2, 2), v(CV+1), s(S_DBG, 4), 0, m=f'offen offset:{D_READY*4} sc1')
                A.s_mov_b64('exec', -1)
                A.label(g)
            guard(A, lp, out)
            A.label(out)
            bcast(A, sk)
            A.s_and_b32(s(chain.S_POL), s(C0), 8192)
            A.s_cmp_lg_u32(s(C0), s(chain.S_POL)); A.s_cbranch_scc1(CSP)
        A.label(CHAINP)
        A.s_mov_b32(s(S_X), s(S_XCC)); A.s_mov_b32(s(S_H), s(C0))
        rts(A, 1)
        chain_setup(A, CABORT, False)
        rts(A, 2)
        handshake(D_READY, True)
        if 'tim' in OPTS:
            A.s_memtime(s(C0, 2)); A.wait(lgkm=0); A.s_sub_u32(s(C0), s(C0), s(100))
            A.v_mov_b32(v(CV), s(C0)); A.v_mov_b32(v(CV+1), 0); A.s_mov_b64('exec', 1)
            A.buffer_atomic_umax(v(CV), v(CV+1), s(S_DBG, 4), 0, m=f'offen offset:{12 if "timd" in OPTS else 132} sc1'); A.s_mov_b64('exec', -1)
        rts(A, 3)
        chain_loop(A, CABORT, CDONE, False)
        A.label(CSP)
        A.s_cmp_eq_u32(s(C0), 1); A.s_cbranch_scc1(NEXT)
        A.s_branch(SPECIAL)
        A.label(CHAINF)
        A.s_and_b32(s(S_X), s(C0), 1); A.s_lshr_b32(s(S_H), s(C0), 1)
        A.wait(vm=0, lgkm=0); A.s_barrier()
        chain_setup(A, CABORT, True)
        handshake(D_READY2, False)
        chain_loop(A, CABORT, CDONE, True)
        A.label(CDONE)
        if chain.TIMERS:
            for i in range(16): A.v_mov_b32(v(32+i), s(chain.S_ACC+i))
            A.s_lshl_b32(s(C0), s(S_X), 5); A.s_add_u32(s(C0), s(C0), s(S_H)); A.s_lshl_b32(s(C0), s(C0), 2); A.s_add_u32(s(C0), s(C0), s(S_W))
            A.s_lshl_b32(s(C0), s(C0), 6); A.s_add_u32(s(C0), s(C0), WS_CTIM); A.v_mov_b32(v(48), 0)
            A.s_mov_b64('exec', 1)
            for i in range(4): A.buffer_store_dwordx4(v(32+4*i, 4), v(48), s(S_WS, 4), s(C0), m=f'offen offset:{16*i}')
            A.s_mov_b64('exec', -1)
            A.wait(vm=0, lgkm=0)
        rts(A, 4)
        if 'tim' in OPTS:
            A.s_memtime(s(C0, 2)); A.wait(lgkm=0); A.s_sub_u32(s(C0), s(C0), s(100))
            A.v_mov_b32(v(CV), s(C0)); A.v_mov_b32(v(CV+1), 0); A.s_mov_b64('exec', 1)
            A.buffer_atomic_umax(v(CV), v(CV+1), s(S_DBG, 4), 0, m=f'offen offset:{24 if "timd" in OPTS else 136} sc1'); A.s_mov_b64('exec', -1)
        if chain.TIMERS: A.wait(vm=0); A.s_endpgm()
        A.s_cmp_eq_u32(s(S_TASK), -1); A.s_cbranch_scc1(NEXT)
        A.s_branch(DECODE)
        A.label(CABORT)
        A.s_mov_b64('exec', -1)
        A.v_mov_b32(v(CV), '0xdead'); A.v_mov_b32(v(CV+1), 0)
        A.buffer_store_dword(v(CV), v(CV+1), s(S_DBG, 4), 0, m=f'offen offset:{D_ABORT*4} sc1')
        A.wait(vm=0)
        A.s_endpgm()
    else:
        A.label(CHAINF); A.s_endpgm()
    n = A.fix_hazards()
    errs = A.check_waits()
    for e in errs[:20]: print('WAITERR', e)
    code, desc = kernel_wrap(KNAME + '_kernel', A.text())
    ol = ['; ORDER ' + ' '.join(f'{ty}{first+i}' for ty, first, cnt in order() for i in range(cnt))] if 'log' in OPTS else []
    return header(ol + [f'; @launch grid=(256,1,1) block=(256,1,1) lds={LDS_BYTES}']) + code + '.section .rodata,"a"\n' + desc

if __name__ == '__main__':
    for spec in sys.argv[1:]:
        OPTS = set(spec.split('+')) - {'base'}
        if 'timd' in OPTS: OPTS.add('tim')
        chain.TIMERS = 'ct' in OPTS; S0, NG = 48, 2
        chain.PAR.clear(); chain.PAR.update(chain.PAR0)
        import gemm; gemm.XP.clear()
        for o in OPTS:
            if o.startswith('x_'): gemm.XP[o[2:].split('=')[0]] = int(o.split('=')[1]) if '=' in o else 1
        for o in OPTS:
            if '=' in o and not o.startswith('x_'):
                k_, v_ = o.split('=')
                if k_ == 'S0': S0 = int(v_)
                elif k_ == 'NG': NG = int(v_)
                else: chain.PAR[k_] = int(v_)
        import asmcheck
        p = 'mega_%s.s' % spec.replace('+', '_').replace('=', '')
        open(p, 'w').write(build())
        asmcheck.assemble(p)
```

```python
from asmlib import *
from layout import *
import struct

OPT = set()
HOOK = None
HOOK2 = None
PAR0 = dict(nm=2, np=2, swz=0, md=0, pd=0, ack=3, hv=0, vo=2, qa=18, ka=34, km=4, vp=2, nr=2, rd=16, dp=2, sp=0, x4=0, at=0, nd=0, kq=0, bo=0, rp=0)
PAR = dict(PAR0)
S_WS, S_DBG, S_TMP = 4, 8, 12
S_LO8 = 12
S_X, S_H, S_W, S_STEP, S_TO = 16, 17, 18, 19, 20
S_MEMLD, S_MEMST = 21, 23
S_XQO, S_XQI = 25, 27
S_PST, S_PLD = 29, 31
S_KX, S_VT, S_PUB, S_PUBV, S_PRG, S_KVR, S_POL = 33, 34, 35, 36, 37, 38, 39
S_C = 40
S_T0, S_T1, S_T2, S_T3 = 42, 43, 44, 45
S_TMP2 = 48
S_ACC = 47
S_PTR = 64
def ptr(i): return S_PTR + 2*i

V_A = 0
V_MW, V_L8, V_WO, V_PST, V_PLD, V_MST, V_IDX = 0, 4, 5, 6, 7, 8, 9
V_TB, V_TK, V_ONE, V_HALF = 10, 11, 12, 14
KP, VP = 16, 24
WVR, WOR = 128, 192
def WQ(jj): return 256 + 8*jj
def WK(jj): return 384 + 8*jj
O_FO, O_KX, O_X = L_FO - L_MEMB, L_KXB - L_MEMB, L_X - L_MEMB
def QPO(): return 576 if PAR['x4'] else 544

def srd(A, d, p, nbytes):
    A.s_mov_b32(s(d), s(ptr(p))); A.s_mov_b32(s(d+1), s(ptr(p)+1))
    A.s_mov_b32(s(d+2), hex(nbytes)); A.s_mov_b32(s(d+3), '0x20000')

def load_ptrs(A):
    for i in range(0, 14, 2):
        A.s_load_dwordx4(s(ptr(i), 4), s(0, 2), i*8)
    A.s_load_dwordx2(s(ptr(14), 2), s(0, 2), 112)

def spin_guard(A, retry, abort):
    A.s_sub_u32(s(S_TO), s(S_TO), 1)
    A.s_cbranch_scc0(retry)
    A.s_branch(abort)

PB = [32, 40]
def AF(jj):
    assert jj not in (0, 2)
    return 48 + 4*([1, 3] + list(range(4, 16))).index(jj)

def xq_base(A, fb):
    A.s_lshl_b32(s(S_T0), s(S_X), 5); A.s_add_u32(s(S_T0), s(S_T0), s(S_H)); A.s_lshl_b32(s(S_T0), s(S_T0), 15)
    A.s_add_u32(s(S_T0), s(S_T0), WS_XQ + (FB_XQ if fb else 0) - L_MEMB)

def chain_setup(A, abort, fb=False):
    L, G, N16, T1, T2, T3, T4 = 16, 17, 18, 19, 20, 21, 22
    WS_PART_, WS_MEM_ = WS_PART + (FB_PART if fb else 0), WS_MEM + (FB_MEM if fb else 0)
    A.c('---- chain setup: lane constants ----')
    A.v_mbcnt_lo_u32_b32(v(L), -1, 0); A.v_mbcnt_hi_u32_b32(v(L), -1, v(L))
    A.v_lshrrev_b32(v(G), 4, v(L)); A.v_and_b32(v(N16), 15, v(L))
    A.v_lshrrev_b32(v(T1), 3, v(N16)); A.v_lshlrev_b32(v(T1), 9, v(T1)); A.v_lshl_add_u32(v(T1), v(G), 7, v(T1))
    A.v_and_b32(v(T2), 7, v(L)); A.v_lshl_add_u32(v(T1), v(T2), 4, v(T1))
    A.s_lshl_b32(s(S_T0), s(S_W), 11); A.s_add_u32(s(S_T0), s(S_T0), L_MEMB)
    A.v_add_u32(v(V_MW), s(S_T0), v(T1))
    for a_ in range(1, 4): A.v_xor_b32(v(V_A+a_), a_*2048, v(V_MW))
    A.v_lshlrev_b32(v(T1), 3, v(L)); A.v_add_u32(v(V_L8), s(S_T0), v(T1))
    A.s_lshl_b32(s(S_T3), s(S_W), 15)
    A.v_lshlrev_b32(v(T1), 4, v(L)); A.v_add_u32(v(V_WO), s(S_T3), v(T1))
    A.v_and_b32(v(T3), 1, v(G)); A.v_lshlrev_b32(v(T3), 1, v(T3)); A.v_lshrrev_b32(v(T4), 1, v(G)); A.v_add_u32(v(T3), v(T3), v(T4))
    A.v_lshlrev_b32(v(T3), 13, v(T3)); A.v_lshl_add_u32(v(T3), v(N16), 4, v(T3))
    A.s_lshl_b32(s(S_T0), s(S_W), 16); A.v_add_u32(v(T3), s(S_T0), v(T3))
    if PAR['swz']:
        A.v_lshrrev_b32(v(T4), 13, v(T3)); A.v_xor_b32(v(T4), s(S_H), v(T4)); A.v_lshl_add_u32(v(V_PST), v(T4), 8, v(T3))
    else:
        A.s_lshl_b32(s(S_T1), s(S_H), 8); A.v_add_u32(v(V_PST), s(S_T1), v(T3))
    A.v_lshrrev_b32(v(T3), 2, v(L)); A.v_lshlrev_b32(v(T3), 8, v(T3))
    A.v_and_b32(v(T4), 3, v(L)); A.v_lshl_add_u32(v(T3), v(T4), 4, v(T3))
    A.s_lshl_b32(s(S_T0), s(S_H), 13); A.s_lshl_b32(s(S_T1), s(S_W), 6); A.s_add_u32(s(S_T0), s(S_T0), s(S_T1))
    A.v_add_u32(v(V_PLD), s(S_T0), v(T3))
    A.v_lshrrev_b32(v(T3), 3, v(L)); A.v_lshlrev_b32(v(T3), 4, v(T3))
    A.v_and_b32(v(T4), 2, v(L)); A.v_lshl_add_u32(v(T3), v(T4), 1, v(T3))
    A.s_lshl_b32(s(S_T0), s(S_H), 8); A.s_lshr_b32(s(S_T1), s(S_W), 1); A.s_lshl_b32(s(S_T1), s(S_T1), 7); A.s_add_u32(s(S_T0), s(S_T0), s(S_T1))
    A.s_and_b32(s(S_T1), s(S_W), 1); A.s_lshl_b32(s(S_T1), s(S_T1), 3); A.s_add_u32(s(S_T0), s(S_T0), s(S_T1))
    A.v_add_u32(v(T3), s(S_T0), v(T3))
    A.v_and_b32(v(T4), 5, v(L)); A.v_cmp_eq_u32('vcc', 0, v(T4)); A.v_bfrev_b32(v(T4), 1)
    A.v_cndmask_b32(v(V_MST), v(T4), v(T3))
    A.v_mov_b32(v(T3), '0x4444'); A.v_mov_b32(v(T4), '0xeeee')
    A.v_cmp_lt_u32('vcc', 7, v(N16)); A.v_cndmask_b32(v(V_IDX), v(T3), v(T4))
    A.v_lshrrev_b32(v(T1), 1, v(G)); A.v_lshlrev_b32(v(T1), 8, v(T1))
    A.v_and_b32(v(T2), 1, v(L)); A.v_lshl_add_u32(v(T1), v(T2), 7, v(T1))
    A.v_and_b32(v(T2), 1, v(G)); A.v_lshl_add_u32(v(T1), v(T2), 3 if PAR['x4'] else 6, v(T1))
    A.v_bfe_u32(v(T2), v(L), 2, 2); A.v_lshl_add_u32(v(T1), v(T2), 4 if PAR['x4'] else 3, v(T1))
    A.v_add_u32(v(V_TK), L_FO, v(T1))
    A.v_bfe_u32(v(T2), v(L), 1, 1); A.v_mul_u32_u24(v(T2), QPO(), v(T2)); A.v_add_u32(v(T1), v(T1), v(T2))
    A.v_add_u32(v(V_TB), L_X, v(T1))
    for i in range(2): A.v_mov_b32(v(V_ONE+i), '0x3f803f80'); A.v_mov_b32(v(V_HALF+i), '0x3f003f00')
    A.c('---- scalar constants ----')
    cbits = struct.unpack('<I', struct.pack('<f', (128 ** -0.5) * 1.4426950408889634))[0]
    A.s_mov_b32(s(S_C), hex(cbits)); A.s_mov_b32(s(S_C+1), hex(cbits))
    A.s_lshl_b32(s(S_T0), s(S_X), 14)
    for par in range(2):
        A.s_add_u32(s(S_MEMST+par), s(S_T0), WS_MEM_ + par*8192)
        A.s_add_u32(s(S_MEMLD+par), s(S_T0), WS_MEM_ + par*8192 - L_MEMB)
    A.s_lshl_b32(s(S_PRG), s(S_X), 5); A.s_add_u32(s(S_PRG), s(S_PRG), s(S_H)); A.s_lshl_b32(s(S_PRG), s(S_PRG), 7); A.s_add_u32(s(S_PRG), s(S_PRG), WS_CTL + C_PROG)
    A.s_lshl_b32(s(S_T0), s(S_X), 18)
    for i in range(2):
        A.s_add_u32(s(S_PST+i), s(S_T0), WS_PART_ + i*32768)
        A.s_add_u32(s(S_PLD+i), s(S_T0), WS_PART_ + i*4096)
    if PAR['swz']:
        A.s_and_b32(s(S_T1), s(S_H), 4); A.s_lshl_b32(s(S_T1), s(S_T1), 9); A.s_add_u32(s(S_PST+1), s(S_PST+1), 1024); A.s_sub_u32(s(S_PST+1), s(S_PST+1), s(S_T1))
    A.s_lshl_b32(s(S_T0), s(S_H), 13)
    A.s_add_u32(s(S_KX), s(S_T0), WS_KX - L_MEMB); A.s_add_u32(s(S_VT), s(S_T0), WS_VT - L_MEMB)
    A.s_add_u32(s(S_PUBV), s(S_T0), WS_PUB - L_MEMB); A.s_lshl_b32(s(S_T1), s(S_X), 9); A.s_add_u32(s(S_PUBV), s(S_PUBV), s(S_T1))
    A.c('---- init hand-off buffers (write-through) ----')
    for i in range(4): A.v_mov_b32(v(32+i), 1)
    A.v_mov_b32(v(36), -1)
    xq_base(A, fb)
    for k in range(4):
        A.buffer_store_dwordx4(v(32, 4), v(V_MW), s(S_WS, 4), s(S_T0), m='offen sc1')
        A.buffer_store_dwordx4(v(32, 4), v(V_MW), s(S_WS, 4), s(S_T0), m='offen offset:1024 sc1')
        if k < 3: A.s_add_u32(s(S_T0), s(S_T0), 8192)
    for q in range(2):
        A.buffer_store_dwordx4(v(32, 4), v(V_PLD), s(S_WS, 4), s(S_PLD+q), m='offen sc1')
    for par in range(2):
        A.buffer_store_dword(v(36), v(V_MST), s(S_WS, 4), s(S_MEMST+par), m='offen sc1')
    A.c('---- weight load: whole 128-byte lines, wave pairs share the staged rows ----')
    VD, VDO, VRV, VRVB, VRP, VRPB, VRO, VM0, R_ = 23, 24, 25, 26, 27, 28, 29, 30, 31
    A.v_lshrrev_b32(v(T1), 3, v(L)); A.v_and_b32(v(T2), 7, v(L)); A.v_lshlrev_b32(v(T3), 4, v(T2))
    A.v_lshl_add_u32(v(VD), v(T1), 13, v(T3)); A.v_lshl_add_u32(v(VDO), v(T1), 11, v(T3))
    A.s_lshl_b32(s(S_T0), s(S_X), 22); A.s_lshl_b32(s(S_T1), s(S_H), 8); A.s_add_u32(s(S_T0), s(S_T0), s(S_T1))
    A.s_lshr_b32(s(S_T1), s(S_W), 1); A.s_lshl_b32(s(S_T1), s(S_T1), 7); A.s_add_u32(s(S_T0), s(S_T0), s(S_T1)); A.v_add_u32(v(VD), s(S_T0), v(VD))
    A.s_lshl_b32(s(S_T0), s(S_H), 18); A.s_lshl_b32(s(S_T1), s(S_X), 10); A.s_add_u32(s(S_T0), s(S_T0), s(S_T1))
    A.s_lshl_b32(s(S_T1), s(S_W), 8); A.s_add_u32(s(S_T0), s(S_T0), s(S_T1)); A.v_add_u32(v(VDO), s(S_T0), v(VDO))
    A.v_and_b32(v(T2), 3, v(L))
    A.v_bfe_u32(v(R_), v(L), 3, 1)
    A.v_bfe_u32(v(T1), v(L), 2, 1)
    A.s_and_b32(s(S_T0), s(S_W), 1); A.s_lshl_b32(s(S_T0), s(S_T0), 6); A.s_add_u32(s(S_T0), s(S_T0), s(S_T3))
    A.v_lshl_add_u32(v(T4), v(G), 2, v(T1)); A.v_lshlrev_b32(v(T4), 7, v(T4)); A.v_add_u32(v(T4), s(S_T0), v(T4))
    A.v_mul_u32_u24(v(VRV), 4128, v(R_)); A.v_lshl_add_u32(v(VRV), v(T2), 3, v(VRV)); A.v_add_u32(v(VRV), v(VRV), v(T4)); A.v_xor_b32(v(VRVB), '0x1000', v(VRV))
    A.v_xor_b32(v(VRP), '0x8000', v(VRV)); A.v_xor_b32(v(VRPB), '0x8000', v(VRVB))
    A.v_and_b32(v(T3), 1, v(G)); A.v_lshlrev_b32(v(T3), 4, v(T3)); A.v_lshrrev_b32(v(T4), 1, v(G)); A.v_lshl_add_u32(v(T3), v(T4), 2, v(T3))
    A.v_add_u32(v(T3), v(T3), v(T1)); A.v_lshlrev_b32(v(T3), 7, v(T3)); A.v_lshl_add_u32(v(T3), v(R_), 5, v(T3)); A.v_lshl_add_u32(v(T3), v(T2), 3, v(T3))
    A.v_add_u32(v(VRO), s(S_T3), v(T3))
    A.v_and_b32(v(T1), 7, v(L)); A.v_lshlrev_b32(v(T1), 11, v(T1)); A.v_lshl_add_u32(v(T1), v(G), 4, v(T1))
    A.v_lshl_add_u32(v(T1), v(R_), 6, v(T1))
    A.s_lshl_b32(s(S_T0), s(S_X), 10); A.s_lshl_b32(s(S_T1), s(S_W), 8); A.s_add_u32(s(S_T0), s(S_T0), s(S_T1)); A.v_add_u32(v(VM0), s(S_T0), v(T1))
    two = lambda m_, l_: [(m_, a_, i) for a_ in l_ for i in range(2)]
    groups = two('q', (0, 2)) + two('k', (0, 2)) + two('v', (0,)) + two('o', (0, 1)) + two('v', (2,))
    cur = [None]
    def setsrd(p, n):
        if cur[0] != p: srd(A, S_TMP, p, n); cur[0] = p
    def issue(g):
        slot, (m_, a_, i) = g % 4, groups[g]
        setsrd(*{'q': (P_WQ, 1 << 23), 'k': (P_WK, 1 << 23), 'v': (P_WV, 1 << 23), 'o': (P_WO, 1 << 23)}[m_])
        if m_ != 'o': A.s_xor_b32(s(S_T1), s(S_W), a_); A.s_lshl_b32(s(S_T1), s(S_T1), 20)
        for b in range(8):
            if m_ != 'o': A.s_add_u32(s(S_T0), s(S_T1), hex((64*i + 8*b) << 13))
            else:
                if b % 4 == 0: A.s_xor_b32(s(S_T1), s(S_W), 2*i + b // 4); A.s_lshl_b32(s(S_T1), s(S_T1), 16)
                A.s_add_u32(s(S_T0), s(S_T1), hex((b % 4)*16384 + a_*128))
            A.s_add_u32('m0', s(S_T3), slot*8192 + b*1024)
            A.buffer_load_dwordx4(v(VDO if m_ == 'o' else VD), s(S_TMP, 4), s(S_T0), m='offen lds')
    def wr_frag(src, f):
        for u in range(2): A.ds_write_b128(v(V_WO), v(src + 4*u, 4), m=f'offset:{f*2048 + u*1024}')
    for g in range(4): issue(g)
    for g in range(16):
        A.wait(vm=min(3, 15-g) * 8)
        slot, (m_, a_, i) = g % 4, groups[g]
        if m_ != 'o': A.s_barrier()
        for k in range(4):
            for m in range(4):
                if m_ != 'o':
                    jj = 4*(a_ + k // 2) + 2*i + k % 2
                    if m_ == 'v': dst = WVR + 8*jj if a_ < 2 else 96 + 8*k
                    else: dst = (WQ if m_ == 'q' else WK)(jj)
                    A.ds_read_b64_tr_b16(r(dst + 2*m, 2), v([VRV, VRVB, VRP, VRPB][k]), m=f'offset:{slot*8192 + (16*(m//2) + 2*(m % 2))*128}')
                else:
                    T_ = 2*a_ + k % 2
                    dst = {0: 32 + 8*T_, 3: 64 + 8*T_, 1: WOR + 8*T_, 2: WOR + 32 + 8*T_}[2*i + k // 2]
                    A.ds_read_b64_tr_b16(v(dst + 2*m, 2), v(VRO), m=f'offset:{slot*8192 + (32*(k//2) + 8*(m//2) + 2*(m % 2))*128 + (k % 2)*64}')
            if k == 2: A.wait(lgkm=4)
        A.wait(lgkm=0)
        if m_ != 'o': A.s_barrier()
        if HOOK and g % 2 == 0: HOOK(A, 8 + g//2)
        if g+4 < 16: issue(g+4)
        if g >= 14:
            for k in range(4): wr_frag(96 + 8*k, 4*(k // 2) + 2*i + k % 2)
            A.wait(lgkm=0)
    for k in range(8): wr_frag(32 + 8*k, 8 + k)
    A.wait(lgkm=0)
    srd(A, S_TMP, P_MEM0, 8*1024*2)
    for i in range(2):
        A.buffer_load_dwordx4(v(PB[0]+4*i, 4), v(VM0), s(S_TMP, 4), 0, m=f'offen offset:{i*128}')

def kv_wait(A, abort, blk_sreg, t):
    lp, ok, got, oth = A.newlabel('kvw'), A.newlabel('kvok'), A.newlabel('kvg'), A.newlabel('kvo')
    A.s_cmp_lt_u32(s(blk_sreg), s(S_KVR)); A.s_cbranch_scc1(ok)
    A.s_cmp_lg_u32(s(S_W), 0); A.s_cbranch_scc1(oth)
    A.v_bfe_u32(v(t), v(V_WO), 4, 4); A.v_lshlrev_b32(v(t), 7, v(t))
    A.s_mov_b32(s(S_T0), WS_CTL + C_CNT + T_KV*2048)
    A.label(lp)
    A.buffer_load_dword(v(t+1), v(t), s(S_WS, 4), s(S_T0), m='offen sc1')
    A.wait(vm=0)
    A.v_cmp_gt_u32('vcc', KV_TARGET, v(t+1))
    A.s_or_b32(s(S_KVR), 'vcc_lo', 0x10000); A.s_ff1_i32_b32(s(S_KVR), s(S_KVR))
    A.s_cmp_lt_u32(s(blk_sreg), s(S_KVR)); A.s_cbranch_scc1(got)
    A.s_sleep(4)
    A.s_sub_u32(s(S_TO), s(S_TO), 1); A.s_cbranch_scc0(lp)
    A.s_mov_b32(s(S_KVR), 0)
    A.label(got)
    A.v_mov_b32(v(t), L_MISC + 16); A.v_mov_b32(v(t+1), s(S_KVR)); A.ds_write_b32(v(t), v(t+1))
    A.label(oth)
    A.wait(vm=0, lgkm=0); A.s_barrier()
    A.v_mov_b32(v(t), L_MISC + 16); A.ds_read_b32(v(t+1), v(t)); A.wait(lgkm=0)
    A.v_readfirstlane_b32(s(S_KVR), v(t+1))
    A.s_cmp_eq_u32(s(S_KVR), 0); A.s_cbranch_scc1(abort)
    A.label(ok)
KV_TARGET = 32

def kv_prefetch(A):
    ops = []
    for t in range(2): ops.append(lambda t=t: A.buffer_load_dwordx4(v(KP+4*t, 4), v(V_MW), s(S_WS, 4), s(S_KX), m=f'offen offset:{1024*t} sc1'))
    for t in range(2): ops.append(lambda t=t: A.buffer_load_dwordx4(v(VP+4*t, 4), v(V_MW), s(S_WS, 4), s(S_VT), m=f'offen offset:{1024*t} sc1'))
    return ops
def kv_advance(A): A.s_add_u32(s(S_KX), s(S_KX), 262144); A.s_add_u32(s(S_VT), s(S_VT), 262144)

TIMERS = False
NTM = 14
def TM(A, i):
    if TIMERS: (A.s_memrealtime if PAR.get('raw') else A.s_memtime)(s(64+2*i, 2))
def TMACC(A):
    if TIMERS:
        A.wait(lgkm=0)
        if PAR.get('raw'):
            A.s_cmp_eq_u32(s(S_STEP), PAR['raw'])
            for i in range(NTM): A.s_cselect_b32(s(S_ACC+i), s(64+2*i), s(S_ACC+i))
        for i in range(NTM-1):
            if PAR.get('raw'): break
            A.s_sub_u32(s(S_T0), s(66+2*i), s(64+2*i)); A.s_add_u32(s(S_ACC+i), s(S_ACC+i), s(S_T0))
        A.s_mov_b32(s(64), s(64+2*(NTM-1)))
def CNT(A, k):
    if TIMERS: A.s_add_u32(s(61 + k//3), s(61 + k//3), 1 << (10*(k % 3)))
def cvt(A, d, a_, b): return lambda: A.v_cvt_pk_bf16_f32(v(d), v(a_), v(b))
def tagop(A, d, tag): return (lambda: A.v_or_b32(v(d), 1, v(d))) if tag else (lambda: A.v_and_b32(v(d), -2, v(d)))
def run(ops):
    for f in ops: f()

QA, KA, VA = 104, 108, 112
BB, TC = 116, 120
def pre_mem(A):
    for t in range(2): A.ds_write_b128(v(V_MW), v(KP+4*t, 4), m=f'offset:{O_KX + 1024*t}')
    for i in range(6): A.v_mov_b64(v(QA+2*i, 2), 0)
    for a_ in range(4): A.v_xor_b32(v(BB+a_), 512, v(V_A+a_))

def chain_step(A, u, abort, fb, cold, first_entry=None, last=False, done=None):
    par, xtag, ptag = u % 2, (u // 2) % 2, u % 2
    st = 'offen sc1' if fb else 'offen'
    A.c(f'======== chain step u={u} last={last} ========')
    sm = lambda acc, af, W: A.v_smfmac_f32_16x16x64_bf16(v(acc, 4), v(af, 4), r(W, 8), v(V_IDX))
    def poll(check, loads, nfl, name):
        lp, rt = A.newlabel(name + 'l'), A.newlabel(name + 'r')
        A.label(lp); check(); A.s_cbranch_vccnz(rt)
        def emit():
            A.label(rt); A.s_mov_b64('exec', 'vcc')
            if name == 'q': CNT(A, 0)
            k = len(A.items); loads(); k = len(A.items) - k
            A.s_mov_b64('exec', -1)
            A.s_sub_u32(s(S_TO), s(S_TO), 1); A.s_cbranch_scc1(abort)
            A.wait(vm=k*(nfl-1)); A.s_branch(lp)
        cold.append(emit)
        return lp
    p = PB[0]
    def memld():
        for i in range(2): A.buffer_load_dwordx4(v(p+4*i, 4), v(V_MW), s(S_WS, 4), s(S_MEMLD+par), m=f'offen offset:{1024*i} sc1').nochk = True
    late = PAR['md'] or PAR['ack'] & 2
    if not late: memld()
    TMACC(A)
    pre_mem(A)
    if PAR['dp'] < 0: A.v_mov_b32(v(124), ((u + 3) // 2) % 2); A.v_mov_b32(v(125), s(S_STEP))
    if PAR['ack'] & 2: A.wait(vm=0)
    if late: A.nop(PAR['md']); memld()
    A.wait(vm=0)
    others = [(a_, i, f) for a_ in range(1, 4) for i in range(2) for f in range(2)]
    def ord_(k, q):
        a_, i, f = others[k]
        A.ds_read_b128(v(AF(4*a_+2*i+f), 4), v((BB if f else V_A) + a_), m=f'offset:{1024*i}'); q.issue(4*a_+2*i+f)
    def mchk():
        A.v_max3_u32(v(TC), v(p), v(p+1), v(p+2)); A.v_max3_u32(v(TC+1), v(p+3), v(p+4), v(p+5))
        A.v_max3_u32(v(TC), v(TC), v(p+6), v(p+7)); A.v_max_u32(v(TC), v(TC), v(TC+1))
        A.v_cmp_eq_u32('vcc', -1, v(TC))
    top = poll(mchk, memld, PAR['nm'], 'm')
    if first_entry:
        def emit_entry():
            A.label(first_entry); A.wait(vm=0)
            for i in range(8): A.v_min_u32(v(PB[0]+i), -2, v(PB[0]+i))
            pre_mem(A)
            A.v_mov_b32(v(124), 1); A.v_mov_b32(v(125), 0)
            for i in range(NTM): TM(A, i)
            A.s_branch(top)
        cold.append(emit_entry)
    q = LQ(A)
    TM(A, 1)
    vq = []
    def vwait(tag):
        i = vq.index(tag); A.wait(vm=len(vq) - 1 - i); del vq[:i+1]
    full = lambda: A.s_mov_b64('exec', -1)
    X4 = PAR['x4']; US, XN = (64, 4) if X4 else (32, 2)
    lo8 = (lambda: A.s_mov_b64('exec', s(S_LO8, 2))) if X4 else (lambda: None)
    ful8 = full if X4 else (lambda: None)
    def xw(src, lds): (A.ds_write_b128 if X4 else A.ds_write_b64)(v(V_MW if X4 else V_L8), v(src, XN), m=f'offset:{lds}')
    def xo(src, off, n): (A.buffer_store_dwordx4 if n == 4 else A.buffer_store_dwordx2)(v(src, n), v(V_MW if n == 4 else V_L8), s(S_WS, 4), s(S_XQO+par), m=f'offen offset:{off} sc1')
    def xi(dst, off, n):
      if PAR['at'] & {0: 1, 512: 2, 1024: 4}[off]:
        A.v_mov_b64(v(dst, 2), 0)
        A.buffer_atomic_or_x2(v(dst, 2), v(V_L8), s(S_WS, 4), s(S_XQI+par), m=f'offen offset:{off} sc0 sc1').nochk = True
      else: (A.buffer_load_dwordx4 if n == 4 else A.buffer_load_dwordx2)(v(dst, n), v(V_MW if n == 4 else V_L8), s(S_WS, 4), s(S_XQI+par), m=f'offen offset:{off} sc1').nochk = True
    def progress(val, t):
        A.buffer_store_dword(v(t), 'off', s(S_WS, 4), s(S_PRG), m='sc1'); vq.append('prog')
    def late_drop():
        ot = ((u + 3) // 2) % 2
        dr = lambda i: (A.buffer_store_dword(v(124), v(V_MW), s(S_WS, 4), s(S_XQI+1-par), m=f'offen offset:{1024*i} sc1'), vq.append(f'ld{i}'))
        m8 = lambda: (A.s_mov_b32('exec_lo', '0x01010101'), A.s_mov_b32('exec_hi', '0x01010101'))
        return [lambda: (A.v_mov_b32(v(124), ot), A.v_mov_b32(v(125), s(S_STEP)))] + ([] if last or PAR['nd'] else [lambda: (m8(), dr(0), full()), lambda: (m8(), dr(1), full())]) + [
                lambda: (A.s_mov_b64('exec', 1), progress(0, 125), full())]
    A.ds_write_b128(v(V_MW), v(p, 4)); A.ds_write_b128(v(V_MW), v(p+4, 4), m='offset:1024'); q.issue('w0'); q.issue('w1')
    if not last: sm(QA, p, WQ(0))
    A.ds_read_b128(v(AF(1), 4), v(BB)); A.ds_read_b128(v(AF(3), 4), v(BB), m='offset:1024'); q.issue(1); q.issue(3)
    if not last: sm(QA, p+4, WQ(2))
    sm(KA, p, WK(0))
    q.need(['w1']); A.s_barrier()
    TM(A, 2)
    vown = [(VA, p, WVR, None), (VA, p+4, WVR+16, None), (VA, AF(1), WVR+8, 1), (VA, AF(3), WVR+24, 3)]
    vo = PAR['vo']
    fill = [(KA, p+4, WK(2), None)] + ([] if last else [(QA, AF(1), WQ(1), 1), (QA, AF(3), WQ(3), 3)]) + [(KA, AF(1), WK(1), 1), (KA, AF(3), WK(3), 3)] + vown[:vo]
    k = 0
    ld_ = late_drop()
    if PAR['dp'] < 0 and not last:
        ot = ((u + 3) // 2) % 2
        A.s_mov_b32('exec_lo', '0x01010101'); A.s_mov_b32('exec_hi', '0x01010101')
        for i in range(2): A.buffer_store_dword(v(124), v(V_MW), s(S_WS, 4), s(S_XQI+1-par), m=f'offen offset:{1024*i} sc1'); vq.append(f'ld{i}')
        if PAR['dp'] == -2: progress(0, 125); ld_ = []
        else: ld_ = ld_[3:]
        full()
    for acc_, af, W, nd in fill:
        for _ in range(2):
            if k < 12: ord_(k, q); k += 1
        if nd: q.need([nd])
        sm(acc_, af, W)
    while k < 12: ord_(k, q); k += 1
    if last: run(ld_)
    QR, PKV, KRA, VR, XT = QA, VA, KP+4, 118, 114
    VKB, VTW = 116, 117
    KR, BP, K0, VTC, TK = 56, 88, 32, 48, 120
    VF = [40, 120, 32, 48, 40, 120, 32, 48]
    def vrd(k):
        for uu in range(2): A.ds_read_b128(v(VF[k]+4*uu, 4), v(V_WO), m=f'offset:{k*2048 + uu*1024}'); q.issue(('v', k, uu))
    def send(acc_, off, lds, tag, tm):
        o1 = [cvt(A, acc_, acc_, acc_+1), cvt(A, acc_+1, acc_+2, acc_+3)]
        if lds is None: return o1 + ([] if last else [tagop(A, acc_, xtag), lambda: (xo(acc_, off, 2), vq.append(tag))]) + [lambda: TM(A, tm)]
        o2 = [lambda i=i: A.v_mov_b32_dpp(v(acc_+2+i), v(acc_+i), m='row_ror:8 row_mask:0xf bank_mask:0xf') for i in range(2 if X4 else 0)]
        if not last: o2 += [tagop(A, acc_, xtag)]
        o3 = [lo8] + ([] if last else [lambda: (xo(acc_, off, XN), vq.append(tag))])
        o3 += [lambda: (xw(acc_, lds), q.issue(tag)), ful8, lambda: TM(A, tm)]
        return [[o1 + o2 + o3], [o1, o2 + o3], [o1, o2, o3]][PAR['sp']]
    if not last:
        for n, jj in enumerate(range(4, 16)):
            q.need([jj]); sm(QA, AF(jj), WQ(jj))
            if n >= (PAR['dp'] if PAR['dp'] >= 0 else 2) and ld_: ld_.pop(0)()
        assert not ld_
    side = {n: [] for n in range(12)}
    if not last:
        for i, o_ in enumerate(send(QA, 0, O_X, 'qs', 3)): side[1+i] += o_
    side[4] += [lambda: vrd(0)]; side[5] += [lambda: vrd(1)]
    side[7] += [lambda: A.v_and_b32(v(VKB), ~0x1800, v(V_MW)), lambda: A.s_lshl_b32(s(S_T1), s(S_W), 11), lambda: A.v_add_u32(v(VTW), s(S_T1), v(V_TK))]
    flush = lambda: A.wait(vm=len(vq))
    if vo >= 2: side[8] += [flush, lambda: vrd(2)]
    if vo >= 4: side[10] += [lambda: vrd(3)]
    polls = {}
    if not last:
        for key, dst, off in (('qa', QR, 0), ('ka', KRA, 512)):
            polls.setdefault(PAR[key], []).append(lambda key=key, dst=dst, off=off: (lo8(), xi(dst, off, XN), vq.append(key), ful8()))
    for n, jj in enumerate(range(4, 16)):
        q.need([jj]); sm(KA, AF(jj), WK(jj)); run(side.get(n, []) + polls.pop(n, []))
    vseq = vown[vo:] + [(VA, AF(jj), WVR + 8*jj if jj < 8 else VF[jj-8], jj) for jj in (8, 9, 10, 4, 5, 11, 6, 7, 12, 13, 14, 15)]
    nd_ = 4 - vo
    side = {n: [] for n in range(len(vseq))}
    for i, o_ in enumerate(send(KA, 512, O_FO, 'ks', 4)): side[1+i] += o_
    if vo < 2: side[nd_-3] += [flush, lambda: vrd(2)]
    if vo < 4: side[nd_-1] += [lambda: vrd(3)]
    for i, n in enumerate((0, 1, 2, 5)): side[nd_+n] += [lambda i=i: vrd(4+i)]
    def krd(b, t): A.ds_read_b128(v(KR+8*b+4*t, 4), v(VKB), m=f'offset:{O_KX + 2048*b + 1024*t}'); q.issue(('K', b, t))
    if not last:
        for i in range(4): side[nd_+8+i] += [lambda i=i: krd(i, 0), lambda i=i: krd(i, 1)]
    for n, (acc_, af, W, jj) in enumerate(vseq):
        if n >= nd_ and jj >= 8: q.need([('v', jj-8, 0), ('v', jj-8, 1)])
        sm(acc_, af, W); run(side[n] + polls.pop(12+n, []))
    tr = lambda d, a_, off, tag: (A.ds_read_b64_tr_b16(v(d, 2), v(a_), m=f'offset:{off}'), q.issue(tag))
    pubv = lambda: (A.buffer_store_dwordx2(v(PKV, 2), v(V_L8), s(S_WS, 4), s(S_PUBV), m='offen offset:1024 sc1'), vq.append('pv'))
    def pubk():
        q.need([('t', 1)])
        A.s_mov_b64('exec', s(S_LO8, 2))
        A.buffer_store_dwordx4(v(TK, 4), v(V_MW), s(S_WS, 4), s(S_PUBV), m='offen sc1'); vq.append('pk')
        A.s_mov_b64('exec', -1)
    for uu in range(2): tr(TK+2*uu, VTW, US*uu, ('t', uu))
    if last:
        run(send(VA, 1024, None, 'vs', 5)); pubv(); pubk()
        A.wait(vm=0); A.s_barrier()
        A.v_mov_b32(v(32), 64); progress(64, 32)
        A.s_branch(done)
        return
    q.need(['ks']); A.s_barrier()
    def krd2(off):
        for b in range(4):
            for uu in range(2): tr(K0+4*b+2*uu, V_TK, 2048*b + off + US*uu, ('k', b, uu))
    run(polls.pop(30, []))
    if 'ld1' in vq: vwait('ld1')
    run(send(VA, 1024, None, 'vs', 5))
    run(polls.pop(31, []))
    krd2(0)
    for i in range(4): A.v_mov_b64(v(VTC+2*i, 2), v(VP+2*i, 2))
    if u == 3: A.s_add_u32(s(S_T1), s(S_STEP), 1); A.s_lshr_b32(s(S_T1), s(S_T1), 2)
    run(polls.pop(32, []))
    if 33 in polls: vwait('ks'); run(polls.pop(33))
    vpoll = lambda: (xi(VR, 1024, 2), vq.append('vp'))
    if PAR['vp'] == 0: vpoll()
    def xchk(r_): A.v_and_b32(v(XT), 1, v(r_)); A.v_cmp_ne_u32('vcc', xtag, v(XT))
    def train(m_, RA, off, lds, c0):
        rot = [24, 28][:PAR['nr']]
        lo8(); vwait(m_ + 'a')
        kx, kok = A.newlabel('kx'), A.newlabel('kok')
        xchk(RA); A.s_cbranch_vccnz(kx); A.label(kok)
        def emit():
            lp = A.newlabel('kxl')
            kk = A.newlabel('kxk') if m_ == 'q' and PAR['kq'] else kok
            A.label(kx); CNT(A, c0); A.nop(PAR['bo'])
            for n, rg in enumerate(rot):
                if n: A.nop(PAR['rd'])
                xi(rg, off, XN)
            A.label(lp)
            for rg in rot:
                CNT(A, c0+1); A.wait(vm=len(rot)-1)
                for i in range(XN//2): A.v_mov_b64(v(RA+2*i, 2), v(rg+2*i, 2))
                xchk(RA); A.s_cbranch_vccz(kk); A.nop(PAR['rp']); xi(rg, off, XN)
            spin_guard(A, lp, abort)
            if kk != kok: A.label(kk); xi(KRA, 512, XN); A.s_branch(kok)
        cold.append(emit)
        xw(RA, lds); q.issue(m_ + 'w'); ful8()
    train('q', QR, 0, O_X + QPO(), 0)
    TM(A, 6)
    if PAR['vp'] == 1: vpoll()
    run(polls.pop(34, []))
    q.need(['qw']); A.s_barrier()
    for b in range(4):
        for uu in range(2): tr(BP+4*b+2*uu, V_TB, 2048*b + US*uu, ('b', b, uu))
    SX0, SX1, SM = 104, 108, 124
    mf = lambda d, a_, b_, c_: A.v_mfma_f32_16x16x32_bf16(v(d, 4), v(a_, 4), v(b_, 4), c_)
    ml = [(SM, K0+4*b, b) for b in range(4)] + [(sx, KR+8*b+4*t, b) for b in range(4) for t, sx in enumerate((SX0, SX1))]
    def smf(i):
        d, a_, b = ml[i]
        q.need([('b', b, 1)]); mf(d, a_, BP+4*b, v(d, 4) if b else 0)
    kc = PAR['km']
    for i in range(kc): smf(i)
    if PAR['vp'] == 2: vpoll()
    assert not polls
    train('k', KRA, 512, O_FO + 512, 2)
    TM(A, 7)
    if PAR['vp'] == 3: vpoll()
    pf = [lambda f=f: (f(), vq.append('pf')) for f in kv_prefetch(A)]
    M = 120
    sl = [pubv, pubk]
    nb = max(kc + 4, 4)
    for i in range(kc, nb):
        smf(i)
        if sl: sl.pop(0)()
    run(sl)
    q.need(['kw']); A.s_barrier()
    krd2(512)
    if u == 3: kv_wait(A, abort, S_T1, M)
    for i in range(nb, 12):
        smf(i)
        if pf: pf.pop(0)()
    run(pf)
    A.s_add_u32(s(S_PUBV), s(S_PUBV), 262144); kv_advance(A)
    WF = [56, 64, 72, 80, 40, 88, 56, 64]
    WI = [8, 9, 10, 11, 12, 13, 14, 15]
    def wrd(k, uu): A.ds_read_b128(v(WF[k]+4*uu, 4), v(V_WO), m=f'offset:{WI[k]*2048 + uu*1024}'); q.issue(('w', k, uu))
    wl = [lambda k=k, uu=uu: wrd(k, uu) for k in range(6) for uu in range(2)]
    T = M + 1
    PX, PM = 32, 36
    dadd = lambda r_: A.v_add_f32_dpp(v(r_), v(r_), v(r_), m='row_ror:8 row_mask:0xf bank_mask:0xf')
    def sm1(b): q.need([('k', b, 1)]); mf(SM, K0+4*b, BP+4*b, v(SM, 4))
    run(wl[0:2])
    sm1(0); dadd(104); dadd(105); dadd(106)
    sm1(1); dadd(107); dadd(108); dadd(109)
    sm1(2); dadd(110); dadd(111); A.v_max3_f32(v(M), v(104), v(105), v(106))
    sm1(3)
    TM(A, 8)
    A.v_max3_f32(v(M), v(M), v(107), v(108)); A.v_max3_f32(v(T), v(109), v(110), v(111)); A.v_max_f32(v(M), v(M), v(T))
    A.v_mov_b32(v(T), v(M)); run(wl[2:4]); A.v_permlane32_swap_b32(v(M), v(T)); A.v_max_f32(v(M), v(M), v(T))
    for i in range(4): dadd(SM+i)
    A.v_max3_f32(v(M), v(M), v(SM), v(SM+1)); A.v_max3_f32(v(M), v(M), v(SM+2), v(SM+3))
    A.v_mov_b32(v(T), v(M)); run(wl[4:6]); A.v_permlane16_swap_b32(v(M), v(T)); A.v_max_f32(v(M), v(M), v(T))
    A.v_mul_f32(v(M), s(S_C), v(M))
    SR = list(range(104, 112)) + list(range(SM, SM+4))
    fm = lambda i: A.v_pk_fma_f32(v(SR[2*i], 2), v(SR[2*i], 2), s(S_C, 2), v(M, 2), m='op_sel_hi:[1,1,0] neg_lo:[0,0,1] neg_hi:[0,0,1]')
    ex = lambda i: A.v_exp_f32(v(SR[i]), v(SR[i]))
    for i in range(4): fm(i)
    ex(0); run(wl[6:7]); ex(1); run(wl[7:8]); ex(2); cvt(A, PX, 104, 105)(); ex(3); run(wl[8:9]); ex(4); cvt(A, PX+1, 106, 107)()
    ex(5); run(wl[9:10]); ex(6); cvt(A, PX+2, 108, 109)(); ex(7); run(wl[10:12]); fm(4); cvt(A, PX+3, 110, 111)(); fm(5)
    O0, O1, LS, OP = 96, 100, VTC, VTC+4
    ex(8)
    mf(O0, VTC, PX, 0); ex(9); ex(10)
    mf(O1, VTC+4, PX, 0); ex(11); cvt(A, PM, SM, SM+1)()
    m16 = lambda d, a_, b_, c_: A.v_mfma_f32_16x16x16_bf16(v(d, 4), v(a_, 2), v(b_, 2), c_)
    m16(LS, V_ONE, PX, 0); cvt(A, PM+1, SM+2, SM+3)()
    vwait('vp')
    vs, vc = A.newlabel('vs'), A.newlabel('vc')
    A.v_and_b32(v(T), 1, v(VR))
    m16(LS, V_ONE, PX+2, v(LS, 4))
    A.v_cmp_ne_u32('vcc', xtag, v(T)); A.s_cbranch_vccnz(vs); A.label(vc)
    def emit_vs():
        A.label(vs); CNT(A, 4); xi(VR, 1024, 2); A.wait(vm=0)
        A.v_and_b32(v(T), 1, v(VR)); A.v_cmp_ne_u32('vcc', xtag, v(T))
        A.s_cbranch_vccz(vc); spin_guard(A, vs, abort)
    cold.append(emit_vs)
    A.v_permlane32_swap_b32(v(PKV), v(VR)); A.v_permlane32_swap_b32(v(PKV+1), v(VR+1))
    m16(LS, V_HALF, PM, v(LS, 4))
    WA = [104, 108, 120, 124]
    zl = [lambda i=i: A.v_mov_b64(v(WA[i//2] + 2*(i % 2), 2), 0) for i in range(8)]
    zl[0]()
    m16(O0, PKV, PM, v(O0, 4)); zl[1](); m16(O1, VR, PM, v(O1, 4))
    run(zl[2:7])
    A.v_rcp_f32(v(LS), v(LS))
    zl[7]()
    for o in (O0, O0+2, O1, O1+2): A.v_pk_mul_f32(v(o, 2), v(o, 2), v(LS, 2), m='op_sel_hi:[1,0]')
    for i in range(4): cvt(A, OP+i, O0+2*i, O0+2*i+1)()
    A.ds_write_b128(v(V_MW), v(OP, 4), m=f'offset:{O_FO + 1024}'); q.issue('ow')
    OF = [OP, 96, 100, 32]
    def wo(T_, a_):
        if a_ in (0, 3):
            k = T_ if a_ == 0 else 4 + T_
            q.need([('w', k, 0), ('w', k, 1)]); W = WF[k]
        else: W = WOR + 32*(a_-1) + 8*T_
        if a_: q.need([('o', a_)])
        sm(WA[T_], OF[a_], W)
    wo(0, 0); wo(1, 0); wo(2, 0)
    q.need(['ow']); A.s_barrier()
    TM(A, 9)
    for a_ in range(1, 4):
        A.ds_read_b128(v(OF[a_], 4), v(V_A+a_), m=f'offset:{O_FO + 1024}'); q.issue(('o', a_))
        if a_ == 1: wo(3, 0)
    for k in (6, 7):
        for uu in range(2): wrd(k, uu)
    def post(b, k):
        return [cvt(A, b, b, b+1), cvt(A, b+1, b+2, b+3), cvt(A, b+2, b+4, b+5), cvt(A, b+3, b+6, b+7),
                lambda: A.v_permlane16_swap_b32(v(b), v(b+2)), lambda: A.v_permlane16_swap_b32(v(b+1), v(b+3)), tagop(A, b, ptag),
                lambda: A.buffer_store_dwordx4(v(b, 4), v(V_PST), s(S_WS, 4), s(S_PST+k), m=st)]
    for a_ in (1, 2, 3): wo(0, a_); wo(1, a_)
    p0 = post(WA[0], 0)
    n = 0
    for a_ in (1, 2, 3):
        for T_ in (2, 3):
            wo(T_, a_)
            if n: run(p0[2*n-2:2*n])
            n += 1
    run(post(WA[2], 1))
    TM(A, 10)
    reducer(A, u, fb, poll)

def reducer(A, u, fb, poll):
    par, ptag = u % 2, u % 2
    st = 'offen sc1' if fb else 'offen'
    mf = lambda d, a_, b_, c_: A.v_mfma_f32_16x16x32_bf16(v(d, 4), v(a_, 4), v(b_, 4), c_)
    RB_, SEL, X = 64, 48, 56
    def pld():
        for qq in range(2): A.buffer_load_dwordx4(v(RB_+4*qq, 4), v(V_PLD), s(S_WS, 4), s(S_PLD+qq), m='offen sc1').nochk = True
    skp = A.newlabel('skp')
    if PAR['hv']: A.s_cmp_ge_u32(s(S_W), 2); A.s_cbranch_scc1(skp)
    late = PAR['pd'] or PAR['ack'] & 1
    if not late: pld()
    A.v_and_b32(v(SEL+4), 16, v(V_WO)); A.v_mov_b32(v(SEL+5), '0x3f80'); A.v_lshlrev_b32(v(SEL+4), v(SEL+4), v(SEL+5))
    for i in range(4):
        A.s_mov_b32('vcc_lo', hex(0x00030003 << (4*i))); A.s_mov_b32('vcc_hi', hex(0x00030003 << (4*i)))
        A.v_cndmask_b32(v(SEL+i), 0, v(SEL+4), 'vcc')
    A.v_mov_b32(v(SEL+4), -1)
    if PAR['ack'] & 1: A.wait(vm=0)
    if late: A.nop(PAR['pd']); pld()
    A.wait(vm=0)
    def pchk():
        A.v_bitop3_b32(v(X+4), v(RB_), v(RB_+4), 1, m='bitop3:' + ('0x80' if ptag else '0xa8'))
        A.v_cmp_ne_u32('vcc', ptag, v(X+4))
    poll(pchk, pld, PAR['np'], 'p')
    if PAR['hv']: A.label(skp); A.v_mov_b32(v(SEL+4), -1)
    mf(X, SEL, RB_, 0); mf(X, SEL, RB_+4, v(X, 4))
    TM(A, 11)
    Y = X+4
    A.v_add_f32_dpp(v(Y), v(X), v(X), m='row_ror:8 row_mask:0xf bank_mask:0x3')
    A.v_add_f32_dpp(v(Y), v(X+1), v(X+1), m='row_ror:8 row_mask:0xf bank_mask:0xc')
    A.v_add_f32_dpp(v(Y), v(Y), v(Y), m='row_shl:4 row_mask:0xf bank_mask:0xf')
    A.v_mov_b32_dpp(v(Y+1), v(Y), m='quad_perm:[1,1,3,3] row_mask:0xf bank_mask:0xf')
    A.v_cvt_pk_bf16_f32(v(Y+2), v(Y), v(Y+1))
    A.v_min_u32(v(Y+2), -2, v(Y+2))
    A.buffer_store_dword(v(Y+2), v(V_MST), s(S_WS, 4), s(S_MEMST+1-par), m=st)
    TM(A, 12)
    A.buffer_store_dword(v(SEL+4), v(V_MST), s(S_WS, 4), s(S_MEMST+par), m=st)
    A.s_add_u32(s(S_STEP), s(S_STEP), 1)
    TM(A, 13)

def chain_loop(A, abort, done, fb):
    top, ent, lastl = A.newlabel('ctop'), A.newlabel('cent'), A.newlabel('clast')
    cold = []
    xq_base(A, fb); A.s_add_u32(s(S_T0), s(S_T0), s(S_POL))
    A.s_lshl_b32(s(S_T1), s(S_X), 21); A.s_sub_u32(s(S_T1), 1 << 20, s(S_T1))
    for par in range(2):
        A.s_add_u32(s(S_XQI+par), s(S_T0), par*16384); A.s_add_u32(s(S_XQO+par), s(S_XQI+par), s(S_T1))
    A.wait(vm=0)
    A.s_mov_b32(s(S_LO8), '0x00ff00ff'); A.s_mov_b32(s(S_LO8+1), '0x00ff00ff')
    A.s_mov_b32(s(S_STEP), 0)
    if TIMERS:
        for i in range(17): A.s_mov_b32(s(S_ACC+i), 0)
    kv_wait(A, abort, S_STEP, 48)
    if HOOK2: HOOK2(A)
    run(kv_prefetch(A)); kv_advance(A)
    A.s_branch(ent)
    A.label(top)
    chain_step(A, 0, abort, fb, cold, first_entry=ent)
    chain_step(A, 1, abort, fb, cold)
    chain_step(A, 2, abort, fb, cold)
    A.s_cmp_eq_u32(s(S_STEP), 63); A.s_cbranch_scc1(lastl)
    chain_step(A, 3, abort, fb, cold)
    A.s_branch(top)
    A.label(lastl)
    chain_step(A, 3, abort, fb, cold, last=True, done=done)
    for e in cold: e()
```

```python
WS_KX   = 0x2000000
WS_VT   = 0x1000000
WS_QX   = 0x0000000
WS_H    = 0x3000000
WS_O    = 0x4000000
WS_B    = 0x5000000
WS_G    = 0x5800000
WS_PUB  = 0x6000000
WS_XQ   = 0x7000000
WS_PART = 0x7400000
WS_MEM  = 0x7500000
FB_XQ, FB_PART, FB_MEM = 0x200000, 0x80000, 0x8000
WS_CTL  = 0x7600000
C_CNT   = 0x0000
C_TAB   = 0x4000
C_PROG  = 0x5000
C_HEAD  = 0x7000
CTL_BYTES = 0x8000
T_KV, T_Q, T_GU, T_DN, T_AT = range(5)
WS_TIM  = 0x7800000
WS_CTIM = 0x7820000
WS_SIZE = 0x10000000
D_CNT0, D_CNT1, D_READY, D_READY2, D_SPARE, D_INIT, D_FBT, D_ABORT = range(8)
D_GHEAD = 40
D_LH   = 8
D_SLOT0 = 48
L_WO   = 0
L_MEMB = 131072
L_FO   = 139264
L_KXB  = 147456
L_X    = 155648
L_MISC = 163776
LDS_BYTES = 163840
P_X, P_MEM0, P_WQ, P_WK, P_WV, P_WO, P_SEG, P_BX, P_WG, P_WU, P_WD, P_GW, P_OUT, P_DBG, P_WS = range(15)
KNAME = 'gated_mix__memory_aug_recurrent_mem_tr__swiglu_ffn__prompt'
```

```python
import sys
from asmlib import *
from layout import *
import chain
from chain import S_WS, S_DBG, S_X, S_H, S_W, S_TO, ptr, srd, load_ptrs, chain_setup, chain_loop
from gemm import *
from tasks import *

C0, C1, C2, C3, C4, C5 = 94, 95, 96, 97, 98, 99
CV = 120
K_EXIT, K_FB = 0xFFFF, 0x10000
POISON = 16
S0 = 48
NG = 2
ORD = 1
def order():
    k = (S0 + 7) // 8
    if ORD == 0: return [('KV', 0, 16), ('GU', 0, 16), ('DN', 0, 2), ('Q', 0, 8), ('AT', 0, 4), ('OP', 0, 1), ('AT', 4, S0//8 - 4), ('OP', 1, 1), ('AT', S0//8, 8 - S0//8), ('OPS', 0, NG)]
    if ORD == 1: return [('KV', 0, 16), ('GU', 0, 16), ('DN', 0, 2), ('Q', 0, 8), ('AT', 0, 4), ('OP', 0, 1), ('AT', 4, max(k, 5) - 4), ('OPS', 0, NG), ('OP', 1, int(S0 > 32)), ('AT', max(k, 5), 8 - max(k, 5))]
    if ORD == 2: return [('KV', 0, 16), ('GU', 0, 16), ('DN', 0, 2), ('Q', 0, 8), ('AT', 0, 4), ('OP', 0, 1), ('AT', 4, 1), ('OPS', 0, NG), ('OP', 1, int(S0 > 32)), ('AT', 5, 3)]
OPTS = set()

def header(launch_lines):
    ref = open('cdna_kernels/%s.s.ref' % KNAME).read().split('\n')
    hd = [l for l in ref if l.startswith(';') and '@launch' not in l]
    return '\n'.join(hd + launch_lines) + '\n.amdgcn_target "amdgcn-amd-amdhsa--gfx950"\n.text\n'
def kernel_wrap(name, body, vgpr=512, accum=256):
    return (f".globl {name}\n.p2align 8\n.type {name},@function\n{name}:\n" + body,
            f".p2align 6\n.amdhsa_kernel {name}\n  .amdhsa_next_free_vgpr {vgpr}\n  .amdhsa_next_free_sgpr 102\n  .amdhsa_accum_offset {accum}\n"
            f"  .amdhsa_group_segment_fixed_size 0\n  .amdhsa_kernarg_size 120\n  .amdhsa_user_sgpr_count 2\n  .amdhsa_user_sgpr_kernarg_segment_ptr 1\n"
            f"  .amdhsa_system_sgpr_workgroup_id_x 1\n.end_amdhsa_kernel\n")

def stamp(A, d):
    if 'log' in OPTS:
        A.s_memrealtime(s(12, 2)); A.wait(lgkm=0); A.s_mov_b32(s(d), s(12))
        if d in (22, 23):
            A.s_memtime(s(12, 2)); A.wait(lgkm=0)
            if d == 22: A.s_mov_b32(s(100), s(12))
            else: A.s_sub_u32(s(101), s(12), s(100))
S_WG = 63
def rts(A, k):
    if 'log' in OPTS:
        A.s_memrealtime(s(C4, 2)); A.wait(lgkm=0); A.v_mov_b32(v(CV), s(C4)); A.v_mov_b32(v(CV+1), 0); A.s_mov_b64('exec', 1)
        A.buffer_store_dword(v(CV), v(CV+1), s(S_WS, 4), s(S_WG), m=f'offen offset:{4*k}'); A.s_mov_b64('exec', -1)
def only_w0(A):
    sk = A.newlabel('w0'); A.s_cmp_lg_u32(s(S_W), 0); A.s_cbranch_scc1(sk); return sk
def dbg_atomic(A, dw, soff=0, ret=True, val=1):
    A.v_mov_b32(v(CV), val); A.v_mov_b32(v(CV+1), 0)
    A.s_mov_b64('exec', 1)
    A.buffer_atomic_add(v(CV), v(CV+1), s(S_DBG, 4), soff, m=f'offen offset:{dw*4} ' + ('sc0 sc1' if ret else 'sc1'))
    A.s_mov_b64('exec', -1)
    if ret: A.wait(vm=0); A.v_readfirstlane_b32(s(C0), v(CV))
def bcast(A, sk, tail=True):
    A.v_mov_b32(v(CV), s(C0)); A.v_mov_b32(v(CV+1), L_MISC)
    A.ds_write_b32(v(CV+1), v(CV)); A.wait(lgkm=0)
    A.label(sk)
    A.s_barrier()
    A.v_mov_b32(v(CV+1), L_MISC); A.ds_read_b32(v(CV), v(CV+1)); A.wait(lgkm=0)
    A.v_readfirstlane_b32(s(C0), v(CV))
    if tail: A.s_barrier()
def guard(A, retry, out):
    A.s_sub_u32(s(S_TO), s(S_TO), 1); A.s_cbranch_scc0(retry)
    A.v_mov_b32(v(CV), '0xdead'); A.v_mov_b32(v(CV+1), 0)
    A.buffer_store_dword(v(CV), v(CV+1), s(S_DBG, 4), 0, m=f'offen offset:{D_ABORT*4} sc1')
    A.s_mov_b32(s(S_TO), 0); A.s_mov_b32(s(C0), K_EXIT); A.s_branch(out)
def ensure_init(A, out):
    ok, lp = A.newlabel('ini'), A.newlabel('inl')
    A.s_bitcmp1_b32(s(S_INIT), 0); A.s_cbranch_scc1(ok)
    A.v_mov_b32(v(CV+1), 0)
    A.label(lp)
    A.buffer_load_dword(v(CV), v(CV+1), s(S_DBG, 4), 0, m=f'offen offset:{D_INIT*4} sc1')
    A.wait(vm=0); A.v_readfirstlane_b32(s(C1), v(CV)); A.s_or_b32(s(S_INIT), s(S_INIT), s(C1))
    A.s_bitcmp1_b32(s(S_INIT), 0); A.s_cbranch_scc1(ok)
    A.s_sleep(2)
    guard(A, lp, out)
    A.label(ok)
def take_fb(A, out, cont):
    dbg_atomic(A, D_FBT)
    A.s_or_b32(s(S_INIT), s(S_INIT), 2)
    A.s_cmp_ge_u32(s(C0), 64); A.s_cbranch_scc1(cont)
    A.s_or_b32(s(C0), s(C0), K_FB); A.s_branch(out)
def settled(A, r_):
    A.s_and_b32(s(C0), s(r_), 0x100ff); A.s_cmp_eq_u32(s(C0), 65); A.s_cselect_b32(s(C0), 2, 0); A.s_or_b32(s(S_INIT), s(S_INIT), s(C0))
def dep_wait(A, setup, special):
    sk = only_w0(A)
    out, lp, sl = A.newlabel('dwo'), A.newlabel('dwl'), A.newlabel('dws')
    ensure_init(A, out)
    setup()
    A.v_mov_b32(v(CV+6), 0)
    A.label(lp)
    nr = A.newlabel('dwn')
    A.buffer_load_dword(v(CV+4), v(CV+2), s(S_WS, 4), 0, m='offen sc1')
    A.s_bitcmp1_b32(s(S_INIT), 1); A.s_cbranch_scc1(nr)
    A.buffer_load_dword(v(CV+5), v(CV+6), s(S_DBG, 4), 0, m=f'offen offset:{D_READY*4} sc1')
    A.label(nr)
    A.wait(vm=0)
    A.s_mov_b32(s(C0), 0)
    A.v_cmp_lt_u32('vcc', v(CV+4), v(CV+3)); A.s_cbranch_vccz(out)
    A.s_bitcmp1_b32(s(S_INIT), 1); A.s_cbranch_scc1(sl)
    A.v_readfirstlane_b32(s(C1), v(CV+5))
    settled(A, C1)
    A.s_bitcmp0_b32(s(C1), POISON); A.s_cbranch_scc1(sl)
    take_fb(A, out, sl)
    A.label(sl)
    A.s_sleep(4)
    guard(A, lp, out)
    A.label(out)
    bcast(A, sk)
    A.s_cmp_lg_u32(s(C0), 0); A.s_cbranch_scc1(special)
def cnt_addr(t): return WS_CTL + C_CNT + t*2048
def dep_cnt(A, t, target):
    def f():
        A.s_lshl_b32(s(C2), s(G_MB), 7); A.s_add_u32(s(C2), s(C2), cnt_addr(t))
        A.v_mov_b32(v(CV+2), s(C2)); A.v_mov_b32(v(CV+3), target)
    return f

def status_ld(A):
    A.s_lshl_b32(s(C1), s(S_XCC), 2); A.v_mov_b32(v(CV+1), 0)
    A.s_mov_b64('exec', 1)
    A.buffer_load_dwordx4(v(CV+4, 4), v(CV+1), s(S_DBG, 4), 0, m=f'offen offset:{D_READY*4} sc1').nochk = True
    A.buffer_load_dword(v(CV+2), v(CV+1), s(S_DBG, 4), s(C1), m=f'offen offset:{D_LH*4} sc1').nochk = True
    A.s_mov_b64('exec', -1)
def status_rd(A):
    A.v_readfirstlane_b32(s(C5), v(CV+4)); A.v_readfirstlane_b32(s(C1), v(CV+7)); A.v_readfirstlane_b32(s(C0), v(CV+2))
    A.s_or_b32(s(S_INIT), s(S_INIT), s(C1))
    A.s_cmp_ge_u32(s(C0), 32); A.s_cselect_b32(s(C0), 16, 0); A.s_or_b32(s(S_INIT), s(S_INIT), s(C0))
    settled(A, C5)
def ticket(A):
    A.s_lshl_b32(s(C1), s(S_XCC), 7); A.s_add_u32(s(C1), s(C1), WS_CTL + C_HEAD)
    A.v_mov_b32(v(CV), 1); A.v_mov_b32(v(CV+1), 0)
    A.s_mov_b64('exec', 1)
    A.buffer_atomic_add(v(CV), v(CV+1), s(S_WS, 4), s(C1), m='offen sc0 sc1').nochk = True
    A.s_mov_b64('exec', -1)
def tab_addr(A):
    A.s_lshl_b32(s(C4), s(S_XCC), 7); A.s_add_u32(s(C4), s(C4), s(C3)); A.s_lshl_b32(s(C4), s(C4), 2); A.s_add_u32(s(C4), s(C4), WS_CTL + C_TAB)
def ws_srd(A, d):
    A.s_mov_b32(s(d), s(ptr(P_WS))); A.s_mov_b32(s(d+1), s(ptr(P_WS)+1)); A.s_mov_b32(s(d+2), hex(WS_SIZE)); A.s_mov_b32(s(d+3), '0x20000')

def build():
    A = Asm()
    END, NEXT, DECODE, SPECIAL, DONE, CABORT = '.end', '.next', '.decode', '.special', '.done', '.cabort'
    GEMM, GEMMV, CHAINP, CHAINF, CDONE = '.gemm', '.gemmv', '.chainp', '.chainf', '.cdone'
    A.s_cmp_ge_u32(s(2), 256); A.s_cbranch_scc1('.end0')
    load_ptrs(A)
    if 'log' in OPTS: A.s_lshl_b32(s(S_WG), s(2), 6); A.s_add_u32(s(S_WG), s(S_WG), WS_TIM + 0x10000)
    A.v_lshrrev_b32(v(1), 6, v(0)); A.v_readfirstlane_b32(s(S_W), v(1))
    A.s_getreg_b32(s(S_XCC), 'hwreg(HW_REG_XCC_ID, 0, 3)')
    A.s_mov_b32(s(S_TO), 1 << 17); A.s_mov_b32(s(S_INIT), 0); A.s_mov_b32(s(S_TASK), -1)
    A.wait(lgkm=0)
    srd(A, S_WS, P_WS, WS_SIZE); srd(A, S_DBG, P_DBG, 256)
    if 'tim' in OPTS: A.s_memrealtime(s(100, 2))
    rts(A, 0)
    if 'nochain' not in OPTS:
        A.s_cmp_gt_u32(s(S_XCC), 0 if 'forcefb' in OPTS else 1); A.s_cbranch_scc1(NEXT)
        sk = only_w0(A)
        A.s_lshl_b32(s(C1), s(S_XCC), 2)
        dbg_atomic(A, D_CNT0, s(C1))
        bcast(A, sk)
        A.s_cmp_lt_u32(s(C0), 32); A.s_cbranch_scc1(CHAINP)
    A.label(NEXT)
    if 'chainonly' in OPTS: A.s_branch(END)
    A.s_sub_u32(s(S_TO), s(S_TO), 32); A.s_cbranch_scc1(END)
    if 'log' in OPTS:
        nl = A.newlabel('nl')
        A.s_cmp_lg_u32(s(S_W), 0); A.s_cbranch_scc1(nl)
        A.s_cmp_ge_u32(s(S_TASK), 2048); A.s_cbranch_scc1(nl)
        A.s_memrealtime(s(C0, 2)); A.wait(lgkm=0)
        A.v_mov_b32(v(CV+4), s(21)); A.v_mov_b32(v(CV+5), s(22)); A.v_mov_b32(v(CV+6), s(23)); A.v_mov_b32(v(CV+7), s(C0))
        A.v_mov_b32(v(CV), s(S_XCC)); A.v_mov_b32(v(CV+1), s(14)); A.v_mov_b32(v(CV+2), s(15)); A.v_mov_b32(v(CV+3), s(101)); A.v_mov_b32(v(112), 0)
        A.s_lshl_b32(s(C0), s(S_TASK), 5); A.s_add_u32(s(C0), s(C0), WS_TIM)
        A.s_mov_b64('exec', 1)
        A.buffer_store_dwordx4(v(CV+4, 4), v(112), s(S_WS, 4), s(C0), m='offen')
        A.buffer_store_dwordx4(v(CV, 4), v(112), s(S_WS, 4), s(C0), m='offen offset:16')
        A.s_mov_b64('exec', -1)
        A.label(nl)
        stamp(A, 14)
    sk = only_w0(A)
    out, lead, got, lp = A.newlabel('dqo'), A.newlabel('dqlead'), A.newlabel('dqgot'), A.newlabel('dql')
    pre, tk, t2, t3 = A.newlabel('dqp'), A.newlabel('dqt'), A.newlabel('dqs'), A.newlabel('dqu')
    A.s_bitcmp1_b32(s(S_INIT), 2); A.s_cbranch_scc1(pre)
    A.s_bitcmp1_b32(s(S_INIT), 4); A.s_cbranch_scc1(t2)
    A.s_lshl_b32(s(C1), s(S_XCC), 2)
    A.v_mov_b32(v(CV), 1); A.v_mov_b32(v(CV+1), 0)
    A.s_mov_b64('exec', 1)
    A.buffer_atomic_add(v(CV), v(CV+1), s(S_DBG, 4), s(C1), m=f'offen offset:{D_LH*4} sc0 sc1')
    A.s_mov_b64('exec', -1)
    A.s_mov_b32(s(C5), 0)
    A.wait(vm=0)
    A.v_readfirstlane_b32(s(C2), v(CV))
    A.s_cmp_lt_u32(s(C2), 32); A.s_cbranch_scc1(tk)
    A.s_bitset1_b32(s(S_INIT), 4)
    A.label(t2)
    ensure_init(A, out)
    ticket(A)
    A.s_mov_b32(s(C5), 0)
    A.s_bitcmp1_b32(s(S_INIT), 1); A.s_cbranch_scc1(t3)
    status_ld(A); A.wait(vm=0); status_rd(A)
    A.label(t3)
    A.wait(vm=0)
    A.v_readfirstlane_b32(s(C2), v(CV)); A.s_add_u32(s(C2), s(C2), 32)
    A.label(tk)
    A.s_lshr_b32(s(C3), s(C2), 5); A.s_and_b32(s(C2), s(C2), 31)
    A.s_mov_b32(s(C0), K_EXIT); A.s_cmp_ge_u32(s(C3), 128); A.s_cbranch_scc1(out)
    tab_addr(A)
    A.s_bitcmp1_b32(s(S_INIT), 2); A.s_bitset0_b32(s(S_INIT), 2); A.s_cselect_b32(s(C1), 1, s(C2))
    A.s_cmp_eq_u32(s(C1), 0); A.s_cbranch_scc1(lead)
    A.v_mov_b32(v(CV+1), 0)
    A.label(lp)
    l0, l1 = A.newlabel('dq0'), A.newlabel('dq1')
    A.s_cmp_eq_u32(s(C3), 0); A.s_cbranch_scc1(l0)
    A.buffer_load_dword(v(CV), v(CV+1), s(S_WS, 4), s(C4), m='offen sc1'); A.s_branch(l1)
    A.label(l0)
    A.s_lshl_b32(s(C1), s(S_XCC), 2)
    A.buffer_load_dword(v(CV), v(CV+1), s(S_DBG, 4), s(C1), m=f'offen offset:{D_SLOT0*4} sc1')
    A.label(l1)
    A.wait(vm=0); A.v_readfirstlane_b32(s(C0), v(CV))
    A.s_sub_u32(s(C0), s(C0), 1); A.s_cbranch_scc0(got)
    if XP.get('slp', 4): A.s_sleep(XP.get('slp', 4))
    guard(A, lp, out)
    A.label(pre)
    A.s_mov_b32(s(C2), s(S_TICK)); A.s_mov_b32(s(C5), s(S_RDY))
    A.s_sub_u32(s(C0), s(S_NXT), 1); A.s_cbranch_scc1(tk)
    A.s_bitset0_b32(s(S_INIT), 2); A.s_and_b32(s(C2), s(C2), 31); A.s_branch(got)
    A.label(lead)
    dbg_atomic(A, D_GHEAD)
    A.s_add_u32(s(C1), s(C0), 1); A.v_mov_b32(v(CV), s(C1))
    l0 = A.newlabel('dq0')
    A.s_mov_b64('exec', 1)
    A.s_cmp_eq_u32(s(C3), 0); A.s_cbranch_scc1(l0)
    A.buffer_store_dword(v(CV), v(CV+1), s(S_WS, 4), s(C4), m='offen sc1'); A.s_mov_b64('exec', -1); A.s_branch(got)
    A.label(l0)
    A.s_lshl_b32(s(C1), s(S_XCC), 2)
    A.buffer_store_dword(v(CV), v(CV+1), s(S_DBG, 4), s(C1), m=f'offen offset:{D_SLOT0*4} sc1'); A.s_mov_b64('exec', -1)
    A.label(got)
    A.s_min_u32(s(C0), s(C0), 1023)
    A.s_lshl_b32(s(C0), s(C0), 5); A.s_or_b32(s(C0), s(C0), s(C2))
    A.s_bitcmp0_b32(s(C5), POISON); A.s_cbranch_scc1(out)
    A.s_bitcmp1_b32(s(S_INIT), 1); A.s_cbranch_scc1(out)
    A.s_cmp_lt_u32(s(C0), 16*32); A.s_cbranch_scc1(out)
    A.s_mov_b32(s(C5), s(C0))
    back = A.newlabel('dqb')
    dbg_atomic(A, D_FBT)
    A.s_or_b32(s(S_INIT), s(S_INIT), 2)
    A.s_cmp_ge_u32(s(C0), 64); A.s_cbranch_scc1(back)
    A.s_lshl_b32(s(C0), s(C0), 17); A.s_or_b32(s(C0), s(C0), K_FB); A.s_or_b32(s(C0), s(C0), s(C5)); A.s_branch(out)
    A.label(back); A.s_mov_b32(s(C0), s(C5))
    A.label(out)
    bcast(A, sk)
    A.s_and_b32(s(S_TASK), s(C0), 0xFFFF)
    dec0 = A.newlabel('dec0')
    A.s_bitcmp0_b32(s(C0), 16); A.s_cbranch_scc1(DECODE)
    A.s_lshr_b32(s(C0), s(C0), 17); A.s_branch(CHAINF)
    A.label(SPECIAL)
    A.s_bitcmp0_b32(s(C0), 16); A.s_cbranch_scc1(END)
    A.s_and_b32(s(C0), s(C0), 63); A.s_branch(CHAINF)
    A.label(DECODE)
    stamp(A, 21); stamp(A, 22); stamp(A, 23); stamp(A, 15)
    A.s_lshr_b32(s(C0), s(S_TASK), 5); A.s_and_b32(s(C1), s(S_TASK), 31)
    TL = {n: A.newlabel('t' + n) for n in ('KV', 'GU', 'DN', 'Q', 'AT', 'OP', 'OPS')}
    tKV, tGU, tDN, tQ, tAT, tOP, tOPS = TL.values()
    pos = 0
    A.s_mov_b32(s(C2), s(C0))
    for ty, first, cnt in order():
        if not cnt: continue
        A.s_sub_u32(s(C0), s(C2), pos - first)
        pos += cnt
        A.s_cmp_lt_u32(s(C2), pos); A.s_cbranch_scc1(TL[ty])
    A.label(END)
    rts(A, 5); A.wait(vm=0)
    if 'tim' in OPTS:
        A.s_cmp_lg_u32(s(S_W), 0); A.s_cbranch_scc1('.end0')
        A.s_memrealtime(s(C0, 2)); A.wait(lgkm=0); A.s_sub_u32(s(C0), s(C0), s(100))
        A.v_mov_b32(v(CV), s(C0)); A.v_mov_b32(v(CV+1), 0); A.s_mov_b64('exec', 1)
        A.buffer_atomic_umax(v(CV), v(CV+1), s(S_DBG, 4), 0, m=f'offen offset:{28 if "timd" in OPTS else 128} sc1'); A.wait(vm=0)
    A.label('.end0')
    A.s_endpgm()

    def x_operand():
        srd(A, SRD_A, P_X, 2048*2048); A.s_lshl_b32(s(G_SA), s(G_MB), 18); A.s_mov_b32(s(G_STA), 2048); A.s_mov_b32(s(G_N), 16); A.s_mov_b32(s(G_ASTEP), 128)
    def b_operand(p, nbytes, stride, ntreg):
        srd(A, SRD_B0, p, nbytes); srd(A, SRD_B1, p, nbytes)
        A.s_lshl_b32(s(G_SB0), s(ntreg), 9); A.s_add_u32(s(G_SB1), s(G_SB0), 256)
        A.s_mov_b32(s(G_STB), stride); A.s_mov_b32(s(G_BSTEP), 64*stride)
    def set_cnt(t): A.s_lshl_b32(s(G_CNT), s(G_MB), 7); A.s_add_u32(s(G_CNT), s(G_CNT), cnt_addr(t))
    def mb_nt(qshift, mul, tr=False):
        if tr: A.s_lshr_b32(s(C2), s(C1), 3); A.s_and_b32(s(C1), s(C1), 7); A.s_lshl_b32(s(C1), s(C1), 2); A.s_add_u32(s(C1), s(C1), s(C2))
        A.s_lshr_b32(s(G_MB), s(C0), qshift); A.s_lshl_b32(s(G_MB), s(G_MB), 2); A.s_and_b32(s(C2), s(C1), 3); A.s_add_u32(s(G_MB), s(G_MB), s(C2))
        A.s_and_b32(s(C3), s(C0), (1 << qshift) - 1); A.s_mul_i32(s(G_NT), s(C3), mul); A.s_lshr_b32(s(C2), s(C1), 2); A.s_add_u32(s(G_NT), s(G_NT), s(C2))
    A.label(tKV)
    noz = A.newlabel('noz')
    A.s_cmp_lg_u32(s(S_TASK), 0); A.s_cbranch_scc1(noz)
    lane_id(A, CV); A.s_lshl_b32(s(C2), s(S_W), 10); A.v_lshlrev_b32(v(CV), 4, v(CV)); A.v_add_u32(v(CV), s(C2), v(CV))
    A.v_mov_b64(v(CV+4, 2), 0); A.v_mov_b64(v(CV+6, 2), 0)
    for i in range(CTL_BYTES // 4096):
        A.s_mov_b32(s(C2), WS_CTL + i*4096)
        A.buffer_store_dwordx4(v(CV+4, 4), v(CV), s(S_WS, 4), s(C2), m='offen sc1')
    if 'nochain' in OPTS:
        A.wait(vm=0); A.s_barrier()
        A.v_mov_b32(v(CV+4), 64); A.v_lshlrev_b32(v(CV), 3, v(CV)); A.s_mov_b32(s(C2), WS_CTL + C_PROG)
        q = only_w0(A)
        A.buffer_store_dword(v(CV+4), v(CV), s(S_WS, 4), s(C2), m='offen sc1')
        A.label(q)
    A.wait(vm=0); A.s_barrier()
    q = only_w0(A); dbg_atomic(A, D_INIT, ret=False); A.label(q)
    A.label(noz)
    mb_nt(2, 8, not XP.get('notr')); x_operand(); set_cnt(T_KV)
    tV = A.newlabel('tv')
    A.s_cmp_ge_u32(s(G_NT), 16); A.s_cbranch_scc1(tV)
    def kv_base(base):
        A.s_lshl_b32(s(G_SC), s(G_MB), 20); A.s_lshl_b32(s(C2), s(G_NT), 14); A.s_add_u32(s(G_SC), s(G_SC), s(C2))
        A.s_lshl_b32(s(C2), s(S_W), 11); A.s_add_u32(s(G_SC), s(G_SC), s(C2)); A.s_add_u32(s(G_SC), s(G_SC), base)
    b_operand(P_WK, 1024*8192, 8192, G_NT); kv_base(WS_KX); A.s_mov_b32(s(G_EPI), 1); A.s_branch(GEMM)
    A.label(tV)
    A.s_sub_u32(s(G_NT), s(G_NT), 16)
    b_operand(P_WV, 1024*8192, 8192, G_NT)
    kv_base(WS_VT)
    A.s_and_b32(s(G_EPI), s(G_N), 0); A.s_add_u32(s(G_EPI), s(G_EPI), 5); A.s_branch(GEMM)
    A.label(tQ)
    mb_nt(1, 8); x_operand(); set_cnt(T_Q)
    b_operand(P_WQ, 1024*8192, 8192, G_NT); kv_base(WS_QX); A.s_mov_b32(s(G_EPI), 0); A.s_branch(GEMM)
    A.label(tGU)
    tG = A.newlabel('tg')
    mb_nt(2, 7)
    A.s_cmp_ge_u32(s(C1), 28); A.s_cbranch_scc1(tG)
    x_operand(); set_cnt(T_GU)
    srd(A, SRD_B0, P_WG, 1024*7168); srd(A, SRD_B1, P_WU, 1024*7168)
    A.s_lshl_b32(s(G_SB0), s(G_NT), 8); A.s_mov_b32(s(G_SB1), s(G_SB0)); A.s_mov_b32(s(G_STB), 7168); A.s_mov_b32(s(G_BSTEP), 64*7168)
    A.s_mul_i32(s(G_SC), s(G_MB), 128*7168); A.s_lshl_b32(s(C2), s(G_NT), 13); A.s_add_u32(s(G_SC), s(G_SC), s(C2))
    A.s_lshl_b32(s(C2), s(S_W), 11); A.s_add_u32(s(G_SC), s(G_SC), s(C2)); A.s_add_u32(s(G_SC), s(G_SC), WS_H)
    A.s_mov_b32(s(G_EPI), 2); A.s_branch(GEMM)
    A.label(tG)
    A.s_cmp_lg_u32(s(C3), 0); A.s_cbranch_scc1(NEXT)
    set_cnt(T_DN); task_g(A); A.s_branch(DONE)
    A.label(tDN)
    A.s_lshl_b32(s(G_MB), s(C0), 3); A.s_and_b32(s(C2), s(C1), 7); A.s_add_u32(s(G_MB), s(G_MB), s(C2))
    A.s_lshr_b32(s(G_NT), s(C1), 3)
    dep_wait(A, dep_cnt(A, T_GU, 28), SPECIAL)
    set_cnt(T_DN)
    ws_srd(A, SRD_A); A.s_mul_i32(s(G_SA), s(G_MB), 128*7168); A.s_add_u32(s(G_SA), s(G_SA), WS_H); A.s_mov_b32(s(G_STA), 32*7168); A.s_mov_b32(s(G_N), 56); A.s_mov_b32(s(G_ASTEP), 4096)
    b_operand(P_WD, 3584*2048, 2048, G_NT)
    A.s_lshl_b32(s(G_SC), s(G_MB), 2); A.s_add_u32(s(G_SC), s(G_SC), s(G_NT)); A.s_lshl_b32(s(G_SC), s(G_SC), 2); A.s_add_u32(s(G_SC), s(G_SC), s(S_W))
    A.s_lshl_b32(s(G_SC), s(G_SC), 14); A.s_add_u32(s(G_SC), s(G_SC), WS_B)
    A.s_mov_b32(s(G_EPI), 3); A.s_branch(GEMM)
    A.label(tAT)
    A.s_lshl_b32(s(G_MB), s(C0), 3); A.s_lshr_b32(s(C2), s(C1), 2); A.s_add_u32(s(G_MB), s(G_MB), s(C2)); A.s_and_b32(s(G_NT), s(C1), 3)
    set_cnt(T_AT)
    def d_kvq():
        A.s_lshr_b32(s(C2), s(G_MB), 2); A.s_lshl_b32(s(C2), s(C2), 7); A.s_add_u32(s(C2), s(C2), cnt_addr(T_KV))
        lane_id(A, CV+3); A.v_and_b32(v(CV+3), 1, v(CV+3))
        A.v_lshlrev_b32(v(CV+2), 11, v(CV+3)); A.v_add_u32(v(CV+2), s(C2), v(CV+2))
        A.v_lshlrev_b32(v(CV+3), 4, v(CV+3)); A.v_sub_u32(v(CV+3), 32, v(CV+3))
        assert T_Q == T_KV + 1
    dep_wait(A, d_kvq, SPECIAL)
    stamp(A, 22); task_at_pre(A)
    def d_prog():
        lane_id(A, CV+3)
        A.v_and_b32(v(CV+2), 1, v(CV+3)); A.v_lshlrev_b32(v(CV+2), 12, v(CV+2))
        A.v_bfe_u32(v(CV+3), v(CV+3), 1, 3); A.v_lshl_add_u32(v(CV+2), v(CV+3), 7, v(CV+2))
        A.s_lshl_b32(s(C2), s(G_NT), 10); A.s_add_u32(s(C2), s(C2), WS_CTL + C_PROG); A.v_add_u32(v(CV+2), s(C2), v(CV+2))
        A.s_add_u32(s(C2), s(G_MB), 1); A.v_mov_b32(v(CV+3), s(C2))
    dep_wait(A, d_prog, SPECIAL)
    stamp(A, 23); task_at_post(A); stamp(A, 15); A.s_branch(DONE)
    A.label(tOPS)
    A.s_mov_b32(s(G_NT), s(C1)); A.s_add_u32(s(G_MB), s(C0), S0)
    task_ops_pre(A)
    stamp(A, 22)
    opl = A.newlabel('opsl'); A.label(opl)
    def d_ops():
        lane_id(A, CV+3); A.v_and_b32(v(CV+3), 1, v(CV+3))
        A.s_lshl_b32(s(C2), s(G_MB), 7); A.s_add_u32(s(C2), s(C2), cnt_addr(T_AT))
        A.s_lshr_b32(s(C3), s(G_MB), 2); A.s_lshl_b32(s(C3), s(C3), 7); A.s_add_u32(s(C3), s(C3), cnt_addr(T_DN)); A.s_sub_u32(s(C3), s(C2), s(C3))
        A.v_mul_u32_u24(v(CV+2), s(C3), v(CV+3)); A.v_sub_u32(v(CV+2), s(C2), v(CV+2))
        A.v_add_u32(v(CV+3), 4, v(CV+3))
    dep_wait(A, d_ops, SPECIAL)
    stamp(A, 23)
    task_ops_seg(A)
    A.s_add_u32(s(G_MB), s(G_MB), NG); A.s_cmp_lt_u32(s(G_MB), 64); A.s_cbranch_scc1(opl)
    stamp(A, 15)
    A.wait(vm=0); A.s_branch(NEXT)
    A.label(tOP)
    A.s_lshl_b32(s(G_MB), s(C0), 3); A.s_lshr_b32(s(C2), s(C1), 2); A.s_add_u32(s(G_MB), s(G_MB), s(C2)); A.s_and_b32(s(G_NT), s(C1), 3)
    A.s_cmp_ge_u32(s(G_MB), S0 // 4); A.s_cbranch_scc1(NEXT)
    def d_at():
        lane_id(A, CV+3); A.v_and_b32(v(CV+3), 3, v(CV+3))
        A.s_lshl_b32(s(C2), s(G_MB), 9); A.s_add_u32(s(C2), s(C2), cnt_addr(T_AT))
        A.v_lshlrev_b32(v(CV+2), 7, v(CV+3)); A.v_add_u32(v(CV+2), s(C2), v(CV+2)); A.v_mov_b32(v(CV+3), 4)
    dep_wait(A, d_at, SPECIAL)
    ws_srd(A, SRD_A); A.s_lshl_b32(s(G_SA), s(G_MB), 20); A.s_add_u32(s(G_SA), s(G_SA), WS_O); A.s_mov_b32(s(G_STA), 262144); A.s_mov_b32(s(G_N), 64)
    A.s_mov_b32(s(G_ASTEP), 4096)
    b_operand(P_WO, 4096*2048, 2048, G_NT)
    A.s_lshl_b32(s(G_SC), s(G_MB), 18); A.s_lshl_b32(s(C2), s(G_NT), 9); A.s_add_u32(s(G_SC), s(G_SC), s(C2))
    A.s_lshl_b32(s(C2), s(S_W), 6); A.s_add_u32(s(G_SC), s(G_SC), s(C2))
    A.s_mov_b32(s(G_EPI), 4)
    A.label(GEMM)
    EPI, EPIRET, LEND, HOOK, RET, RETV, go = '.epi', '.epiret', '.lend', '.hook', '.hret', '.hretv', A.newlabel('go')
    stamp(A, 22); gemm_consts(A)
    A.s_or_b32(s(G_HOOK), s(G_N), -1)
    nh = A.newlabel('nh')
    A.s_cmp_lg_u32(s(S_W), 0); A.s_cbranch_scc1(nh)
    A.s_cmp_lg_u32(s(G_N), 16); A.s_cbranch_scc1(nh)
    if 'nopf' not in OPTS:
        A.s_mov_b32(s(G_HOOK), 14); A.s_and_b32(s(S_HST), s(G_N), 0)
        A.s_and_b32(s(C0), s(S_INIT), 17); A.s_cmp_eq_u32(s(C0), 17); A.s_cbranch_scc1(nh)
        status_ld(A)
    A.label(nh)
    NPRE = XP.get('npre', 12)
    gemm_pro(A, 0, NPRE)
    A.s_bitcmp1_b32(s(S_INIT), 3); A.s_cbranch_scc1(EPI)
    A.s_mov_b32(s(E_CNT), 0)
    gemm_pro(A, max(NPRE, 1) if not NPRE else NPRE, 27) if NPRE else [dma(A, 0, 'sc1'), gemm_pro(A, 1, 27)]
    gemm_zero(A); A.wait(vm=15)
    A.label(go)
    A.s_barrier()
    A.s_cmp_eq_u32(s(G_EPI), 5); A.s_cbranch_scc1(GEMMV)
    gemm_loop(A, False, HOOK, RET)
    A.label(LEND)
    stamp(A, 23)
    A.s_mov_b32(s(E_SC), s(G_SC)); A.s_mov_b32(s(E_EPI), s(G_EPI)); A.s_mov_b32(s(E_CNT), s(G_CNT))
    A.s_cmp_lg_u32(s(G_ASTEP), 128); A.s_cbranch_scc1(EPI)
    sk = only_w0(A)
    sl = A.newlabel('slow')
    A.s_mov_b32(s(C0), -1)
    A.s_cmp_lg_u32(s(G_HOOK), -2); A.s_cbranch_scc1(sl)
    np_ = A.newlabel('np')
    A.v_readfirstlane_b32(s(S_NXT), v(CV))
    A.s_bitcmp1_b32(s(S_INIT), 1); A.s_cbranch_scc1(np_)
    status_rd(A); A.s_mov_b32(s(S_RDY), s(C5)); A.s_mov_b32(s(C0), -1)
    A.s_bitcmp1_b32(s(S_RDY), POISON); A.s_cbranch_scc1(sl)
    A.label(np_)
    A.s_cmp_eq_u32(s(G_CNT), cnt_addr(T_KV)); A.s_cbranch_scc1(sl)
    A.s_sub_u32(s(C1), s(S_NXT), 1); A.s_cmp_ge_u32(s(C1), 64); A.s_cbranch_scc1(sl)
    seq = [ty for ty, first, cnt in order() for i in range(cnt)]
    m_all = sum(1 << i for i, ty in enumerate(seq) if ty in ('KV', 'Q', 'GU')); m_ng = sum(1 << i for i, ty in enumerate(seq) if ty in ('KV', 'Q'))
    A.s_and_b32(s(C2), s(S_TICK), 31); A.s_cmp_ge_u32(s(C2), 28)
    for i in range(2):
        A.s_mov_b32(s(C4+i), hex((m_all >> 32*i) & 0xffffffff)); A.s_cmov_b32(s(C4+i), hex((m_ng >> 32*i) & 0xffffffff))
    A.s_bitcmp0_b64(s(C4, 2), s(C1)); A.s_cbranch_scc1(sl)
    A.s_lshl_b32(s(C0), s(C1), 5); A.s_or_b32(s(C0), s(C0), s(C2)); A.s_bitset0_b32(s(S_INIT), 2)
    A.label(sl)
    bcast(A, sk, False)
    A.s_cmp_eq_u32(s(C0), -1); A.s_cbranch_scc1(EPI)
    if 'log' in OPTS:
        A.s_lshl_b32(s(C1), s(S_TASK), 5); A.s_add_u32(s(C1), s(C1), WS_TIM); A.v_mov_b32(v(104), s(C1))
        for i, k in enumerate((21, 22, 23)): A.v_mov_b32(v(96+i), s(k))
        A.v_mov_b32(v(100), s(S_XCC)); A.v_mov_b32(v(101), s(14)); A.s_mov_b32(s(14), s(23)); A.v_mov_b32(v(103), s(101))
    A.s_mov_b32(s(S_TASK), s(C0)); A.s_bitset1_b32(s(S_INIT), 3); A.s_branch(DECODE)
    A.label(GEMMV)
    gemm_loop(A, True, HOOK, RETV)
    A.s_branch(LEND)
    A.label(HOOK)
    h1, h2, h3, h4, hx, hn, hoff, hk, hm = (A.newlabel(n_) for n_ in ('ha', 'hb', 'hc', 'hd', 'hx', 'hn', 'hoff', 'hk', 'hm'))
    for i, l_ in enumerate((h1, h2, h3)): A.s_cmp_eq_u32(s(S_HST), i+1); A.s_cbranch_scc1(l_)
    A.s_cmp_eq_u32(s(E_CNT), 0); A.s_cbranch_scc1(hn)
    A.v_mov_b32(v(CV), 1); A.v_mov_b32(v(CV+1), 0)
    A.s_mov_b64('exec', 1)
    A.buffer_atomic_add(v(CV), v(CV+1), s(S_WS, 4), s(E_CNT), m='offen sc1')
    A.s_mov_b64('exec', -1)
    A.s_mov_b32(s(E_CNT), 0)
    A.label(hn)
    A.s_and_b32(s(C0), s(S_INIT), 17); A.s_cmp_eq_u32(s(C0), 17); A.s_cbranch_scc1(hk)
    status_rd(A)
    A.s_and_b32(s(C0), s(S_INIT), 17); A.s_cmp_eq_u32(s(C0), 17); A.s_cbranch_scc1(hk)
    A.s_cmp_le_u32(s(G_HOOK), 8); A.s_cbranch_scc1(hoff)
    status_ld(A); A.s_branch(hm)
    A.label(hk)
    ticket(A)
    A.s_mov_b32(s(S_HST), 1); A.s_branch(hm)
    A.label(h1)
    A.v_readfirstlane_b32(s(S_TICK), v(CV)); A.s_add_u32(s(S_TICK), s(S_TICK), 32)
    A.s_bitset1_b32(s(S_INIT), 2); A.s_mov_b32(s(S_NXT), 0); A.s_mov_b32(s(S_RDY), 0)
    A.s_cmp_ge_u32(s(S_TICK), 128*32); A.s_cbranch_scc1(hoff)
    A.s_mov_b32(s(S_HST), 3); A.s_mov_b32(s(C0), s(G_HOOK)); A.s_mov_b32(s(G_HOOK), 3)
    A.s_and_b32(s(C2), s(S_TICK), 31); A.s_cbranch_scc1(hx)
    A.v_mov_b32(v(CV), 1); A.v_mov_b32(v(CV+1), 0)
    A.s_mov_b64('exec', 1)
    A.buffer_atomic_add(v(CV), v(CV+1), s(S_DBG, 4), 0, m=f'offen offset:{D_GHEAD*4} sc0 sc1').nochk = True
    A.s_mov_b64('exec', -1)
    A.s_mov_b32(s(S_HST), 2); A.s_sub_u32(s(G_HOOK), s(C0), 2); A.s_branch(hx)
    A.label(h2)
    A.s_lshr_b32(s(C3), s(S_TICK), 5); tab_addr(A)
    A.v_add_u32(v(CV), 1, v(CV)); A.v_mov_b32(v(CV+1), 0)
    A.s_mov_b64('exec', 1)
    A.buffer_store_dword(v(CV), v(CV+1), s(S_WS, 4), s(C4), m='offen sc1')
    A.s_branch(h4)
    A.label(h3)
    A.s_lshr_b32(s(C3), s(S_TICK), 5); tab_addr(A)
    A.v_mov_b32(v(CV+1), 0)
    A.s_mov_b64('exec', 1)
    A.buffer_load_dword(v(CV), v(CV+1), s(S_WS, 4), s(C4), m='offen sc1').nochk = True
    A.label(h4)
    A.s_mov_b64('exec', -1)
    A.s_mov_b32(s(G_HOOK), -2)
    A.s_bitcmp1_b32(s(S_INIT), 1); A.s_cbranch_scc1(hx)
    status_ld(A); A.s_branch(hx)
    A.label(hm)
    A.s_sub_u32(s(G_HOOK), s(G_HOOK), 2); A.s_branch(hx)
    A.label(hoff)
    A.s_mov_b32(s(G_HOOK), -1)
    A.label(hx)
    A.s_cmp_eq_u32(s(G_EPI), 5); A.s_cbranch_scc1(RETV)
    A.s_branch(RET)
    A.label(EPIRET)
    A.s_bitcmp0_b32(s(S_INIT), 3); A.s_cbranch_scc1(DONE)
    A.s_bitset0_b32(s(S_INIT), 3)
    if 'log' in OPTS:
        nl = only_w0(A)
        A.v_mov_b32(v(99), s(15)); A.v_mov_b32(v(102), s(15))
        A.s_mov_b64('exec', 1)
        A.buffer_store_dwordx4(v(96, 4), v(104), s(S_WS, 4), 0, m='offen')
        A.buffer_store_dwordx4(v(100, 4), v(104), s(S_WS, 4), 0, m='offen offset:16')
        A.s_mov_b64('exec', -1)
        A.label(nl)
    gemm_pro(A, NPRE, 27) if NPRE else [dma(A, 0, 'sc1'), gemm_pro(A, 1, 27)]
    gemm_zero(A); A.wait(vm=23 if NPRE >= 12 else 15); A.s_branch(go)
    A.label(EPI)
    eGU, eDN, eOP, eK, eV = A.newlabel('egu'), A.newlabel('edn'), A.newlabel('eop'), A.newlabel('ek'), A.newlabel('ev')
    A.s_cmp_eq_u32(s(E_EPI), 1); A.s_cbranch_scc1(eK)
    A.s_cmp_eq_u32(s(E_EPI), 2); A.s_cbranch_scc1(eGU)
    A.s_cmp_eq_u32(s(E_EPI), 3); A.s_cbranch_scc1(eDN)
    A.s_cmp_eq_u32(s(E_EPI), 4); A.s_cbranch_scc1(eOP)
    A.s_cmp_eq_u32(s(E_EPI), 5); A.s_cbranch_scc1(eV)
    epi_q(A); stamp(A, 15); A.s_branch(EPIRET)
    A.label(eK); epi_k(A); stamp(A, 15); A.s_branch(EPIRET)
    A.label(eV); epi_vt(A); stamp(A, 15); A.s_branch(EPIRET)
    A.label(eGU); epi_gu(A); stamp(A, 15); A.s_branch(EPIRET)
    A.label(eDN); epi_dn(A); stamp(A, 15); A.s_branch(DONE)
    A.label(eOP)
    dep_wait(A, dep_cnt(A, T_DN, 5), SPECIAL)
    A.s_lshl_b32(s(G_T2), s(G_MB), 2); A.s_add_u32(s(G_T2), s(G_T2), s(G_NT)); A.s_lshl_b32(s(G_T2), s(G_T2), 2); A.s_add_u32(s(G_T2), s(G_T2), s(S_W))
    A.s_lshl_b32(s(G_T2), s(G_T2), 14); A.s_add_u32(s(G_T2), s(G_T2), WS_B)
    A.s_lshl_b32(s(G_T3), s(G_MB), 9); A.s_add_u32(s(G_T3), s(G_T3), WS_G)
    srd(A, SRD_C, P_OUT, 2048*2048)
    stamp(A, 15); epi_op_loads(A); epi_op(A)
    A.wait(vm=0); A.s_branch(NEXT)
    A.label(DONE)
    A.wait(vm=0); A.s_barrier()
    A.s_cmp_lg_u32(s(S_W), 0); A.s_cbranch_scc1(NEXT)
    ensure_init(A, NEXT)
    A.v_mov_b32(v(CV), 1); A.v_mov_b32(v(CV+1), 0)
    A.s_mov_b64('exec', 1)
    A.buffer_atomic_add(v(CV), v(CV+1), s(S_WS, 4), s(G_CNT), m='offen sc1')
    A.s_mov_b64('exec', -1)
    A.s_branch(NEXT)
    if 'nochain' not in OPTS:
        CSP = '.cspecial'
        def handshake(dw, timed):
            A.wait(vm=0); A.s_barrier()
            sk = only_w0(A)
            out, lp, nx, nc = A.newlabel('hso'), A.newlabel('hsl'), A.newlabel('hsn'), A.newlabel('hsc')
            dbg_atomic(A, dw)
            A.s_and_b32(s(C0), s(C0), 255); A.s_cbranch_scc1(nc)
            chain.xq_base(A, not timed); A.s_add_u32(s(C0), s(chain.S_T0), L_MEMB + 1536)
            lane_id(A, CV+2); A.v_lshlrev_b32(v(CV+2), 4, v(CV+2))
            for i in range(4): A.v_mov_b32(v(CV+4+i), 1)
            A.s_mov_b32(s(C1), -1); A.s_mov_b32(s(C2), -1)
            A.s_mov_b64('exec', '0xffffffff')
            for i in range(3):
                for pol in range(2):
                    A.s_memtime(s(C4, 2)); A.wait(lgkm=0); A.s_mov_b32(s(C3), s(C4))
                    A.buffer_store_dwordx4(v(CV+4, 4), v(CV+2), s(S_WS, 4), s(C0), m='offen sc1')
                    A.wait(vm=0); A.s_memtime(s(C4, 2)); A.wait(lgkm=0); A.s_sub_u32(s(C3), s(C4), s(C3))
                    A.s_min_u32(s(C1+pol), s(C1+pol), s(C3)); A.s_xor_b32(s(C0), s(C0), 8192)
            A.s_mov_b64('exec', -1)
            A.s_cmp_lt_u32(s(C2), s(C1)); A.s_cselect_b32(s(C3), 257, 1)
            if 'pol0' in OPTS or 'pol1' in OPTS: A.s_mov_b32(s(C3), 257 if 'pol1' in OPTS else 1)
            if 'polx' in OPTS: A.s_cselect_b32(s(C3), 1, 257)
            if timed:
                kl, kd = A.newlabel('hsk'), A.newlabel('hsd')
                ensure_init(A, out)
                lane_id(A, CV+2); A.v_and_b32(v(CV+2), 15, v(CV+2)); A.v_lshlrev_b32(v(CV+2), 7, v(CV+2))
                A.s_mov_b32(s(C2), cnt_addr(T_KV))
                A.label(kl)
                A.buffer_load_dword(v(CV+4), v(CV+2), s(S_WS, 4), s(C2), m='offen sc1')
                A.wait(vm=0)
                A.v_cmp_gt_u32('vcc', chain.KV_TARGET, v(CV+4))
                A.s_or_b32(s(C1), 'vcc_lo', 0x10000); A.s_ff1_i32_b32(s(C1), s(C1))
                A.s_lshl_b32(s(C1), s(C1), 20); A.s_cbranch_scc1(kd)
                guard(A, kl, out)
                A.label(kd)
                A.s_add_u32(s(C3), s(C3), s(C1))
            dbg_atomic(A, dw, ret=False, val=s(C3))
            A.label(nc)
            A.s_mov_b32(s(C2), 300 if 'forcefb' not in OPTS else 20)
            A.label(lp)
            A.buffer_load_dwordx4(v(CV+4, 4), v(CV+1), s(S_DBG, 4), 0, m=f'offen offset:{D_READY*4} sc1')
            A.wait(vm=0)
            A.v_readfirstlane_b32(s(C1), v(CV+4 + dw - D_READY)); A.v_readfirstlane_b32(s(C3), v(CV+7))
            A.s_or_b32(s(S_INIT), s(S_INIT), s(C3))
            A.s_and_b32(s(C0), s(C1), 256); A.s_lshl_b32(s(C0), s(C0), 5)
            A.s_and_b32(s(C3), s(C1), '0x1f00000'); A.s_or_b32(s(C0), s(C0), s(C3))
            A.s_and_b32(s(C3), s(C1), 0x100ff)
            A.s_cmp_lg_u32(s(C3), 65); A.s_cbranch_scc1(nx)
            A.s_bitcmp1_b32(s(S_INIT), 0); A.s_cbranch_scc1(out)
            A.label(nx)
            if timed:
                np_, wk = A.newlabel('hsp'), A.newlabel('hsw')
                A.s_bitcmp0_b32(s(C1), POISON); A.s_cbranch_scc1(np_)
                take_fb(A, out, wk)
                A.label(wk); A.s_mov_b32(s(C0), 1); A.s_branch(out)
                A.label(np_)
                g = A.newlabel('hsg')
                A.s_sub_u32(s(C2), s(C2), 1); A.s_cbranch_scc0(g)
                A.s_mov_b32(s(C2), 0)
                A.s_cmp_ge_u32(s(C3), 65); A.s_cbranch_scc1(g)
                A.s_or_b32(s(C3), s(C1), 1 << POISON)
                A.v_mov_b32(v(CV+2), s(C3)); A.v_mov_b32(v(CV+3), s(C1))
                A.s_mov_b64('exec', 1)
                A.buffer_atomic_cmpswap(v(CV+2, 2), v(CV+1), s(S_DBG, 4), 0, m=f'offen offset:{D_READY*4} sc1')
                A.s_mov_b64('exec', -1)
                A.label(g)
            if XP.get('hsl', 2): A.s_sleep(XP.get('hsl', 2))
            guard(A, lp, out)
            A.label(out)
            bcast(A, sk)
            A.s_lshr_b32(s(chain.S_KVR), s(C0), 20); A.s_and_b32(s(C0), s(C0), '0xfffff')
            A.s_and_b32(s(chain.S_POL), s(C0), 8192)
            A.s_cmp_lg_u32(s(C0), s(chain.S_POL)); A.s_cbranch_scc1(CSP)
        A.label(CHAINP)
        A.s_mov_b32(s(S_X), s(S_XCC)); A.s_mov_b32(s(S_H), s(C0))
        rts(A, 1)
        if 'log' in OPTS:
            A.s_lshl_b32(s(C4), s(S_X), 5); A.s_add_u32(s(C4), s(C4), s(S_H)); A.v_mov_b32(v(CV), s(C4)); A.v_mov_b32(v(CV+1), 0)
            A.buffer_store_dword(v(CV), v(CV+1), s(S_WS, 4), s(S_WG), m='offen offset:28')
            if 'wl' in OPTS: chain.HOOK = rts
        chain_setup(A, CABORT, False)
        chain.HOOK = None
        rts(A, 2)
        handshake(D_READY, True)
        def tstart(A, off):
            sk_ = A.newlabel('ts'); A.s_and_b32(s(C0), s(S_H), 7); A.s_or_b32(s(C0), s(C0), s(S_W)); A.s_cbranch_scc1(sk_)
            tstart_(A, off); A.label(sk_)
        def tstart_(A, off):
            A.s_memrealtime(s(C0, 2)); A.wait(lgkm=0); A.s_sub_u32(s(C0), s(C0), s(100))
            A.v_mov_b32(v(CV), s(C0)); A.v_mov_b32(v(CV+1), 0); A.s_mov_b64('exec', 1)
            A.buffer_atomic_umax(v(CV), v(CV+1), s(S_DBG, 4), 0, m=f'offen offset:{off} sc1'); A.s_mov_b64('exec', -1)
        if 'tim' in OPTS:
            tstart(A, 140)
            chain.HOOK2 = lambda A: tstart(A, 12 if "timd" in OPTS else 132)
        rts(A, 3)
        chain_loop(A, CABORT, CDONE, False)
        chain.HOOK2 = None
        A.label(CSP)
        A.s_cmp_eq_u32(s(C0), 1); A.s_cbranch_scc1(NEXT)
        A.s_branch(SPECIAL)
        A.label(CHAINF)
        A.s_and_b32(s(S_X), s(C0), 1); A.s_lshr_b32(s(S_H), s(C0), 1)
        A.wait(vm=0, lgkm=0); A.s_barrier()
        chain_setup(A, CABORT, True)
        handshake(D_READY2, False)
        chain_loop(A, CABORT, CDONE, True)
        A.label(CDONE)
        if chain.TIMERS:
            for i in range(16): A.v_mov_b32(v(32+i), s(chain.S_ACC+i))
            A.s_lshl_b32(s(C0), s(S_X), 5); A.s_add_u32(s(C0), s(C0), s(S_H)); A.s_lshl_b32(s(C0), s(C0), 2); A.s_add_u32(s(C0), s(C0), s(S_W))
            A.s_lshl_b32(s(C0), s(C0), 6); A.s_add_u32(s(C0), s(C0), WS_CTIM); A.v_mov_b32(v(48), 0)
            A.s_mov_b64('exec', 1)
            for i in range(4): A.buffer_store_dwordx4(v(32+4*i, 4), v(48), s(S_WS, 4), s(C0), m=f'offen offset:{16*i}')
            A.s_mov_b64('exec', -1)
            A.wait(vm=0, lgkm=0)
        rts(A, 4)
        if 'tim' in OPTS: tstart(A, 24 if 'timd' in OPTS else 136)
        if chain.TIMERS: A.wait(vm=0); A.s_endpgm()
        A.s_cmp_eq_u32(s(S_TASK), -1); A.s_cbranch_scc1(NEXT)
        A.s_branch(DECODE)
        A.label(CABORT)
        A.s_mov_b64('exec', -1)
        A.v_mov_b32(v(CV), '0xdead'); A.v_mov_b32(v(CV+1), 0)
        A.buffer_store_dword(v(CV), v(CV+1), s(S_DBG, 4), 0, m=f'offen offset:{D_ABORT*4} sc1')
        A.wait(vm=0)
        A.s_endpgm()
    else:
        A.label(CHAINF); A.s_endpgm()
    n = A.fix_hazards()
    errs = A.check_waits()
    for e in errs[:20]: print('WAITERR', e)
    code, desc = kernel_wrap(KNAME + '_kernel', A.text())
    ol = ['; ORDER ' + ' '.join(f'{ty}{first+i}' for ty, first, cnt in order() for i in range(cnt))] if 'log' in OPTS else []
    return header(ol + [f'; @launch grid=(256,1,1) block=(256,1,1) lds={LDS_BYTES}']) + code + '.section .rodata,"a"\n' + desc

if __name__ == '__main__':
    for spec in sys.argv[1:]:
        OPTS = set(spec.split('+')) - {'base'}
        if 'timd' in OPTS: OPTS.add('tim')
        chain.TIMERS = 'ct' in OPTS; S0, NG, ORD = 40, 2, 1
        chain.PAR.clear(); chain.PAR.update(chain.PAR0)
        import gemm; gemm.XP.clear()
        for o in OPTS:
            if o.startswith('x_'): gemm.XP[o[2:].split('=')[0]] = int(o.split('=')[1]) if '=' in o else 1
        for o in OPTS:
            if '=' in o and not o.startswith('x_'):
                k_, v_ = o.split('=')
                if k_ == 'S0': S0 = int(v_)
                elif k_ == 'NG': NG = int(v_)
                elif k_ == 'ORD': ORD = int(v_)
                else: chain.PAR[k_] = int(v_)
        import asmcheck
        p = 'mega_%s.s' % spec.replace('+', '_').replace('=', '')
        open(p, 'w').write(build())
        asmcheck.assemble(p)
```

```python
from asmlib import *
from layout import *
import struct

OPT = set()
HOOK = None
HOOK2 = None
PAR0 = dict(nm=2, np=2, swz=0, md=0, pd=0, ack=3, hv=0, vo=2, qa=18, ka=33, km=4, vp=2, nr=2, rd=16, dp=2, sp=0, x4=0, at=0, nd=0, kq=1, bo=0, rp=0, sw=0, pp=0, fp=10203, qk=0, qd=0, qs=0, ks=1)
PAR = dict(PAR0)
S_WS, S_DBG, S_TMP = 4, 8, 12
S_LO8 = 12
S_X, S_H, S_W, S_STEP, S_TO = 16, 17, 18, 19, 20
S_MEMLD, S_MEMST = 21, 23
S_XQO, S_XQI = 25, 27
S_PST, S_PLD = 29, 31
S_KX, S_VT, S_PUB, S_PUBV, S_PRG, S_KVR, S_POL = 33, 34, 35, 36, 37, 38, 39
S_PFM = 14
S_C = 40
S_T0, S_T1, S_T2, S_T3 = 42, 43, 44, 45
S_TMP2 = 48
S_ACC = 47
S_PTR = 64
def ptr(i): return S_PTR + 2*i

V_A = 0
V_MW, V_L8, V_WO, V_PST, V_PLD, V_MST, V_IDX = 0, 4, 5, 6, 7, 8, 9
V_TB, V_TK, V_ONE, V_HALF = 10, 11, 12, 14
KP, VP = 16, 24
WVR, WOR = 128, 192
def WQ(jj): return 256 + 8*jj
def WK(jj): return 384 + 8*jj
O_FO, O_KX, O_X = L_FO - L_MEMB, L_KXB - L_MEMB, L_X - L_MEMB
def QPO(): return 576 if PAR['x4'] else 544

def srd(A, d, p, nbytes):
    A.s_mov_b32(s(d), s(ptr(p))); A.s_mov_b32(s(d+1), s(ptr(p)+1))
    A.s_mov_b32(s(d+2), hex(nbytes)); A.s_mov_b32(s(d+3), '0x20000')

def load_ptrs(A):
    for i in range(0, 14, 2):
        A.s_load_dwordx4(s(ptr(i), 4), s(0, 2), i*8)
    A.s_load_dwordx2(s(ptr(14), 2), s(0, 2), 112)

def spin_guard(A, retry, abort):
    A.s_sub_u32(s(S_TO), s(S_TO), 1)
    A.s_cbranch_scc0(retry)
    A.s_branch(abort)

PB = [32, 40]
def AF(jj):
    assert jj not in (0, 2)
    return 48 + 4*([1, 3] + list(range(4, 16))).index(jj)

def xq_base(A, fb):
    A.s_lshl_b32(s(S_T0), s(S_X), 5); A.s_add_u32(s(S_T0), s(S_T0), s(S_H)); A.s_lshl_b32(s(S_T0), s(S_T0), 15)
    A.s_add_u32(s(S_T0), s(S_T0), WS_XQ + (FB_XQ if fb else 0) - L_MEMB)

def chain_setup(A, abort, fb=False):
    L, G, N16, T1, T2, T3, T4 = 16, 17, 18, 19, 20, 21, 22
    WS_PART_, WS_MEM_ = WS_PART + (FB_PART if fb else 0), WS_MEM + (FB_MEM if fb else 0)
    A.c('---- chain setup: lane constants ----')
    A.v_mbcnt_lo_u32_b32(v(L), -1, 0); A.v_mbcnt_hi_u32_b32(v(L), -1, v(L))
    A.v_lshrrev_b32(v(G), 4, v(L)); A.v_and_b32(v(N16), 15, v(L))
    A.v_lshrrev_b32(v(T1), 3, v(N16)); A.v_lshlrev_b32(v(T1), 9, v(T1)); A.v_lshl_add_u32(v(T1), v(G), 7, v(T1))
    A.v_and_b32(v(T2), 7, v(L)); A.v_lshl_add_u32(v(T1), v(T2), 4, v(T1))
    A.s_lshl_b32(s(S_T0), s(S_W), 11); A.s_add_u32(s(S_T0), s(S_T0), L_MEMB)
    A.v_add_u32(v(V_MW), s(S_T0), v(T1))
    for a_ in range(1, 4): A.v_xor_b32(v(V_A+a_), a_*2048, v(V_MW))
    A.v_lshlrev_b32(v(T1), 3, v(L)); A.v_add_u32(v(V_L8), s(S_T0), v(T1))
    A.s_lshl_b32(s(S_T3), s(S_W), 15)
    A.v_lshlrev_b32(v(T1), 4, v(L)); A.v_add_u32(v(V_WO), s(S_T3), v(T1))
    A.v_and_b32(v(T3), 1, v(G)); A.v_lshlrev_b32(v(T3), 1, v(T3)); A.v_lshrrev_b32(v(T4), 1, v(G)); A.v_add_u32(v(T3), v(T3), v(T4))
    A.v_lshlrev_b32(v(T3), 13, v(T3)); A.v_lshl_add_u32(v(T3), v(N16), 4, v(T3))
    A.s_lshl_b32(s(S_T0), s(S_W), 16); A.v_add_u32(v(T3), s(S_T0), v(T3))
    if PAR['swz']:
        A.v_lshrrev_b32(v(T4), 13, v(T3)); A.v_xor_b32(v(T4), s(S_H), v(T4)); A.v_lshl_add_u32(v(V_PST), v(T4), 8, v(T3))
    else:
        A.s_lshl_b32(s(S_T1), s(S_H), 8); A.v_add_u32(v(V_PST), s(S_T1), v(T3))
    A.v_lshrrev_b32(v(T3), 2, v(L)); A.v_lshlrev_b32(v(T3), 8, v(T3))
    A.v_and_b32(v(T4), 3, v(L)); A.v_lshl_add_u32(v(T3), v(T4), 4, v(T3))
    A.s_lshl_b32(s(S_T0), s(S_H), 13)
    if PAR['sw']: A.s_and_b32(s(S_T1), s(S_W), 1); A.s_lshl_b32(s(S_T1), s(S_T1), 7)
    else: A.s_lshl_b32(s(S_T1), s(S_W), 6)
    A.s_add_u32(s(S_T0), s(S_T0), s(S_T1))
    A.v_add_u32(v(V_PLD), s(S_T0), v(T3))
    A.v_lshrrev_b32(v(T3), 3, v(L)); A.v_lshlrev_b32(v(T3), 4, v(T3))
    A.v_and_b32(v(T4), 2, v(L)); A.v_lshl_add_u32(v(T3), v(T4), 1, v(T3))
    A.s_lshl_b32(s(S_T0), s(S_H), 8)
    if PAR['sw']: A.s_and_b32(s(S_T1), s(S_W), 1); A.s_lshl_b32(s(S_T1), s(S_T1), 7); A.s_add_u32(s(S_T0), s(S_T0), s(S_T1))
    else:
        A.s_lshr_b32(s(S_T1), s(S_W), 1); A.s_lshl_b32(s(S_T1), s(S_T1), 7); A.s_add_u32(s(S_T0), s(S_T0), s(S_T1))
        A.s_and_b32(s(S_T1), s(S_W), 1); A.s_lshl_b32(s(S_T1), s(S_T1), 3); A.s_add_u32(s(S_T0), s(S_T0), s(S_T1))
    A.v_add_u32(v(T3), s(S_T0), v(T3))
    A.v_and_b32(v(T4), 5, v(L)); A.v_cmp_eq_u32('vcc', 0, v(T4)); A.v_bfrev_b32(v(T4), 1)
    A.v_cndmask_b32(v(V_MST), v(T4), v(T3))
    A.v_mov_b32(v(T3), '0x4444'); A.v_mov_b32(v(T4), '0xeeee')
    A.v_cmp_lt_u32('vcc', 7, v(N16)); A.v_cndmask_b32(v(V_IDX), v(T3), v(T4))
    A.v_lshrrev_b32(v(T1), 1, v(G)); A.v_lshlrev_b32(v(T1), 8, v(T1))
    A.v_and_b32(v(T2), 1, v(L)); A.v_lshl_add_u32(v(T1), v(T2), 7, v(T1))
    A.v_and_b32(v(T2), 1, v(G)); A.v_lshl_add_u32(v(T1), v(T2), 3 if PAR['x4'] else 6, v(T1))
    A.v_bfe_u32(v(T2), v(L), 2, 2); A.v_lshl_add_u32(v(T1), v(T2), 4 if PAR['x4'] else 3, v(T1))
    A.v_add_u32(v(V_TK), L_FO, v(T1))
    A.v_bfe_u32(v(T2), v(L), 1, 1); A.v_mul_u32_u24(v(T2), QPO(), v(T2)); A.v_add_u32(v(T1), v(T1), v(T2))
    A.v_add_u32(v(V_TB), L_X, v(T1))
    for i in range(2): A.v_mov_b32(v(V_ONE+i), '0x3f803f80'); A.v_mov_b32(v(V_HALF+i), '0x3f003f00')
    A.c('---- scalar constants ----')
    cbits = struct.unpack('<I', struct.pack('<f', (128 ** -0.5) * 1.4426950408889634))[0]
    A.s_mov_b32(s(S_C), hex(cbits)); A.s_mov_b32(s(S_C+1), hex(cbits))
    A.s_lshl_b32(s(S_T0), s(S_X), 14)
    for par in range(2):
        A.s_add_u32(s(S_MEMST+par), s(S_T0), WS_MEM_ + par*8192)
        A.s_add_u32(s(S_MEMLD+par), s(S_T0), WS_MEM_ + par*8192 - L_MEMB)
    A.s_lshl_b32(s(S_PRG), s(S_X), 5); A.s_add_u32(s(S_PRG), s(S_PRG), s(S_H)); A.s_lshl_b32(s(S_PRG), s(S_PRG), 7); A.s_add_u32(s(S_PRG), s(S_PRG), WS_CTL + C_PROG)
    A.s_lshl_b32(s(S_T0), s(S_X), 18)
    for i in range(2):
        A.s_add_u32(s(S_PST+i), s(S_T0), WS_PART_ + i*32768)
        A.s_add_u32(s(S_PLD+i), s(S_T0), WS_PART_ + i*4096)
    if PAR['swz']:
        A.s_and_b32(s(S_T1), s(S_H), 4); A.s_lshl_b32(s(S_T1), s(S_T1), 9); A.s_add_u32(s(S_PST+1), s(S_PST+1), 1024); A.s_sub_u32(s(S_PST+1), s(S_PST+1), s(S_T1))
    A.s_lshl_b32(s(S_T0), s(S_H), 13)
    if PAR['sw']:
        A.s_mov_b32(s(S_KX), hex(WS_KX)); A.s_mov_b32(s(S_VT), L_KXB)
        A.s_bitcmp1_b32(s(S_W), 0); A.s_cmov_b32(s(S_KX), hex(WS_VT)); A.s_cmov_b32(s(S_VT), L_MEMB)
        A.s_add_u32(s(S_KX), s(S_KX), s(S_T0)); A.s_sub_u32(s(S_KX), s(S_KX), s(S_T3))
    else: A.s_add_u32(s(S_KX), s(S_T0), WS_KX - L_MEMB); A.s_add_u32(s(S_VT), s(S_T0), WS_VT - L_MEMB)
    A.s_add_u32(s(S_PUBV), s(S_T0), WS_PUB - L_MEMB); A.s_lshl_b32(s(S_T1), s(S_X), 9); A.s_add_u32(s(S_PUBV), s(S_PUBV), s(S_T1))
    A.c('---- init hand-off buffers (write-through) ----')
    for i in range(4): A.v_mov_b32(v(32+i), 1)
    A.v_mov_b32(v(36), -1)
    xq_base(A, fb)
    for k in range(4):
        A.buffer_store_dwordx4(v(32, 4), v(V_MW), s(S_WS, 4), s(S_T0), m='offen sc1')
        A.buffer_store_dwordx4(v(32, 4), v(V_MW), s(S_WS, 4), s(S_T0), m='offen offset:1024 sc1')
        if k < 3: A.s_add_u32(s(S_T0), s(S_T0), 8192)
    for q in range(2):
        A.buffer_store_dwordx4(v(32, 4), v(V_PLD), s(S_WS, 4), s(S_PLD+q), m='offen sc1')
        if PAR['sw']: A.buffer_store_dwordx4(v(32, 4), v(V_PLD), s(S_WS, 4), s(S_PLD+q), m='offen offset:64 sc1')
    for par in range(2):
        A.buffer_store_dword(v(36), v(V_MST), s(S_WS, 4), s(S_MEMST+par), m='offen sc1')
        if PAR['sw']: A.buffer_store_dword(v(36), v(V_MST), s(S_WS, 4), s(S_MEMST+par), m='offen offset:8 sc1')
    A.c('---- weight load: whole 128-byte lines, wave pairs share the staged rows ----')
    VD, VDO, VRV, VRVB, VRP, VRPB, VRO, VM0, R_ = 23, 24, 25, 26, 27, 28, 29, 30, 31
    A.v_lshrrev_b32(v(T1), 3, v(L)); A.v_and_b32(v(T2), 7, v(L)); A.v_lshlrev_b32(v(T3), 4, v(T2))
    A.v_lshl_add_u32(v(VD), v(T1), 13, v(T3)); A.v_lshl_add_u32(v(VDO), v(T1), 11, v(T3))
    A.s_lshl_b32(s(S_T0), s(S_X), 22); A.s_lshl_b32(s(S_T1), s(S_H), 8); A.s_add_u32(s(S_T0), s(S_T0), s(S_T1))
    A.s_lshr_b32(s(S_T1), s(S_W), 1); A.s_lshl_b32(s(S_T1), s(S_T1), 7); A.s_add_u32(s(S_T0), s(S_T0), s(S_T1)); A.v_add_u32(v(VD), s(S_T0), v(VD))
    A.s_lshl_b32(s(S_T0), s(S_H), 18); A.s_lshl_b32(s(S_T1), s(S_X), 10); A.s_add_u32(s(S_T0), s(S_T0), s(S_T1))
    A.s_lshl_b32(s(S_T1), s(S_W), 8); A.s_add_u32(s(S_T0), s(S_T0), s(S_T1)); A.v_add_u32(v(VDO), s(S_T0), v(VDO))
    A.v_and_b32(v(T2), 3, v(L))
    A.v_bfe_u32(v(R_), v(L), 3, 1)
    A.v_bfe_u32(v(T1), v(L), 2, 1)
    A.s_and_b32(s(S_T0), s(S_W), 1); A.s_lshl_b32(s(S_T0), s(S_T0), 6); A.s_add_u32(s(S_T0), s(S_T0), s(S_T3))
    A.v_lshl_add_u32(v(T4), v(G), 2, v(T1)); A.v_lshlrev_b32(v(T4), 7, v(T4)); A.v_add_u32(v(T4), s(S_T0), v(T4))
    A.v_mul_u32_u24(v(VRV), 4128, v(R_)); A.v_lshl_add_u32(v(VRV), v(T2), 3, v(VRV)); A.v_add_u32(v(VRV), v(VRV), v(T4)); A.v_xor_b32(v(VRVB), '0x1000', v(VRV))
    A.v_xor_b32(v(VRP), '0x8000', v(VRV)); A.v_xor_b32(v(VRPB), '0x8000', v(VRVB))
    A.v_and_b32(v(T3), 1, v(G)); A.v_lshlrev_b32(v(T3), 4, v(T3)); A.v_lshrrev_b32(v(T4), 1, v(G)); A.v_lshl_add_u32(v(T3), v(T4), 2, v(T3))
    A.v_add_u32(v(T3), v(T3), v(T1)); A.v_lshlrev_b32(v(T3), 7, v(T3)); A.v_lshl_add_u32(v(T3), v(R_), 5, v(T3)); A.v_lshl_add_u32(v(T3), v(T2), 3, v(T3))
    A.v_add_u32(v(VRO), s(S_T3), v(T3))
    A.v_and_b32(v(T1), 7, v(L)); A.v_lshlrev_b32(v(T1), 11, v(T1)); A.v_lshl_add_u32(v(T1), v(G), 4, v(T1))
    A.v_lshl_add_u32(v(T1), v(R_), 6, v(T1))
    A.s_lshl_b32(s(S_T0), s(S_X), 10); A.s_lshl_b32(s(S_T1), s(S_W), 8); A.s_add_u32(s(S_T0), s(S_T0), s(S_T1)); A.v_add_u32(v(VM0), s(S_T0), v(T1))
    two = lambda m_, l_: [(m_, a_, i) for a_ in l_ for i in range(2)]
    groups = two('q', (0, 2)) + two('k', (0, 2)) + two('v', (0,)) + two('o', (0, 1)) + two('v', (2,))
    cur = [None]
    def setsrd(p, n):
        if cur[0] != p: srd(A, S_TMP, p, n); cur[0] = p
    def issue(g):
        slot, (m_, a_, i) = g % 4, groups[g]
        setsrd(*{'q': (P_WQ, 1 << 23), 'k': (P_WK, 1 << 23), 'v': (P_WV, 1 << 23), 'o': (P_WO, 1 << 23)}[m_])
        if m_ != 'o': A.s_xor_b32(s(S_T1), s(S_W), a_); A.s_lshl_b32(s(S_T1), s(S_T1), 20)
        for b in range(8):
            if m_ != 'o': A.s_add_u32(s(S_T0), s(S_T1), hex((64*i + 8*b) << 13))
            else:
                if b % 4 == 0: A.s_xor_b32(s(S_T1), s(S_W), 2*i + b // 4); A.s_lshl_b32(s(S_T1), s(S_T1), 16)
                A.s_add_u32(s(S_T0), s(S_T1), hex((b % 4)*16384 + a_*128))
            A.s_add_u32('m0', s(S_T3), slot*8192 + b*1024)
            A.buffer_load_dwordx4(v(VDO if m_ == 'o' else VD), s(S_TMP, 4), s(S_T0), m='offen lds')
    def wr_frag(src, f):
        for u in range(2): A.ds_write_b128(v(V_WO), v(src + 4*u, 4), m=f'offset:{f*2048 + u*1024}')
    for g in range(4): issue(g)
    for g in range(16):
        A.wait(vm=min(3, 15-g) * 8)
        slot, (m_, a_, i) = g % 4, groups[g]
        if m_ != 'o': A.s_barrier()
        for k in range(4):
            for m in range(4):
                if m_ != 'o':
                    jj = 4*(a_ + k // 2) + 2*i + k % 2
                    if m_ == 'v': dst = WVR + 8*jj if a_ < 2 else 96 + 8*k
                    else: dst = (WQ if m_ == 'q' else WK)(jj)
                    A.ds_read_b64_tr_b16(r(dst + 2*m, 2), v([VRV, VRVB, VRP, VRPB][k]), m=f'offset:{slot*8192 + (16*(m//2) + 2*(m % 2))*128}')
                else:
                    T_ = 2*a_ + k % 2
                    dst = {0: 32 + 8*T_, 3: 64 + 8*T_, 1: WOR + 8*T_, 2: WOR + 32 + 8*T_}[2*i + k // 2]
                    A.ds_read_b64_tr_b16(v(dst + 2*m, 2), v(VRO), m=f'offset:{slot*8192 + (32*(k//2) + 8*(m//2) + 2*(m % 2))*128 + (k % 2)*64}')
            if k == 2: A.wait(lgkm=4)
        A.wait(lgkm=0)
        if m_ != 'o': A.s_barrier()
        if HOOK and g % 2 == 0: HOOK(A, 8 + g//2)
        if g+4 < 16: issue(g+4)
        if g >= 14:
            for k in range(4): wr_frag(96 + 8*k, 4*(k // 2) + 2*i + k % 2)
            A.wait(lgkm=0)
    for k in range(8): wr_frag(32 + 8*k, 8 + k)
    A.wait(lgkm=0)
    srd(A, S_TMP, P_MEM0, 8*1024*2)
    for i in range(2):
        A.buffer_load_dwordx4(v(PB[0]+4*i, 4), v(VM0), s(S_TMP, 4), 0, m=f'offen offset:{i*128}')

def kv_wait(A, abort, blk_sreg, t):
    lp, ok, got, oth = A.newlabel('kvw'), A.newlabel('kvok'), A.newlabel('kvg'), A.newlabel('kvo')
    A.s_cmp_lt_u32(s(blk_sreg), s(S_KVR)); A.s_cbranch_scc1(ok)
    A.s_cmp_lg_u32(s(S_W), 0); A.s_cbranch_scc1(oth)
    A.v_bfe_u32(v(t), v(V_WO), 4, 4); A.v_lshlrev_b32(v(t), 7, v(t))
    A.s_mov_b32(s(S_T0), WS_CTL + C_CNT + T_KV*2048)
    A.label(lp)
    A.buffer_load_dword(v(t+1), v(t), s(S_WS, 4), s(S_T0), m='offen sc1')
    A.wait(vm=0)
    A.v_cmp_gt_u32('vcc', KV_TARGET, v(t+1))
    A.s_or_b32(s(S_KVR), 'vcc_lo', 0x10000); A.s_ff1_i32_b32(s(S_KVR), s(S_KVR))
    A.s_cmp_lt_u32(s(blk_sreg), s(S_KVR)); A.s_cbranch_scc1(got)
    A.s_sleep(4)
    A.s_sub_u32(s(S_TO), s(S_TO), 1); A.s_cbranch_scc0(lp)
    A.s_mov_b32(s(S_KVR), 0)
    A.label(got)
    A.v_mov_b32(v(t), L_MISC + 16); A.v_mov_b32(v(t+1), s(S_KVR)); A.ds_write_b32(v(t), v(t+1))
    A.label(oth)
    A.wait(vm=0, lgkm=0); A.s_barrier()
    A.v_mov_b32(v(t), L_MISC + 16); A.ds_read_b32(v(t+1), v(t)); A.wait(lgkm=0)
    A.v_readfirstlane_b32(s(S_KVR), v(t+1))
    A.s_cmp_eq_u32(s(S_KVR), 0); A.s_cbranch_scc1(abort)
    A.label(ok)
KV_TARGET = 32

def kv_prefetch(A):
    ops = []
    if PAR['sw']:
        ld = lambda so, t: A.buffer_load_dwordx4(v(V_WO), s(S_WS, 4), s(so), m=f'offen offset:{1024*t} sc1 lds')
        on, off = (lambda: A.s_mov_b64('exec', s(S_PFM, 2))), (lambda: A.s_mov_b64('exec', -1))
        def h0(): A.s_mov_b32('m0', s(S_VT)); on(); [ld(S_KX, t) for t in range(4)]
        def h1(): A.s_add_u32('m0', s(S_VT), 4096); A.s_add_u32(s(S_T2), s(S_KX), 4096); [ld(S_T2, t) for t in range(4)]; off()
        if PAR['pp'] == 1: return [lambda: (h0(), off()), lambda: (on(), h1())]
        return [lambda: (h0(), h1())]
    for t in range(2): ops.append(lambda t=t: A.buffer_load_dwordx4(v(KP+4*t, 4), v(V_MW), s(S_WS, 4), s(S_KX), m=f'offen offset:{1024*t} sc1'))
    for t in range(2): ops.append(lambda t=t: A.buffer_load_dwordx4(v(VP+4*t, 4), v(V_MW), s(S_WS, 4), s(S_VT), m=f'offen offset:{1024*t} sc1'))
    return ops
def kv_advance(A):
    A.s_add_u32(s(S_KX), s(S_KX), 262144)
    if not PAR['sw']: A.s_add_u32(s(S_VT), s(S_VT), 262144)
def vt_read(A):
    for t in range(2): A.ds_read_b128(v(VP+4*t, 4), v(V_MW), m=f'offset:{1024*t}')

TIMERS = False
NTM = 14
def TM(A, i):
    if TIMERS: (A.s_memrealtime if PAR.get('raw') else A.s_memtime)(s(64+2*i, 2))
def TMACC(A):
    if TIMERS:
        A.wait(lgkm=0)
        if PAR.get('raw'):
            A.s_cmp_eq_u32(s(S_STEP), PAR['raw'])
            for i in range(NTM): A.s_cselect_b32(s(S_ACC+i), s(64+2*i), s(S_ACC+i))
        for i in range(NTM-1):
            if PAR.get('raw'): break
            A.s_sub_u32(s(S_T0), s(66+2*i), s(64+2*i)); A.s_add_u32(s(S_ACC+i), s(S_ACC+i), s(S_T0))
        A.s_mov_b32(s(64), s(64+2*(NTM-1)))
def CNT(A, k):
    if TIMERS: A.s_add_u32(s(61 + k//3), s(61 + k//3), 1 << (10*(k % 3)))
def cvt(A, d, a_, b): return lambda: A.v_cvt_pk_bf16_f32(v(d), v(a_), v(b))
def tagop(A, d, tag): return (lambda: A.v_or_b32(v(d), 1, v(d))) if tag else (lambda: A.v_and_b32(v(d), -2, v(d)))
def run(ops):
    for f in ops: f()

QA, KA, VA = 104, 108, 112
BB, TC = 116, 120
def pre_mem(A):
    if not PAR['sw']:
        for t in range(2): A.ds_write_b128(v(V_MW), v(KP+4*t, 4), m=f'offset:{O_KX + 1024*t}')
    for i in range(6): A.v_mov_b64(v(QA+2*i, 2), 0)
    for a_ in range(4): A.v_xor_b32(v(BB+a_), 512, v(V_A+a_))

def chain_step(A, u, abort, fb, cold, first_entry=None, last=False, done=None):
    par, xtag, ptag = u % 2, (u // 2) % 2, u % 2
    st = 'offen sc1' if fb else 'offen'
    A.c(f'======== chain step u={u} last={last} ========')
    sm = lambda acc, af, W: A.v_smfmac_f32_16x16x64_bf16(v(acc, 4), v(af, 4), r(W, 8), v(V_IDX))
    def poll(check, loads, nfl, name):
        lp, rt = A.newlabel(name + 'l'), A.newlabel(name + 'r')
        A.label(lp); check(); A.s_cbranch_vccnz(rt)
        def emit():
            A.label(rt); A.s_mov_b64('exec', 'vcc')
            if name == 'q': CNT(A, 0)
            k = len(A.items); loads(); k = len(A.items) - k
            A.s_mov_b64('exec', -1)
            A.s_sub_u32(s(S_TO), s(S_TO), 1); A.s_cbranch_scc1(abort)
            A.wait(vm=k*(nfl-1)); A.s_branch(lp)
        cold.append(emit)
        return lp
    p = PB[0]
    def memld():
        for i in range(2): A.buffer_load_dwordx4(v(p+4*i, 4), v(V_MW), s(S_WS, 4), s(S_MEMLD+par), m=f'offen offset:{1024*i} sc1').nochk = True
    late = PAR['md'] or PAR['ack'] & 2
    if not late: memld()
    TMACC(A)
    pre_mem(A)
    if PAR['dp'] < 0: A.v_mov_b32(v(124), ((u + 3) // 2) % 2); A.v_mov_b32(v(125), s(S_STEP))
    if PAR['ack'] & 2: A.wait(vm=0)
    if PAR['sw']: A.s_barrier()
    if late: A.nop(PAR['md']); memld()
    if PAR['sw']: vt_read(A)
    A.wait(vm=0)
    others = [(a_, i, f) for a_ in range(1, 4) for i in range(2) for f in range(2)]
    def ord_(k, q):
        a_, i, f = others[k]
        A.ds_read_b128(v(AF(4*a_+2*i+f), 4), v((BB if f else V_A) + a_), m=f'offset:{1024*i}'); q.issue(4*a_+2*i+f)
    def mchk():
        A.v_max3_u32(v(TC), v(p), v(p+1), v(p+2)); A.v_max3_u32(v(TC+1), v(p+3), v(p+4), v(p+5))
        A.v_max3_u32(v(TC), v(TC), v(p+6), v(p+7)); A.v_max_u32(v(TC), v(TC), v(TC+1))
        A.v_cmp_eq_u32('vcc', -1, v(TC))
    top = poll(mchk, memld, PAR['nm'], 'm')
    if first_entry:
        def emit_entry():
            A.label(first_entry); A.wait(vm=0)
            if PAR['sw']: A.s_barrier(); vt_read(A)
            for i in range(8): A.v_min_u32(v(PB[0]+i), -2, v(PB[0]+i))
            pre_mem(A)
            A.v_mov_b32(v(124), 1); A.v_mov_b32(v(125), 0)
            for i in range(NTM): TM(A, i)
            A.s_branch(top)
        cold.append(emit_entry)
    q = LQ(A)
    TM(A, 1)
    vq = []
    def vwait(tag):
        i = vq.index(tag); A.wait(vm=len(vq) - 1 - i); del vq[:i+1]
    full = lambda: A.s_mov_b64('exec', -1)
    X4 = PAR['x4']; US, XN = (64, 4) if X4 else (32, 2)
    lo8 = (lambda: A.s_mov_b64('exec', s(S_LO8, 2))) if X4 else (lambda: None)
    ful8 = full if X4 else (lambda: None)
    def xw(src, lds): (A.ds_write_b128 if X4 else A.ds_write_b64)(v(V_MW if X4 else V_L8), v(src, XN), m=f'offset:{lds}')
    def xo(src, off, n): (A.buffer_store_dwordx4 if n == 4 else A.buffer_store_dwordx2)(v(src, n), v(V_MW if n == 4 else V_L8), s(S_WS, 4), s(S_XQO+par), m=f'offen offset:{off} sc1')
    def xi(dst, off, n):
      if PAR['at'] & {0: 1, 512: 2, 1024: 4}[off]:
        A.v_mov_b64(v(dst, 2), 0)
        A.buffer_atomic_or_x2(v(dst, 2), v(V_L8), s(S_WS, 4), s(S_XQI+par), m=f'offen offset:{off} sc0 sc1').nochk = True
      else: (A.buffer_load_dwordx4 if n == 4 else A.buffer_load_dwordx2)(v(dst, n), v(V_MW if n == 4 else V_L8), s(S_WS, 4), s(S_XQI+par), m=f'offen offset:{off} sc1').nochk = True
    def progress(val, t):
        A.buffer_store_dword(v(t), 'off', s(S_WS, 4), s(S_PRG), m='sc1'); vq.append('prog')
    def late_drop():
        ot = ((u + 3) // 2) % 2
        dr = lambda i: (A.buffer_store_dword(v(124), v(V_MW), s(S_WS, 4), s(S_XQI+1-par), m=f'offen offset:{1024*i} sc1'), vq.append(f'ld{i}'))
        m8 = lambda: (A.s_mov_b32('exec_lo', '0x01010101'), A.s_mov_b32('exec_hi', '0x01010101'))
        return [lambda: (A.v_mov_b32(v(124), ot), A.v_mov_b32(v(125), s(S_STEP)))] + ([] if last or PAR['nd'] else [lambda: (m8(), dr(0), full()), lambda: (m8(), dr(1), full())]) + [
                lambda: (A.s_mov_b64('exec', 1), progress(0, 125), full())]
    A.ds_write_b128(v(V_MW), v(p, 4)); A.ds_write_b128(v(V_MW), v(p+4, 4), m='offset:1024'); q.issue('w0'); q.issue('w1')
    if not last: sm(QA, p, WQ(0))
    A.ds_read_b128(v(AF(1), 4), v(BB)); A.ds_read_b128(v(AF(3), 4), v(BB), m='offset:1024'); q.issue(1); q.issue(3)
    if not last: sm(QA, p+4, WQ(2))
    sm(KA, p, WK(0))
    q.need(['w1']); A.s_barrier()
    TM(A, 2)
    vown = [(VA, p, WVR, None), (VA, p+4, WVR+16, None), (VA, AF(1), WVR+8, 1), (VA, AF(3), WVR+24, 3)]
    vo = PAR['vo']
    fill = [(KA, p+4, WK(2), None)] + ([] if last else [(QA, AF(1), WQ(1), 1), (QA, AF(3), WQ(3), 3)]) + [(KA, AF(1), WK(1), 1), (KA, AF(3), WK(3), 3)] + vown[:vo]
    QK = PAR['qk'] and not last
    if QK: fill = [fill[i] for i in (0, 1, 3, 2, 4)] + fill[5:]
    k = 0
    ld_ = late_drop()
    if PAR['dp'] < 0 and not last:
        ot = ((u + 3) // 2) % 2
        A.s_mov_b32('exec_lo', '0x01010101'); A.s_mov_b32('exec_hi', '0x01010101')
        for i in range(2): A.buffer_store_dword(v(124), v(V_MW), s(S_WS, 4), s(S_XQI+1-par), m=f'offen offset:{1024*i} sc1'); vq.append(f'ld{i}')
        if PAR['dp'] == -2: progress(0, 125); ld_ = []
        else: ld_ = ld_[3:]
        full()
    for acc_, af, W, nd in fill:
        for _ in range(2):
            if k < 12: ord_(k, q); k += 1
        if nd: q.need([nd])
        sm(acc_, af, W)
    while k < 12: ord_(k, q); k += 1
    if last: run(ld_)
    QR, PKV, KRA, VR, XT = QA, VA, KP+4, 118, 114
    VKB, VTW = 116, 117
    KR, BP, K0, VTC, TK = 56, 88, 32, 48, 120
    VF = [40, 120, 32, 48, 40, 120, 32, 48]
    def vrd(k):
        for uu in range(2): A.ds_read_b128(v(VF[k]+4*uu, 4), v(V_WO), m=f'offset:{k*2048 + uu*1024}'); q.issue(('v', k, uu))
    def send(acc_, off, lds, tag, tm):
        o1 = [cvt(A, acc_, acc_, acc_+1), cvt(A, acc_+1, acc_+2, acc_+3)]
        if lds is None: return o1 + ([] if last else [tagop(A, acc_, xtag), lambda: (xo(acc_, off, 2), vq.append(tag))]) + [lambda: TM(A, tm)]
        o2 = [lambda i=i: A.v_mov_b32_dpp(v(acc_+2+i), v(acc_+i), m='row_ror:8 row_mask:0xf bank_mask:0xf') for i in range(2 if X4 else 0)]
        if not last: o2 += [tagop(A, acc_, xtag)]
        o3 = [lo8] + ([] if last else [lambda: (xo(acc_, off, XN), vq.append(tag))])
        o3 += [lambda: (xw(acc_, lds), q.issue(tag)), ful8, lambda: TM(A, tm)]
        return [[o1 + o2 + o3], [o1, o2 + o3], [o1, o2, o3]][PAR['sp']]
    if not last and not QK:
        for n, jj in enumerate(range(4, 16)):
            q.need([jj]); sm(QA, AF(jj), WQ(jj))
            if n >= (PAR['dp'] if PAR['dp'] >= 0 else 2) and ld_: ld_.pop(0)()
        assert not ld_
    side = {n: [] for n in range(12)}
    if QK:
        for n in range(len(ld_)): side[PAR['dp'] + n].append(ld_[n])
    elif not last:
        for i, o_ in enumerate(send(QA, 0, O_X, 'qs', 3)): side[1+i] += o_
    side[4] += [lambda: vrd(0)]; side[5] += [lambda: vrd(1)]
    side[7] += [lambda: A.v_and_b32(v(VKB), ~0x1800, v(V_MW)), lambda: A.s_lshl_b32(s(S_T1), s(S_W), 11), lambda: A.v_add_u32(v(VTW), s(S_T1), v(V_TK))]
    flush = lambda: A.wait(vm=len(vq))
    if vo >= 2: side[8] += [flush, lambda: vrd(2)]
    if vo >= 4: side[10] += [lambda: vrd(3)]
    polls = {}
    if not last:
        for key, dst, off in (('qa', QR, 0), ('ka', KRA, 512)):
            polls.setdefault(PAR[key], []).append(lambda key=key, dst=dst, off=off: (lo8(), xi(dst, off, XN), vq.append(key), ful8()))
    for n, jj in enumerate(range(4, 16)):
        q.need([jj])
        if QK: sm(QA, AF(jj), WQ(jj))
        sm(KA, AF(jj), WK(jj)); run(side.get(n, []) + polls.pop(n, []))
    vseq = vown[vo:] + [(VA, AF(jj), WVR + 8*jj if jj < 8 else VF[jj-8], jj) for jj in (8, 9, 10, 4, 5, 11, 6, 7, 12, 13, 14, 15)]
    nd_ = 4 - vo
    side = {n: [] for n in range(len(vseq))}
    if QK:
        for i, o_ in enumerate(send(QA, 0, O_X, 'qs', 3)): side[PAR['qs']+i] += o_
    for i, o_ in enumerate(send(KA, 512, O_FO, 'ks', 4)): side[PAR['ks']+i] += o_
    if vo < 2: side[nd_-3] += [flush, lambda: vrd(2)]
    if vo < 4: side[nd_-1] += [lambda: vrd(3)]
    for i, n in enumerate((0, 1, 2, 5)): side[nd_+n] += [lambda i=i: vrd(4+i)]
    def krd(b, t): A.ds_read_b128(v(KR+8*b+4*t, 4), v(VKB), m=f'offset:{O_KX + 2048*b + 1024*t}'); q.issue(('K', b, t))
    if not last:
        for i in range(4): side[nd_+8+i] += [lambda i=i: krd(i, 0), lambda i=i: krd(i, 1)]
    for n, (acc_, af, W, jj) in enumerate(vseq):
        if n >= nd_ and jj >= 8: q.need([('v', jj-8, 0), ('v', jj-8, 1)])
        sm(acc_, af, W); run(side[n] + polls.pop(12+n, []))
    tr = lambda d, a_, off, tag: (A.ds_read_b64_tr_b16(v(d, 2), v(a_), m=f'offset:{off}'), q.issue(tag))
    pubv = lambda: (A.buffer_store_dwordx2(v(PKV, 2), v(V_L8), s(S_WS, 4), s(S_PUBV), m='offen offset:1024 sc1'), vq.append('pv'))
    def pubk():
        q.need([('t', 1)])
        A.s_mov_b64('exec', s(S_LO8, 2))
        A.buffer_store_dwordx4(v(TK, 4), v(V_MW), s(S_WS, 4), s(S_PUBV), m='offen sc1'); vq.append('pk')
        A.s_mov_b64('exec', -1)
    for uu in range(2): tr(TK+2*uu, VTW, US*uu, ('t', uu))
    if last:
        run(send(VA, 1024, None, 'vs', 5)); pubv(); pubk()
        A.wait(vm=0); A.s_barrier()
        A.v_mov_b32(v(32), 64); progress(64, 32)
        A.s_branch(done)
        return
    q.need(['ks']); A.s_barrier()
    K1 = KP if QK else K0
    def krd2(off):
        for b in range(4):
            for uu in range(2): tr((K1 if off else K0)+4*b+2*uu, V_TK, 2048*b + off + US*uu, ('k', b, uu))
    run(polls.pop(30, []))
    if 'ld1' in vq: vwait('ld1')
    run(send(VA, 1024, None, 'vs', 5))
    run(polls.pop(31, []))
    krd2(0)
    for i in range(4): A.v_mov_b64(v(VTC+2*i, 2), v(VP+2*i, 2))
    if u == 3: A.s_add_u32(s(S_T1), s(S_STEP), 1); A.s_lshr_b32(s(S_T1), s(S_T1), 2)
    if 32 in polls: A.nop(PAR['qd'])
    run(polls.pop(32, []))
    if 33 in polls: vwait('ks'); A.nop(PAR['qd']); run(polls.pop(33))
    if 35 in polls: vwait('vs'); run(polls.pop(35))
    vpoll = lambda: (xi(VR, 1024, 2), vq.append('vp'))
    if PAR['vp'] == 0: vpoll()
    def xchk(r_): A.v_and_b32(v(XT), 1, v(r_)); A.v_cmp_ne_u32('vcc', xtag, v(XT))
    def train(m_, RA, off, lds, c0):
        rot = ([116, 118] if QK else [24, 28])[:PAR['nr']]
        lo8(); vwait(m_ + 'a')
        kx, kok = A.newlabel('kx'), A.newlabel('kok')
        xchk(RA); A.s_cbranch_vccnz(kx); A.label(kok)
        def emit():
            lp = A.newlabel('kxl')
            kk = A.newlabel('kxk') if m_ == 'q' and PAR['kq'] else kok
            A.label(kx); CNT(A, c0); A.nop(PAR['bo'])
            for n, rg in enumerate(rot):
                if n: A.nop(PAR['rd'])
                xi(rg, off, XN)
            A.label(lp)
            for rg in rot:
                CNT(A, c0+1); A.wait(vm=len(rot)-1)
                for i in range(XN//2): A.v_mov_b64(v(RA+2*i, 2), v(rg+2*i, 2))
                xchk(RA); A.s_cbranch_vccz(kk); A.nop(PAR['rp']); xi(rg, off, XN)
            spin_guard(A, lp, abort)
            if kk != kok: A.label(kk); xi(KRA, 512, XN); A.s_branch(kok)
        cold.append(emit)
        xw(RA, lds); q.issue(m_ + 'w'); ful8()
    train('q', QR, 0, O_X + QPO(), 0)
    TM(A, 6)
    if PAR['vp'] == 1: vpoll()
    run(polls.pop(34, []))
    if QK: train('k', KRA, 512, O_FO + 512, 2); TM(A, 7); q.need(['kw'])
    q.need(['qw']); A.s_barrier()
    for b in range(4):
        for uu in range(2): tr(BP+4*b+2*uu, V_TB, 2048*b + US*uu, ('b', b, uu))
    if QK: krd2(512)
    SX0, SX1, SM = 104, 108, 124
    mf = lambda d, a_, b_, c_: A.v_mfma_f32_16x16x32_bf16(v(d, 4), v(a_, 4), v(b_, 4), c_)
    ml = [(SM, K0+4*b, b) for b in range(4)] + [(sx, KR+8*b+4*t, b) for b in range(4) for t, sx in enumerate((SX0, SX1))]
    if QK: ml = [e for b in range(4) for e in (ml[4+2*b], ml[5+2*b], ml[b])]
    def smf(i):
        d, a_, b = ml[i]
        q.need([('b', b, 1)]); mf(d, a_, BP+4*b, v(d, 4) if b else 0)
    kc = PAR['km']
    for i in range(kc): smf(i)
    if PAR['vp'] == 2: vpoll()
    assert not polls
    if not QK: train('k', KRA, 512, O_FO + 512, 2); TM(A, 7)
    if PAR['vp'] == 3: vpoll()
    pfl = kv_prefetch(A)
    pf = [lambda f=f: (f(), vq.extend(['pf'] * (8 // len(pfl) if PAR['sw'] else 1))) for f in pfl]
    M = 120
    fpos = [] if PAR['sw'] else [PAR['fp'] // 100**(3-i) % 100 for i in range(4)]
    def PF(k):
        for i in range(fpos.count(k)):
            f = pf.pop(0)
            if k < 90: f()
            if not pf: kv_advance(A)
    sl = [pubv, pubk]
    nb = max(kc + 4, 4)
    for i in range(kc, nb):
        smf(i)
        if sl: sl.pop(0)()
    run(sl)
    if not QK: q.need(['kw']); A.s_barrier(); krd2(512)
    else: assert min(fpos) >= 5
    if u == 3: kv_wait(A, abort, S_T1, XT if QK else M)
    for i in range(nb, 12):
        smf(i)
        PF(i - 8)
        if pf and PAR['sw'] and (i >= {0: 11, 1: 9, 2: 8, 3: 10}[PAR['pp']] and (PAR['pp'] != 1 or i % 2)): pf.pop(0)()
    PF(99)
    if PAR['sw']: run(pf); kv_advance(A)
    A.s_add_u32(s(S_PUBV), s(S_PUBV), 262144)
    WF = [56, 64, 72, 80, 40, 88, 56, 64]
    WI = [8, 9, 10, 11, 12, 13, 14, 15]
    def wrd(k, uu): A.ds_read_b128(v(WF[k]+4*uu, 4), v(V_WO), m=f'offset:{WI[k]*2048 + uu*1024}'); q.issue(('w', k, uu))
    wl = [lambda k=k, uu=uu: wrd(k, uu) for k in range(6) for uu in range(2)]
    T = M + 1
    PX, PM = 32, 36
    dadd = lambda r_: A.v_add_f32_dpp(v(r_), v(r_), v(r_), m='row_ror:8 row_mask:0xf bank_mask:0xf')
    def sm1(b): q.need([('k', b, 1)]); mf(SM, K1+4*b, BP+4*b, v(SM, 4))
    run(wl[0:2])
    sm1(0); dadd(104); dadd(105); dadd(106)
    sm1(1); PF(4); dadd(107); dadd(108); dadd(109)
    sm1(2); dadd(110); dadd(111); A.v_max3_f32(v(M), v(104), v(105), v(106))
    sm1(3); PF(5)
    TM(A, 8)
    A.v_max3_f32(v(M), v(M), v(107), v(108)); A.v_max3_f32(v(T), v(109), v(110), v(111)); A.v_max_f32(v(M), v(M), v(T))
    A.v_mov_b32(v(T), v(M)); run(wl[2:4]); PF(6); A.v_permlane32_swap_b32(v(M), v(T)); A.v_max_f32(v(M), v(M), v(T))
    for i in range(4): dadd(SM+i)
    A.v_max3_f32(v(M), v(M), v(SM), v(SM+1)); A.v_max3_f32(v(M), v(M), v(SM+2), v(SM+3))
    A.v_mov_b32(v(T), v(M)); run(wl[4:6]); PF(7); A.v_permlane16_swap_b32(v(M), v(T)); A.v_max_f32(v(M), v(M), v(T))
    A.v_mul_f32(v(M), s(S_C), v(M))
    SR = list(range(104, 112)) + list(range(SM, SM+4))
    fm = lambda i: A.v_pk_fma_f32(v(SR[2*i], 2), v(SR[2*i], 2), s(S_C, 2), v(M, 2), m='op_sel_hi:[1,1,0] neg_lo:[0,0,1] neg_hi:[0,0,1]')
    ex = lambda i: A.v_exp_f32(v(SR[i]), v(SR[i]))
    for i in range(4): fm(i)
    ex(0); run(wl[6:7]); ex(1); run(wl[7:8]); ex(2); cvt(A, PX, 104, 105)(); ex(3); run(wl[8:9]); PF(8); ex(4); cvt(A, PX+1, 106, 107)()
    ex(5); run(wl[9:10]); ex(6); cvt(A, PX+2, 108, 109)(); ex(7); run(wl[10:12]); fm(4); cvt(A, PX+3, 110, 111)(); fm(5)
    O0, O1, LS, OP = 96, 100, VTC, VTC+4
    ex(8); PF(9)
    mf(O0, VTC, PX, 0); ex(9); ex(10)
    mf(O1, VTC+4, PX, 0); ex(11); cvt(A, PM, SM, SM+1)()
    m16 = lambda d, a_, b_, c_: A.v_mfma_f32_16x16x16_bf16(v(d, 4), v(a_, 2), v(b_, 2), c_)
    m16(LS, V_ONE, PX, 0); cvt(A, PM+1, SM+2, SM+3)()
    vwait('vp')
    vs, vc = A.newlabel('vs'), A.newlabel('vc')
    A.v_and_b32(v(T), 1, v(VR))
    m16(LS, V_ONE, PX+2, v(LS, 4))
    A.v_cmp_ne_u32('vcc', xtag, v(T)); A.s_cbranch_vccnz(vs); A.label(vc)
    def emit_vs():
        A.label(vs); CNT(A, 4); xi(VR, 1024, 2); A.wait(vm=0)
        A.v_and_b32(v(T), 1, v(VR)); A.v_cmp_ne_u32('vcc', xtag, v(T))
        A.s_cbranch_vccz(vc); spin_guard(A, vs, abort)
    cold.append(emit_vs)
    A.v_permlane32_swap_b32(v(PKV), v(VR)); A.v_permlane32_swap_b32(v(PKV+1), v(VR+1))
    m16(LS, V_HALF, PM, v(LS, 4))
    WA = [104, 108, 120, 124]
    zl = [lambda i=i: A.v_mov_b64(v(WA[i//2] + 2*(i % 2), 2), 0) for i in range(8)]
    zl[0](); PF(10)
    m16(O0, PKV, PM, v(O0, 4)); zl[1](); m16(O1, VR, PM, v(O1, 4))
    run(zl[2:7])
    A.v_rcp_f32(v(LS), v(LS))
    zl[7]()
    for o in (O0, O0+2, O1, O1+2): A.v_pk_mul_f32(v(o, 2), v(o, 2), v(LS, 2), m='op_sel_hi:[1,0]')
    for i in range(4): cvt(A, OP+i, O0+2*i, O0+2*i+1)()
    A.ds_write_b128(v(V_MW), v(OP, 4), m=f'offset:{O_FO + 1024}'); q.issue('ow')
    OF = [OP, 96, 100, 32]
    def wo(T_, a_):
        if a_ in (0, 3):
            k = T_ if a_ == 0 else 4 + T_
            q.need([('w', k, 0), ('w', k, 1)]); W = WF[k]
        else: W = WOR + 32*(a_-1) + 8*T_
        if a_: q.need([('o', a_)])
        sm(WA[T_], OF[a_], W)
    PF(11); wo(0, 0); wo(1, 0); PF(12); wo(2, 0)
    q.need(['ow']); A.s_barrier()
    TM(A, 9)
    for a_ in range(1, 4):
        A.ds_read_b128(v(OF[a_], 4), v(V_A+a_), m=f'offset:{O_FO + 1024}'); q.issue(('o', a_))
        if a_ == 1: wo(3, 0)
    for k in (6, 7):
        for uu in range(2): wrd(k, uu)
    def post(b, k):
        return [cvt(A, b, b, b+1), cvt(A, b+1, b+2, b+3), cvt(A, b+2, b+4, b+5), cvt(A, b+3, b+6, b+7),
                lambda: A.v_permlane16_swap_b32(v(b), v(b+2)), lambda: A.v_permlane16_swap_b32(v(b+1), v(b+3)), tagop(A, b, ptag),
                lambda: A.buffer_store_dwordx4(v(b, 4), v(V_PST), s(S_WS, 4), s(S_PST+k), m=st)]
    for a_ in (1, 2, 3): wo(0, a_); wo(1, a_); PF(12 + a_)
    p0 = post(WA[0], 0)
    n = 0
    for a_ in (1, 2, 3):
        for T_ in (2, 3):
            wo(T_, a_)
            if n: run(p0[2*n-2:2*n])
            n += 1
    run(post(WA[2], 1))
    PF(16); assert not pf or PAR['sw']
    TM(A, 10)
    reducer(A, u, fb, poll)

def reducer(A, u, fb, poll):
    par, ptag = u % 2, u % 2
    st = 'offen sc1' if fb else 'offen'
    mf = lambda d, a_, b_, c_: A.v_mfma_f32_16x16x32_bf16(v(d, 4), v(a_, 4), v(b_, 4), c_)
    RB_, SEL, X = 64, 48, 56
    NH = 2 if PAR['sw'] else 1
    XS = [56, 80]
    def pld():
        for qq in range(2):
            for hf in range(NH): A.buffer_load_dwordx4(v(RB_+8*hf+4*qq, 4), v(V_PLD), s(S_WS, 4), s(S_PLD+qq), m=f'offen offset:{64*hf} sc1').nochk = True
    skp = A.newlabel('skp')
    if PAR['sw']: A.s_cmp_ge_u32(s(S_W), 2); A.s_cbranch_scc1(skp)
    late = PAR['pd'] or PAR['ack'] & 1
    if not late: pld()
    A.v_and_b32(v(SEL+4), 16, v(V_WO)); A.v_mov_b32(v(SEL+5), '0x3f80'); A.v_lshlrev_b32(v(SEL+4), v(SEL+4), v(SEL+5))
    for i in range(4):
        A.s_mov_b32('vcc_lo', hex(0x00030003 << (4*i))); A.s_mov_b32('vcc_hi', hex(0x00030003 << (4*i)))
        A.v_cndmask_b32(v(SEL+i), 0, v(SEL+4), 'vcc')
    A.v_mov_b32(v(SEL+4), -1)
    if PAR['ack'] & 1: A.wait(vm=0)
    if late: A.nop(PAR['pd']); pld()
    A.wait(vm=0)
    def pchk():
        if NH == 2:
            A.v_bitop3_b32(v(X+4), v(RB_), v(RB_+4), v(RB_+8), m='bitop3:' + ('0x80' if ptag else '0xfe'))
            A.v_bitop3_b32(v(X+4), v(X+4), v(RB_+12), 1, m='bitop3:' + ('0x80' if ptag else '0xa8'))
        else: A.v_bitop3_b32(v(X+4), v(RB_), v(RB_+4), 1, m='bitop3:' + ('0x80' if ptag else '0xa8'))
        A.v_cmp_ne_u32('vcc', ptag, v(X+4))
    poll(pchk, pld, PAR['np'], 'p')
    H = range(NH)
    for hf in H: mf(XS[hf], SEL, RB_+8*hf, 0)
    for hf in H: mf(XS[hf], SEL, RB_+8*hf+4, v(XS[hf], 4))
    TM(A, 11)
    for hf in H: A.v_add_f32_dpp(v(XS[hf]+4), v(XS[hf]), v(XS[hf]), m='row_ror:8 row_mask:0xf bank_mask:0x3')
    for hf in H: A.v_add_f32_dpp(v(XS[hf]+4), v(XS[hf]+1), v(XS[hf]+1), m='row_ror:8 row_mask:0xf bank_mask:0xc')
    for hf in H: A.v_add_f32_dpp(v(XS[hf]+4), v(XS[hf]+4), v(XS[hf]+4), m='row_shl:4 row_mask:0xf bank_mask:0xf')
    for hf in H: A.v_mov_b32_dpp(v(XS[hf]+5), v(XS[hf]+4), m='quad_perm:[1,1,3,3] row_mask:0xf bank_mask:0xf')
    for hf in H: A.v_cvt_pk_bf16_f32(v(XS[hf]+6), v(XS[hf]+4), v(XS[hf]+5))
    for hf in H:
        A.v_min_u32(v(XS[hf]+6), -2, v(XS[hf]+6))
        A.buffer_store_dword(v(XS[hf]+6), v(V_MST), s(S_WS, 4), s(S_MEMST+1-par), m=st.replace('offen', f'offen offset:{8*hf}'))
    TM(A, 12)
    for hf in H: A.buffer_store_dword(v(SEL+4), v(V_MST), s(S_WS, 4), s(S_MEMST+par), m=st.replace('offen', f'offen offset:{8*hf}'))
    if PAR['sw']: A.label(skp)
    A.s_add_u32(s(S_STEP), s(S_STEP), 1)
    TM(A, 13)

def chain_loop(A, abort, done, fb):
    top, ent, lastl = A.newlabel('ctop'), A.newlabel('cent'), A.newlabel('clast')
    cold = []
    xq_base(A, fb); A.s_add_u32(s(S_T0), s(S_T0), s(S_POL))
    A.s_lshl_b32(s(S_T1), s(S_X), 21); A.s_sub_u32(s(S_T1), 1 << 20, s(S_T1))
    for par in range(2):
        A.s_add_u32(s(S_XQI+par), s(S_T0), par*16384); A.s_add_u32(s(S_XQO+par), s(S_XQI+par), s(S_T1))
    A.wait(vm=0)
    A.s_mov_b32(s(S_LO8), '0x00ff00ff'); A.s_mov_b32(s(S_LO8+1), '0x00ff00ff')
    if PAR['sw']: A.s_cmp_ge_u32(s(S_W), 2); A.s_cselect_b64(s(S_PFM, 2), -1, 0)
    A.s_mov_b32(s(S_STEP), 0)
    if TIMERS:
        for i in range(17): A.s_mov_b32(s(S_ACC+i), 0)
    kv_wait(A, abort, S_STEP, 48)
    if HOOK2: HOOK2(A)
    run(kv_prefetch(A)); kv_advance(A)
    A.s_branch(ent)
    A.label(top)
    chain_step(A, 0, abort, fb, cold, first_entry=ent)
    chain_step(A, 1, abort, fb, cold)
    chain_step(A, 2, abort, fb, cold)
    A.s_cmp_eq_u32(s(S_STEP), 63); A.s_cbranch_scc1(lastl)
    chain_step(A, 3, abort, fb, cold)
    A.s_branch(top)
    A.label(lastl)
    chain_step(A, 3, abort, fb, cold, last=True, done=done)
    for e in cold: e()
```

```python
import sys
from asmlib import *
from layout import *
import chain
from chain import S_WS, S_DBG, S_X, S_H, S_W, S_TO, ptr, srd, load_ptrs, chain_setup, chain_loop
from gemm import *
from tasks import *

C0, C1, C2, C3, C4, C5 = 94, 95, 96, 97, 98, 99
CV = 120
K_EXIT, K_FB = 0xFFFF, 0x10000
POISON = 16
S0 = 48
NG = 2
ORD = 1
ORDS = {
 10: 'K0-15 G8-15 D1 Q0-3 G0-7 Q4-5 A0-1 D0 A2-4 Q6 O0 O1 Q7 S0 A5-7',
 11: 'K0-15 G8-15 D1 Q0-3 G0-7 Q4-5 A0-3 D0 O0 Q6-7 A4 S0 O1 A5-7',
 12: 'K0-15 G8-15 Q0-1 D1 Q2-3 G0-7 Q4-5 A0-3 D0 O0 A4 Q6-7 O1 S0 A5-7',
 13: 'K0-15 G8-15 Q0-3 D1 G0-7 Q4-5 A0-3 D0 O0 A4 Q6-7 O1 S0 A5-7',
 14: 'K0-15 Q0-3 G8-15 A0-1 D1 G0-7 A2-3 Q4-5 O0 D0 A4 Q6-7 O1 S0 A5-7',
 15: 'K0-15 Q0-3 G8-15 G0-1 D1 G2-7 A0-3 Q4-5 O0 D0 A4 Q6-7 O1 S0 A5-7',
 16: 'K0-15 G0-15 D1 Q0-3 D0 Q4-5 A0-3 O0 Q6-7 A4 O1 S0 A5-7',
 18: 'K0-15 G8-15 Q0-1 D1 Q2-3 G0-7 Q4-5 A0-3 D0 O0 A4 Q6-7 S0 O1 A5-7',
 19: 'K0-15 Q0-3 G8-15 A0-1 D1 G0-7 A2-3 Q4-5 O0 D0 A4 Q6-7 S0 O1 A5-7',
 20: 'K0-15 G0-15 D1 Q0-3 D0 Q4-5 A0-3 O0 Q6-7 A4 S0 O1 A5-7',
 21: 'K0-15 G8-15 D1 Q0-5 G0-7 A0-3 D0 O0 Q6-7 A4 S0 O1 A5-7',
 17: 'K0-15 G8-15 G0-3 D1 G4-7 Q0-5 D0 A0-3 O0 Q6-7 A4 O1 S0 A5-7',
}
def order():
    k = (S0 + 7) // 8
    if ORD in ORDS:
        r_ = []
        for tok in ORDS[ORD].split():
            ty = {'K': 'KV', 'G': 'GU', 'D': 'DN', 'Q': 'Q', 'A': 'AT', 'O': 'OP', 'S': 'OPS'}[tok[0]]
            lo, hi = (tok[1:].split('-') + [tok[1:]])[:2]
            if ty == 'OPS': lo, hi = 0, NG - 1
            if ty == 'OP' and lo == '1' and S0 <= 32: continue
            r_.append((ty, int(lo), int(hi) - int(lo) + 1))
        for ty, n in (('KV', 16), ('GU', 16), ('DN', 2), ('Q', 8), ('AT', 8)):
            assert sorted(f + i for t_, f, c in r_ if t_ == ty for i in range(c)) == list(range(n)), ty
        return r_
    if ORD == 0: return [('KV', 0, 16), ('GU', 0, 16), ('DN', 0, 2), ('Q', 0, 8), ('AT', 0, 4), ('OP', 0, 1), ('AT', 4, S0//8 - 4), ('OP', 1, 1), ('AT', S0//8, 8 - S0//8), ('OPS', 0, NG)]
    if ORD == 1: return [('KV', 0, 16), ('GU', 0, 16), ('DN', 0, 2), ('Q', 0, 8), ('AT', 0, 4), ('OP', 0, 1), ('AT', 4, max(k, 5) - 4), ('OPS', 0, NG), ('OP', 1, int(S0 > 32)), ('AT', max(k, 5), 8 - max(k, 5))]
    if ORD == 2: return [('KV', 0, 16), ('GU', 0, 16), ('DN', 0, 2), ('Q', 0, 8), ('AT', 0, 4), ('OP', 0, 1), ('AT', 4, 1), ('OPS', 0, NG), ('OP', 1, int(S0 > 32)), ('AT', 5, 3)]
    tl = [('AT', 4, max(k, 5) - 4), ('OPS', 0, NG), ('OP', 1, int(S0 > 32)), ('AT', max(k, 5), 8 - max(k, 5))]
    if ORD == 3: return [('KV', 0, 16), ('GU', 8, 8), ('DN', 1, 1), ('Q', 0, 4), ('GU', 0, 8), ('AT', 0, 4), ('Q', 4, 2), ('DN', 0, 1), ('OP', 0, 1), ('Q', 6, 2)] + tl
    if ORD == 4: return [('KV', 0, 16), ('GU', 8, 8), ('DN', 1, 1), ('GU', 0, 8), ('Q', 0, 4), ('DN', 0, 1), ('AT', 0, 4), ('Q', 4, 2), ('OP', 0, 1), ('Q', 6, 2)] + tl
    if ORD == 5: return [('KV', 0, 16), ('GU', 8, 8), ('DN', 1, 1), ('Q', 0, 4), ('GU', 0, 8), ('AT', 0, 2), ('Q', 4, 2), ('AT', 2, 2), ('DN', 0, 1), ('OP', 0, 1), ('Q', 6, 2)] + tl
    if ORD == 6: return [('KV', 0, 16), ('GU', 8, 8), ('Q', 0, 2), ('DN', 1, 1), ('Q', 2, 2), ('GU', 0, 8), ('AT', 0, 3), ('Q', 4, 2), ('AT', 3, 1), ('DN', 0, 1), ('OP', 0, 1), ('Q', 6, 2)] + tl
OPTS = set()

def header(launch_lines):
    ref = open('cdna_kernels/%s.s.ref' % KNAME).read().split('\n')
    hd = [l for l in ref if l.startswith(';') and '@launch' not in l]
    return '\n'.join(hd + launch_lines) + '\n.amdgcn_target "amdgcn-amd-amdhsa--gfx950"\n.text\n'
def kernel_wrap(name, body, vgpr=512, accum=256):
    return (f".globl {name}\n.p2align 8\n.type {name},@function\n{name}:\n" + body,
            f".p2align 6\n.amdhsa_kernel {name}\n  .amdhsa_next_free_vgpr {vgpr}\n  .amdhsa_next_free_sgpr 102\n  .amdhsa_accum_offset {accum}\n"
            f"  .amdhsa_group_segment_fixed_size 0\n  .amdhsa_kernarg_size 120\n  .amdhsa_user_sgpr_count 2\n  .amdhsa_user_sgpr_kernarg_segment_ptr 1\n"
            f"  .amdhsa_system_sgpr_workgroup_id_x 1\n.end_amdhsa_kernel\n")

def stamp(A, d):
    if 'log' in OPTS:
        A.s_memrealtime(s(12, 2)); A.wait(lgkm=0); A.s_mov_b32(s(d), s(12))
        if d in (22, 23):
            A.s_memtime(s(12, 2)); A.wait(lgkm=0)
            if d == 22: A.s_mov_b32(s(100), s(12))
            else: A.s_sub_u32(s(101), s(12), s(100))
S_WG = 63
def rts(A, k):
    if 'log' in OPTS:
        A.s_memrealtime(s(C4, 2)); A.wait(lgkm=0); A.v_mov_b32(v(CV), s(C4)); A.v_mov_b32(v(CV+1), 0); A.s_mov_b64('exec', 1)
        A.buffer_store_dword(v(CV), v(CV+1), s(S_WS, 4), s(S_WG), m=f'offen offset:{4*k}'); A.s_mov_b64('exec', -1)
def only_w0(A):
    sk = A.newlabel('w0'); A.s_cmp_lg_u32(s(S_W), 0); A.s_cbranch_scc1(sk); return sk
def dbg_atomic(A, dw, soff=0, ret=True, val=1):
    A.v_mov_b32(v(CV), val); A.v_mov_b32(v(CV+1), 0)
    A.s_mov_b64('exec', 1)
    A.buffer_atomic_add(v(CV), v(CV+1), s(S_DBG, 4), soff, m=f'offen offset:{dw*4} ' + ('sc0 sc1' if ret else 'sc1'))
    A.s_mov_b64('exec', -1)
    if ret: A.wait(vm=0); A.v_readfirstlane_b32(s(C0), v(CV))
def bcast(A, sk, tail=True):
    A.v_mov_b32(v(CV), s(C0)); A.v_mov_b32(v(CV+1), L_MISC)
    A.ds_write_b32(v(CV+1), v(CV)); A.wait(lgkm=0)
    A.label(sk)
    A.s_barrier()
    A.v_mov_b32(v(CV+1), L_MISC); A.ds_read_b32(v(CV), v(CV+1)); A.wait(lgkm=0)
    A.v_readfirstlane_b32(s(C0), v(CV))
    if tail: A.s_barrier()
def guard(A, retry, out):
    A.s_sub_u32(s(S_TO), s(S_TO), 1); A.s_cbranch_scc0(retry)
    A.v_mov_b32(v(CV), '0xdead'); A.v_mov_b32(v(CV+1), 0)
    A.buffer_store_dword(v(CV), v(CV+1), s(S_DBG, 4), 0, m=f'offen offset:{D_ABORT*4} sc1')
    A.s_mov_b32(s(S_TO), 0); A.s_mov_b32(s(C0), K_EXIT); A.s_branch(out)
def ensure_init(A, out):
    ok, lp = A.newlabel('ini'), A.newlabel('inl')
    A.s_bitcmp1_b32(s(S_INIT), 0); A.s_cbranch_scc1(ok)
    A.v_mov_b32(v(CV+1), 0)
    A.label(lp)
    A.buffer_load_dword(v(CV), v(CV+1), s(S_DBG, 4), 0, m=f'offen offset:{D_INIT*4} sc1')
    A.wait(vm=0); A.v_readfirstlane_b32(s(C1), v(CV)); A.s_or_b32(s(S_INIT), s(S_INIT), s(C1))
    A.s_bitcmp1_b32(s(S_INIT), 0); A.s_cbranch_scc1(ok)
    A.s_sleep(2)
    guard(A, lp, out)
    A.label(ok)
def take_fb(A, out, cont):
    dbg_atomic(A, D_FBT)
    A.s_or_b32(s(S_INIT), s(S_INIT), 2)
    A.s_cmp_ge_u32(s(C0), 64); A.s_cbranch_scc1(cont)
    A.s_or_b32(s(C0), s(C0), K_FB); A.s_branch(out)
def settled(A, r_):
    A.s_and_b32(s(C0), s(r_), 0x100ff); A.s_cmp_eq_u32(s(C0), 65); A.s_cselect_b32(s(C0), 2, 0); A.s_or_b32(s(S_INIT), s(S_INIT), s(C0))
def dep_wait(A, setup, special):
    sk = only_w0(A)
    out, lp, sl = A.newlabel('dwo'), A.newlabel('dwl'), A.newlabel('dws')
    ensure_init(A, out)
    setup()
    A.v_mov_b32(v(CV+6), 0)
    A.label(lp)
    nr = A.newlabel('dwn')
    A.buffer_load_dword(v(CV+4), v(CV+2), s(S_WS, 4), 0, m='offen sc1')
    A.s_bitcmp1_b32(s(S_INIT), 1); A.s_cbranch_scc1(nr)
    A.buffer_load_dword(v(CV+5), v(CV+6), s(S_DBG, 4), 0, m=f'offen offset:{D_READY*4} sc1')
    A.label(nr)
    A.wait(vm=0)
    A.s_mov_b32(s(C0), 0)
    A.v_cmp_lt_u32('vcc', v(CV+4), v(CV+3)); A.s_cbranch_vccz(out)
    A.s_bitcmp1_b32(s(S_INIT), 1); A.s_cbranch_scc1(sl)
    A.v_readfirstlane_b32(s(C1), v(CV+5))
    settled(A, C1)
    A.s_bitcmp0_b32(s(C1), POISON); A.s_cbranch_scc1(sl)
    take_fb(A, out, sl)
    A.label(sl)
    A.s_sleep(4)
    guard(A, lp, out)
    A.label(out)
    bcast(A, sk)
    A.s_cmp_lg_u32(s(C0), 0); A.s_cbranch_scc1(special)
def cnt_addr(t): return WS_CTL + C_CNT + t*2048
def dep_cnt(A, t, target):
    def f():
        A.s_lshl_b32(s(C2), s(G_MB), 7); A.s_add_u32(s(C2), s(C2), cnt_addr(t))
        A.v_mov_b32(v(CV+2), s(C2)); A.v_mov_b32(v(CV+3), target)
    return f

def status_ld(A):
    A.s_lshl_b32(s(C1), s(S_XCC), 2); A.v_mov_b32(v(CV+1), 0)
    A.s_mov_b64('exec', 1)
    A.buffer_load_dwordx4(v(CV+4, 4), v(CV+1), s(S_DBG, 4), 0, m=f'offen offset:{D_READY*4} sc1').nochk = True
    A.buffer_load_dword(v(CV+2), v(CV+1), s(S_DBG, 4), s(C1), m=f'offen offset:{D_LH*4} sc1').nochk = True
    A.s_mov_b64('exec', -1)
def status_rd(A):
    A.v_readfirstlane_b32(s(C5), v(CV+4)); A.v_readfirstlane_b32(s(C1), v(CV+7)); A.v_readfirstlane_b32(s(C0), v(CV+2))
    A.s_or_b32(s(S_INIT), s(S_INIT), s(C1))
    A.s_cmp_ge_u32(s(C0), 32); A.s_cselect_b32(s(C0), 16, 0); A.s_or_b32(s(S_INIT), s(S_INIT), s(C0))
    settled(A, C5)
def ticket(A):
    A.s_lshl_b32(s(C1), s(S_XCC), 7); A.s_add_u32(s(C1), s(C1), WS_CTL + C_HEAD)
    A.v_mov_b32(v(CV), 1); A.v_mov_b32(v(CV+1), 0)
    A.s_mov_b64('exec', 1)
    A.buffer_atomic_add(v(CV), v(CV+1), s(S_WS, 4), s(C1), m='offen sc0 sc1').nochk = True
    A.s_mov_b64('exec', -1)
def tab_addr(A):
    A.s_lshl_b32(s(C4), s(S_XCC), 7); A.s_add_u32(s(C4), s(C4), s(C3)); A.s_lshl_b32(s(C4), s(C4), 2); A.s_add_u32(s(C4), s(C4), WS_CTL + C_TAB)
def ws_srd(A, d):
    A.s_mov_b32(s(d), s(ptr(P_WS))); A.s_mov_b32(s(d+1), s(ptr(P_WS)+1)); A.s_mov_b32(s(d+2), hex(WS_SIZE)); A.s_mov_b32(s(d+3), '0x20000')

def build():
    A = Asm()
    END, NEXT, DECODE, SPECIAL, DONE, CABORT = '.end', '.next', '.decode', '.special', '.done', '.cabort'
    GEMM, GEMMV, CHAINP, CHAINF, CDONE = '.gemm', '.gemmv', '.chainp', '.chainf', '.cdone'
    A.s_cmp_ge_u32(s(2), 256); A.s_cbranch_scc1('.end0')
    load_ptrs(A)
    if 'log' in OPTS: A.s_lshl_b32(s(S_WG), s(2), 6); A.s_add_u32(s(S_WG), s(S_WG), WS_TIM + 0x10000)
    A.v_lshrrev_b32(v(1), 6, v(0)); A.v_readfirstlane_b32(s(S_W), v(1))
    A.s_getreg_b32(s(S_XCC), 'hwreg(HW_REG_XCC_ID, 0, 3)')
    A.s_mov_b32(s(S_TO), 1 << 17); A.s_mov_b32(s(S_INIT), 0); A.s_mov_b32(s(S_TASK), -1)
    A.wait(lgkm=0)
    srd(A, S_WS, P_WS, WS_SIZE); srd(A, S_DBG, P_DBG, 256)
    if 'tim' in OPTS: A.s_memrealtime(s(100, 2))
    rts(A, 0)
    if 'nochain' not in OPTS:
        A.s_cmp_gt_u32(s(S_XCC), 0 if 'forcefb' in OPTS else 1); A.s_cbranch_scc1(NEXT)
        sk = only_w0(A)
        A.s_lshl_b32(s(C1), s(S_XCC), 2)
        dbg_atomic(A, D_CNT0, s(C1))
        bcast(A, sk)
        A.s_cmp_lt_u32(s(C0), 32); A.s_cbranch_scc1(CHAINP)
    A.label(NEXT)
    if 'chainonly' in OPTS: A.s_branch(END)
    A.s_sub_u32(s(S_TO), s(S_TO), 32); A.s_cbranch_scc1(END)
    if 'log' in OPTS:
        nl = A.newlabel('nl')
        A.s_cmp_lg_u32(s(S_W), 0); A.s_cbranch_scc1(nl)
        A.s_cmp_ge_u32(s(S_TASK), 2048); A.s_cbranch_scc1(nl)
        A.s_memrealtime(s(C0, 2)); A.wait(lgkm=0)
        A.v_mov_b32(v(CV+4), s(21)); A.v_mov_b32(v(CV+5), s(22)); A.v_mov_b32(v(CV+6), s(23)); A.v_mov_b32(v(CV+7), s(C0))
        A.v_mov_b32(v(CV), s(S_XCC)); A.v_mov_b32(v(CV+1), s(14)); A.v_mov_b32(v(CV+2), s(15)); A.v_mov_b32(v(CV+3), s(101)); A.v_mov_b32(v(112), 0)
        A.s_lshl_b32(s(C0), s(S_TASK), 5); A.s_add_u32(s(C0), s(C0), WS_TIM)
        A.s_mov_b64('exec', 1)
        A.buffer_store_dwordx4(v(CV+4, 4), v(112), s(S_WS, 4), s(C0), m='offen')
        A.buffer_store_dwordx4(v(CV, 4), v(112), s(S_WS, 4), s(C0), m='offen offset:16')
        A.s_mov_b64('exec', -1)
        A.label(nl)
        stamp(A, 14)
    sk = only_w0(A)
    out, lead, got, lp = A.newlabel('dqo'), A.newlabel('dqlead'), A.newlabel('dqgot'), A.newlabel('dql')
    pre, tk, t2, t3 = A.newlabel('dqp'), A.newlabel('dqt'), A.newlabel('dqs'), A.newlabel('dqu')
    A.s_mov_b32(s(C0), K_EXIT); A.s_bitcmp1_b32(s(S_INIT), 5); A.s_cbranch_scc1(out)
    A.s_bitcmp1_b32(s(S_INIT), 2); A.s_cbranch_scc1(pre)
    A.s_bitcmp1_b32(s(S_INIT), 4); A.s_cbranch_scc1(t2)
    A.s_lshl_b32(s(C1), s(S_XCC), 2)
    A.v_mov_b32(v(CV), 1); A.v_mov_b32(v(CV+1), 0)
    A.s_mov_b64('exec', 1)
    A.buffer_atomic_add(v(CV), v(CV+1), s(S_DBG, 4), s(C1), m=f'offen offset:{D_LH*4} sc0 sc1')
    A.s_mov_b64('exec', -1)
    A.s_mov_b32(s(C5), 0)
    A.wait(vm=0)
    A.v_readfirstlane_b32(s(C2), v(CV))
    A.s_cmp_lt_u32(s(C2), 32); A.s_cbranch_scc1(tk)
    A.s_bitset1_b32(s(S_INIT), 4)
    A.label(t2)
    ensure_init(A, out)
    ticket(A)
    A.s_mov_b32(s(C5), 0)
    A.s_bitcmp1_b32(s(S_INIT), 1); A.s_cbranch_scc1(t3)
    status_ld(A); A.wait(vm=0); status_rd(A)
    A.label(t3)
    A.wait(vm=0)
    A.v_readfirstlane_b32(s(C2), v(CV)); A.s_add_u32(s(C2), s(C2), 32)
    A.label(tk)
    A.s_lshr_b32(s(C3), s(C2), 5); A.s_and_b32(s(C2), s(C2), 31)
    A.s_mov_b32(s(C0), K_EXIT); A.s_cmp_ge_u32(s(C3), 128); A.s_cbranch_scc1(out)
    tab_addr(A)
    A.s_bitcmp1_b32(s(S_INIT), 2); A.s_bitset0_b32(s(S_INIT), 2); A.s_cselect_b32(s(C1), 1, s(C2))
    A.s_cmp_eq_u32(s(C1), 0); A.s_cbranch_scc1(lead)
    A.v_mov_b32(v(CV+1), 0)
    A.label(lp)
    l0, l1 = A.newlabel('dq0'), A.newlabel('dq1')
    A.s_cmp_eq_u32(s(C3), 0); A.s_cbranch_scc1(l0)
    A.buffer_load_dword(v(CV), v(CV+1), s(S_WS, 4), s(C4), m='offen sc1'); A.s_branch(l1)
    A.label(l0)
    A.s_lshl_b32(s(C1), s(S_XCC), 2)
    A.buffer_load_dword(v(CV), v(CV+1), s(S_DBG, 4), s(C1), m=f'offen offset:{D_SLOT0*4} sc1')
    A.label(l1)
    A.wait(vm=0); A.v_readfirstlane_b32(s(C0), v(CV))
    A.s_sub_u32(s(C0), s(C0), 1); A.s_cbranch_scc0(got)
    if XP.get('slp', 4): A.s_sleep(XP.get('slp', 4))
    guard(A, lp, out)
    A.label(pre)
    A.s_mov_b32(s(C2), s(S_TICK)); A.s_mov_b32(s(C5), s(S_RDY))
    A.s_sub_u32(s(C0), s(S_NXT), 1); A.s_cbranch_scc1(tk)
    A.s_bitset0_b32(s(S_INIT), 2); A.s_and_b32(s(C2), s(C2), 31); A.s_branch(got)
    A.label(lead)
    dbg_atomic(A, D_GHEAD)
    A.s_add_u32(s(C1), s(C0), 1); A.v_mov_b32(v(CV), s(C1))
    l0 = A.newlabel('dq0')
    A.s_mov_b64('exec', 1)
    A.s_cmp_eq_u32(s(C3), 0); A.s_cbranch_scc1(l0)
    A.buffer_store_dword(v(CV), v(CV+1), s(S_WS, 4), s(C4), m='offen sc1'); A.s_mov_b64('exec', -1); A.s_branch(got)
    A.label(l0)
    A.s_lshl_b32(s(C1), s(S_XCC), 2)
    A.buffer_store_dword(v(CV), v(CV+1), s(S_DBG, 4), s(C1), m=f'offen offset:{D_SLOT0*4} sc1'); A.s_mov_b64('exec', -1)
    A.label(got)
    A.s_min_u32(s(C0), s(C0), 1023)
    A.s_lshl_b32(s(C0), s(C0), 5); A.s_or_b32(s(C0), s(C0), s(C2))
    A.s_bitcmp0_b32(s(C5), POISON); A.s_cbranch_scc1(out)
    A.s_bitcmp1_b32(s(S_INIT), 1); A.s_cbranch_scc1(out)
    A.s_cmp_lt_u32(s(C0), 16*32); A.s_cbranch_scc1(out)
    A.s_mov_b32(s(C5), s(C0))
    back = A.newlabel('dqb')
    dbg_atomic(A, D_FBT)
    A.s_or_b32(s(S_INIT), s(S_INIT), 2)
    A.s_cmp_ge_u32(s(C0), 64); A.s_cbranch_scc1(back)
    A.s_lshl_b32(s(C0), s(C0), 17); A.s_or_b32(s(C0), s(C0), K_FB); A.s_or_b32(s(C0), s(C0), s(C5)); A.s_branch(out)
    A.label(back); A.s_mov_b32(s(C0), s(C5))
    A.label(out)
    bcast(A, sk)
    A.s_and_b32(s(S_TASK), s(C0), 0xFFFF)
    dec0 = A.newlabel('dec0')
    A.s_bitcmp0_b32(s(C0), 16); A.s_cbranch_scc1(DECODE)
    A.s_lshr_b32(s(C0), s(C0), 17); A.s_branch(CHAINF)
    A.label(SPECIAL)
    A.s_bitcmp0_b32(s(C0), 16); A.s_cbranch_scc1(END)
    A.s_and_b32(s(C0), s(C0), 63); A.s_branch(CHAINF)
    A.label(DECODE)
    stamp(A, 21); stamp(A, 22); stamp(A, 23); stamp(A, 15)
    A.s_lshr_b32(s(C0), s(S_TASK), 5); A.s_and_b32(s(C1), s(S_TASK), 31)
    TL = {n: A.newlabel('t' + n) for n in ('KV', 'GU', 'DN', 'Q', 'AT', 'OP', 'OPS')}
    tKV, tGU, tDN, tQ, tAT, tOP, tOPS = TL.values()
    pos = 0
    A.s_mov_b32(s(C2), s(C0))
    for ty, first, cnt in order():
        if not cnt: continue
        A.s_sub_u32(s(C0), s(C2), pos - first)
        pos += cnt
        A.s_cmp_lt_u32(s(C2), pos); A.s_cbranch_scc1(TL[ty])
    A.label(END)
    rts(A, 5); A.wait(vm=0)
    if 'tim' in OPTS:
        A.s_cmp_lg_u32(s(S_W), 0); A.s_cbranch_scc1('.end0')
        A.s_memrealtime(s(C0, 2)); A.wait(lgkm=0); A.s_sub_u32(s(C0), s(C0), s(100))
        A.v_mov_b32(v(CV), s(C0)); A.v_mov_b32(v(CV+1), 0); A.s_mov_b64('exec', 1)
        A.buffer_atomic_umax(v(CV), v(CV+1), s(S_DBG, 4), 0, m=f'offen offset:{28 if "timd" in OPTS else 128} sc1'); A.wait(vm=0)
    A.label('.end0')
    A.s_endpgm()

    def x_operand():
        srd(A, SRD_A, P_X, 2048*2048); A.s_lshl_b32(s(G_SA), s(G_MB), 18); A.s_mov_b32(s(G_STA), 2048); A.s_mov_b32(s(G_N), 16); A.s_mov_b32(s(G_ASTEP), 128)
    def b_operand(p, nbytes, stride, ntreg):
        srd(A, SRD_B0, p, nbytes); srd(A, SRD_B1, p, nbytes)
        A.s_lshl_b32(s(G_SB0), s(ntreg), 9); A.s_add_u32(s(G_SB1), s(G_SB0), 256)
        A.s_mov_b32(s(G_STB), stride); A.s_mov_b32(s(G_BSTEP), 64*stride)
    def set_cnt(t): A.s_lshl_b32(s(G_CNT), s(G_MB), 7); A.s_add_u32(s(G_CNT), s(G_CNT), cnt_addr(t))
    def mb_nt(qshift, mul, tr=False):
        if tr: A.s_lshr_b32(s(C2), s(C1), 3); A.s_and_b32(s(C1), s(C1), 7); A.s_lshl_b32(s(C1), s(C1), 2); A.s_add_u32(s(C1), s(C1), s(C2))
        A.s_lshr_b32(s(G_MB), s(C0), qshift); A.s_lshl_b32(s(G_MB), s(G_MB), 2); A.s_and_b32(s(C2), s(C1), 3); A.s_add_u32(s(G_MB), s(G_MB), s(C2))
        A.s_and_b32(s(C3), s(C0), (1 << qshift) - 1); A.s_mul_i32(s(G_NT), s(C3), mul); A.s_lshr_b32(s(C2), s(C1), 2); A.s_add_u32(s(G_NT), s(G_NT), s(C2))
    A.label(tKV)
    noz = A.newlabel('noz')
    A.s_cmp_lg_u32(s(S_TASK), 0); A.s_cbranch_scc1(noz)
    lane_id(A, CV); A.s_lshl_b32(s(C2), s(S_W), 10); A.v_lshlrev_b32(v(CV), 4, v(CV)); A.v_add_u32(v(CV), s(C2), v(CV))
    A.v_mov_b64(v(CV+4, 2), 0); A.v_mov_b64(v(CV+6, 2), 0)
    for i in range(CTL_BYTES // 4096):
        A.s_mov_b32(s(C2), WS_CTL + i*4096)
        A.buffer_store_dwordx4(v(CV+4, 4), v(CV), s(S_WS, 4), s(C2), m='offen sc1')
    if 'nochain' in OPTS:
        A.wait(vm=0); A.s_barrier()
        A.v_mov_b32(v(CV+4), 64); A.v_lshlrev_b32(v(CV), 3, v(CV)); A.s_mov_b32(s(C2), WS_CTL + C_PROG)
        q = only_w0(A)
        A.buffer_store_dword(v(CV+4), v(CV), s(S_WS, 4), s(C2), m='offen sc1')
        A.label(q)
    A.wait(vm=0); A.s_barrier()
    q = only_w0(A); dbg_atomic(A, D_INIT, ret=False); A.label(q)
    A.label(noz)
    mb_nt(2, 8, not XP.get('notr')); x_operand(); set_cnt(T_KV)
    tV = A.newlabel('tv')
    A.s_cmp_ge_u32(s(G_NT), 16); A.s_cbranch_scc1(tV)
    def kv_base(base):
        A.s_lshl_b32(s(G_SC), s(G_MB), 20); A.s_lshl_b32(s(C2), s(G_NT), 14); A.s_add_u32(s(G_SC), s(G_SC), s(C2))
        A.s_lshl_b32(s(C2), s(S_W), 11); A.s_add_u32(s(G_SC), s(G_SC), s(C2)); A.s_add_u32(s(G_SC), s(G_SC), base)
    b_operand(P_WK, 1024*8192, 8192, G_NT); kv_base(WS_KX); A.s_mov_b32(s(G_EPI), 1); A.s_branch(GEMM)
    A.label(tV)
    A.s_sub_u32(s(G_NT), s(G_NT), 16)
    b_operand(P_WV, 1024*8192, 8192, G_NT)
    kv_base(WS_VT)
    A.s_and_b32(s(G_EPI), s(G_N), 0); A.s_add_u32(s(G_EPI), s(G_EPI), 5); A.s_branch(GEMM)
    A.label(tQ)
    mb_nt(1, 8); x_operand(); set_cnt(T_Q)
    b_operand(P_WQ, 1024*8192, 8192, G_NT); kv_base(WS_QX); A.s_mov_b32(s(G_EPI), 0); A.s_branch(GEMM)
    A.label(tGU)
    tG = A.newlabel('tg')
    mb_nt(2, 7)
    A.s_cmp_ge_u32(s(C1), 28); A.s_cbranch_scc1(tG)
    x_operand(); set_cnt(T_GU)
    srd(A, SRD_B0, P_WG, 1024*7168); srd(A, SRD_B1, P_WU, 1024*7168)
    A.s_lshl_b32(s(G_SB0), s(G_NT), 8); A.s_mov_b32(s(G_SB1), s(G_SB0)); A.s_mov_b32(s(G_STB), 7168); A.s_mov_b32(s(G_BSTEP), 64*7168)
    A.s_mul_i32(s(G_SC), s(G_MB), 128*7168); A.s_lshl_b32(s(C2), s(G_NT), 13); A.s_add_u32(s(G_SC), s(G_SC), s(C2))
    A.s_lshl_b32(s(C2), s(S_W), 11); A.s_add_u32(s(G_SC), s(G_SC), s(C2)); A.s_add_u32(s(G_SC), s(G_SC), WS_H)
    A.s_mov_b32(s(G_EPI), 2); A.s_branch(GEMM)
    A.label(tG)
    A.s_cmp_lg_u32(s(C3), 0); A.s_cbranch_scc1(NEXT)
    set_cnt(T_DN); task_g(A); A.s_branch(DONE)
    A.label(tDN)
    A.s_lshl_b32(s(G_MB), s(C0), 3); A.s_and_b32(s(C2), s(C1), 7); A.s_add_u32(s(G_MB), s(G_MB), s(C2))
    A.s_lshr_b32(s(G_NT), s(C1), 3)
    dep_wait(A, dep_cnt(A, T_GU, 28), SPECIAL)
    set_cnt(T_DN)
    ws_srd(A, SRD_A); A.s_mul_i32(s(G_SA), s(G_MB), 128*7168); A.s_add_u32(s(G_SA), s(G_SA), WS_H); A.s_mov_b32(s(G_STA), 32*7168); A.s_mov_b32(s(G_N), 56); A.s_mov_b32(s(G_ASTEP), 4096)
    b_operand(P_WD, 3584*2048, 2048, G_NT)
    A.s_lshl_b32(s(G_SC), s(G_MB), 2); A.s_add_u32(s(G_SC), s(G_SC), s(G_NT)); A.s_lshl_b32(s(G_SC), s(G_SC), 2); A.s_add_u32(s(G_SC), s(G_SC), s(S_W))
    A.s_lshl_b32(s(G_SC), s(G_SC), 14); A.s_add_u32(s(G_SC), s(G_SC), WS_B)
    A.s_mov_b32(s(G_EPI), 3); A.s_branch(GEMM)
    A.label(tAT)
    A.s_lshl_b32(s(G_MB), s(C0), 3); A.s_lshr_b32(s(C2), s(C1), 2); A.s_add_u32(s(G_MB), s(G_MB), s(C2)); A.s_and_b32(s(G_NT), s(C1), 3)
    set_cnt(T_AT)
    def d_kvq():
        A.s_lshr_b32(s(C2), s(G_MB), 2); A.s_lshl_b32(s(C2), s(C2), 7); A.s_add_u32(s(C2), s(C2), cnt_addr(T_KV))
        lane_id(A, CV+3); A.v_and_b32(v(CV+3), 1, v(CV+3))
        A.v_lshlrev_b32(v(CV+2), 11, v(CV+3)); A.v_add_u32(v(CV+2), s(C2), v(CV+2))
        A.v_lshlrev_b32(v(CV+3), 4, v(CV+3)); A.v_sub_u32(v(CV+3), 32, v(CV+3))
        assert T_Q == T_KV + 1
    dep_wait(A, d_kvq, SPECIAL)
    stamp(A, 22); task_at_pre(A)
    def d_prog():
        lane_id(A, CV+3)
        A.v_and_b32(v(CV+2), 1, v(CV+3)); A.v_lshlrev_b32(v(CV+2), 12, v(CV+2))
        A.v_bfe_u32(v(CV+3), v(CV+3), 1, 3); A.v_lshl_add_u32(v(CV+2), v(CV+3), 7, v(CV+2))
        A.s_lshl_b32(s(C2), s(G_NT), 10); A.s_add_u32(s(C2), s(C2), WS_CTL + C_PROG); A.v_add_u32(v(CV+2), s(C2), v(CV+2))
        A.s_add_u32(s(C2), s(G_MB), 1); A.v_mov_b32(v(CV+3), s(C2))
    dep_wait(A, d_prog, SPECIAL)
    stamp(A, 23); task_at_post(A); stamp(A, 15); A.s_branch(DONE)
    A.label(tOPS)
    A.s_mov_b32(s(G_NT), s(C1)); A.s_add_u32(s(G_MB), s(C0), S0)
    task_ops_pre(A)
    stamp(A, 22)
    opl = A.newlabel('opsl'); A.label(opl)
    def d_ops():
        lane_id(A, CV+3); A.v_and_b32(v(CV+3), 1, v(CV+3))
        A.s_lshl_b32(s(C2), s(G_MB), 7); A.s_add_u32(s(C2), s(C2), cnt_addr(T_AT))
        A.s_lshr_b32(s(C3), s(G_MB), 2); A.s_lshl_b32(s(C3), s(C3), 7); A.s_add_u32(s(C3), s(C3), cnt_addr(T_DN)); A.s_sub_u32(s(C3), s(C2), s(C3))
        A.v_mul_u32_u24(v(CV+2), s(C3), v(CV+3)); A.v_sub_u32(v(CV+2), s(C2), v(CV+2))
        A.v_add_u32(v(CV+3), 4, v(CV+3))
    dep_wait(A, d_ops, SPECIAL)
    stamp(A, 23)
    task_ops_seg(A)
    spl, ope = opl, A.newlabel('opse')
    A.s_add_u32(s(G_MB), s(G_MB), NG); A.s_cmp_lt_u32(s(G_MB), 64 - NG); A.s_cbranch_scc1(opl)
    A.s_cmp_ge_u32(s(G_MB), 64); A.s_cbranch_scc1(ope)
    if not XP.get('nopeek'):
        A.s_cmp_lg_u32(s(S_W), 0); A.s_cbranch_scc1(spl)
        A.s_bitcmp0_b32(s(S_INIT), 4); A.s_cbranch_scc1(spl)
        NSUP = sum(c_ for _, _, c_ in order())
        A.v_mov_b32(v(CV+1), 0)
        A.buffer_load_dword(v(CV), v(CV+1), s(S_DBG, 4), 0, m=f'offen offset:{D_GHEAD*4} sc1'); A.wait(vm=0)
        A.v_readfirstlane_b32(s(C0), v(CV)); A.s_cmp_lt_u32(s(C0), NSUP); A.s_cbranch_scc1(spl)
        A.s_lshl_b32(s(C1), s(S_XCC), 7); A.s_add_u32(s(C1), s(C1), WS_CTL + C_HEAD)
        A.buffer_load_dword(v(CV), v(CV+1), s(S_WS, 4), s(C1), m='offen sc1'); A.wait(vm=0)
        yes = A.newlabel('opy')
        A.v_readfirstlane_b32(s(C2), v(CV)); A.s_and_b32(s(C0), s(C2), 31); A.s_cbranch_scc0(yes)
        A.s_lshr_b32(s(C3), s(C2), 5); A.s_add_u32(s(C3), s(C3), 1); A.s_cmp_ge_u32(s(C3), 128); A.s_cbranch_scc1(yes)
        tab_addr(A)
        A.buffer_load_dword(v(CV), v(CV+1), s(S_WS, 4), s(C4), m='offen sc1'); A.wait(vm=0)
        A.v_readfirstlane_b32(s(C0), v(CV)); A.s_cmp_le_u32(s(C0), NSUP); A.s_cbranch_scc1(spl)
        A.label(yes); A.s_bitset1_b32(s(S_INIT), 5)
    A.s_branch(opl)
    A.label(ope)
    stamp(A, 15)
    A.s_branch(NEXT)
    A.label(tOP)
    A.s_lshl_b32(s(G_MB), s(C0), 3); A.s_lshr_b32(s(C2), s(C1), 2); A.s_add_u32(s(G_MB), s(G_MB), s(C2)); A.s_and_b32(s(G_NT), s(C1), 3)
    A.s_cmp_ge_u32(s(G_MB), S0 // 4); A.s_cbranch_scc1(NEXT)
    def d_at():
        lane_id(A, CV+3); A.v_and_b32(v(CV+3), 3, v(CV+3))
        A.s_lshl_b32(s(C2), s(G_MB), 9); A.s_add_u32(s(C2), s(C2), cnt_addr(T_AT))
        A.v_lshlrev_b32(v(CV+2), 7, v(CV+3)); A.v_add_u32(v(CV+2), s(C2), v(CV+2)); A.v_mov_b32(v(CV+3), 4)
    dep_wait(A, d_at, SPECIAL)
    ws_srd(A, SRD_A); A.s_lshl_b32(s(G_SA), s(G_MB), 20); A.s_add_u32(s(G_SA), s(G_SA), WS_O); A.s_mov_b32(s(G_STA), 262144); A.s_mov_b32(s(G_N), 64)
    A.s_mov_b32(s(G_ASTEP), 4096)
    b_operand(P_WO, 4096*2048, 2048, G_NT)
    A.s_lshl_b32(s(G_SC), s(G_MB), 18); A.s_lshl_b32(s(C2), s(G_NT), 9); A.s_add_u32(s(G_SC), s(G_SC), s(C2))
    A.s_lshl_b32(s(C2), s(S_W), 6); A.s_add_u32(s(G_SC), s(G_SC), s(C2))
    A.s_mov_b32(s(G_EPI), 4)
    A.label(GEMM)
    EPI, EPIRET, LEND, HOOK, RET, RETV, go = '.epi', '.epiret', '.lend', '.hook', '.hret', '.hretv', A.newlabel('go')
    stamp(A, 22); gemm_consts(A)
    A.s_or_b32(s(G_HOOK), s(G_N), -1)
    nh = A.newlabel('nh')
    A.s_cmp_lg_u32(s(S_W), 0); A.s_cbranch_scc1(nh)
    A.s_cmp_lg_u32(s(G_N), 16); A.s_cbranch_scc1(nh)
    if 'nopf' not in OPTS:
        A.s_mov_b32(s(G_HOOK), 14); A.s_and_b32(s(S_HST), s(G_N), 0)
        A.s_and_b32(s(C0), s(S_INIT), 17); A.s_cmp_eq_u32(s(C0), 17); A.s_cbranch_scc1(nh)
        status_ld(A)
    A.label(nh)
    NPRE = XP.get('npre', 12)
    gemm_pro(A, 0, NPRE)
    A.s_bitcmp1_b32(s(S_INIT), 3); A.s_cbranch_scc1(EPI)
    A.s_mov_b32(s(E_CNT), 0)
    gemm_pro(A, max(NPRE, 1) if not NPRE else NPRE, 27) if NPRE else [dma(A, 0, 'sc1'), gemm_pro(A, 1, 27)]
    gemm_zero(A); A.wait(vm=15)
    A.label(go)
    A.s_barrier()
    A.s_cmp_eq_u32(s(G_EPI), 5); A.s_cbranch_scc1(GEMMV)
    gemm_loop(A, False, HOOK, RET)
    A.label(LEND)
    stamp(A, 23)
    A.s_mov_b32(s(E_SC), s(G_SC)); A.s_mov_b32(s(E_EPI), s(G_EPI)); A.s_mov_b32(s(E_CNT), s(G_CNT))
    A.s_cmp_lg_u32(s(G_ASTEP), 128); A.s_cbranch_scc1(EPI)
    sk = only_w0(A)
    sl = A.newlabel('slow')
    A.s_mov_b32(s(C0), -1)
    A.s_cmp_lg_u32(s(G_HOOK), -2); A.s_cbranch_scc1(sl)
    np_ = A.newlabel('np')
    A.v_readfirstlane_b32(s(S_NXT), v(CV))
    A.s_bitcmp1_b32(s(S_INIT), 1); A.s_cbranch_scc1(np_)
    status_rd(A); A.s_mov_b32(s(S_RDY), s(C5)); A.s_mov_b32(s(C0), -1)
    A.s_bitcmp1_b32(s(S_RDY), POISON); A.s_cbranch_scc1(sl)
    A.label(np_)
    A.s_cmp_eq_u32(s(G_CNT), cnt_addr(T_KV)); A.s_cbranch_scc1(sl)
    A.s_sub_u32(s(C1), s(S_NXT), 1); A.s_cmp_ge_u32(s(C1), 64); A.s_cbranch_scc1(sl)
    seq = [ty for ty, first, cnt in order() for i in range(cnt)]
    m_all = sum(1 << i for i, ty in enumerate(seq) if ty in ('KV', 'Q', 'GU')); m_ng = sum(1 << i for i, ty in enumerate(seq) if ty in ('KV', 'Q'))
    A.s_and_b32(s(C2), s(S_TICK), 31); A.s_cmp_ge_u32(s(C2), 28)
    for i in range(2):
        A.s_mov_b32(s(C4+i), hex((m_all >> 32*i) & 0xffffffff)); A.s_cmov_b32(s(C4+i), hex((m_ng >> 32*i) & 0xffffffff))
    A.s_bitcmp0_b64(s(C4, 2), s(C1)); A.s_cbranch_scc1(sl)
    A.s_lshl_b32(s(C0), s(C1), 5); A.s_or_b32(s(C0), s(C0), s(C2)); A.s_bitset0_b32(s(S_INIT), 2)
    A.label(sl)
    bcast(A, sk, False)
    A.s_cmp_eq_u32(s(C0), -1); A.s_cbranch_scc1(EPI)
    if 'log' in OPTS:
        A.s_lshl_b32(s(C1), s(S_TASK), 5); A.s_add_u32(s(C1), s(C1), WS_TIM); A.v_mov_b32(v(104), s(C1))
        for i, k in enumerate((21, 22, 23)): A.v_mov_b32(v(96+i), s(k))
        A.v_mov_b32(v(100), s(S_XCC)); A.v_mov_b32(v(101), s(14)); A.s_mov_b32(s(14), s(23)); A.v_mov_b32(v(103), s(101))
    A.s_mov_b32(s(S_TASK), s(C0)); A.s_bitset1_b32(s(S_INIT), 3); A.s_branch(DECODE)
    A.label(GEMMV)
    gemm_loop(A, True, HOOK, RETV)
    A.s_branch(LEND)
    A.label(HOOK)
    h1, h2, h3, h4, hx, hn, hoff, hk, hm = (A.newlabel(n_) for n_ in ('ha', 'hb', 'hc', 'hd', 'hx', 'hn', 'hoff', 'hk', 'hm'))
    for i, l_ in enumerate((h1, h2, h3)): A.s_cmp_eq_u32(s(S_HST), i+1); A.s_cbranch_scc1(l_)
    A.s_cmp_eq_u32(s(E_CNT), 0); A.s_cbranch_scc1(hn)
    A.v_mov_b32(v(CV), 1); A.v_mov_b32(v(CV+1), 0)
    A.s_mov_b64('exec', 1)
    A.buffer_atomic_add(v(CV), v(CV+1), s(S_WS, 4), s(E_CNT), m='offen sc1')
    A.s_mov_b64('exec', -1)
    A.s_mov_b32(s(E_CNT), 0)
    A.label(hn)
    A.s_and_b32(s(C0), s(S_INIT), 17); A.s_cmp_eq_u32(s(C0), 17); A.s_cbranch_scc1(hk)
    status_rd(A)
    A.s_and_b32(s(C0), s(S_INIT), 17); A.s_cmp_eq_u32(s(C0), 17); A.s_cbranch_scc1(hk)
    A.s_cmp_le_u32(s(G_HOOK), 8); A.s_cbranch_scc1(hoff)
    status_ld(A); A.s_branch(hm)
    A.label(hk)
    ticket(A)
    A.s_mov_b32(s(S_HST), 1); A.s_branch(hm)
    A.label(h1)
    A.v_readfirstlane_b32(s(S_TICK), v(CV)); A.s_add_u32(s(S_TICK), s(S_TICK), 32)
    A.s_bitset1_b32(s(S_INIT), 2); A.s_mov_b32(s(S_NXT), 0); A.s_mov_b32(s(S_RDY), 0)
    A.s_cmp_ge_u32(s(S_TICK), 128*32); A.s_cbranch_scc1(hoff)
    A.s_mov_b32(s(S_HST), 3); A.s_mov_b32(s(C0), s(G_HOOK)); A.s_mov_b32(s(G_HOOK), 3)
    A.s_and_b32(s(C2), s(S_TICK), 31); A.s_cbranch_scc1(hx)
    A.v_mov_b32(v(CV), 1); A.v_mov_b32(v(CV+1), 0)
    A.s_mov_b64('exec', 1)
    A.buffer_atomic_add(v(CV), v(CV+1), s(S_DBG, 4), 0, m=f'offen offset:{D_GHEAD*4} sc0 sc1').nochk = True
    A.s_mov_b64('exec', -1)
    A.s_mov_b32(s(S_HST), 2); A.s_sub_u32(s(G_HOOK), s(C0), 2); A.s_branch(hx)
    A.label(h2)
    A.s_lshr_b32(s(C3), s(S_TICK), 5); tab_addr(A)
    A.v_add_u32(v(CV), 1, v(CV)); A.v_mov_b32(v(CV+1), 0)
    A.s_mov_b64('exec', 1)
    A.buffer_store_dword(v(CV), v(CV+1), s(S_WS, 4), s(C4), m='offen sc1')
    A.s_branch(h4)
    A.label(h3)
    A.s_lshr_b32(s(C3), s(S_TICK), 5); tab_addr(A)
    A.v_mov_b32(v(CV+1), 0)
    A.s_mov_b64('exec', 1)
    A.buffer_load_dword(v(CV), v(CV+1), s(S_WS, 4), s(C4), m='offen sc1').nochk = True
    A.label(h4)
    A.s_mov_b64('exec', -1)
    A.s_mov_b32(s(G_HOOK), -2)
    A.s_bitcmp1_b32(s(S_INIT), 1); A.s_cbranch_scc1(hx)
    status_ld(A); A.s_branch(hx)
    A.label(hm)
    A.s_sub_u32(s(G_HOOK), s(G_HOOK), 2); A.s_branch(hx)
    A.label(hoff)
    A.s_mov_b32(s(G_HOOK), -1)
    A.label(hx)
    A.s_cmp_eq_u32(s(G_EPI), 5); A.s_cbranch_scc1(RETV)
    A.s_branch(RET)
    A.label(EPIRET)
    A.s_bitcmp0_b32(s(S_INIT), 3); A.s_cbranch_scc1(DONE)
    A.s_bitset0_b32(s(S_INIT), 3)
    if 'log' in OPTS:
        nl = only_w0(A)
        A.v_mov_b32(v(99), s(15)); A.v_mov_b32(v(102), s(15))
        A.s_mov_b64('exec', 1)
        A.buffer_store_dwordx4(v(96, 4), v(104), s(S_WS, 4), 0, m='offen')
        A.buffer_store_dwordx4(v(100, 4), v(104), s(S_WS, 4), 0, m='offen offset:16')
        A.s_mov_b64('exec', -1)
        A.label(nl)
    gemm_pro(A, NPRE, 27) if NPRE else [dma(A, 0, 'sc1'), gemm_pro(A, 1, 27)]
    gemm_zero(A); A.wait(vm=23 if NPRE >= 12 else 15); A.s_branch(go)
    A.label(EPI)
    eGU, eDN, eOP, eK, eV = A.newlabel('egu'), A.newlabel('edn'), A.newlabel('eop'), A.newlabel('ek'), A.newlabel('ev')
    A.s_cmp_eq_u32(s(E_EPI), 1); A.s_cbranch_scc1(eK)
    A.s_cmp_eq_u32(s(E_EPI), 2); A.s_cbranch_scc1(eGU)
    A.s_cmp_eq_u32(s(E_EPI), 3); A.s_cbranch_scc1(eDN)
    A.s_cmp_eq_u32(s(E_EPI), 4); A.s_cbranch_scc1(eOP)
    A.s_cmp_eq_u32(s(E_EPI), 5); A.s_cbranch_scc1(eV)
    epi_q(A); stamp(A, 15); A.s_branch(EPIRET)
    A.label(eK); epi_k(A); stamp(A, 15); A.s_branch(EPIRET)
    A.label(eV); epi_vt(A); stamp(A, 15); A.s_branch(EPIRET)
    A.label(eGU); epi_gu(A); stamp(A, 15); A.s_branch(EPIRET)
    A.label(eDN); epi_dn(A); stamp(A, 15); A.s_branch(DONE)
    A.label(eOP)
    dep_wait(A, dep_cnt(A, T_DN, 5), SPECIAL)
    A.s_lshl_b32(s(G_T2), s(G_MB), 2); A.s_add_u32(s(G_T2), s(G_T2), s(G_NT)); A.s_lshl_b32(s(G_T2), s(G_T2), 2); A.s_add_u32(s(G_T2), s(G_T2), s(S_W))
    A.s_lshl_b32(s(G_T2), s(G_T2), 14); A.s_add_u32(s(G_T2), s(G_T2), WS_B)
    A.s_lshl_b32(s(G_T3), s(G_MB), 9); A.s_add_u32(s(G_T3), s(G_T3), WS_G)
    srd(A, SRD_C, P_OUT, 2048*2048)
    stamp(A, 15); epi_op_loads(A); epi_op(A)
    A.wait(vm=0); A.s_branch(NEXT)
    A.label(DONE)
    A.wait(vm=0); A.s_barrier()
    A.s_cmp_lg_u32(s(S_W), 0); A.s_cbranch_scc1(NEXT)
    ensure_init(A, NEXT)
    A.v_mov_b32(v(CV), 1); A.v_mov_b32(v(CV+1), 0)
    A.s_mov_b64('exec', 1)
    A.buffer_atomic_add(v(CV), v(CV+1), s(S_WS, 4), s(G_CNT), m='offen sc1')
    A.s_mov_b64('exec', -1)
    A.s_branch(NEXT)
    if 'nochain' not in OPTS:
        CSP = '.cspecial'
        def handshake(dw, timed):
            A.wait(vm=0); A.s_barrier()
            sk = only_w0(A)
            out, lp, nx, nc = A.newlabel('hso'), A.newlabel('hsl'), A.newlabel('hsn'), A.newlabel('hsc')
            dbg_atomic(A, dw)
            A.s_and_b32(s(C0), s(C0), 255); A.s_cbranch_scc1(nc)
            chain.xq_base(A, not timed); A.s_add_u32(s(C0), s(chain.S_T0), L_MEMB + 1536)
            lane_id(A, CV+2); A.v_lshlrev_b32(v(CV+2), 4, v(CV+2))
            for i in range(4): A.v_mov_b32(v(CV+4+i), 1)
            A.s_mov_b32(s(C1), -1); A.s_mov_b32(s(C2), -1)
            A.s_mov_b64('exec', '0xffffffff')
            for i in range(3):
                for pol in range(2):
                    A.s_memtime(s(C4, 2)); A.wait(lgkm=0); A.s_mov_b32(s(C3), s(C4))
                    A.buffer_store_dwordx4(v(CV+4, 4), v(CV+2), s(S_WS, 4), s(C0), m='offen sc1')
                    A.wait(vm=0); A.s_memtime(s(C4, 2)); A.wait(lgkm=0); A.s_sub_u32(s(C3), s(C4), s(C3))
                    A.s_min_u32(s(C1+pol), s(C1+pol), s(C3)); A.s_xor_b32(s(C0), s(C0), 8192)
            A.s_mov_b64('exec', -1)
            A.s_cmp_lt_u32(s(C2), s(C1)); A.s_cselect_b32(s(C3), 257, 1)
            if 'pol0' in OPTS or 'pol1' in OPTS: A.s_mov_b32(s(C3), 257 if 'pol1' in OPTS else 1)
            if 'polx' in OPTS: A.s_cselect_b32(s(C3), 1, 257)
            if timed:
                kl, kd = A.newlabel('hsk'), A.newlabel('hsd')
                ensure_init(A, out)
                lane_id(A, CV+2); A.v_and_b32(v(CV+2), 15, v(CV+2)); A.v_lshlrev_b32(v(CV+2), 7, v(CV+2))
                A.s_mov_b32(s(C2), cnt_addr(T_KV))
                A.label(kl)
                A.buffer_load_dword(v(CV+4), v(CV+2), s(S_WS, 4), s(C2), m='offen sc1')
                A.wait(vm=0)
                A.v_cmp_gt_u32('vcc', chain.KV_TARGET, v(CV+4))
                A.s_or_b32(s(C1), 'vcc_lo', 0x10000); A.s_ff1_i32_b32(s(C1), s(C1))
                A.s_lshl_b32(s(C1), s(C1), 20); A.s_cbranch_scc1(kd)
                guard(A, kl, out)
                A.label(kd)
                A.s_add_u32(s(C3), s(C3), s(C1))
            dbg_atomic(A, dw, ret=False, val=s(C3))
            A.label(nc)
            A.s_mov_b32(s(C2), 300 if 'forcefb' not in OPTS else 20)
            A.label(lp)
            A.buffer_load_dwordx4(v(CV+4, 4), v(CV+1), s(S_DBG, 4), 0, m=f'offen offset:{D_READY*4} sc1')
            A.wait(vm=0)
            A.v_readfirstlane_b32(s(C1), v(CV+4 + dw - D_READY)); A.v_readfirstlane_b32(s(C3), v(CV+7))
            A.s_or_b32(s(S_INIT), s(S_INIT), s(C3))
            A.s_and_b32(s(C0), s(C1), 256); A.s_lshl_b32(s(C0), s(C0), 5)
            A.s_and_b32(s(C3), s(C1), '0x1f00000'); A.s_or_b32(s(C0), s(C0), s(C3))
            A.s_and_b32(s(C3), s(C1), 0x100ff)
            A.s_cmp_lg_u32(s(C3), 65); A.s_cbranch_scc1(nx)
            A.s_bitcmp1_b32(s(S_INIT), 0); A.s_cbranch_scc1(out)
            A.label(nx)
            if timed:
                np_, wk = A.newlabel('hsp'), A.newlabel('hsw')
                A.s_bitcmp0_b32(s(C1), POISON); A.s_cbranch_scc1(np_)
                take_fb(A, out, wk)
                A.label(wk); A.s_mov_b32(s(C0), 1); A.s_branch(out)
                A.label(np_)
                g = A.newlabel('hsg')
                A.s_sub_u32(s(C2), s(C2), 1); A.s_cbranch_scc0(g)
                A.s_mov_b32(s(C2), 0)
                A.s_cmp_ge_u32(s(C3), 65); A.s_cbranch_scc1(g)
                A.s_or_b32(s(C3), s(C1), 1 << POISON)
                A.v_mov_b32(v(CV+2), s(C3)); A.v_mov_b32(v(CV+3), s(C1))
                A.s_mov_b64('exec', 1)
                A.buffer_atomic_cmpswap(v(CV+2, 2), v(CV+1), s(S_DBG, 4), 0, m=f'offen offset:{D_READY*4} sc1')
                A.s_mov_b64('exec', -1)
                A.label(g)
            if XP.get('hsl', 2): A.s_sleep(XP.get('hsl', 2))
            guard(A, lp, out)
            A.label(out)
            bcast(A, sk)
            A.s_lshr_b32(s(chain.S_KVR), s(C0), 20); A.s_and_b32(s(C0), s(C0), '0xfffff')
            A.s_and_b32(s(chain.S_POL), s(C0), 8192)
            A.s_cmp_lg_u32(s(C0), s(chain.S_POL)); A.s_cbranch_scc1(CSP)
        A.label(CHAINP)
        A.s_mov_b32(s(S_X), s(S_XCC)); A.s_mov_b32(s(S_H), s(C0))
        rts(A, 1)
        if 'log' in OPTS:
            A.s_lshl_b32(s(C4), s(S_X), 5); A.s_add_u32(s(C4), s(C4), s(S_H)); A.v_mov_b32(v(CV), s(C4)); A.v_mov_b32(v(CV+1), 0)
            A.buffer_store_dword(v(CV), v(CV+1), s(S_WS, 4), s(S_WG), m='offen offset:28')
            if 'wl' in OPTS: chain.HOOK = rts
        chain_setup(A, CABORT, False)
        chain.HOOK = None
        rts(A, 2)
        handshake(D_READY, True)
        def tstart(A, off):
            sk_ = A.newlabel('ts'); A.s_and_b32(s(C0), s(S_H), 7); A.s_or_b32(s(C0), s(C0), s(S_W)); A.s_cbranch_scc1(sk_)
            tstart_(A, off); A.label(sk_)
        def tstart_(A, off):
            A.s_memrealtime(s(C0, 2)); A.wait(lgkm=0); A.s_sub_u32(s(C0), s(C0), s(100))
            A.v_mov_b32(v(CV), s(C0)); A.v_mov_b32(v(CV+1), 0); A.s_mov_b64('exec', 1)
            A.buffer_atomic_umax(v(CV), v(CV+1), s(S_DBG, 4), 0, m=f'offen offset:{off} sc1'); A.s_mov_b64('exec', -1)
        if 'tim' in OPTS:
            tstart(A, 140)
            chain.HOOK2 = lambda A: tstart(A, 12 if "timd" in OPTS else 132)
        rts(A, 3)
        chain_loop(A, CABORT, CDONE, False)
        chain.HOOK2 = None
        A.label(CSP)
        A.s_cmp_eq_u32(s(C0), 1); A.s_cbranch_scc1(NEXT)
        A.s_branch(SPECIAL)
        A.label(CHAINF)
        A.s_and_b32(s(S_X), s(C0), 1); A.s_lshr_b32(s(S_H), s(C0), 1)
        A.wait(vm=0, lgkm=0); A.s_barrier()
        chain_setup(A, CABORT, True)
        handshake(D_READY2, False)
        chain_loop(A, CABORT, CDONE, True)
        A.label(CDONE)
        if chain.TIMERS:
            for i in range(16): A.v_mov_b32(v(32+i), s(chain.S_ACC+i))
            A.s_lshl_b32(s(C0), s(S_X), 5); A.s_add_u32(s(C0), s(C0), s(S_H)); A.s_lshl_b32(s(C0), s(C0), 2); A.s_add_u32(s(C0), s(C0), s(S_W))
            A.s_lshl_b32(s(C0), s(C0), 6); A.s_add_u32(s(C0), s(C0), WS_CTIM); A.v_mov_b32(v(48), 0)
            A.s_mov_b64('exec', 1)
            for i in range(4): A.buffer_store_dwordx4(v(32+4*i, 4), v(48), s(S_WS, 4), s(C0), m=f'offen offset:{16*i}')
            A.s_mov_b64('exec', -1)
            A.wait(vm=0, lgkm=0)
        rts(A, 4)
        if 'tim' in OPTS: tstart(A, 24 if 'timd' in OPTS else 136)
        if chain.TIMERS: A.wait(vm=0); A.s_endpgm()
        A.s_cmp_eq_u32(s(S_TASK), -1); A.s_cbranch_scc1(NEXT)
        A.s_branch(DECODE)
        A.label(CABORT)
        A.s_mov_b64('exec', -1)
        A.v_mov_b32(v(CV), '0xdead'); A.v_mov_b32(v(CV+1), 0)
        A.buffer_store_dword(v(CV), v(CV+1), s(S_DBG, 4), 0, m=f'offen offset:{D_ABORT*4} sc1')
        A.wait(vm=0)
        A.s_endpgm()
    else:
        A.label(CHAINF); A.s_endpgm()
    n = A.fix_hazards()
    errs = A.check_waits()
    for e in errs[:20]: print('WAITERR', e)
    code, desc = kernel_wrap(KNAME + '_kernel', A.text())
    ol = ['; ORDER ' + ' '.join(f'{ty}{first+i}' for ty, first, cnt in order() for i in range(cnt))] if 'log' in OPTS else []
    return header(ol + [f'; @launch grid=(256,1,1) block=(256,1,1) lds={LDS_BYTES}']) + code + '.section .rodata,"a"\n' + desc

if __name__ == '__main__':
    for spec in sys.argv[1:]:
        OPTS = set(spec.split('+')) - {'base'}
        if 'timd' in OPTS: OPTS.add('tim')
        chain.TIMERS = 'ct' in OPTS; S0, NG, ORD = 40, 3, 3
        chain.PAR.clear(); chain.PAR.update(chain.PAR0)
        import gemm; gemm.XP.clear()
        for o in OPTS:
            if o.startswith('x_'): gemm.XP[o[2:].split('=')[0]] = int(o.split('=')[1]) if '=' in o else 1
        for o in OPTS:
            if '=' in o and not o.startswith('x_'):
                k_, v_ = o.split('=')
                if k_ == 'S0': S0 = int(v_)
                elif k_ == 'NG': NG = int(v_)
                elif k_ == 'ORD': ORD = int(v_)
                else: chain.PAR[k_] = int(v_)
        import asmcheck
        p = 'mega_%s.s' % spec.replace('+', '_').replace('=', '')
        open(p, 'w').write(build())
        asmcheck.assemble(p)
```

```python
from asmlib import *
from layout import *
import struct

OPT = set()
HOOK = None
HOOK2 = None
PAR0 = dict(nm=2, np=2, swz=0, md=0, pd=0, ack=3, hv=0, vo=2, qa=18, ka=33, km=4, vp=2, nr=2, rd=16, dp=2, sp=0, x4=0, at=0, nd=0, kq=1, bo=0, rp=0, sw=0, pp=0, fp=10203, qk=0, qd=0, qs=0, ks=1, sp0=56)
PAR = dict(PAR0)
S_WS, S_DBG, S_TMP = 4, 8, 12
S_LO8 = 12
S_X, S_H, S_W, S_STEP, S_TO = 16, 17, 18, 19, 20
S_MEMLD, S_MEMST = 21, 23
S_XQO, S_XQI = 25, 27
S_PST, S_PLD = 29, 31
S_KX, S_VT, S_PUB, S_PUBV, S_PRG, S_KVR, S_POL = 33, 34, 35, 36, 37, 38, 39
S_PFM = 14
S_C = 40
S_T0, S_T1, S_T2, S_T3 = 42, 43, 44, 45
S_TMP2 = 48
S_ACC = 47
S_PTR = 64
def ptr(i): return S_PTR + 2*i

V_A = 0
V_MW, V_L8, V_WO, V_PST, V_PLD, V_MST, V_IDX = 0, 4, 5, 6, 7, 8, 9
V_TB, V_TK, V_ONE, V_HALF = 10, 11, 12, 14
KP, VP = 16, 24
WVR, WOR = 128, 192
def WQ(jj): return 256 + 8*jj
def WK(jj): return 384 + 8*jj
O_FO, O_KX, O_X = L_FO - L_MEMB, L_KXB - L_MEMB, L_X - L_MEMB
def QPO(): return 576 if PAR['x4'] else 544

def srd(A, d, p, nbytes):
    A.s_mov_b32(s(d), s(ptr(p))); A.s_mov_b32(s(d+1), s(ptr(p)+1))
    A.s_mov_b32(s(d+2), hex(nbytes)); A.s_mov_b32(s(d+3), '0x20000')

def load_ptrs(A):
    for i in range(0, 14, 2):
        A.s_load_dwordx4(s(ptr(i), 4), s(0, 2), i*8)
    A.s_load_dwordx2(s(ptr(14), 2), s(0, 2), 112)

def spin_guard(A, retry, abort):
    A.s_sub_u32(s(S_TO), s(S_TO), 1)
    A.s_cbranch_scc0(retry)
    A.s_branch(abort)

PB = [32, 40]
def AF(jj):
    assert jj not in (0, 2)
    return 48 + 4*([1, 3] + list(range(4, 16))).index(jj)

def xq_base(A, fb):
    A.s_lshl_b32(s(S_T0), s(S_X), 5); A.s_add_u32(s(S_T0), s(S_T0), s(S_H)); A.s_lshl_b32(s(S_T0), s(S_T0), 15)
    A.s_add_u32(s(S_T0), s(S_T0), WS_XQ + (FB_XQ if fb else 0) - L_MEMB)

def chain_setup(A, abort, fb=False):
    L, G, N16, T1, T2, T3, T4 = 16, 17, 18, 19, 20, 21, 22
    WS_PART_, WS_MEM_ = WS_PART + (FB_PART if fb else 0), WS_MEM + (FB_MEM if fb else 0)
    A.c('---- chain setup: lane constants ----')
    A.v_mbcnt_lo_u32_b32(v(L), -1, 0); A.v_mbcnt_hi_u32_b32(v(L), -1, v(L))
    A.v_lshrrev_b32(v(G), 4, v(L)); A.v_and_b32(v(N16), 15, v(L))
    A.v_lshrrev_b32(v(T1), 3, v(N16)); A.v_lshlrev_b32(v(T1), 9, v(T1)); A.v_lshl_add_u32(v(T1), v(G), 7, v(T1))
    A.v_and_b32(v(T2), 7, v(L)); A.v_lshl_add_u32(v(T1), v(T2), 4, v(T1))
    A.s_lshl_b32(s(S_T0), s(S_W), 11); A.s_add_u32(s(S_T0), s(S_T0), L_MEMB)
    A.v_add_u32(v(V_MW), s(S_T0), v(T1))
    for a_ in range(1, 4): A.v_xor_b32(v(V_A+a_), a_*2048, v(V_MW))
    A.v_lshlrev_b32(v(T1), 3, v(L)); A.v_add_u32(v(V_L8), s(S_T0), v(T1))
    A.s_lshl_b32(s(S_T3), s(S_W), 15)
    A.v_lshlrev_b32(v(T1), 4, v(L)); A.v_add_u32(v(V_WO), s(S_T3), v(T1))
    A.v_and_b32(v(T3), 1, v(G)); A.v_lshlrev_b32(v(T3), 1, v(T3)); A.v_lshrrev_b32(v(T4), 1, v(G)); A.v_add_u32(v(T3), v(T3), v(T4))
    A.v_lshlrev_b32(v(T3), 13, v(T3)); A.v_lshl_add_u32(v(T3), v(N16), 4, v(T3))
    A.s_lshl_b32(s(S_T0), s(S_W), 16); A.v_add_u32(v(T3), s(S_T0), v(T3))
    if PAR['swz']:
        A.v_lshrrev_b32(v(T4), 13, v(T3)); A.v_xor_b32(v(T4), s(S_H), v(T4)); A.v_lshl_add_u32(v(V_PST), v(T4), 8, v(T3))
    else:
        A.s_lshl_b32(s(S_T1), s(S_H), 8); A.v_add_u32(v(V_PST), s(S_T1), v(T3))
    A.v_lshrrev_b32(v(T3), 2, v(L)); A.v_lshlrev_b32(v(T3), 8, v(T3))
    A.v_and_b32(v(T4), 3, v(L)); A.v_lshl_add_u32(v(T3), v(T4), 4, v(T3))
    A.s_lshl_b32(s(S_T0), s(S_H), 13)
    if PAR['sw']: A.s_and_b32(s(S_T1), s(S_W), 1); A.s_lshl_b32(s(S_T1), s(S_T1), 7)
    else: A.s_lshl_b32(s(S_T1), s(S_W), 6)
    A.s_add_u32(s(S_T0), s(S_T0), s(S_T1))
    A.v_add_u32(v(V_PLD), s(S_T0), v(T3))
    A.v_lshrrev_b32(v(T3), 3, v(L)); A.v_lshlrev_b32(v(T3), 4, v(T3))
    A.v_and_b32(v(T4), 2, v(L)); A.v_lshl_add_u32(v(T3), v(T4), 1, v(T3))
    A.s_lshl_b32(s(S_T0), s(S_H), 8)
    if PAR['sw']: A.s_and_b32(s(S_T1), s(S_W), 1); A.s_lshl_b32(s(S_T1), s(S_T1), 7); A.s_add_u32(s(S_T0), s(S_T0), s(S_T1))
    else:
        A.s_lshr_b32(s(S_T1), s(S_W), 1); A.s_lshl_b32(s(S_T1), s(S_T1), 7); A.s_add_u32(s(S_T0), s(S_T0), s(S_T1))
        A.s_and_b32(s(S_T1), s(S_W), 1); A.s_lshl_b32(s(S_T1), s(S_T1), 3); A.s_add_u32(s(S_T0), s(S_T0), s(S_T1))
    A.v_add_u32(v(T3), s(S_T0), v(T3))
    A.v_and_b32(v(T4), 5, v(L)); A.v_cmp_eq_u32('vcc', 0, v(T4)); A.v_bfrev_b32(v(T4), 1)
    A.v_cndmask_b32(v(V_MST), v(T4), v(T3))
    A.v_mov_b32(v(T3), '0x4444'); A.v_mov_b32(v(T4), '0xeeee')
    A.v_cmp_lt_u32('vcc', 7, v(N16)); A.v_cndmask_b32(v(V_IDX), v(T3), v(T4))
    A.v_lshrrev_b32(v(T1), 1, v(G)); A.v_lshlrev_b32(v(T1), 8, v(T1))
    A.v_and_b32(v(T2), 1, v(L)); A.v_lshl_add_u32(v(T1), v(T2), 7, v(T1))
    A.v_and_b32(v(T2), 1, v(G)); A.v_lshl_add_u32(v(T1), v(T2), 3 if PAR['x4'] else 6, v(T1))
    A.v_bfe_u32(v(T2), v(L), 2, 2); A.v_lshl_add_u32(v(T1), v(T2), 4 if PAR['x4'] else 3, v(T1))
    A.v_add_u32(v(V_TK), L_FO, v(T1))
    A.v_bfe_u32(v(T2), v(L), 1, 1); A.v_mul_u32_u24(v(T2), QPO(), v(T2)); A.v_add_u32(v(T1), v(T1), v(T2))
    A.v_add_u32(v(V_TB), L_X, v(T1))
    for i in range(2): A.v_mov_b32(v(V_ONE+i), '0x3f803f80'); A.v_mov_b32(v(V_HALF+i), '0x3f003f00')
    A.c('---- scalar constants ----')
    cbits = struct.unpack('<I', struct.pack('<f', (128 ** -0.5) * 1.4426950408889634))[0]
    A.s_mov_b32(s(S_C), hex(cbits)); A.s_mov_b32(s(S_C+1), hex(cbits))
    A.s_lshl_b32(s(S_T0), s(S_X), 14)
    for par in range(2):
        A.s_add_u32(s(S_MEMST+par), s(S_T0), WS_MEM_ + par*8192)
        A.s_add_u32(s(S_MEMLD+par), s(S_T0), WS_MEM_ + par*8192 - L_MEMB)
    A.s_lshl_b32(s(S_PRG), s(S_X), 5); A.s_add_u32(s(S_PRG), s(S_PRG), s(S_H)); A.s_lshl_b32(s(S_PRG), s(S_PRG), 7); A.s_add_u32(s(S_PRG), s(S_PRG), WS_CTL + C_PROG)
    A.s_lshl_b32(s(S_T0), s(S_X), 18)
    for i in range(2):
        A.s_add_u32(s(S_PST+i), s(S_T0), WS_PART_ + i*32768)
        A.s_add_u32(s(S_PLD+i), s(S_T0), WS_PART_ + i*4096)
    if PAR['swz']:
        A.s_and_b32(s(S_T1), s(S_H), 4); A.s_lshl_b32(s(S_T1), s(S_T1), 9); A.s_add_u32(s(S_PST+1), s(S_PST+1), 1024); A.s_sub_u32(s(S_PST+1), s(S_PST+1), s(S_T1))
    A.s_lshl_b32(s(S_T0), s(S_H), 13)
    if PAR['sw']:
        A.s_mov_b32(s(S_KX), hex(WS_KX)); A.s_mov_b32(s(S_VT), L_KXB)
        A.s_bitcmp1_b32(s(S_W), 0); A.s_cmov_b32(s(S_KX), hex(WS_VT)); A.s_cmov_b32(s(S_VT), L_MEMB)
        A.s_add_u32(s(S_KX), s(S_KX), s(S_T0)); A.s_sub_u32(s(S_KX), s(S_KX), s(S_T3))
    else: A.s_add_u32(s(S_KX), s(S_T0), WS_KX - L_MEMB); A.s_add_u32(s(S_VT), s(S_T0), WS_VT - L_MEMB)
    A.s_add_u32(s(S_PUBV), s(S_T0), WS_PUB - L_MEMB); A.s_lshl_b32(s(S_T1), s(S_X), 9); A.s_add_u32(s(S_PUBV), s(S_PUBV), s(S_T1))
    A.c('---- init hand-off buffers (write-through) ----')
    for i in range(4): A.v_mov_b32(v(32+i), 1)
    A.v_mov_b32(v(36), -1)
    xq_base(A, fb)
    for k in range(4):
        A.buffer_store_dwordx4(v(32, 4), v(V_MW), s(S_WS, 4), s(S_T0), m='offen sc1')
        A.buffer_store_dwordx4(v(32, 4), v(V_MW), s(S_WS, 4), s(S_T0), m='offen offset:1024 sc1')
        if k < 3: A.s_add_u32(s(S_T0), s(S_T0), 8192)
    for q in range(2):
        A.buffer_store_dwordx4(v(32, 4), v(V_PLD), s(S_WS, 4), s(S_PLD+q), m='offen sc1')
        if PAR['sw']: A.buffer_store_dwordx4(v(32, 4), v(V_PLD), s(S_WS, 4), s(S_PLD+q), m='offen offset:64 sc1')
    for par in range(2):
        A.buffer_store_dword(v(36), v(V_MST), s(S_WS, 4), s(S_MEMST+par), m='offen sc1')
        if PAR['sw']: A.buffer_store_dword(v(36), v(V_MST), s(S_WS, 4), s(S_MEMST+par), m='offen offset:8 sc1')
    A.c('---- weight load: whole 128-byte lines, wave pairs share the staged rows ----')
    VD, VDO, VRV, VRVB, VRP, VRPB, VRO, VM0, R_ = 23, 24, 25, 26, 27, 28, 29, 30, 31
    A.v_lshrrev_b32(v(T1), 3, v(L)); A.v_and_b32(v(T2), 7, v(L)); A.v_lshlrev_b32(v(T3), 4, v(T2))
    A.v_lshl_add_u32(v(VD), v(T1), 13, v(T3)); A.v_lshl_add_u32(v(VDO), v(T1), 11, v(T3))
    A.s_lshl_b32(s(S_T0), s(S_X), 22); A.s_lshl_b32(s(S_T1), s(S_H), 8); A.s_add_u32(s(S_T0), s(S_T0), s(S_T1))
    A.s_lshr_b32(s(S_T1), s(S_W), 1); A.s_lshl_b32(s(S_T1), s(S_T1), 7); A.s_add_u32(s(S_T0), s(S_T0), s(S_T1)); A.v_add_u32(v(VD), s(S_T0), v(VD))
    A.s_lshl_b32(s(S_T0), s(S_H), 18); A.s_lshl_b32(s(S_T1), s(S_X), 10); A.s_add_u32(s(S_T0), s(S_T0), s(S_T1))
    A.s_lshl_b32(s(S_T1), s(S_W), 8); A.s_add_u32(s(S_T0), s(S_T0), s(S_T1)); A.v_add_u32(v(VDO), s(S_T0), v(VDO))
    A.v_and_b32(v(T2), 3, v(L))
    A.v_bfe_u32(v(R_), v(L), 3, 1)
    A.v_bfe_u32(v(T1), v(L), 2, 1)
    A.s_and_b32(s(S_T0), s(S_W), 1); A.s_lshl_b32(s(S_T0), s(S_T0), 6); A.s_add_u32(s(S_T0), s(S_T0), s(S_T3))
    A.v_lshl_add_u32(v(T4), v(G), 2, v(T1)); A.v_lshlrev_b32(v(T4), 7, v(T4)); A.v_add_u32(v(T4), s(S_T0), v(T4))
    A.v_mul_u32_u24(v(VRV), 4128, v(R_)); A.v_lshl_add_u32(v(VRV), v(T2), 3, v(VRV)); A.v_add_u32(v(VRV), v(VRV), v(T4)); A.v_xor_b32(v(VRVB), '0x1000', v(VRV))
    A.v_xor_b32(v(VRP), '0x8000', v(VRV)); A.v_xor_b32(v(VRPB), '0x8000', v(VRVB))
    A.v_and_b32(v(T3), 1, v(G)); A.v_lshlrev_b32(v(T3), 4, v(T3)); A.v_lshrrev_b32(v(T4), 1, v(G)); A.v_lshl_add_u32(v(T3), v(T4), 2, v(T3))
    A.v_add_u32(v(T3), v(T3), v(T1)); A.v_lshlrev_b32(v(T3), 7, v(T3)); A.v_lshl_add_u32(v(T3), v(R_), 5, v(T3)); A.v_lshl_add_u32(v(T3), v(T2), 3, v(T3))
    A.v_add_u32(v(VRO), s(S_T3), v(T3))
    A.v_and_b32(v(T1), 7, v(L)); A.v_lshlrev_b32(v(T1), 11, v(T1)); A.v_lshl_add_u32(v(T1), v(G), 4, v(T1))
    A.v_lshl_add_u32(v(T1), v(R_), 6, v(T1))
    A.s_lshl_b32(s(S_T0), s(S_X), 10); A.s_lshl_b32(s(S_T1), s(S_W), 8); A.s_add_u32(s(S_T0), s(S_T0), s(S_T1)); A.v_add_u32(v(VM0), s(S_T0), v(T1))
    two = lambda m_, l_: [(m_, a_, i) for a_ in l_ for i in range(2)]
    groups = two('q', (0, 2)) + two('k', (0, 2)) + two('v', (0,)) + two('o', (0, 1)) + two('v', (2,))
    cur = [None]
    def setsrd(p, n):
        if cur[0] != p: srd(A, S_TMP, p, n); cur[0] = p
    def issue(g):
        slot, (m_, a_, i) = g % 4, groups[g]
        setsrd(*{'q': (P_WQ, 1 << 23), 'k': (P_WK, 1 << 23), 'v': (P_WV, 1 << 23), 'o': (P_WO, 1 << 23)}[m_])
        if m_ != 'o': A.s_xor_b32(s(S_T1), s(S_W), a_); A.s_lshl_b32(s(S_T1), s(S_T1), 20)
        for b in range(8):
            if m_ != 'o': A.s_add_u32(s(S_T0), s(S_T1), hex((64*i + 8*b) << 13))
            else:
                if b % 4 == 0: A.s_xor_b32(s(S_T1), s(S_W), 2*i + b // 4); A.s_lshl_b32(s(S_T1), s(S_T1), 16)
                A.s_add_u32(s(S_T0), s(S_T1), hex((b % 4)*16384 + a_*128))
            A.s_add_u32('m0', s(S_T3), slot*8192 + b*1024)
            A.buffer_load_dwordx4(v(VDO if m_ == 'o' else VD), s(S_TMP, 4), s(S_T0), m='offen lds')
    def wr_frag(src, f):
        for u in range(2): A.ds_write_b128(v(V_WO), v(src + 4*u, 4), m=f'offset:{f*2048 + u*1024}')
    for g in range(4): issue(g)
    for g in range(16):
        A.wait(vm=min(3, 15-g) * 8)
        slot, (m_, a_, i) = g % 4, groups[g]
        if m_ != 'o': A.s_barrier()
        for k in range(4):
            for m in range(4):
                if m_ != 'o':
                    jj = 4*(a_ + k // 2) + 2*i + k % 2
                    if m_ == 'v': dst = WVR + 8*jj if a_ < 2 else 96 + 8*k
                    else: dst = (WQ if m_ == 'q' else WK)(jj)
                    A.ds_read_b64_tr_b16(r(dst + 2*m, 2), v([VRV, VRVB, VRP, VRPB][k]), m=f'offset:{slot*8192 + (16*(m//2) + 2*(m % 2))*128}')
                else:
                    T_ = 2*a_ + k % 2
                    dst = {0: 32 + 8*T_, 3: 64 + 8*T_, 1: WOR + 8*T_, 2: WOR + 32 + 8*T_}[2*i + k // 2]
                    A.ds_read_b64_tr_b16(v(dst + 2*m, 2), v(VRO), m=f'offset:{slot*8192 + (32*(k//2) + 8*(m//2) + 2*(m % 2))*128 + (k % 2)*64}')
            if k == 2: A.wait(lgkm=4)
        A.wait(lgkm=0)
        if m_ != 'o': A.s_barrier()
        if HOOK and g % 2 == 0: HOOK(A, 8 + g//2)
        if g+4 < 16: issue(g+4)
        if g >= 14:
            for k in range(4): wr_frag(96 + 8*k, 4*(k // 2) + 2*i + k % 2)
            A.wait(lgkm=0)
    for k in range(8): wr_frag(32 + 8*k, 8 + k)
    A.wait(lgkm=0)
    srd(A, S_TMP, P_MEM0, 8*1024*2)
    for i in range(2):
        A.buffer_load_dwordx4(v(PB[0]+4*i, 4), v(VM0), s(S_TMP, 4), 0, m=f'offen offset:{i*128}')

def kv_wait(A, abort, blk_sreg, t):
    lp, ok, got, oth = A.newlabel('kvw'), A.newlabel('kvok'), A.newlabel('kvg'), A.newlabel('kvo')
    A.s_cmp_lt_u32(s(blk_sreg), s(S_KVR)); A.s_cbranch_scc1(ok)
    A.s_cmp_lg_u32(s(S_W), 0); A.s_cbranch_scc1(oth)
    A.v_bfe_u32(v(t), v(V_WO), 4, 4); A.v_lshlrev_b32(v(t), 7, v(t))
    A.s_mov_b32(s(S_T0), WS_CTL + C_CNT + T_KV*2048)
    A.label(lp)
    A.buffer_load_dword(v(t+1), v(t), s(S_WS, 4), s(S_T0), m='offen sc1')
    A.wait(vm=0)
    A.v_cmp_gt_i32('vcc', KV_TARGET, v(t+1))
    A.s_or_b32(s(S_KVR), 'vcc_lo', 0x10000); A.s_ff1_i32_b32(s(S_KVR), s(S_KVR))
    A.s_cmp_lt_u32(s(blk_sreg), s(S_KVR)); A.s_cbranch_scc1(got)
    A.s_sleep(4)
    A.s_sub_u32(s(S_TO), s(S_TO), 1); A.s_cbranch_scc0(lp)
    A.s_mov_b32(s(S_KVR), 0)
    A.label(got)
    A.v_mov_b32(v(t), L_MISC + 16); A.v_mov_b32(v(t+1), s(S_KVR)); A.ds_write_b32(v(t), v(t+1))
    A.label(oth)
    A.wait(vm=0, lgkm=0); A.s_barrier()
    A.v_mov_b32(v(t), L_MISC + 16); A.ds_read_b32(v(t+1), v(t)); A.wait(lgkm=0)
    A.v_readfirstlane_b32(s(S_KVR), v(t+1))
    A.s_cmp_eq_u32(s(S_KVR), 0); A.s_cbranch_scc1(abort)
    A.label(ok)
KV_TARGET = 32

def kv_prefetch(A):
    ops = []
    if PAR['sw']:
        ld = lambda so, t: A.buffer_load_dwordx4(v(V_WO), s(S_WS, 4), s(so), m=f'offen offset:{1024*t} sc1 lds')
        on, off = (lambda: A.s_mov_b64('exec', s(S_PFM, 2))), (lambda: A.s_mov_b64('exec', -1))
        def h0(): A.s_mov_b32('m0', s(S_VT)); on(); [ld(S_KX, t) for t in range(4)]
        def h1(): A.s_add_u32('m0', s(S_VT), 4096); A.s_add_u32(s(S_T2), s(S_KX), 4096); [ld(S_T2, t) for t in range(4)]; off()
        if PAR['pp'] == 1: return [lambda: (h0(), off()), lambda: (on(), h1())]
        return [lambda: (h0(), h1())]
    for t in range(2): ops.append(lambda t=t: A.buffer_load_dwordx4(v(KP+4*t, 4), v(V_MW), s(S_WS, 4), s(S_KX), m=f'offen offset:{1024*t} sc1'))
    for t in range(2): ops.append(lambda t=t: A.buffer_load_dwordx4(v(VP+4*t, 4), v(V_MW), s(S_WS, 4), s(S_VT), m=f'offen offset:{1024*t} sc1'))
    return ops
def kv_advance(A):
    A.s_add_u32(s(S_KX), s(S_KX), 262144)
    if not PAR['sw']: A.s_add_u32(s(S_VT), s(S_VT), 262144)
def vt_read(A):
    for t in range(2): A.ds_read_b128(v(VP+4*t, 4), v(V_MW), m=f'offset:{1024*t}')

TIMERS = False
NTM = 14
def TM(A, i):
    if TIMERS: (A.s_memrealtime if PAR.get('raw') else A.s_memtime)(s(64+2*i, 2))
def TMACC(A):
    if TIMERS:
        A.wait(lgkm=0)
        if PAR.get('raw'):
            A.s_cmp_eq_u32(s(S_STEP), PAR['raw'])
            for i in range(NTM): A.s_cselect_b32(s(S_ACC+i), s(64+2*i), s(S_ACC+i))
        for i in range(NTM-1):
            if PAR.get('raw'): break
            A.s_sub_u32(s(S_T0), s(66+2*i), s(64+2*i)); A.s_add_u32(s(S_ACC+i), s(S_ACC+i), s(S_T0))
        A.s_mov_b32(s(64), s(64+2*(NTM-1)))
def CNT(A, k):
    if TIMERS: A.s_add_u32(s(61 + k//3), s(61 + k//3), 1 << (10*(k % 3)))
def cvt(A, d, a_, b): return lambda: A.v_cvt_pk_bf16_f32(v(d), v(a_), v(b))
def tagop(A, d, tag): return (lambda: A.v_or_b32(v(d), 1, v(d))) if tag else (lambda: A.v_and_b32(v(d), -2, v(d)))
def run(ops):
    for f in ops: f()

QA, KA, VA = 104, 108, 112
BB, TC = 116, 120
def pre_mem(A):
    if not PAR['sw']:
        for t in range(2): A.ds_write_b128(v(V_MW), v(KP+4*t, 4), m=f'offset:{O_KX + 1024*t}')
    for i in range(6): A.v_mov_b64(v(QA+2*i, 2), 0)
    for a_ in range(4): A.v_xor_b32(v(BB+a_), 512, v(V_A+a_))

def chain_step(A, u, abort, fb, cold, first_entry=None, last=False, done=None):
    par, xtag, ptag = u % 2, (u // 2) % 2, u % 2
    st = 'offen sc1' if fb else 'offen'
    A.c(f'======== chain step u={u} last={last} ========')
    sm = lambda acc, af, W: A.v_smfmac_f32_16x16x64_bf16(v(acc, 4), v(af, 4), r(W, 8), v(V_IDX))
    def poll(check, loads, nfl, name):
        lp, rt = A.newlabel(name + 'l'), A.newlabel(name + 'r')
        A.label(lp); check(); A.s_cbranch_vccnz(rt)
        def emit():
            A.label(rt); A.s_mov_b64('exec', 'vcc')
            if name == 'q': CNT(A, 0)
            k = len(A.items); loads(); k = len(A.items) - k
            A.s_mov_b64('exec', -1)
            A.s_sub_u32(s(S_TO), s(S_TO), 1); A.s_cbranch_scc1(abort)
            A.wait(vm=k*(nfl-1)); A.s_branch(lp)
        cold.append(emit)
        return lp
    p = PB[0]
    def memld():
        for i in range(2): A.buffer_load_dwordx4(v(p+4*i, 4), v(V_MW), s(S_WS, 4), s(S_MEMLD+par), m=f'offen offset:{1024*i} sc1').nochk = True
    late = PAR['md'] or PAR['ack'] & 2
    if not late: memld()
    TMACC(A)
    pre_mem(A)
    if PAR['dp'] < 0: A.v_mov_b32(v(124), ((u + 3) // 2) % 2); A.v_mov_b32(v(125), s(S_STEP))
    if PAR['ack'] & 2: A.wait(vm=0)
    if PAR['sw']: A.s_barrier()
    if late: A.nop(PAR['md']); memld()
    if PAR['sw']: vt_read(A)
    A.wait(vm=0)
    others = [(a_, i, f) for a_ in range(1, 4) for i in range(2) for f in range(2)]
    def ord_(k, q):
        a_, i, f = others[k]
        A.ds_read_b128(v(AF(4*a_+2*i+f), 4), v((BB if f else V_A) + a_), m=f'offset:{1024*i}'); q.issue(4*a_+2*i+f)
    def mchk():
        A.v_max3_u32(v(TC), v(p), v(p+1), v(p+2)); A.v_max3_u32(v(TC+1), v(p+3), v(p+4), v(p+5))
        A.v_max3_u32(v(TC), v(TC), v(p+6), v(p+7)); A.v_max_u32(v(TC), v(TC), v(TC+1))
        A.v_cmp_eq_u32('vcc', -1, v(TC))
    top = poll(mchk, memld, PAR['nm'], 'm')
    if first_entry:
        def emit_entry():
            A.label(first_entry); A.wait(vm=0)
            if PAR['sw']: A.s_barrier(); vt_read(A)
            for i in range(8): A.v_min_u32(v(PB[0]+i), -2, v(PB[0]+i))
            pre_mem(A)
            A.v_mov_b32(v(124), 1); A.v_mov_b32(v(125), 0)
            for i in range(NTM): TM(A, i)
            A.s_branch(top)
        cold.append(emit_entry)
    q = LQ(A)
    TM(A, 1)
    vq = []
    def vwait(tag):
        i = vq.index(tag); A.wait(vm=len(vq) - 1 - i); del vq[:i+1]
    full = lambda: A.s_mov_b64('exec', -1)
    X4 = PAR['x4']; US, XN = (64, 4) if X4 else (32, 2)
    lo8 = (lambda: A.s_mov_b64('exec', s(S_LO8, 2))) if X4 else (lambda: None)
    ful8 = full if X4 else (lambda: None)
    def xw(src, lds): (A.ds_write_b128 if X4 else A.ds_write_b64)(v(V_MW if X4 else V_L8), v(src, XN), m=f'offset:{lds}')
    def xo(src, off, n): (A.buffer_store_dwordx4 if n == 4 else A.buffer_store_dwordx2)(v(src, n), v(V_MW if n == 4 else V_L8), s(S_WS, 4), s(S_XQO+par), m=f'offen offset:{off} sc1')
    def xi(dst, off, n):
      if PAR['at'] & {0: 1, 512: 2, 1024: 4}[off]:
        A.v_mov_b64(v(dst, 2), 0)
        A.buffer_atomic_or_x2(v(dst, 2), v(V_L8), s(S_WS, 4), s(S_XQI+par), m=f'offen offset:{off} sc0 sc1').nochk = True
      else: (A.buffer_load_dwordx4 if n == 4 else A.buffer_load_dwordx2)(v(dst, n), v(V_MW if n == 4 else V_L8), s(S_WS, 4), s(S_XQI+par), m=f'offen offset:{off} sc1').nochk = True
    def progress(val, t):
        A.buffer_store_dword(v(t), 'off', s(S_WS, 4), s(S_PRG), m='sc1'); vq.append('prog')
    def late_drop():
        ot = ((u + 3) // 2) % 2
        dr = lambda i: (A.buffer_store_dword(v(124), v(V_MW), s(S_WS, 4), s(S_XQI+1-par), m=f'offen offset:{1024*i} sc1'), vq.append(f'ld{i}'))
        m8 = lambda: (A.s_mov_b32('exec_lo', '0x01010101'), A.s_mov_b32('exec_hi', '0x01010101'))
        def mark():
            n_ = 64 - PAR['sp0']
            A.v_mov_b64(v(124, 2), -1)
            A.s_lshr_b32(s(S_T0), s(S_STEP), 2); A.s_mul_i32(s(S_T1), s(S_T0), -3*262144); A.s_add_u32(s(S_T1), s(S_T1), s(S_PUBV)); A.s_add_u32(s(S_T1), s(S_T1), (PAR['sp0'] - 1)*262144)
            A.s_cmp_lt_u32(s(S_T0), n_); A.s_cselect_b64('exec', -1, 0); A.s_cselect_b32(s(S_T1), s(S_T1), s(S_PUBV))
            for i in range(2): A.buffer_store_dwordx2(v(124, 2), v(V_L8), s(S_WS, 4), s(S_T1), m=f'offen offset:{1024*i} sc1'); vq.append(f'mk{i}')
            full()
        return ([mark] if u == 1 else []) + [lambda: (A.v_mov_b32(v(124), ot), A.v_mov_b32(v(125), s(S_STEP)))] + ([] if last or PAR['nd'] else [lambda: (m8(), dr(0), full()), lambda: (m8(), dr(1), full())]) + [
                lambda: (A.s_mov_b64('exec', 1), progress(0, 125), full())]
    A.ds_write_b128(v(V_MW), v(p, 4)); A.ds_write_b128(v(V_MW), v(p+4, 4), m='offset:1024'); q.issue('w0'); q.issue('w1')
    if not last: sm(QA, p, WQ(0))
    A.ds_read_b128(v(AF(1), 4), v(BB)); A.ds_read_b128(v(AF(3), 4), v(BB), m='offset:1024'); q.issue(1); q.issue(3)
    if not last: sm(QA, p+4, WQ(2))
    sm(KA, p, WK(0))
    q.need(['w1']); A.s_barrier()
    TM(A, 2)
    vown = [(VA, p, WVR, None), (VA, p+4, WVR+16, None), (VA, AF(1), WVR+8, 1), (VA, AF(3), WVR+24, 3)]
    vo = PAR['vo']
    fill = [(KA, p+4, WK(2), None)] + ([] if last else [(QA, AF(1), WQ(1), 1), (QA, AF(3), WQ(3), 3)]) + [(KA, AF(1), WK(1), 1), (KA, AF(3), WK(3), 3)] + vown[:vo]
    QK = PAR['qk'] and not last
    if QK: fill = [fill[i] for i in (0, 1, 3, 2, 4)] + fill[5:]
    k = 0
    ld_ = late_drop()
    if PAR['dp'] < 0 and not last:
        ot = ((u + 3) // 2) % 2
        A.s_mov_b32('exec_lo', '0x01010101'); A.s_mov_b32('exec_hi', '0x01010101')
        for i in range(2): A.buffer_store_dword(v(124), v(V_MW), s(S_WS, 4), s(S_XQI+1-par), m=f'offen offset:{1024*i} sc1'); vq.append(f'ld{i}')
        if PAR['dp'] == -2: progress(0, 125); ld_ = []
        else: ld_ = ld_[3:]
        full()
    for acc_, af, W, nd in fill:
        for _ in range(2):
            if k < 12: ord_(k, q); k += 1
        if nd: q.need([nd])
        sm(acc_, af, W)
    while k < 12: ord_(k, q); k += 1
    if last: run(ld_)
    QR, PKV, KRA, VR, XT = QA, VA, KP+4, 118, 114
    VKB, VTW = 116, 117
    KR, BP, K0, VTC, TK = 56, 88, 32, 48, 120
    VF = [40, 120, 32, 48, 40, 120, 32, 48]
    def vrd(k):
        for uu in range(2): A.ds_read_b128(v(VF[k]+4*uu, 4), v(V_WO), m=f'offset:{k*2048 + uu*1024}'); q.issue(('v', k, uu))
    def send(acc_, off, lds, tag, tm):
        o1 = [cvt(A, acc_, acc_, acc_+1), cvt(A, acc_+1, acc_+2, acc_+3)]
        if lds is None: return o1 + ([] if last else [tagop(A, acc_, xtag), lambda: (xo(acc_, off, 2), vq.append(tag))]) + [lambda: TM(A, tm)]
        o2 = [lambda i=i: A.v_mov_b32_dpp(v(acc_+2+i), v(acc_+i), m='row_ror:8 row_mask:0xf bank_mask:0xf') for i in range(2 if X4 else 0)]
        if not last: o2 += [tagop(A, acc_, xtag)]
        o3 = [lo8] + ([] if last else [lambda: (xo(acc_, off, XN), vq.append(tag))])
        o3 += [lambda: (xw(acc_, lds), q.issue(tag)), ful8, lambda: TM(A, tm)]
        return [[o1 + o2 + o3], [o1, o2 + o3], [o1, o2, o3]][PAR['sp']]
    if not last and not QK:
        for n, jj in enumerate(range(4, 16)):
            q.need([jj]); sm(QA, AF(jj), WQ(jj))
            if n >= (PAR['dp'] if PAR['dp'] >= 0 else 2) and ld_: ld_.pop(0)()
        assert not ld_
    side = {n: [] for n in range(12)}
    if QK:
        for n in range(len(ld_)): side[PAR['dp'] + n].append(ld_[n])
    elif not last:
        for i, o_ in enumerate(send(QA, 0, O_X, 'qs', 3)): side[1+i] += o_
    side[4] += [lambda: vrd(0)]; side[5] += [lambda: vrd(1)]
    side[7] += [lambda: A.v_and_b32(v(VKB), ~0x1800, v(V_MW)), lambda: A.s_lshl_b32(s(S_T1), s(S_W), 11), lambda: A.v_add_u32(v(VTW), s(S_T1), v(V_TK))]
    flush = lambda: A.wait(vm=len(vq))
    if vo >= 2: side[8] += [flush, lambda: vrd(2)]
    if vo >= 4: side[10] += [lambda: vrd(3)]
    polls = {}
    if not last:
        for key, dst, off in (('qa', QR, 0), ('ka', KRA, 512)):
            polls.setdefault(PAR[key], []).append(lambda key=key, dst=dst, off=off: (lo8(), xi(dst, off, XN), vq.append(key), ful8()))
    for n, jj in enumerate(range(4, 16)):
        q.need([jj])
        if QK: sm(QA, AF(jj), WQ(jj))
        sm(KA, AF(jj), WK(jj)); run(side.get(n, []) + polls.pop(n, []))
    vseq = vown[vo:] + [(VA, AF(jj), WVR + 8*jj if jj < 8 else VF[jj-8], jj) for jj in (8, 9, 10, 4, 5, 11, 6, 7, 12, 13, 14, 15)]
    nd_ = 4 - vo
    side = {n: [] for n in range(len(vseq))}
    if QK:
        for i, o_ in enumerate(send(QA, 0, O_X, 'qs', 3)): side[PAR['qs']+i] += o_
    for i, o_ in enumerate(send(KA, 512, O_FO, 'ks', 4)): side[PAR['ks']+i] += o_
    if vo < 2: side[nd_-3] += [flush, lambda: vrd(2)]
    if vo < 4: side[nd_-1] += [lambda: vrd(3)]
    for i, n in enumerate((0, 1, 2, 5)): side[nd_+n] += [lambda i=i: vrd(4+i)]
    def krd(b, t): A.ds_read_b128(v(KR+8*b+4*t, 4), v(VKB), m=f'offset:{O_KX + 2048*b + 1024*t}'); q.issue(('K', b, t))
    if not last:
        for i in range(4): side[nd_+8+i] += [lambda i=i: krd(i, 0), lambda i=i: krd(i, 1)]
    for n, (acc_, af, W, jj) in enumerate(vseq):
        if n >= nd_ and jj >= 8: q.need([('v', jj-8, 0), ('v', jj-8, 1)])
        sm(acc_, af, W); run(side[n] + polls.pop(12+n, []))
    tr = lambda d, a_, off, tag: (A.ds_read_b64_tr_b16(v(d, 2), v(a_), m=f'offset:{off}'), q.issue(tag))
    pubv = lambda: (A.buffer_store_dwordx2(v(PKV, 2), v(V_L8), s(S_WS, 4), s(S_PUBV), m='offen offset:1024 sc1'), vq.append('pv'))
    def pubk():
        q.need([('t', 1)])
        A.s_mov_b64('exec', s(S_LO8, 2))
        A.buffer_store_dwordx4(v(TK, 4), v(V_MW), s(S_WS, 4), s(S_PUBV), m='offen sc1'); vq.append('pk')
        A.s_mov_b64('exec', -1)
    for uu in range(2): tr(TK+2*uu, VTW, US*uu, ('t', uu))
    if last:
        run(send(VA, 1024, None, 'vs', 5)); pubv(); pubk()
        A.wait(vm=0); A.s_barrier()
        A.v_mov_b32(v(32), 64); progress(64, 32)
        A.s_branch(done)
        return
    q.need(['ks']); A.s_barrier()
    K1 = KP if QK else K0
    def krd2(off):
        for b in range(4):
            for uu in range(2): tr((K1 if off else K0)+4*b+2*uu, V_TK, 2048*b + off + US*uu, ('k', b, uu))
    run(polls.pop(30, []))
    if 'ld1' in vq: vwait('ld1')
    run(send(VA, 1024, None, 'vs', 5))
    run(polls.pop(31, []))
    krd2(0)
    for i in range(4): A.v_mov_b64(v(VTC+2*i, 2), v(VP+2*i, 2))
    if u == 3: A.s_add_u32(s(S_T1), s(S_STEP), 1); A.s_lshr_b32(s(S_T1), s(S_T1), 2)
    if 32 in polls: A.nop(PAR['qd'])
    run(polls.pop(32, []))
    if 33 in polls: vwait('ks'); A.nop(PAR['qd']); run(polls.pop(33))
    if 35 in polls: vwait('vs'); run(polls.pop(35))
    vpoll = lambda: (xi(VR, 1024, 2), vq.append('vp'))
    if PAR['vp'] == 0: vpoll()
    def xchk(r_): A.v_and_b32(v(XT), 1, v(r_)); A.v_cmp_ne_u32('vcc', xtag, v(XT))
    def train(m_, RA, off, lds, c0):
        rot = ([116, 118] if QK else [24, 28])[:PAR['nr']]
        lo8(); vwait(m_ + 'a')
        kx, kok = A.newlabel('kx'), A.newlabel('kok')
        xchk(RA); A.s_cbranch_vccnz(kx); A.label(kok)
        def emit():
            lp = A.newlabel('kxl')
            kk = A.newlabel('kxk') if m_ == 'q' and PAR['kq'] else kok
            A.label(kx); CNT(A, c0); A.nop(PAR['bo'])
            for n, rg in enumerate(rot):
                if n: A.nop(PAR['rd'])
                xi(rg, off, XN)
            A.label(lp)
            for rg in rot:
                CNT(A, c0+1); A.wait(vm=len(rot)-1)
                for i in range(XN//2): A.v_mov_b64(v(RA+2*i, 2), v(rg+2*i, 2))
                xchk(RA); A.s_cbranch_vccz(kk); A.nop(PAR['rp']); xi(rg, off, XN)
            spin_guard(A, lp, abort)
            if kk != kok: A.label(kk); xi(KRA, 512, XN); A.s_branch(kok)
        cold.append(emit)
        xw(RA, lds); q.issue(m_ + 'w'); ful8()
    train('q', QR, 0, O_X + QPO(), 0)
    TM(A, 6)
    if PAR['vp'] == 1: vpoll()
    run(polls.pop(34, []))
    if QK: train('k', KRA, 512, O_FO + 512, 2); TM(A, 7); q.need(['kw'])
    q.need(['qw']); A.s_barrier()
    for b in range(4):
        for uu in range(2): tr(BP+4*b+2*uu, V_TB, 2048*b + US*uu, ('b', b, uu))
    if QK: krd2(512)
    SX0, SX1, SM = 104, 108, 124
    mf = lambda d, a_, b_, c_: A.v_mfma_f32_16x16x32_bf16(v(d, 4), v(a_, 4), v(b_, 4), c_)
    ml = [(SM, K0+4*b, b) for b in range(4)] + [(sx, KR+8*b+4*t, b) for b in range(4) for t, sx in enumerate((SX0, SX1))]
    if QK: ml = [e for b in range(4) for e in (ml[4+2*b], ml[5+2*b], ml[b])]
    def smf(i):
        d, a_, b = ml[i]
        q.need([('b', b, 1)]); mf(d, a_, BP+4*b, v(d, 4) if b else 0)
    kc = PAR['km']
    for i in range(kc): smf(i)
    if PAR['vp'] == 2: vpoll()
    assert not polls
    if not QK: train('k', KRA, 512, O_FO + 512, 2); TM(A, 7)
    if PAR['vp'] == 3: vpoll()
    pfl = kv_prefetch(A)
    pf = [lambda f=f: (f(), vq.extend(['pf'] * (8 // len(pfl) if PAR['sw'] else 1))) for f in pfl]
    M = 120
    fpos = [] if PAR['sw'] else [PAR['fp'] // 100**(3-i) % 100 for i in range(4)]
    def PF(k):
        for i in range(fpos.count(k)):
            f = pf.pop(0)
            if k < 90: f()
            if not pf: kv_advance(A)
    sl = [pubv, pubk]
    nb = max(kc + 4, 4)
    for i in range(kc, nb):
        smf(i)
        if sl: sl.pop(0)()
    run(sl)
    if not QK: q.need(['kw']); A.s_barrier(); krd2(512)
    else: assert min(fpos) >= 5
    if u == 3: kv_wait(A, abort, S_T1, XT if QK else M)
    for i in range(nb, 12):
        smf(i)
        PF(i - 8)
        if pf and PAR['sw'] and (i >= {0: 11, 1: 9, 2: 8, 3: 10}[PAR['pp']] and (PAR['pp'] != 1 or i % 2)): pf.pop(0)()
    PF(99)
    if PAR['sw']: run(pf); kv_advance(A)
    A.s_add_u32(s(S_PUBV), s(S_PUBV), 262144)
    WF = [56, 64, 72, 80, 40, 88, 56, 64]
    WI = [8, 9, 10, 11, 12, 13, 14, 15]
    def wrd(k, uu): A.ds_read_b128(v(WF[k]+4*uu, 4), v(V_WO), m=f'offset:{WI[k]*2048 + uu*1024}'); q.issue(('w', k, uu))
    wl = [lambda k=k, uu=uu: wrd(k, uu) for k in range(6) for uu in range(2)]
    T = M + 1
    PX, PM = 32, 36
    dadd = lambda r_: A.v_add_f32_dpp(v(r_), v(r_), v(r_), m='row_ror:8 row_mask:0xf bank_mask:0xf')
    def sm1(b): q.need([('k', b, 1)]); mf(SM, K1+4*b, BP+4*b, v(SM, 4))
    run(wl[0:2])
    sm1(0); dadd(104); dadd(105); dadd(106)
    sm1(1); PF(4); dadd(107); dadd(108); dadd(109)
    sm1(2); dadd(110); dadd(111); A.v_max3_f32(v(M), v(104), v(105), v(106))
    sm1(3); PF(5)
    TM(A, 8)
    A.v_max3_f32(v(M), v(M), v(107), v(108)); A.v_max3_f32(v(T), v(109), v(110), v(111)); A.v_max_f32(v(M), v(M), v(T))
    A.v_mov_b32(v(T), v(M)); run(wl[2:4]); PF(6); A.v_permlane32_swap_b32(v(M), v(T)); A.v_max_f32(v(M), v(M), v(T))
    for i in range(4): dadd(SM+i)
    A.v_max3_f32(v(M), v(M), v(SM), v(SM+1)); A.v_max3_f32(v(M), v(M), v(SM+2), v(SM+3))
    A.v_mov_b32(v(T), v(M)); run(wl[4:6]); PF(7); A.v_permlane16_swap_b32(v(M), v(T)); A.v_max_f32(v(M), v(M), v(T))
    A.v_mul_f32(v(M), s(S_C), v(M))
    SR = list(range(104, 112)) + list(range(SM, SM+4))
    fm = lambda i: A.v_pk_fma_f32(v(SR[2*i], 2), v(SR[2*i], 2), s(S_C, 2), v(M, 2), m='op_sel_hi:[1,1,0] neg_lo:[0,0,1] neg_hi:[0,0,1]')
    ex = lambda i: A.v_exp_f32(v(SR[i]), v(SR[i]))
    for i in range(4): fm(i)
    ex(0); run(wl[6:7]); ex(1); run(wl[7:8]); ex(2); cvt(A, PX, 104, 105)(); ex(3); run(wl[8:9]); PF(8); ex(4); cvt(A, PX+1, 106, 107)()
    ex(5); run(wl[9:10]); ex(6); cvt(A, PX+2, 108, 109)(); ex(7); run(wl[10:12]); fm(4); cvt(A, PX+3, 110, 111)(); fm(5)
    O0, O1, LS, OP = 96, 100, VTC, VTC+4
    ex(8); PF(9)
    mf(O0, VTC, PX, 0); ex(9); ex(10)
    mf(O1, VTC+4, PX, 0); ex(11); cvt(A, PM, SM, SM+1)()
    m16 = lambda d, a_, b_, c_: A.v_mfma_f32_16x16x16_bf16(v(d, 4), v(a_, 2), v(b_, 2), c_)
    m16(LS, V_ONE, PX, 0); cvt(A, PM+1, SM+2, SM+3)()
    vwait('vp')
    vs, vc = A.newlabel('vs'), A.newlabel('vc')
    A.v_and_b32(v(T), 1, v(VR))
    m16(LS, V_ONE, PX+2, v(LS, 4))
    A.v_cmp_ne_u32('vcc', xtag, v(T)); A.s_cbranch_vccnz(vs); A.label(vc)
    def emit_vs():
        A.label(vs); CNT(A, 4); xi(VR, 1024, 2); A.wait(vm=0)
        A.v_and_b32(v(T), 1, v(VR)); A.v_cmp_ne_u32('vcc', xtag, v(T))
        A.s_cbranch_vccz(vc); spin_guard(A, vs, abort)
    cold.append(emit_vs)
    A.v_permlane32_swap_b32(v(PKV), v(VR)); A.v_permlane32_swap_b32(v(PKV+1), v(VR+1))
    m16(LS, V_HALF, PM, v(LS, 4))
    WA = [104, 108, 120, 124]
    zl = [lambda i=i: A.v_mov_b64(v(WA[i//2] + 2*(i % 2), 2), 0) for i in range(8)]
    zl[0](); PF(10)
    m16(O0, PKV, PM, v(O0, 4)); zl[1](); m16(O1, VR, PM, v(O1, 4))
    run(zl[2:7])
    A.v_rcp_f32(v(LS), v(LS))
    zl[7]()
    for o in (O0, O0+2, O1, O1+2): A.v_pk_mul_f32(v(o, 2), v(o, 2), v(LS, 2), m='op_sel_hi:[1,0]')
    for i in range(4): cvt(A, OP+i, O0+2*i, O0+2*i+1)()
    A.ds_write_b128(v(V_MW), v(OP, 4), m=f'offset:{O_FO + 1024}'); q.issue('ow')
    OF = [OP, 96, 100, 32]
    def wo(T_, a_):
        if a_ in (0, 3):
            k = T_ if a_ == 0 else 4 + T_
            q.need([('w', k, 0), ('w', k, 1)]); W = WF[k]
        else: W = WOR + 32*(a_-1) + 8*T_
        if a_: q.need([('o', a_)])
        sm(WA[T_], OF[a_], W)
    PF(11); wo(0, 0); wo(1, 0); PF(12); wo(2, 0)
    q.need(['ow']); A.s_barrier()
    TM(A, 9)
    for a_ in range(1, 4):
        A.ds_read_b128(v(OF[a_], 4), v(V_A+a_), m=f'offset:{O_FO + 1024}'); q.issue(('o', a_))
        if a_ == 1: wo(3, 0)
    for k in (6, 7):
        for uu in range(2): wrd(k, uu)
    def post(b, k):
        return [cvt(A, b, b, b+1), cvt(A, b+1, b+2, b+3), cvt(A, b+2, b+4, b+5), cvt(A, b+3, b+6, b+7),
                lambda: A.v_permlane16_swap_b32(v(b), v(b+2)), lambda: A.v_permlane16_swap_b32(v(b+1), v(b+3)), tagop(A, b, ptag),
                lambda: A.buffer_store_dwordx4(v(b, 4), v(V_PST), s(S_WS, 4), s(S_PST+k), m=st)]
    for a_ in (1, 2, 3): wo(0, a_); wo(1, a_); PF(12 + a_)
    p0 = post(WA[0], 0)
    n = 0
    for a_ in (1, 2, 3):
        for T_ in (2, 3):
            wo(T_, a_)
            if n: run(p0[2*n-2:2*n])
            n += 1
    run(post(WA[2], 1))
    PF(16); assert not pf or PAR['sw']
    TM(A, 10)
    reducer(A, u, fb, poll)

def reducer(A, u, fb, poll):
    par, ptag = u % 2, u % 2
    st = 'offen sc1' if fb else 'offen'
    mf = lambda d, a_, b_, c_: A.v_mfma_f32_16x16x32_bf16(v(d, 4), v(a_, 4), v(b_, 4), c_)
    RB_, SEL, X = 64, 48, 56
    NH = 2 if PAR['sw'] else 1
    XS = [56, 80]
    def pld():
        for qq in range(2):
            for hf in range(NH): A.buffer_load_dwordx4(v(RB_+8*hf+4*qq, 4), v(V_PLD), s(S_WS, 4), s(S_PLD+qq), m=f'offen offset:{64*hf} sc1').nochk = True
    skp = A.newlabel('skp')
    if PAR['sw']: A.s_cmp_ge_u32(s(S_W), 2); A.s_cbranch_scc1(skp)
    late = PAR['pd'] or PAR['ack'] & 1
    if not late: pld()
    A.v_and_b32(v(SEL+4), 16, v(V_WO)); A.v_mov_b32(v(SEL+5), '0x3f80'); A.v_lshlrev_b32(v(SEL+4), v(SEL+4), v(SEL+5))
    for i in range(4):
        A.s_mov_b32('vcc_lo', hex(0x00030003 << (4*i))); A.s_mov_b32('vcc_hi', hex(0x00030003 << (4*i)))
        A.v_cndmask_b32(v(SEL+i), 0, v(SEL+4), 'vcc')
    A.v_mov_b32(v(SEL+4), -1)
    if PAR['ack'] & 1: A.wait(vm=0)
    if late: A.nop(PAR['pd']); pld()
    A.wait(vm=0)
    def pchk():
        if NH == 2:
            A.v_bitop3_b32(v(X+4), v(RB_), v(RB_+4), v(RB_+8), m='bitop3:' + ('0x80' if ptag else '0xfe'))
            A.v_bitop3_b32(v(X+4), v(X+4), v(RB_+12), 1, m='bitop3:' + ('0x80' if ptag else '0xa8'))
        else: A.v_bitop3_b32(v(X+4), v(RB_), v(RB_+4), 1, m='bitop3:' + ('0x80' if ptag else '0xa8'))
        A.v_cmp_ne_u32('vcc', ptag, v(X+4))
    poll(pchk, pld, PAR['np'], 'p')
    H = range(NH)
    for hf in H: mf(XS[hf], SEL, RB_+8*hf, 0)
    for hf in H: mf(XS[hf], SEL, RB_+8*hf+4, v(XS[hf], 4))
    TM(A, 11)
    for hf in H: A.v_add_f32_dpp(v(XS[hf]+4), v(XS[hf]), v(XS[hf]), m='row_ror:8 row_mask:0xf bank_mask:0x3')
    for hf in H: A.v_add_f32_dpp(v(XS[hf]+4), v(XS[hf]+1), v(XS[hf]+1), m='row_ror:8 row_mask:0xf bank_mask:0xc')
    for hf in H: A.v_add_f32_dpp(v(XS[hf]+4), v(XS[hf]+4), v(XS[hf]+4), m='row_shl:4 row_mask:0xf bank_mask:0xf')
    for hf in H: A.v_mov_b32_dpp(v(XS[hf]+5), v(XS[hf]+4), m='quad_perm:[1,1,3,3] row_mask:0xf bank_mask:0xf')
    for hf in H: A.v_cvt_pk_bf16_f32(v(XS[hf]+6), v(XS[hf]+4), v(XS[hf]+5))
    for hf in H:
        A.v_min_u32(v(XS[hf]+6), -2, v(XS[hf]+6))
        A.buffer_store_dword(v(XS[hf]+6), v(V_MST), s(S_WS, 4), s(S_MEMST+1-par), m=st.replace('offen', f'offen offset:{8*hf}'))
    TM(A, 12)
    for hf in H: A.buffer_store_dword(v(SEL+4), v(V_MST), s(S_WS, 4), s(S_MEMST+par), m=st.replace('offen', f'offen offset:{8*hf}'))
    if PAR['sw']: A.label(skp)
    A.s_add_u32(s(S_STEP), s(S_STEP), 1)
    TM(A, 13)

def chain_loop(A, abort, done, fb):
    top, ent, lastl = A.newlabel('ctop'), A.newlabel('cent'), A.newlabel('clast')
    cold = []
    xq_base(A, fb); A.s_add_u32(s(S_T0), s(S_T0), s(S_POL))
    A.s_lshl_b32(s(S_T1), s(S_X), 21); A.s_sub_u32(s(S_T1), 1 << 20, s(S_T1))
    for par in range(2):
        A.s_add_u32(s(S_XQI+par), s(S_T0), par*16384); A.s_add_u32(s(S_XQO+par), s(S_XQI+par), s(S_T1))
    A.wait(vm=0)
    A.s_mov_b32(s(S_LO8), '0x00ff00ff'); A.s_mov_b32(s(S_LO8+1), '0x00ff00ff')
    if PAR['sw']: A.s_cmp_ge_u32(s(S_W), 2); A.s_cselect_b64(s(S_PFM, 2), -1, 0)
    A.s_mov_b32(s(S_STEP), 0)
    if TIMERS:
        for i in range(17): A.s_mov_b32(s(S_ACC+i), 0)
    kv_wait(A, abort, S_STEP, 48)
    if HOOK2: HOOK2(A)
    run(kv_prefetch(A)); kv_advance(A)
    A.s_branch(ent)
    A.label(top)
    chain_step(A, 0, abort, fb, cold, first_entry=ent)
    chain_step(A, 1, abort, fb, cold)
    chain_step(A, 2, abort, fb, cold)
    A.s_cmp_eq_u32(s(S_STEP), 63); A.s_cbranch_scc1(lastl)
    chain_step(A, 3, abort, fb, cold)
    A.s_branch(top)
    A.label(lastl)
    chain_step(A, 3, abort, fb, cold, last=True, done=done)
    for e in cold: e()
```

```python
from gemm import *
import struct
def f2u(x): return struct.unpack('<I', struct.pack('<f', x))[0]

def poll_sleep(A): A.s_sleep(4)

def task_g(A):
    L, T0, T1, AC = V_LANE, V_T, V_T+1, 24
    lane_id(A, L)
    srd(A, SRD_A, P_X, 2048*2048); srd(A, SRD_B0, P_GW, 2048)
    A.v_and_b32(v(T0), 31, v(L)); A.v_lshrrev_b32(v(T1), 5, v(L)); A.v_lshlrev_b32(v(T1), 10, v(T1))
    A.v_lshl_add_u32(v(T0), v(T0), 11, v(T1))
    A.s_lshl_b32(s(G_T0), s(G_MB), 2); A.s_add_u32(s(G_T0), s(G_T0), s(S_W)); A.s_lshl_b32(s(G_T1), s(G_T0), 16)
    for i in range(4): A.v_mov_b32(v(AC+i), 0)
    for blk in range(4):
        for c in range(16):
            A.buffer_load_dwordx4(v(32+4*c, 4), v(T0), s(SRD_A, 4), s(G_T1), m=f'offen offset:{blk*256 + c*16}')
            A.buffer_load_dwordx4(v(128+4*c, 4), v(T1), s(SRD_B0, 4), 0, m=f'offen offset:{blk*256 + c*16}')
        for c in range(16):
            A.wait(vm=30-2*c)
            for i in range(4): A.v_dot2c_f32_bf16(v(AC+i), v(32+4*c+i), v(128+4*c+i))
    A.v_add_f32(v(AC), v(AC), v(AC+1)); A.v_add_f32(v(AC+2), v(AC+2), v(AC+3)); A.v_add_f32(v(AC), v(AC), v(AC+2))
    A.v_mov_b32(v(AC+1), v(AC)); A.v_permlane32_swap_b32(v(AC), v(AC+1)); A.v_add_f32(v(AC), v(AC), v(AC+1))
    A.v_mul_f32(v(AC), '0xbfb8aa3b', v(AC)); A.v_exp_f32(v(AC), v(AC)); A.v_add_f32(v(AC), 1.0, v(AC)); A.v_rcp_f32(v(AC), v(AC))
    A.v_lshlrev_b32(v(T0), 2, v(L))
    A.s_lshl_b32(s(G_T0), s(G_T0), 7); A.s_add_u32(s(G_T0), s(G_T0), WS_G)
    A.s_mov_b64('exec', '0xffffffff')
    A.buffer_store_dword(v(AC), v(T0), s(S_WS, 4), s(G_T0), m='offen sc1')
    A.s_mov_b64('exec', -1)

def task_at_pre(A, again, nh):
    L, T0, T1, T2 = V_LANE, V_T, V_T+1, V_T+2
    VQ, VK, VV, VM, VKM, VZ = 21, 22, 23, 24, 25, 26
    lane_id(A, L)
    A.v_and_b32(v(T0), 31, v(L)); A.v_lshrrev_b32(v(T1), 5, v(L))
    A.v_lshlrev_b32(v(VQ), 4, v(L))
    A.v_lshlrev_b32(v(VZ), 3, v(T1)); A.v_sub_u32(v(VZ), v(T0), v(VZ))
    A.v_and_b32(v(T2), 7, v(L)); A.v_lshlrev_b32(v(T2), 4, v(T2)); A.v_lshl_add_u32(v(VKM), v(T1), 7, v(T2))
    A.v_lshrrev_b32(v(T2), 3, v(T0)); A.v_lshl_add_u32(v(VV), v(T2), 9, v(VKM))
    A.v_bfe_u32(v(T2), v(L), 3, 1); A.v_lshl_add_u32(v(VK), v(T2), 10, v(VKM))
    A.v_bfe_u32(v(T2), v(L), 4, 1); A.v_lshl_add_u32(v(VK), v(T2), 9, v(VK))
    A.v_lshlrev_b32(v(VM), 8, v(T2)); A.v_lshl_add_u32(v(VM), v(T1), 7, v(VM))
    A.v_and_b32(v(T2), 15, v(L)); A.v_lshl_add_u32(v(VM), v(T2), 3, v(VM))
    A.v_bfe_u32(v(T2), v(L), 3, 1); A.v_lshl_add_u32(v(VKM), v(T2), 9, v(VKM))
    A.s_lshl_b32(s(G_T0), s(G_MB), 4 - nh); A.s_add_u32(s(G_T0), s(G_T0), s(G_NT)); A.s_lshl_b32(s(G_T0), s(G_T0), 2); A.s_add_u32(s(G_T0), s(G_T0), s(S_W))
    A.s_lshl_b32(s(G_T0), s(G_T0), 12 + nh)
    A.s_add_u32(s(G_SA), s(G_T0), WS_QX); A.s_add_u32(s(E_SC), s(G_T0), WS_O)
    A.s_add_u32(s(G_SB0), s(G_T0), WS_KX); A.s_add_u32(s(G_SB1), s(G_T0), WS_VT); A.s_add_u32(s(G_BSTEP), s(G_T0), WS_PUB)
    for hd in range(nh):
        b = 96*hd
        for j in range(8):
            if j % 4 == 0: A.s_add_u32(s(G_T0), s(G_SB0), hd*8192 + (j//4)*4096); A.s_add_u32(s(G_T1), s(G_SA), hd*8192 + (j//4)*4096)
            A.buffer_load_dwordx4(a(b+32+4*j, 4), v(VK), s(S_WS, 4), s(G_T0), m=f'offen offset:{((j//2) % 2)*2048 + (j % 2)*256} sc1')
            A.buffer_load_dwordx4(a(b+4*j, 4), v(VQ), s(S_WS, 4), s(G_T1), m=f'offen offset:{(j % 4)*1024} sc1')
    for hd in range(nh):
        b = 96*hd + 64
        for et in range(4):
            if et % 2 == 0: A.s_add_u32(s(G_T0), s(G_SB1), hd*8192 + et*2048)
            for t in range(2):
                A.buffer_load_dwordx4(a(b+8*et+4*t, 4), v(VV), s(S_WS, 4), s(G_T0), m=f'offen offset:{(et % 2)*2048 + t*256} sc1')
    if again: A.label(again)
    A.v_mov_b32(v(T0), hex(f2u(-1e9 * 128 ** 0.5)))
    for hd in range(nh):
        b, S = 96*hd, 32 + 16*hd
        for j in range(8):
            A.wait(vm=24*nh - 2 - 16*hd - 2*j)
            A.v_mfma_f32_32x32x16_bf16(v(S, 16), a(b+32+4*j, 4), a(b+4*j, 4), v(S, 16) if j else 0)
    for hd in range(nh):
        S = 32 + 16*hd
        for i in range(16):
            g = i // 4
            kap = 16*(g//2) + 4*(g % 2) + i % 4
            A.v_cmp_le_i32('vcc', kap, v(VZ)); A.v_cndmask_b32(v(S+i), v(T0), v(S+i), 'vcc')

def task_at_post(A, check, nh):
    L, T0, T1, T2 = V_LANE, V_T, V_T+1, V_T+2
    VM, VKM = 24, 25
    KF, VMF = 128, 192
    for hd in range(nh):
        for j in range(8):
            if j % 4 == 0: A.s_add_u32(s(G_T0), s(G_BSTEP), hd*8192 + (j//4)*4096)
            A.buffer_load_dwordx4(v(KF+32*hd+4*j, 4), v(VKM), s(S_WS, 4), s(G_T0), m=f'offen offset:{((j//2) % 2)*2048 + (j % 2)*256} sc1')
    for hd in range(nh):
        for et in range(4):
            if et % 2 == 0: A.s_add_u32(s(G_T0), s(G_BSTEP), hd*8192 + et*2048)
            for X in range(2):
                A.buffer_load_dwordx2(a(VMF+16*hd+4*et+2*X, 2), v(VM), s(S_WS, 4), s(G_T0), m=f'offen offset:{(et % 2)*2048 + 1024 + X*512} sc1')
    c = hex(f2u(128 ** -0.5 * 1.4426950408889634))
    A.s_mov_b32(s(G_T2), c); A.s_mov_b32(s(G_T3), c)
    for hd in range(nh):
        SM = 64 + 16*hd
        for j in range(8):
            A.wait(vm=16*nh - 1 - 8*hd - j)
            A.v_mfma_f32_32x32x16_bf16(v(SM, 16), v(KF+32*hd+4*j, 4), a(96*hd+4*j, 4), v(SM, 16) if j else 0)
    for hd in range(nh):
        S, SM = 32 + 16*hd, 64 + 16*hd
        M, T = 112, 113
        for i in range(2): A.v_pk_add_f32(v(SM+2*i, 2), v(SM+2*i, 2), v(SM+4+2*i, 2))
        A.v_max3_f32(v(M), v(S), v(S+1), v(S+2))
        for i in range(3, 15, 2): A.v_max3_f32(v(M), v(M), v(S+i), v(S+i+1))
        A.v_max3_f32(v(M), v(M), v(S+15), v(SM)); A.v_max3_f32(v(M), v(M), v(SM+1), v(SM+2)); A.v_max_f32(v(M), v(M), v(SM+3))
        A.v_mov_b32(v(T), v(M)); A.v_permlane32_swap_b32(v(M), v(T)); A.v_max_f32(v(M), v(M), v(T))
        A.v_mul_f32(v(M), s(G_T2), v(M))
        regs = [S+2*i for i in range(8)] + [SM, SM+2]
        for r_ in regs: A.v_pk_fma_f32(v(r_, 2), v(r_, 2), s(G_T2, 2), v(M, 2), m='op_sel_hi:[1,1,0] neg_lo:[0,0,1] neg_hi:[0,0,1]')
        if hd == 0: A.wait(vm=0)
        for k, r_ in enumerate(regs):
            A.v_exp_f32(v(r_), v(r_)); A.v_exp_f32(v(r_+1), v(r_+1))
            if check and k < 4: A.v_mfma_f32_16x16x32_bf16(v(96, 4), a(VMF+4*k, 4), a(0, 4), v(96, 4) if k else 0)
        P = 116
        for k, r_ in enumerate(regs): A.v_cvt_pk_bf16_f32(v(P+k), v(r_), v(r_+1))
        A.v_mov_b64(v(P+10, 2), v(P+8, 2))
        O = 128 + 64*hd
        for et in range(4):
            va = 96*hd + 64 + 8*et
            A.v_mfma_f32_32x32x16_bf16(v(O+16*et, 16), a(va, 4), v(P, 4), 0)
            A.v_mfma_f32_32x32x16_bf16(v(O+16*et, 16), a(va+4, 4), v(P+4, 4), v(O+16*et, 16))
            A.v_mfma_f32_32x32x16_bf16(v(O+16*et, 16), a(VMF+16*hd+4*et, 4), v(P+8, 4), v(O+16*et, 16))
        for r_ in regs[1:]: A.v_pk_add_f32(v(S, 2), v(S, 2), v(r_, 2))
        LS = 114 + hd
        A.v_add_f32(v(LS), v(S), v(S+1)); A.v_mov_b32(v(T), v(LS)); A.v_permlane32_swap_b32(v(LS), v(T)); A.v_add_f32(v(LS), v(LS), v(T))
        A.v_rcp_f32(v(LS), v(LS))
    if check: check()
    def pre(k):
        T_, hd = 128 + 16*k, k // 4
        sel = 'op_sel:[0,1] op_sel_hi:[1,1]' if hd else 'op_sel_hi:[1,0]'
        return [lambda i=i: A.v_pk_mul_f32(v(T_+2*i, 2), v(T_+2*i, 2), v(114, 2), m=sel) for i in range(8)]
    epi_native(A, [(128+16*k, k*2048) for k in range(4*nh)], pre)

def task_ops_pre(A):
    L, T0, T1, VD, VR = V_LANE, V_T, V_T+1, 21, 22
    lane_id(A, L)
    srd(A, SRD_B0, P_WO, 4096*2048)
    A.v_lshrrev_b32(v(T0), 2, v(L)); A.v_and_b32(v(T1), 3, v(L)); A.v_lshlrev_b32(v(VD), 11, v(T0)); A.v_lshl_add_u32(v(VD), v(T1), 4, v(VD))
    A.v_and_b32(v(T0), 3, v(T0)); A.v_lshlrev_b32(v(VR), 6, v(T0)); A.v_lshl_add_u32(v(VR), v(T1), 3, v(VR))
    A.v_lshrrev_b32(v(T0), 5, v(L)); A.v_lshl_add_u32(v(VR), v(T0), 9, v(VR))
    A.v_bfe_u32(v(T0), v(L), 4, 1); A.v_lshl_add_u32(v(VR), v(T0), 5, v(VR))
    A.s_lshl_b32(s(G_M0), s(S_W), 15); A.v_add_u32(v(VR), s(G_M0), v(VR))
    A.s_lshl_b32(s(G_SB0), s(S_W), 21); A.s_lshl_b32(s(G_T0), s(G_NT), 6); A.s_add_u32(s(G_SB0), s(G_SB0), s(G_T0))
    def ld(f):
        A.s_add_u32('m0', s(G_M0), (f % 32)*1024)
        A.buffer_load_dwordx4(v(VD), s(SRD_B0, 4), s(G_SB0), m='offen lds')
        A.s_add_u32(s(G_SB0), s(G_SB0), 32768)
    for f in range(32): ld(f)
    for g in range(8):
        A.wait(vm=24 if g < 4 else 8*(7-g))
        for f in range(8*g, 8*g+8):
            for u in range(2): A.ds_read_b64_tr_b16(a(4*f+2*u, 2), v(VR), m=f'offset:{(f % 32)*1024 + u*256}')
            if f % 4 == 3: A.wait(lgkm=8 if f % 8 == 3 else 0)
        if g < 4:
            for f in range(8*g+32, 8*g+40): ld(f)

def task_ops_seg(A, check, half=False, tm=False):
    L, T0, T1, VO, VB, VG, VS = V_LANE, V_T, V_T+1, 21, 22, 23, 24
    BV, GV, C0_, C1_, BUF, NB = 26, 28, 224, 240, 32, 48
    lane_id(A, L)
    VL = VO
    if half:
        VL, NB = 25, 32
        A.v_bfe_u32(v(T1), v(L), 4, 1)
        if XP.get('il', 1): A.v_and_b32(v(T0), 8, v(L)); A.v_and_b32(v(L), 39, v(L)); A.v_lshl_add_u32(v(L), v(T0), 1, v(L))
        else: A.v_and_b32(v(L), 47, v(L))
        A.v_add_u32(v(L), s(G_T3), v(L))
        A.v_lshlrev_b32(v(VO), 4, v(L)); A.v_lshl_add_u32(v(VL), v(T1), 10, v(VO))
    else: A.v_lshlrev_b32(v(VO), 4, v(L))
    A.s_lshl_b32(s(G_SA), s(G_MB), 2); A.s_add_u32(s(G_SA), s(G_SA), s(S_W)); A.s_lshl_b32(s(G_SA), s(G_SA), 16); A.s_add_u32(s(G_SA), s(G_SA), WS_O)
    def ld(f):
        A.buffer_load_dwordx4(v(BUF+4*(f % NB), 4), v(VL), s(S_WS, 4), s(G_SA), m=f'offen offset:{(f % 2)*2048 if half else (f % 4)*1024} sc1')
        if (f % 2 if half else f % 4 == 3): A.s_add_u32(s(G_SA), s(G_SA), 4096)
    pr = lambda i: 4*(i % 8) + i//8 if tm else i
    if tm:
        for i in range(NB):
            A.s_add_u32(s(G_T0), s(G_SA), pr(i)*2048)
            A.buffer_load_dwordx4(v(BUF+4*i, 4), v(VL), s(S_WS, 4), s(G_T0), m='offen sc1')
    else:
        for f in range(NB): ld(f)
    A.s_lshr_b32(s(G_T0), s(G_MB), 2); A.s_lshl_b32(s(G_T0), s(G_T0), 2); A.s_lshr_b32(s(G_T1), s(G_NT), 3); A.s_add_u32(s(G_T0), s(G_T0), s(G_T1))
    A.s_lshl_b32(s(G_T0), s(G_T0), 2); A.s_and_b32(s(G_T1), s(G_NT), 3); A.s_add_u32(s(G_T0), s(G_T0), s(G_T1)); A.s_lshl_b32(s(G_T0), s(G_T0), 2)
    A.s_and_b32(s(G_T1), s(G_MB), 3); A.s_add_u32(s(G_T0), s(G_T0), s(G_T1)); A.s_lshl_b32(s(G_T0), s(G_T0), 1)
    A.s_bfe_u32(s(G_T1), s(G_NT), 0x10002); A.s_add_u32(s(G_T0), s(G_T0), s(G_T1)); A.s_lshl_b32(s(G_T0), s(G_T0), 1)
    A.s_lshr_b32(s(G_T1), s(S_W), 1); A.s_add_u32(s(G_T0), s(G_T0), s(G_T1)); A.s_lshl_b32(s(G_T0), s(G_T0), 10)
    A.s_and_b32(s(G_T1), s(S_W), 1); A.s_lshl_b32(s(G_T1), s(G_T1), 3); A.s_add_u32(s(G_T0), s(G_T0), s(G_T1)); A.s_add_u32(s(G_T0), s(G_T0), WS_B)
    A.v_and_b32(v(T0), 31, v(L)); A.v_lshlrev_b32(v(VG), 2, v(T0))
    A.s_lshl_b32(s(G_T1), s(G_MB), 7); A.s_add_u32(s(G_T1), s(G_T1), WS_G)
    A.v_lshrrev_b32(v(T1), 5, v(L)); A.v_lshlrev_b32(v(T1), 3, v(T1)); A.v_lshl_add_u32(v(VS), v(T0), 11, v(T1))
    A.s_lshl_b32(s(G_SC), s(G_MB), 16); A.s_lshl_b32(s(G_T2), s(G_NT), 6); A.s_add_u32(s(G_SC), s(G_SC), s(G_T2))
    A.s_lshl_b32(s(G_T2), s(S_W), 4); A.s_add_u32(s(G_SC), s(G_SC), s(G_T2))
    srd(A, SRD_C, P_OUT, 2048*2048)
    if half:
        A.buffer_load_dwordx2(v(BV, 2), v(VO), s(S_WS, 4), s(G_T0), m='offen sc1')
        A.buffer_load_dword(v(GV), v(VG), s(S_WS, 4), s(G_T1), m='offen sc1')
        lane_id(A, L); A.v_lshlrev_b32(v(VO), 4, v(L))
    A.s_lshl_b32(s(G_T2), s(S_W), 12); A.v_add_u32(v(VB), s(G_T2), v(VO))
    A.s_lshl_b32(s(G_T2), s(S_W), 10); A.v_add_u32(v(T1), s(G_T2), v(VO))
    for f in range(64 if half else 0):
        if f % 2 == 0: A.wait(vm=33 - f//2)
        c = C1_ if f % 2 else C0_
        A.v_mfma_f32_32x32x16_bf16(v(c, 16), a(8*pr(f//2) + 4*(f % 2), 4), v(BUF+4*(f//2), 4), v(c, 16) if f >= 2 else 0)
    if half:
        check(C0_, C1_)
        for i in range(16): A.v_permlane16_swap_b32(v(C1_+i), v(BUF+i))
        C1_ = BUF
    for f in range(0 if half else 64):
        nq = min(63, f + NB - 1) - f + (2 if f >= 64 - NB else 0)
        A.wait(vm=nq)
        c = C1_ if f % 2 else C0_
        A.v_mfma_f32_32x32x16_bf16(v(c, 16), a(4*f, 4), v(BUF+4*(f % NB), 4), v(c, 16) if f >= 2 else 0)
        if f + NB < 64: ld(f + NB)
        if f + NB == 63:
            A.buffer_load_dwordx2(v(BV, 2), v(VO), s(S_WS, 4), s(G_T0), m='offen sc1')
            A.buffer_load_dword(v(GV), v(VG), s(S_WS, 4), s(G_T1), m='offen sc1')
    for i in range(8): A.v_pk_add_f32(v(C0_+2*i, 2), v(C0_+2*i, 2), v(C1_+2*i, 2))
    if not half: check(C0_, C0_)
    for i in range(4): A.ds_write_b128(v(VB), v(C0_+4*i, 4), m=f'offset:{1024*i}')
    A.wait(lgkm=0); A.s_barrier()
    for i in range(4): A.ds_read_b128(v(BUF+4*i, 4), v(T1), m=f'offset:{4096*i}')
    E = BUF + 16
    A.wait(vm=0)
    for i in range(2): A.v_lshlrev_b32(v(E+2*i), 16, v(BV+i)); A.v_and_b32(v(E+2*i+1), '0xffff0000', v(BV+i))
    A.wait(lgkm=2)
    for i in range(2): A.v_pk_add_f32(v(BUF+2*i, 2), v(BUF+2*i, 2), v(BUF+4+2*i, 2))
    A.wait(lgkm=0)
    for i in range(2): A.v_pk_add_f32(v(BUF+8+2*i, 2), v(BUF+8+2*i, 2), v(BUF+12+2*i, 2))
    for i in range(2): A.v_pk_add_f32(v(BUF+2*i, 2), v(BUF+2*i, 2), v(BUF+8+2*i, 2))
    for i in range(2): A.v_pk_add_f32(v(BUF+2*i, 2), v(BUF+2*i, 2), v(E+2*i, 2), m='neg_lo:[0,1] neg_hi:[0,1]')
    for i in range(2): A.v_pk_fma_f32(v(BUF+2*i, 2), v(BUF+2*i, 2), v(GV, 2), v(E+2*i, 2), m='op_sel_hi:[1,0,1]')
    for i in range(2): A.v_cvt_pk_bf16_f32(v(BUF+i), v(BUF+2*i), v(BUF+2*i+1))
    if half: A.s_mov_b32('exec_lo', '0xffff'); A.s_mov_b32('exec_hi', '0xffff')
    A.buffer_store_dwordx2(v(BUF, 2), v(VS), s(SRD_C, 4), s(G_SC), m='offen')
    if half: A.s_mov_b64('exec', -1)
```

```python
import sys
from asmlib import *
from layout import *
import chain
from chain import S_WS, S_DBG, S_X, S_H, S_W, S_TO, ptr, srd, load_ptrs, chain_setup, chain_loop
from gemm import *
from tasks import *

C0, C1, C2, C3, C4, C5 = 94, 95, 96, 97, 98, 99
CV = 120
K_EXIT, K_FB = 0xFFFF, 0x10000
POISON = 16
S0 = 48
NG = 2
ORD = 1
ORDS = {
 10: 'K0-15 G8-15 D1 Q0-3 G0-7 Q4-5 A0-1 D0 A2-4 Q6 O0 O1 Q7 S0 A5-7',
 11: 'K0-15 G8-15 D1 Q0-3 G0-7 Q4-5 A0-3 D0 O0 Q6-7 A4 S0 O1 A5-7',
 12: 'K0-15 G8-15 Q0-1 D1 Q2-3 G0-7 Q4-5 A0-3 D0 O0 A4 Q6-7 O1 S0 A5-7',
 13: 'K0-15 G8-15 Q0-3 D1 G0-7 Q4-5 A0-3 D0 O0 A4 Q6-7 O1 S0 A5-7',
 14: 'K0-15 Q0-3 G8-15 A0-1 D1 G0-7 A2-3 Q4-5 O0 D0 A4 Q6-7 O1 S0 A5-7',
 15: 'K0-15 Q0-3 G8-15 G0-1 D1 G2-7 A0-3 Q4-5 O0 D0 A4 Q6-7 O1 S0 A5-7',
 16: 'K0-15 G0-15 D1 Q0-3 D0 Q4-5 A0-3 O0 Q6-7 A4 O1 S0 A5-7',
 18: 'K0-15 G8-15 Q0-1 D1 Q2-3 G0-7 Q4-5 A0-3 D0 O0 A4 Q6-7 S0 O1 A5-7',
 19: 'K0-15 Q0-3 G8-15 A0-1 D1 G0-7 A2-3 Q4-5 O0 D0 A4 Q6-7 S0 O1 A5-7',
 20: 'K0-15 G0-15 D1 Q0-3 D0 Q4-5 A0-3 O0 Q6-7 A4 S0 O1 A5-7',
 21: 'K0-15 G8-15 D1 Q0-5 G0-7 A0-3 D0 O0 Q6-7 A4 S0 O1 A5-7',
 17: 'K0-15 G8-15 G0-3 D1 G4-7 Q0-5 D0 A0-3 O0 Q6-7 A4 O1 S0 A5-7',
}
def order():
    k = (S0 + 7) // 8
    if ORD in ORDS:
        r_ = []
        for tok in ORDS[ORD].split():
            ty = {'K': 'KV', 'G': 'GU', 'D': 'DN', 'Q': 'Q', 'A': 'AT', 'O': 'OP', 'S': 'OPS'}[tok[0]]
            lo, hi = (tok[1:].split('-') + [tok[1:]])[:2]
            if ty == 'OPS': lo, hi = 0, NG - 1
            if ty == 'OP' and lo == '1' and S0 <= 32: continue
            r_.append((ty, int(lo), int(hi) - int(lo) + 1))
        for ty, n in (('KV', 16), ('GU', 16), ('DN', 2), ('Q', 8), ('AT', 8)):
            assert sorted(f + i for t_, f, c in r_ if t_ == ty for i in range(c)) == list(range(n)), ty
        return r_
    if ORD == 0: return [('KV', 0, 16), ('GU', 0, 16), ('DN', 0, 2), ('Q', 0, 8), ('AT', 0, 4), ('OP', 0, 1), ('AT', 4, S0//8 - 4), ('OP', 1, 1), ('AT', S0//8, 8 - S0//8), ('OPS', 0, NG)]
    if ORD == 1: return [('KV', 0, 16), ('GU', 0, 16), ('DN', 0, 2), ('Q', 0, 8), ('AT', 0, 4), ('OP', 0, 1), ('AT', 4, max(k, 5) - 4), ('OPS', 0, NG), ('OP', 1, int(S0 > 32)), ('AT', max(k, 5), 8 - max(k, 5))]
    if ORD == 2: return [('KV', 0, 16), ('GU', 0, 16), ('DN', 0, 2), ('Q', 0, 8), ('AT', 0, 4), ('OP', 0, 1), ('AT', 4, 1), ('OPS', 0, NG), ('OP', 1, int(S0 > 32)), ('AT', 5, 3)]
    tl = [('AT', 4, max(k, 5) - 4), ('OPS', 0, NG), ('OP', 1, int(S0 > 32)), ('AT', max(k, 5), (chain.PAR['sp0'] + 7)//8 - max(k, 5)), ('AX', chain.PAR['sp0']//4, 16 - chain.PAR['sp0']//4)]
    if ORD == 3: return [('KV', 0, 16), ('GU', 8, 8), ('DN', 1, 1), ('Q', 0, 4), ('GU', 0, 8), ('AT', 0, 4), ('Q', 4, 2), ('DN', 0, 1), ('OP', 0, 1), ('Q', 6, 2)] + tl
    if ORD == 4: return [('KV', 0, 16), ('GU', 8, 8), ('DN', 1, 1), ('GU', 0, 8), ('Q', 0, 4), ('DN', 0, 1), ('AT', 0, 4), ('Q', 4, 2), ('OP', 0, 1), ('Q', 6, 2)] + tl
    if ORD == 5: return [('KV', 0, 16), ('GU', 8, 8), ('DN', 1, 1), ('Q', 0, 4), ('GU', 0, 8), ('AT', 0, 2), ('Q', 4, 2), ('AT', 2, 2), ('DN', 0, 1), ('OP', 0, 1), ('Q', 6, 2)] + tl
    if ORD == 6: return [('KV', 0, 16), ('GU', 8, 8), ('Q', 0, 2), ('DN', 1, 1), ('Q', 2, 2), ('GU', 0, 8), ('AT', 0, 3), ('Q', 4, 2), ('AT', 3, 1), ('DN', 0, 1), ('OP', 0, 1), ('Q', 6, 2)] + tl
OPTS = set()

def header(launch_lines):
    ref = open('cdna_kernels/%s.s.ref' % KNAME).read().split('\n')
    hd = [l for l in ref if l.startswith(';') and '@launch' not in l]
    return '\n'.join(hd + launch_lines) + '\n.amdgcn_target "amdgcn-amd-amdhsa--gfx950"\n.text\n'
def kernel_wrap(name, body, vgpr=512, accum=256):
    return (f".globl {name}\n.p2align 8\n.type {name},@function\n{name}:\n" + body,
            f".p2align 6\n.amdhsa_kernel {name}\n  .amdhsa_next_free_vgpr {vgpr}\n  .amdhsa_next_free_sgpr 102\n  .amdhsa_accum_offset {accum}\n"
            f"  .amdhsa_group_segment_fixed_size 0\n  .amdhsa_kernarg_size 120\n  .amdhsa_user_sgpr_count 2\n  .amdhsa_user_sgpr_kernarg_segment_ptr 1\n"
            f"  .amdhsa_system_sgpr_workgroup_id_x 1\n.end_amdhsa_kernel\n")

def stamp(A, d):
    if 'log' in OPTS:
        A.s_memrealtime(s(12, 2)); A.wait(lgkm=0); A.s_mov_b32(s(d), s(12))
        if d in (22, 23):
            A.s_memtime(s(12, 2)); A.wait(lgkm=0)
            if d == 22: A.s_mov_b32(s(100), s(12))
            else: A.s_sub_u32(s(101), s(12), s(100))
def att(A, dw, mb=None):
    if 'tt' not in OPTS: return
    reg = {57: 21, 58: 22, 59: 23, 60: 21, 61: 22, 62: 23, 36: 15, 37: 15, 56: 23, 63: 23}[dw]
    A.s_memrealtime(s(12, 2)); A.wait(lgkm=0); A.s_mov_b32(s(reg), s(12))
    fl = {59: [(57, 21), (58, 22), (59, 23)], 62: [(60, 21), (61, 22), (62, 23), (37, 15)], 56: [(56, 23)], 63: [(63, 23)]}.get(dw)
    if fl:
        sk = A.newlabel('att')
        if mb is not None: A.s_cmp_lg_u32(s(G_MB), mb); A.s_cbranch_scc1(sk)
        A.s_cmp_lg_u32(s(S_W), 1); A.s_cbranch_scc1(sk)
        A.wait(vm=0)
        if dw == 59: A.s_memrealtime(s(12, 2)); A.wait(lgkm=0); A.s_mov_b32(s(15), s(12)); fl = fl + [(36, 15)]
        for i, (d_, r_) in enumerate(fl): A.s_mov_b32(s(12), 4*d_); A.v_writelane_b32(v(CV), s(r_), i); A.v_writelane_b32(v(CV+1), s(12), i)
        A.s_mov_b64('exec', (1 << len(fl)) - 1)
        A.buffer_atomic_umax(v(CV), v(CV+1), s(S_DBG, 4), 0, m='offen sc1').nochk = True
        A.s_mov_b64('exec', -1)
        A.label(sk)
S_WG = 63
def rts(A, k):
    if 'log' in OPTS:
        A.s_memrealtime(s(C4, 2)); A.wait(lgkm=0); A.v_mov_b32(v(CV), s(C4)); A.v_mov_b32(v(CV+1), 0); A.s_mov_b64('exec', 1)
        A.buffer_store_dword(v(CV), v(CV+1), s(S_WS, 4), s(S_WG), m=f'offen offset:{4*k}'); A.s_mov_b64('exec', -1)
def only_w0(A):
    sk = A.newlabel('w0'); A.s_cmp_lg_u32(s(S_W), 0); A.s_cbranch_scc1(sk); return sk
def dbg_atomic(A, dw, soff=0, ret=True, val=1):
    A.v_mov_b32(v(CV), val); A.v_mov_b32(v(CV+1), 0)
    A.s_mov_b64('exec', 1)
    A.buffer_atomic_add(v(CV), v(CV+1), s(S_DBG, 4), soff, m=f'offen offset:{dw*4} ' + ('sc0 sc1' if ret else 'sc1'))
    A.s_mov_b64('exec', -1)
    if ret: A.wait(vm=0); A.v_readfirstlane_b32(s(C0), v(CV))
def bcast(A, sk, tail=True):
    A.v_mov_b32(v(CV), s(C0)); A.v_mov_b32(v(CV+1), L_MISC)
    A.ds_write_b32(v(CV+1), v(CV)); A.wait(lgkm=0)
    A.label(sk)
    A.s_barrier()
    A.v_mov_b32(v(CV+1), L_MISC); A.ds_read_b32(v(CV), v(CV+1)); A.wait(lgkm=0)
    A.v_readfirstlane_b32(s(C0), v(CV))
    if tail: A.s_barrier()
def guard(A, retry, out):
    A.s_sub_u32(s(S_TO), s(S_TO), 1); A.s_cbranch_scc0(retry)
    A.v_mov_b32(v(CV), '0xdead'); A.v_mov_b32(v(CV+1), 0)
    A.buffer_store_dword(v(CV), v(CV+1), s(S_DBG, 4), 0, m=f'offen offset:{D_ABORT*4} sc1')
    A.s_mov_b32(s(S_TO), 0); A.s_mov_b32(s(C0), K_EXIT); A.s_branch(out)
def ensure_init(A, out):
    ok, lp = A.newlabel('ini'), A.newlabel('inl')
    A.s_bitcmp1_b32(s(S_INIT), 0); A.s_cbranch_scc1(ok)
    A.v_mov_b32(v(CV+1), 0)
    A.label(lp)
    A.buffer_load_dword(v(CV), v(CV+1), s(S_DBG, 4), 0, m=f'offen offset:{D_INIT*4} sc1')
    A.wait(vm=0); A.v_readfirstlane_b32(s(C1), v(CV)); A.s_or_b32(s(S_INIT), s(S_INIT), s(C1))
    A.s_bitcmp1_b32(s(S_INIT), 0); A.s_cbranch_scc1(ok)
    A.s_sleep(2)
    guard(A, lp, out)
    A.label(ok)
def take_fb(A, out, cont):
    dbg_atomic(A, D_FBT)
    A.s_or_b32(s(S_INIT), s(S_INIT), 2)
    A.s_cmp_ge_u32(s(C0), 64); A.s_cbranch_scc1(cont)
    A.s_or_b32(s(C0), s(C0), K_FB); A.s_branch(out)
def settled(A, r_):
    A.s_and_b32(s(C0), s(r_), 0x100ff); A.s_cmp_eq_u32(s(C0), 65); A.s_cselect_b32(s(C0), 2, 0); A.s_or_b32(s(S_INIT), s(S_INIT), s(C0))
def dep_wait(A, setup, special):
    sk = only_w0(A)
    out, lp, sl = A.newlabel('dwo'), A.newlabel('dwl'), A.newlabel('dws')
    ensure_init(A, out)
    setup()
    A.v_mov_b32(v(CV+6), 0)
    A.label(lp)
    nr = A.newlabel('dwn')
    A.buffer_load_dword(v(CV+4), v(CV+2), s(S_WS, 4), 0, m='offen sc1')
    A.s_bitcmp1_b32(s(S_INIT), 1); A.s_cbranch_scc1(nr)
    A.buffer_load_dword(v(CV+5), v(CV+6), s(S_DBG, 4), 0, m=f'offen offset:{D_READY*4} sc1')
    A.label(nr)
    A.wait(vm=0)
    A.s_mov_b32(s(C0), 0)
    A.v_cmp_lt_u32('vcc', v(CV+4), v(CV+3)); A.s_cbranch_vccz(out)
    A.s_bitcmp1_b32(s(S_INIT), 1); A.s_cbranch_scc1(sl)
    A.v_readfirstlane_b32(s(C1), v(CV+5))
    settled(A, C1)
    A.s_bitcmp0_b32(s(C1), POISON); A.s_cbranch_scc1(sl)
    take_fb(A, out, sl)
    A.label(sl)
    A.s_sleep(4)
    guard(A, lp, out)
    A.label(out)
    bcast(A, sk)
    A.s_cmp_lg_u32(s(C0), 0); A.s_cbranch_scc1(special)
def cnt_addr(t): return WS_CTL + C_CNT + t*2048
def dep_cnt(A, t, target):
    def f():
        A.s_lshl_b32(s(C2), s(G_MB), 7); A.s_add_u32(s(C2), s(C2), cnt_addr(t))
        A.v_mov_b32(v(CV+2), s(C2)); A.v_mov_b32(v(CV+3), target)
    return f

def status_ld(A):
    A.s_lshl_b32(s(C1), s(S_XCC), 2); A.v_mov_b32(v(CV+1), 0)
    A.s_mov_b64('exec', 1)
    A.buffer_load_dwordx4(v(CV+4, 4), v(CV+1), s(S_DBG, 4), 0, m=f'offen offset:{D_READY*4} sc1').nochk = True
    A.buffer_load_dword(v(CV+2), v(CV+1), s(S_DBG, 4), s(C1), m=f'offen offset:{D_LH*4} sc1').nochk = True
    A.s_mov_b64('exec', -1)
def status_rd(A):
    A.v_readfirstlane_b32(s(C5), v(CV+4)); A.v_readfirstlane_b32(s(C1), v(CV+7)); A.v_readfirstlane_b32(s(C0), v(CV+2))
    A.s_or_b32(s(S_INIT), s(S_INIT), s(C1))
    A.s_cmp_ge_u32(s(C0), 32); A.s_cselect_b32(s(C0), 16, 0); A.s_or_b32(s(S_INIT), s(S_INIT), s(C0))
    settled(A, C5)
def ticket(A):
    A.s_lshl_b32(s(C1), s(S_XCC), 7); A.s_add_u32(s(C1), s(C1), WS_CTL + C_HEAD)
    A.v_mov_b32(v(CV), 1); A.v_mov_b32(v(CV+1), 0)
    A.s_mov_b64('exec', 1)
    A.buffer_atomic_add(v(CV), v(CV+1), s(S_WS, 4), s(C1), m='offen sc0 sc1').nochk = True
    A.s_mov_b64('exec', -1)
def tab_addr(A):
    A.s_lshl_b32(s(C4), s(S_XCC), 7); A.s_add_u32(s(C4), s(C4), s(C3)); A.s_lshl_b32(s(C4), s(C4), 2); A.s_add_u32(s(C4), s(C4), WS_CTL + C_TAB)
def ws_srd(A, d):
    A.s_mov_b32(s(d), s(ptr(P_WS))); A.s_mov_b32(s(d+1), s(ptr(P_WS)+1)); A.s_mov_b32(s(d+2), hex(WS_SIZE)); A.s_mov_b32(s(d+3), '0x20000')

def build():
    A = Asm()
    END, NEXT, DECODE, SPECIAL, DONE, CABORT = '.end', '.next', '.decode', '.special', '.done', '.cabort'
    GEMM, GEMMV, CHAINP, CHAINF, CDONE = '.gemm', '.gemmv', '.chainp', '.chainf', '.cdone'
    A.s_cmp_ge_u32(s(2), 256); A.s_cbranch_scc1('.end0')
    load_ptrs(A)
    if 'log' in OPTS: A.s_lshl_b32(s(S_WG), s(2), 6); A.s_add_u32(s(S_WG), s(S_WG), WS_TIM + 0x10000)
    A.v_lshrrev_b32(v(1), 6, v(0)); A.v_readfirstlane_b32(s(S_W), v(1))
    A.s_getreg_b32(s(S_XCC), 'hwreg(HW_REG_XCC_ID, 0, 3)')
    A.s_mov_b32(s(S_TO), 1 << 17); A.s_mov_b32(s(S_INIT), 0); A.s_mov_b32(s(S_TASK), -1)
    A.wait(lgkm=0)
    srd(A, S_WS, P_WS, WS_SIZE); srd(A, S_DBG, P_DBG, 256)
    if 'tim' in OPTS: A.s_memrealtime(s(100, 2))
    rts(A, 0)
    if 'nochain' not in OPTS:
        A.s_cmp_gt_u32(s(S_XCC), 0 if 'forcefb' in OPTS else 1); A.s_cbranch_scc1(NEXT)
        sk = only_w0(A)
        A.s_lshl_b32(s(C1), s(S_XCC), 2)
        dbg_atomic(A, D_CNT0, s(C1))
        bcast(A, sk)
        A.s_cmp_lt_u32(s(C0), 32); A.s_cbranch_scc1(CHAINP)
    A.label(NEXT)
    if 'chainonly' in OPTS: A.s_branch(END)
    A.s_sub_u32(s(S_TO), s(S_TO), 32); A.s_cbranch_scc1(END)
    if 'log' in OPTS:
        nl = A.newlabel('nl')
        A.s_cmp_lg_u32(s(S_W), 0); A.s_cbranch_scc1(nl)
        A.s_cmp_ge_u32(s(S_TASK), 2048); A.s_cbranch_scc1(nl)
        A.s_memrealtime(s(C0, 2)); A.wait(lgkm=0)
        A.v_mov_b32(v(CV+4), s(21)); A.v_mov_b32(v(CV+5), s(22)); A.v_mov_b32(v(CV+6), s(23)); A.v_mov_b32(v(CV+7), s(C0))
        A.v_mov_b32(v(CV), s(S_XCC)); A.v_mov_b32(v(CV+1), s(14)); A.v_mov_b32(v(CV+2), s(15)); A.v_mov_b32(v(CV+3), s(101)); A.v_mov_b32(v(112), 0)
        A.s_lshl_b32(s(C0), s(S_TASK), 5); A.s_add_u32(s(C0), s(C0), WS_TIM)
        A.s_mov_b64('exec', 1)
        A.buffer_store_dwordx4(v(CV+4, 4), v(112), s(S_WS, 4), s(C0), m='offen')
        A.buffer_store_dwordx4(v(CV, 4), v(112), s(S_WS, 4), s(C0), m='offen offset:16')
        A.s_mov_b64('exec', -1)
        A.label(nl)
        stamp(A, 14)
    sk = only_w0(A)
    out, lead, got, lp = A.newlabel('dqo'), A.newlabel('dqlead'), A.newlabel('dqgot'), A.newlabel('dql')
    pre, tk, t2, t3 = A.newlabel('dqp'), A.newlabel('dqt'), A.newlabel('dqs'), A.newlabel('dqu')
    A.s_mov_b32(s(C0), K_EXIT); A.s_bitcmp1_b32(s(S_INIT), 5); A.s_cbranch_scc1(out)
    A.s_bitcmp1_b32(s(S_INIT), 2); A.s_cbranch_scc1(pre)
    A.s_bitcmp1_b32(s(S_INIT), 4); A.s_cbranch_scc1(t2)
    A.s_lshl_b32(s(C1), s(S_XCC), 2)
    A.v_mov_b32(v(CV), 1); A.v_mov_b32(v(CV+1), 0)
    A.s_mov_b64('exec', 1)
    A.buffer_atomic_add(v(CV), v(CV+1), s(S_DBG, 4), s(C1), m=f'offen offset:{D_LH*4} sc0 sc1')
    A.s_mov_b64('exec', -1)
    A.s_mov_b32(s(C5), 0)
    A.wait(vm=0)
    A.v_readfirstlane_b32(s(C2), v(CV))
    A.s_cmp_lt_u32(s(C2), 32); A.s_cbranch_scc1(tk)
    A.s_bitset1_b32(s(S_INIT), 4)
    A.label(t2)
    ensure_init(A, out)
    ticket(A)
    A.s_mov_b32(s(C5), 0)
    A.s_bitcmp1_b32(s(S_INIT), 1); A.s_cbranch_scc1(t3)
    status_ld(A); A.wait(vm=0); status_rd(A)
    A.label(t3)
    A.wait(vm=0)
    A.v_readfirstlane_b32(s(C2), v(CV)); A.s_add_u32(s(C2), s(C2), 32)
    A.label(tk)
    A.s_lshr_b32(s(C3), s(C2), 5); A.s_and_b32(s(C2), s(C2), 31)
    A.s_mov_b32(s(C0), K_EXIT); A.s_cmp_ge_u32(s(C3), 128); A.s_cbranch_scc1(out)
    tab_addr(A)
    A.s_bitcmp1_b32(s(S_INIT), 2); A.s_bitset0_b32(s(S_INIT), 2); A.s_cselect_b32(s(C1), 1, s(C2))
    A.s_cmp_eq_u32(s(C1), 0); A.s_cbranch_scc1(lead)
    A.v_mov_b32(v(CV+1), 0)
    A.label(lp)
    l0, l1 = A.newlabel('dq0'), A.newlabel('dq1')
    A.s_cmp_eq_u32(s(C3), 0); A.s_cbranch_scc1(l0)
    A.buffer_load_dword(v(CV), v(CV+1), s(S_WS, 4), s(C4), m='offen sc1'); A.s_branch(l1)
    A.label(l0)
    A.s_lshl_b32(s(C1), s(S_XCC), 2)
    A.buffer_load_dword(v(CV), v(CV+1), s(S_DBG, 4), s(C1), m=f'offen offset:{D_SLOT0*4} sc1')
    A.label(l1)
    A.wait(vm=0); A.v_readfirstlane_b32(s(C0), v(CV))
    A.s_sub_u32(s(C0), s(C0), 1); A.s_cbranch_scc0(got)
    if XP.get('slp', 4): A.s_sleep(XP.get('slp', 4))
    guard(A, lp, out)
    A.label(pre)
    A.s_mov_b32(s(C2), s(S_TICK)); A.s_mov_b32(s(C5), s(S_RDY))
    A.s_sub_u32(s(C0), s(S_NXT), 1); A.s_cbranch_scc1(tk)
    A.s_bitset0_b32(s(S_INIT), 2); A.s_and_b32(s(C2), s(C2), 31); A.s_branch(got)
    A.label(lead)
    dbg_atomic(A, D_GHEAD)
    A.s_add_u32(s(C1), s(C0), 1); A.v_mov_b32(v(CV), s(C1))
    l0 = A.newlabel('dq0')
    A.s_mov_b64('exec', 1)
    A.s_cmp_eq_u32(s(C3), 0); A.s_cbranch_scc1(l0)
    A.buffer_store_dword(v(CV), v(CV+1), s(S_WS, 4), s(C4), m='offen sc1'); A.s_mov_b64('exec', -1); A.s_branch(got)
    A.label(l0)
    A.s_lshl_b32(s(C1), s(S_XCC), 2)
    A.buffer_store_dword(v(CV), v(CV+1), s(S_DBG, 4), s(C1), m=f'offen offset:{D_SLOT0*4} sc1'); A.s_mov_b64('exec', -1)
    A.label(got)
    A.s_min_u32(s(C0), s(C0), 1023)
    A.s_lshl_b32(s(C0), s(C0), 5); A.s_or_b32(s(C0), s(C0), s(C2))
    A.s_bitcmp0_b32(s(C5), POISON); A.s_cbranch_scc1(out)
    A.s_bitcmp1_b32(s(S_INIT), 1); A.s_cbranch_scc1(out)
    A.s_cmp_lt_u32(s(C0), 16*32); A.s_cbranch_scc1(out)
    A.s_mov_b32(s(C5), s(C0))
    back = A.newlabel('dqb')
    dbg_atomic(A, D_FBT)
    A.s_or_b32(s(S_INIT), s(S_INIT), 2)
    A.s_cmp_ge_u32(s(C0), 64); A.s_cbranch_scc1(back)
    A.s_lshl_b32(s(C0), s(C0), 17); A.s_or_b32(s(C0), s(C0), K_FB); A.s_or_b32(s(C0), s(C0), s(C5)); A.s_branch(out)
    A.label(back); A.s_mov_b32(s(C0), s(C5))
    A.label(out)
    bcast(A, sk)
    A.s_and_b32(s(S_TASK), s(C0), 0xFFFF)
    dec0 = A.newlabel('dec0')
    A.s_bitcmp0_b32(s(C0), 16); A.s_cbranch_scc1(DECODE)
    A.s_lshr_b32(s(C0), s(C0), 17); A.s_branch(CHAINF)
    A.label(SPECIAL)
    A.s_bitcmp0_b32(s(C0), 16); A.s_cbranch_scc1(END)
    A.s_and_b32(s(C0), s(C0), 63); A.s_branch(CHAINF)
    A.label(DECODE)
    stamp(A, 21); stamp(A, 22); stamp(A, 23); stamp(A, 15)
    A.s_lshr_b32(s(C0), s(S_TASK), 5); A.s_and_b32(s(C1), s(S_TASK), 31)
    TL = {n: A.newlabel('t' + n) for n in ('KV', 'GU', 'DN', 'Q', 'AT', 'OP', 'OPS', 'AX')}
    tKV, tGU, tDN, tQ, tAT, tOP, tOPS, tAX = TL.values()
    pos = 0
    A.s_mov_b32(s(C2), s(C0))
    for ty, first, cnt in order():
        if not cnt: continue
        A.s_sub_u32(s(C0), s(C2), pos - first)
        pos += cnt
        A.s_cmp_lt_u32(s(C2), pos); A.s_cbranch_scc1(TL[ty])
    A.label(END)
    rts(A, 5); A.wait(vm=0); att(A, 63)
    if 'tim' in OPTS:
        A.s_cmp_lg_u32(s(S_W), 0); A.s_cbranch_scc1('.end0')
        A.s_memrealtime(s(C0, 2)); A.wait(lgkm=0); A.s_sub_u32(s(C0), s(C0), s(100))
        A.v_mov_b32(v(CV), s(C0)); A.v_mov_b32(v(CV+1), 0); A.s_mov_b64('exec', 1)
        A.buffer_atomic_umax(v(CV), v(CV+1), s(S_DBG, 4), 0, m=f'offen offset:{28 if "timd" in OPTS else 128} sc1'); A.wait(vm=0)
    A.label('.end0')
    A.s_endpgm()

    def x_operand():
        srd(A, SRD_A, P_X, 2048*2048); A.s_lshl_b32(s(G_SA), s(G_MB), 18); A.s_mov_b32(s(G_STA), 2048); A.s_mov_b32(s(G_N), 16); A.s_mov_b32(s(G_ASTEP), 128)
    def b_operand(p, nbytes, stride, ntreg):
        srd(A, SRD_B0, p, nbytes); srd(A, SRD_B1, p, nbytes)
        A.s_lshl_b32(s(G_SB0), s(ntreg), 9); A.s_add_u32(s(G_SB1), s(G_SB0), 256)
        A.s_mov_b32(s(G_STB), stride); A.s_mov_b32(s(G_BSTEP), 64*stride)
    def set_cnt(t): A.s_lshl_b32(s(G_CNT), s(G_MB), 7); A.s_add_u32(s(G_CNT), s(G_CNT), cnt_addr(t))
    def mb_nt(qshift, mul, tr=False):
        if tr: A.s_lshr_b32(s(C2), s(C1), 3); A.s_and_b32(s(C1), s(C1), 7); A.s_lshl_b32(s(C1), s(C1), 2); A.s_add_u32(s(C1), s(C1), s(C2))
        A.s_lshr_b32(s(G_MB), s(C0), qshift); A.s_lshl_b32(s(G_MB), s(G_MB), 2); A.s_and_b32(s(C2), s(C1), 3); A.s_add_u32(s(G_MB), s(G_MB), s(C2))
        A.s_and_b32(s(C3), s(C0), (1 << qshift) - 1); A.s_mul_i32(s(G_NT), s(C3), mul); A.s_lshr_b32(s(C2), s(C1), 2); A.s_add_u32(s(G_NT), s(G_NT), s(C2))
    A.label(tKV)
    noz = A.newlabel('noz')
    A.s_cmp_lg_u32(s(S_TASK), 0); A.s_cbranch_scc1(noz)
    lane_id(A, CV); A.s_lshl_b32(s(C2), s(S_W), 10); A.v_lshlrev_b32(v(CV), 4, v(CV)); A.v_add_u32(v(CV), s(C2), v(CV))
    A.v_mov_b64(v(CV+4, 2), 0); A.v_mov_b64(v(CV+6, 2), 0)
    for i in range(CTL_BYTES // 4096):
        A.s_mov_b32(s(C2), WS_CTL + i*4096)
        A.buffer_store_dwordx4(v(CV+4, 4), v(CV), s(S_WS, 4), s(C2), m='offen sc1')
    if 'nochain' in OPTS:
        A.wait(vm=0); A.s_barrier()
        A.v_mov_b32(v(CV+4), 64); A.v_lshlrev_b32(v(CV), 3, v(CV)); A.s_mov_b32(s(C2), WS_CTL + C_PROG)
        q = only_w0(A)
        A.buffer_store_dword(v(CV+4), v(CV), s(S_WS, 4), s(C2), m='offen sc1')
        A.label(q)
    A.wait(vm=0); A.s_barrier()
    q = only_w0(A); dbg_atomic(A, D_INIT, ret=False); A.label(q)
    A.label(noz)
    mb_nt(2, 8, not XP.get('notr')); x_operand(); set_cnt(T_KV)
    tV = A.newlabel('tv')
    A.s_cmp_ge_u32(s(G_NT), 16); A.s_cbranch_scc1(tV)
    def kv_base(base):
        A.s_lshl_b32(s(G_SC), s(G_MB), 20); A.s_lshl_b32(s(C2), s(G_NT), 14); A.s_add_u32(s(G_SC), s(G_SC), s(C2))
        A.s_lshl_b32(s(C2), s(S_W), 11); A.s_add_u32(s(G_SC), s(G_SC), s(C2)); A.s_add_u32(s(G_SC), s(G_SC), base)
    b_operand(P_WK, 1024*8192, 8192, G_NT); kv_base(WS_KX); A.s_mov_b32(s(G_EPI), 1); A.s_branch(GEMM)
    A.label(tV)
    A.s_sub_u32(s(G_NT), s(G_NT), 16)
    b_operand(P_WV, 1024*8192, 8192, G_NT)
    kv_base(WS_VT)
    A.s_and_b32(s(G_EPI), s(G_N), 0); A.s_add_u32(s(G_EPI), s(G_EPI), 5); A.s_branch(GEMM)
    A.label(tQ)
    mb_nt(1, 8); x_operand(); set_cnt(T_Q)
    b_operand(P_WQ, 1024*8192, 8192, G_NT); kv_base(WS_QX); A.s_mov_b32(s(G_EPI), 0); A.s_branch(GEMM)
    A.label(tGU)
    tG = A.newlabel('tg')
    mb_nt(2, 7)
    A.s_cmp_ge_u32(s(C1), 28); A.s_cbranch_scc1(tG)
    x_operand(); set_cnt(T_GU)
    srd(A, SRD_B0, P_WG, 1024*7168); srd(A, SRD_B1, P_WU, 1024*7168)
    A.s_lshl_b32(s(G_SB0), s(G_NT), 8); A.s_mov_b32(s(G_SB1), s(G_SB0)); A.s_mov_b32(s(G_STB), 7168); A.s_mov_b32(s(G_BSTEP), 64*7168)
    A.s_mul_i32(s(G_SC), s(G_MB), 128*7168); A.s_lshl_b32(s(C2), s(G_NT), 13); A.s_add_u32(s(G_SC), s(G_SC), s(C2))
    A.s_lshl_b32(s(C2), s(S_W), 11); A.s_add_u32(s(G_SC), s(G_SC), s(C2)); A.s_add_u32(s(G_SC), s(G_SC), WS_H)
    A.s_mov_b32(s(G_EPI), 2); A.s_branch(GEMM)
    A.label(tG)
    A.s_cmp_lg_u32(s(C3), 0); A.s_cbranch_scc1(NEXT)
    set_cnt(T_DN); task_g(A); A.s_branch(DONE)
    A.label(tDN)
    A.s_lshl_b32(s(G_MB), s(C0), 3); A.s_and_b32(s(C2), s(C1), 7); A.s_add_u32(s(G_MB), s(G_MB), s(C2))
    A.s_lshr_b32(s(G_NT), s(C1), 3)
    dep_wait(A, dep_cnt(A, T_GU, 28), SPECIAL)
    set_cnt(T_DN)
    ws_srd(A, SRD_A); A.s_mul_i32(s(G_SA), s(G_MB), 128*7168); A.s_add_u32(s(G_SA), s(G_SA), WS_H); A.s_mov_b32(s(G_STA), 32*7168); A.s_mov_b32(s(G_N), 56); A.s_mov_b32(s(G_ASTEP), 4096)
    b_operand(P_WD, 3584*2048, 2048, G_NT)
    A.s_lshl_b32(s(G_SC), s(G_MB), 2); A.s_add_u32(s(G_SC), s(G_SC), s(G_NT)); A.s_lshl_b32(s(G_SC), s(G_SC), 2); A.s_add_u32(s(G_SC), s(G_SC), s(S_W))
    A.s_lshl_b32(s(G_SC), s(G_SC), 14); A.s_add_u32(s(G_SC), s(G_SC), WS_B)
    A.s_mov_b32(s(G_EPI), 3); A.s_branch(GEMM)
    TM_ = XP.get('tm', 63)
    SPA, SPO, SP0 = not XP.get('nospa'), not XP.get('nospo'), chain.PAR['sp0']
    def d_kvq():
        A.s_lshr_b32(s(C2), s(G_MB), 2); A.s_lshl_b32(s(C2), s(C2), 7); A.s_add_u32(s(C2), s(C2), cnt_addr(T_KV))
        lane_id(A, CV+3); A.v_and_b32(v(CV+3), 1, v(CV+3))
        A.v_lshlrev_b32(v(CV+2), 11, v(CV+3)); A.v_add_u32(v(CV+2), s(C2), v(CV+2))
        A.v_lshlrev_b32(v(CV+3), 4, v(CV+3)); A.v_sub_u32(v(CV+3), 32, v(CV+3))
        assert T_Q == T_KV + 1
    def d_prog(nh, d):
        def f():
            lane_id(A, CV+3)
            A.v_and_b32(v(CV+2), 1, v(CV+3)); A.v_lshlrev_b32(v(CV+2), 12, v(CV+2))
            A.v_bfe_u32(v(CV+3), v(CV+3), 1, 1 + nh); A.v_lshl_add_u32(v(CV+2), v(CV+3), 7, v(CV+2))
            A.s_lshl_b32(s(C2), s(G_NT), 8 + nh); A.s_add_u32(s(C2), s(C2), WS_CTL + C_PROG); A.v_add_u32(v(CV+2), s(C2), v(CV+2))
            A.s_add_u32(s(C2), s(G_MB), d); A.v_mov_b32(v(CV+3), s(C2))
        return f
    def probe(flag, mark, go):
        lp, acc_ = A.newlabel('prl'), A.newlabel('pra')
        NP = XP.get('np', 2)
        def ld(i): A.buffer_load_dword(v(CV+4+i % NP), v(CV+2), s(S_WS, 4), 0, m='offen sc1').nochk = True
        for i in range(NP - 1): ld(i)
        A.label(lp)
        for i in range(NP):
            rt = A.newlabel('prr')
            ld(i + NP - 1); A.wait(vm=NP - 1)
            flag(CV+4+i); A.s_cbranch_scc1(acc_)
            A.s_bitcmp0_b32(s(S_INIT), 6); A.s_cbranch_scc1(rt)
            mark(CV+4+i); A.s_cbranch_scc1(go)
            A.label(rt)
            if XP.get('ps'): A.s_sleep(XP['ps'])
        A.s_sub_u32(s(S_TO), s(S_TO), 1); A.s_cbranch_scc0(lp)
        A.s_branch(END)
        A.label(acc_); A.s_bitset0_b32(s(S_INIT), 6)
    A.label(tAT)
    A.s_lshl_b32(s(G_MB), s(C0), 3); A.s_lshr_b32(s(C2), s(C1), 2); A.s_add_u32(s(G_MB), s(G_MB), s(C2)); A.s_and_b32(s(G_NT), s(C1), 3)
    A.s_cmp_ge_u32(s(G_MB), SP0); A.s_cbranch_scc1(NEXT)
    set_cnt(T_AT)
    dep_wait(A, d_kvq, SPECIAL)
    stamp(A, 22); task_at_pre(A, None, 2)
    dep_wait(A, d_prog(2, 1), SPECIAL)
    att(A, 57, TM_); stamp(A, 23); task_at_post(A, None, 2); stamp(A, 15); att(A, 59, TM_); A.s_branch(DONE)
    A.label(tAX)
    A.s_lshr_b32(s(G_MB), s(C1), 3); A.s_lshl2_add_u32(s(G_MB), s(C0), s(G_MB)); A.s_and_b32(s(G_NT), s(C1), 7)
    A.s_cmp_lt_u32(s(G_MB), SP0); A.s_cbranch_scc1(NEXT)
    set_cnt(T_AT)
    dep_wait(A, d_kvq, SPECIAL)
    AG, APR, APO = A.newlabel('aag'), A.newlabel('apr'), A.newlabel('apo')
    stamp(A, 22); task_at_pre(A, AG, 1)
    A.s_bitcmp1_b32(s(S_INIT), 7); A.s_cbranch_scc1(APR)
    dep_wait(A, d_prog(1, -XP.get('spe', 1)), SPECIAL)
    A.v_lshlrev_b32(v(V_C), 4, v(V_LANE))
    for i in range(4): A.v_mov_b32(v(CV+i), -1)
    for i in range(8):
        if i % 4 == 0: A.s_add_u32(s(G_T0), s(E_SC), i*1024)
        A.buffer_store_dwordx4(v(CV, 4), v(V_C), s(S_WS, 4), s(G_T0), m=f'offen offset:{(i % 4)*1024} sc1')
    A.wait(vm=0); A.s_barrier()
    sk = only_w0(A)
    A.v_mov_b32(v(CV), 16); A.v_mov_b32(v(CV+1), 0)
    A.s_mov_b64('exec', 1)
    A.buffer_atomic_add(v(CV), v(CV+1), s(S_WS, 4), s(G_CNT), m='offen sc1')
    A.s_mov_b64('exec', -1)
    A.label(sk)
    if SPA: A.s_bitset1_b32(s(S_INIT), 6)
    DRY = XP.get('dry')
    if DRY: A.s_bitset1_b32(s(S_INIT), 8); A.s_branch(APO)
    A.label(APR)
    A.v_and_b32(v(CV+2), 15, v(V_LANE)); A.v_lshlrev_b32(v(CV+2), 9, v(CV+2)); A.s_add_u32(s(C2), s(G_BSTEP), 496); A.v_add_u32(v(CV+2), s(C2), v(CV+2))
    A.v_and_b32(v(CV+3), 1, v(V_LANE)); A.v_lshlrev_b32(v(CV+3), 12, v(CV+3))
    A.s_lshl_b32(s(C2), s(G_NT), 9); A.s_lshl_b32(s(C3), s(S_W), 7); A.s_add_u32(s(C2), s(C2), s(C3)); A.s_add_u32(s(C2), s(C2), WS_CTL + C_PROG)
    A.v_add_u32(v(CV+3), s(C2), v(CV+3))
    A.v_cmp_lt_u32('vcc', 31, v(V_LANE)); A.v_cndmask_b32(v(CV+2), v(CV+2), v(CV+3), 'vcc')
    probe(lambda r_: (A.v_cmp_ge_u32('vcc', s(G_MB), v(r_)), A.s_cmp_eq_u32('vcc_hi', 0)),
          lambda r_: (A.v_cmp_eq_u32('vcc', -1, v(r_)), A.s_cmp_eq_u32('vcc_lo', 0)), APO)
    A.label(APO)
    def at_check():
        ok, dr = A.newlabel('aok'), A.newlabel('adr')
        if DRY: A.s_bitcmp1_b32(s(S_INIT), 8); A.s_cselect_b64('exec', 0, -1); A.s_cbranch_scc1(dr)
        A.s_bitcmp0_b32(s(S_INIT), 6); A.s_cbranch_scc1(ok)
        A.v_add_f32(v(96), v(96), v(114)); A.v_pk_add_f32(v(96, 2), v(96, 2), v(98, 2))
        A.v_cmp_u_f32('vcc', v(96), v(97)); A.s_cbranch_vccz(ok)
        A.s_bitset0_b32(s(S_INIT), 6); A.s_bitset1_b32(s(S_INIT), 7); A.s_branch(AG)
        A.label(ok); A.s_and_b32(s(S_INIT), s(S_INIT), 63); att(A, 58, TM_); A.label(dr)
    att(A, 57, TM_); stamp(A, 23); task_at_post(A, at_check, 1)
    if DRY:
        nd = A.newlabel('and')
        A.s_bitcmp0_b32(s(S_INIT), 8); A.s_cbranch_scc1(nd)
        A.s_mov_b64('exec', -1); A.s_xor_b32(s(S_INIT), s(S_INIT), 384); A.s_branch(AG)
        A.label(nd)
    stamp(A, 15); att(A, 59, TM_); A.s_branch(DONE)
    A.label(tOPS)
    A.s_mov_b32(s(G_NT), s(C1)); A.s_add_u32(s(G_MB), s(C0), S0)
    task_ops_pre(A)
    stamp(A, 22)
    opl = A.newlabel('opsl'); A.label(opl)
    def d_ops():
        lane_id(A, CV+3); A.v_and_b32(v(CV+3), 1, v(CV+3))
        A.s_lshl_b32(s(C2), s(G_MB), 7); A.s_add_u32(s(C2), s(C2), cnt_addr(T_AT))
        A.s_lshr_b32(s(C3), s(G_MB), 2); A.s_lshl_b32(s(C3), s(C3), 7); A.s_add_u32(s(C3), s(C3), cnt_addr(T_DN)); A.s_sub_u32(s(C3), s(C2), s(C3))
        A.v_mul_u32_u24(v(CV+2), s(C3), v(CV+3)); A.v_sub_u32(v(CV+2), s(C2), v(CV+2))
        A.v_add_u32(v(CV+3), 4, v(CV+3))
        A.s_cmp_ge_u32(s(G_MB), SP0); A.s_cselect_b32(s(C3), 128, 4); A.v_writelane_b32(v(CV+3), s(C3), 0)
    dep_wait(A, d_ops, SPECIAL)
    OPR, OGO = A.newlabel('opr'), A.newlabel('ogo')
    A.s_cmp_lt_u32(s(G_MB), SP0); A.s_cbranch_scc1(OGO)
    if SPO: A.s_bitset1_b32(s(S_INIT), 6)
    A.label(OPR)
    PW = XP.get('pw', 3)
    A.v_and_b32(v(CV+2), (1 << PW) - 1, v(V_LANE)); A.v_lshlrev_b32(v(CV+2), 16 - PW, v(CV+2)); A.v_mov_b32(v(CV+3), 0)
    A.s_lshl_b32(s(C2), s(G_MB), 2); A.s_add_u32(s(C2), s(C2), s(S_W)); A.s_lshl_b32(s(C2), s(C2), 16); A.s_add_u32(s(C2), s(C2), WS_O + (1 << 16 - PW) - 16)
    A.s_lshl_b32(s(C3), s(G_MB), 7); A.s_add_u32(s(C3), s(C3), cnt_addr(T_AT))
    if XP.get('pc') is not None: A.s_cmp_eq_u32(s(G_MB), 63); A.s_cselect_b32(s(C4), (7 - XP['pc'])*1024, 0); A.s_sub_u32(s(C2), s(C2), s(C4))
    A.v_add_u32(v(CV+2), s(C2), v(CV+2)); A.v_mov_b32(v(CV+3), s(C3))
    A.v_cmp_lt_u32('vcc', 31, v(V_LANE)); A.v_cndmask_b32(v(CV+2), v(CV+2), v(CV+3), 'vcc')
    probe(lambda r_: (A.v_readlane_b32(s(C0), v(r_), 32), A.s_cmp_ge_u32(s(C0), 136)),
          lambda r_: (A.v_cmp_eq_u32('vcc', -1, v(r_)), A.s_cmp_lt_u32(s(C0), 128), A.s_cmov_b32('vcc_lo', 1), A.s_cmp_eq_u32('vcc_lo', 0)), OGO)
    A.label(OGO)
    def ops_check(c, c2):
        ok = A.newlabel('ook')
        A.s_bitcmp0_b32(s(S_INIT), 6); A.s_cbranch_scc1(ok)
        A.s_bitset0_b32(s(S_INIT), 6)
        att(A, 37, TM_); A.v_cmp_u_f32('vcc', v(c), v(c2)); A.s_cbranch_vccnz(OPR)
        A.label(ok); att(A, 61, TM_)
    stamp(A, 23); att(A, 60, TM_)
    spl, ope, oph = opl, A.newlabel('opse'), A.newlabel('opsh')
    HS = not XP.get('nohs')
    opn = A.newlabel('opsx')
    WARM = HS and XP.get('warm')
    if HS: A.s_cmp_eq_u32(s(G_MB), 63); A.s_cbranch_scc1(oph)
    if WARM: A.s_sub_u32(s(C0), s(G_MB), 63 - 2*NG); A.s_cmp_lt_u32(s(C0), 2); A.s_cbranch_scc1(oph)
    task_ops_seg(A, ops_check); att(A, 62, TM_)
    A.label(opn)
    A.s_add_u32(s(G_MB), s(G_MB), NG); A.s_cmp_lt_u32(s(G_MB), 64 - NG); A.s_cbranch_scc1(opl)
    A.s_cmp_ge_u32(s(G_MB), 65 if HS else 64); A.s_cbranch_scc1(ope)
    if HS:
        nsh = A.newlabel('opsn')
        A.s_cmp_lg_u32(s(G_MB), 64); A.s_cbranch_scc1(nsh)
        A.s_mov_b32(s(G_MB), 63); A.s_or_b32(s(S_INIT), s(S_INIT), 192 if SPO else 128); A.s_barrier(); A.s_branch(OPR)
        A.label(nsh)
    if not XP.get('nopeek'):
        A.s_cmp_lg_u32(s(S_W), 0); A.s_cbranch_scc1(spl)
        A.s_bitcmp0_b32(s(S_INIT), 4); A.s_cbranch_scc1(spl)
        NSUP = sum(c_ for _, _, c_ in order())
        A.v_mov_b32(v(CV+1), 0)
        A.buffer_load_dword(v(CV), v(CV+1), s(S_DBG, 4), 0, m=f'offen offset:{D_GHEAD*4} sc1'); A.wait(vm=0)
        A.v_readfirstlane_b32(s(C0), v(CV)); A.s_cmp_lt_u32(s(C0), NSUP); A.s_cbranch_scc1(spl)
        A.s_lshl_b32(s(C1), s(S_XCC), 7); A.s_add_u32(s(C1), s(C1), WS_CTL + C_HEAD)
        A.buffer_load_dword(v(CV), v(CV+1), s(S_WS, 4), s(C1), m='offen sc1'); A.wait(vm=0)
        yes = A.newlabel('opy')
        A.v_readfirstlane_b32(s(C2), v(CV)); A.s_and_b32(s(C0), s(C2), 31); A.s_cbranch_scc0(yes)
        A.s_lshr_b32(s(C3), s(C2), 5); A.s_add_u32(s(C3), s(C3), 1); A.s_cmp_ge_u32(s(C3), 128); A.s_cbranch_scc1(yes)
        tab_addr(A)
        A.buffer_load_dword(v(CV), v(CV+1), s(S_WS, 4), s(C4), m='offen sc1'); A.wait(vm=0)
        A.v_readfirstlane_b32(s(C0), v(CV)); A.s_cmp_le_u32(s(C0), NSUP); A.s_cbranch_scc1(spl)
        A.label(yes); A.s_bitset1_b32(s(S_INIT), 5)
    A.s_branch(opl)
    if HS:
        A.label(oph)
        A.s_bitcmp1_b32(s(S_INIT), 7); A.s_cselect_b32(s(G_T3), 8 if XP.get('il', 1) else 16, 0)
        task_ops_seg(A, ops_check, True, XP.get('pc') is not None); att(A, 62, TM_)
        A.s_xor_b32(s(S_INIT), s(S_INIT), 128)
        if WARM:
            lst = A.newlabel('opsz')
            A.s_cmp_eq_u32(s(G_MB), 63); A.s_cbranch_scc1(lst)
            A.s_bitcmp0_b32(s(S_INIT), 7); A.s_cbranch_scc1(opn)
            if SPO: A.s_bitset1_b32(s(S_INIT), 6)
            A.s_barrier(); A.s_branch(OPR)
            A.label(lst)
        A.s_bitset0_b32(s(S_INIT), 7)
    A.label(ope)
    stamp(A, 15)
    A.s_branch(NEXT)
    A.label(tOP)
    A.s_lshl_b32(s(G_MB), s(C0), 3); A.s_lshr_b32(s(C2), s(C1), 2); A.s_add_u32(s(G_MB), s(G_MB), s(C2)); A.s_and_b32(s(G_NT), s(C1), 3)
    A.s_cmp_ge_u32(s(G_MB), S0 // 4); A.s_cbranch_scc1(NEXT)
    def d_at():
        lane_id(A, CV+3); A.v_and_b32(v(CV+3), 3, v(CV+3))
        A.s_lshl_b32(s(C2), s(G_MB), 9); A.s_add_u32(s(C2), s(C2), cnt_addr(T_AT))
        A.v_lshlrev_b32(v(CV+2), 7, v(CV+3)); A.v_add_u32(v(CV+2), s(C2), v(CV+2)); A.v_mov_b32(v(CV+3), 4)
    dep_wait(A, d_at, SPECIAL)
    ws_srd(A, SRD_A); A.s_lshl_b32(s(G_SA), s(G_MB), 20); A.s_add_u32(s(G_SA), s(G_SA), WS_O); A.s_mov_b32(s(G_STA), 262144); A.s_mov_b32(s(G_N), 64)
    A.s_mov_b32(s(G_ASTEP), 4096)
    b_operand(P_WO, 4096*2048, 2048, G_NT)
    A.s_lshl_b32(s(G_SC), s(G_MB), 18); A.s_lshl_b32(s(C2), s(G_NT), 9); A.s_add_u32(s(G_SC), s(G_SC), s(C2))
    A.s_lshl_b32(s(C2), s(S_W), 6); A.s_add_u32(s(G_SC), s(G_SC), s(C2))
    A.s_mov_b32(s(G_EPI), 4)
    A.label(GEMM)
    EPI, EPIRET, LEND, HOOK, RET, RETV, go = '.epi', '.epiret', '.lend', '.hook', '.hret', '.hretv', A.newlabel('go')
    stamp(A, 22); gemm_consts(A)
    A.s_or_b32(s(G_HOOK), s(G_N), -1)
    nh = A.newlabel('nh')
    A.s_cmp_lg_u32(s(S_W), 0); A.s_cbranch_scc1(nh)
    A.s_cmp_lg_u32(s(G_N), 16); A.s_cbranch_scc1(nh)
    if 'nopf' not in OPTS:
        A.s_mov_b32(s(G_HOOK), 14); A.s_and_b32(s(S_HST), s(G_N), 0)
        A.s_and_b32(s(C0), s(S_INIT), 17); A.s_cmp_eq_u32(s(C0), 17); A.s_cbranch_scc1(nh)
        status_ld(A)
    A.label(nh)
    NPRE = XP.get('npre', 12)
    gemm_pro(A, 0, NPRE)
    A.s_bitcmp1_b32(s(S_INIT), 3); A.s_cbranch_scc1(EPI)
    A.s_mov_b32(s(E_CNT), 0)
    gemm_pro(A, max(NPRE, 1) if not NPRE else NPRE, 27) if NPRE else [dma(A, 0, 'sc1'), gemm_pro(A, 1, 27)]
    gemm_zero(A); A.wait(vm=15)
    A.label(go)
    A.s_barrier()
    A.s_cmp_eq_u32(s(G_EPI), 5); A.s_cbranch_scc1(GEMMV)
    gemm_loop(A, False, HOOK, RET)
    A.label(LEND)
    stamp(A, 23)
    A.s_mov_b32(s(E_SC), s(G_SC)); A.s_mov_b32(s(E_EPI), s(G_EPI)); A.s_mov_b32(s(E_CNT), s(G_CNT))
    A.s_cmp_lg_u32(s(G_ASTEP), 128); A.s_cbranch_scc1(EPI)
    sk = only_w0(A)
    sl = A.newlabel('slow')
    A.s_mov_b32(s(C0), -1)
    A.s_cmp_lg_u32(s(G_HOOK), -2); A.s_cbranch_scc1(sl)
    np_ = A.newlabel('np')
    A.v_readfirstlane_b32(s(S_NXT), v(CV))
    A.s_bitcmp1_b32(s(S_INIT), 1); A.s_cbranch_scc1(np_)
    status_rd(A); A.s_mov_b32(s(S_RDY), s(C5)); A.s_mov_b32(s(C0), -1)
    A.s_bitcmp1_b32(s(S_RDY), POISON); A.s_cbranch_scc1(sl)
    A.label(np_)
    A.s_cmp_eq_u32(s(G_CNT), cnt_addr(T_KV)); A.s_cbranch_scc1(sl)
    A.s_sub_u32(s(C1), s(S_NXT), 1); A.s_cmp_ge_u32(s(C1), 64); A.s_cbranch_scc1(sl)
    seq = [ty for ty, first, cnt in order() for i in range(cnt)]
    m_all = sum(1 << i for i, ty in enumerate(seq) if ty in ('KV', 'Q', 'GU')); m_ng = sum(1 << i for i, ty in enumerate(seq) if ty in ('KV', 'Q'))
    A.s_and_b32(s(C2), s(S_TICK), 31); A.s_cmp_ge_u32(s(C2), 28)
    for i in range(2):
        A.s_mov_b32(s(C4+i), hex((m_all >> 32*i) & 0xffffffff)); A.s_cmov_b32(s(C4+i), hex((m_ng >> 32*i) & 0xffffffff))
    A.s_bitcmp0_b64(s(C4, 2), s(C1)); A.s_cbranch_scc1(sl)
    A.s_lshl_b32(s(C0), s(C1), 5); A.s_or_b32(s(C0), s(C0), s(C2)); A.s_bitset0_b32(s(S_INIT), 2)
    A.label(sl)
    bcast(A, sk, False)
    A.s_cmp_eq_u32(s(C0), -1); A.s_cbranch_scc1(EPI)
    if 'log' in OPTS:
        A.s_lshl_b32(s(C1), s(S_TASK), 5); A.s_add_u32(s(C1), s(C1), WS_TIM); A.v_mov_b32(v(104), s(C1))
        for i, k in enumerate((21, 22, 23)): A.v_mov_b32(v(96+i), s(k))
        A.v_mov_b32(v(100), s(S_XCC)); A.v_mov_b32(v(101), s(14)); A.s_mov_b32(s(14), s(23)); A.v_mov_b32(v(103), s(101))
    A.s_mov_b32(s(S_TASK), s(C0)); A.s_bitset1_b32(s(S_INIT), 3); A.s_branch(DECODE)
    A.label(GEMMV)
    gemm_loop(A, True, HOOK, RETV)
    A.s_branch(LEND)
    A.label(HOOK)
    h1, h2, h3, h4, hx, hn, hoff, hk, hm = (A.newlabel(n_) for n_ in ('ha', 'hb', 'hc', 'hd', 'hx', 'hn', 'hoff', 'hk', 'hm'))
    for i, l_ in enumerate((h1, h2, h3)): A.s_cmp_eq_u32(s(S_HST), i+1); A.s_cbranch_scc1(l_)
    A.s_cmp_eq_u32(s(E_CNT), 0); A.s_cbranch_scc1(hn)
    A.v_mov_b32(v(CV), 1); A.v_mov_b32(v(CV+1), 0)
    A.s_mov_b64('exec', 1)
    A.buffer_atomic_add(v(CV), v(CV+1), s(S_WS, 4), s(E_CNT), m='offen sc1')
    A.s_mov_b64('exec', -1)
    A.s_mov_b32(s(E_CNT), 0)
    A.label(hn)
    A.s_and_b32(s(C0), s(S_INIT), 17); A.s_cmp_eq_u32(s(C0), 17); A.s_cbranch_scc1(hk)
    status_rd(A)
    A.s_and_b32(s(C0), s(S_INIT), 17); A.s_cmp_eq_u32(s(C0), 17); A.s_cbranch_scc1(hk)
    A.s_cmp_le_u32(s(G_HOOK), 8); A.s_cbranch_scc1(hoff)
    status_ld(A); A.s_branch(hm)
    A.label(hk)
    ticket(A)
    A.s_mov_b32(s(S_HST), 1); A.s_branch(hm)
    A.label(h1)
    A.v_readfirstlane_b32(s(S_TICK), v(CV)); A.s_add_u32(s(S_TICK), s(S_TICK), 32)
    A.s_bitset1_b32(s(S_INIT), 2); A.s_mov_b32(s(S_NXT), 0); A.s_mov_b32(s(S_RDY), 0)
    A.s_cmp_ge_u32(s(S_TICK), 128*32); A.s_cbranch_scc1(hoff)
    A.s_mov_b32(s(S_HST), 3); A.s_mov_b32(s(C0), s(G_HOOK)); A.s_mov_b32(s(G_HOOK), 3)
    A.s_and_b32(s(C2), s(S_TICK), 31); A.s_cbranch_scc1(hx)
    A.v_mov_b32(v(CV), 1); A.v_mov_b32(v(CV+1), 0)
    A.s_mov_b64('exec', 1)
    A.buffer_atomic_add(v(CV), v(CV+1), s(S_DBG, 4), 0, m=f'offen offset:{D_GHEAD*4} sc0 sc1').nochk = True
    A.s_mov_b64('exec', -1)
    A.s_mov_b32(s(S_HST), 2); A.s_sub_u32(s(G_HOOK), s(C0), 2); A.s_branch(hx)
    A.label(h2)
    A.s_lshr_b32(s(C3), s(S_TICK), 5); tab_addr(A)
    A.v_add_u32(v(CV), 1, v(CV)); A.v_mov_b32(v(CV+1), 0)
    A.s_mov_b64('exec', 1)
    A.buffer_store_dword(v(CV), v(CV+1), s(S_WS, 4), s(C4), m='offen sc1')
    A.s_branch(h4)
    A.label(h3)
    A.s_lshr_b32(s(C3), s(S_TICK), 5); tab_addr(A)
    A.v_mov_b32(v(CV+1), 0)
    A.s_mov_b64('exec', 1)
    A.buffer_load_dword(v(CV), v(CV+1), s(S_WS, 4), s(C4), m='offen sc1').nochk = True
    A.label(h4)
    A.s_mov_b64('exec', -1)
    A.s_mov_b32(s(G_HOOK), -2)
    A.s_bitcmp1_b32(s(S_INIT), 1); A.s_cbranch_scc1(hx)
    status_ld(A); A.s_branch(hx)
    A.label(hm)
    A.s_sub_u32(s(G_HOOK), s(G_HOOK), 2); A.s_branch(hx)
    A.label(hoff)
    A.s_mov_b32(s(G_HOOK), -1)
    A.label(hx)
    A.s_cmp_eq_u32(s(G_EPI), 5); A.s_cbranch_scc1(RETV)
    A.s_branch(RET)
    A.label(EPIRET)
    A.s_bitcmp0_b32(s(S_INIT), 3); A.s_cbranch_scc1(DONE)
    A.s_bitset0_b32(s(S_INIT), 3)
    if 'log' in OPTS:
        nl = only_w0(A)
        A.v_mov_b32(v(99), s(15)); A.v_mov_b32(v(102), s(15))
        A.s_mov_b64('exec', 1)
        A.buffer_store_dwordx4(v(96, 4), v(104), s(S_WS, 4), 0, m='offen')
        A.buffer_store_dwordx4(v(100, 4), v(104), s(S_WS, 4), 0, m='offen offset:16')
        A.s_mov_b64('exec', -1)
        A.label(nl)
    gemm_pro(A, NPRE, 27) if NPRE else [dma(A, 0, 'sc1'), gemm_pro(A, 1, 27)]
    gemm_zero(A); A.wait(vm=23 if NPRE >= 12 else 15); A.s_branch(go)
    A.label(EPI)
    eGU, eDN, eOP, eK, eV = A.newlabel('egu'), A.newlabel('edn'), A.newlabel('eop'), A.newlabel('ek'), A.newlabel('ev')
    A.s_cmp_eq_u32(s(E_EPI), 1); A.s_cbranch_scc1(eK)
    A.s_cmp_eq_u32(s(E_EPI), 2); A.s_cbranch_scc1(eGU)
    A.s_cmp_eq_u32(s(E_EPI), 3); A.s_cbranch_scc1(eDN)
    A.s_cmp_eq_u32(s(E_EPI), 4); A.s_cbranch_scc1(eOP)
    A.s_cmp_eq_u32(s(E_EPI), 5); A.s_cbranch_scc1(eV)
    epi_q(A); stamp(A, 15); A.s_branch(EPIRET)
    A.label(eK); epi_k(A); stamp(A, 15); A.s_branch(EPIRET)
    A.label(eV); epi_vt(A); stamp(A, 15); A.s_branch(EPIRET)
    A.label(eGU); epi_gu(A); stamp(A, 15); A.s_branch(EPIRET)
    A.label(eDN); epi_dn(A); stamp(A, 15); A.s_branch(DONE)
    A.label(eOP)
    dep_wait(A, dep_cnt(A, T_DN, 5), SPECIAL)
    A.s_lshl_b32(s(G_T2), s(G_MB), 2); A.s_add_u32(s(G_T2), s(G_T2), s(G_NT)); A.s_lshl_b32(s(G_T2), s(G_T2), 2); A.s_add_u32(s(G_T2), s(G_T2), s(S_W))
    A.s_lshl_b32(s(G_T2), s(G_T2), 14); A.s_add_u32(s(G_T2), s(G_T2), WS_B)
    A.s_lshl_b32(s(G_T3), s(G_MB), 9); A.s_add_u32(s(G_T3), s(G_T3), WS_G)
    srd(A, SRD_C, P_OUT, 2048*2048)
    stamp(A, 15); epi_op_loads(A); epi_op(A)
    A.wait(vm=0); A.s_branch(NEXT)
    A.label(DONE)
    A.wait(vm=0); A.s_barrier()
    A.s_cmp_lg_u32(s(S_W), 0); A.s_cbranch_scc1(NEXT)
    ensure_init(A, NEXT)
    A.v_mov_b32(v(CV), 1); A.v_mov_b32(v(CV+1), 0)
    A.s_mov_b64('exec', 1)
    A.buffer_atomic_add(v(CV), v(CV+1), s(S_WS, 4), s(G_CNT), m='offen sc1')
    A.s_mov_b64('exec', -1)
    A.s_branch(NEXT)
    if 'nochain' not in OPTS:
        CSP = '.cspecial'
        def handshake(dw, timed):
            A.wait(vm=0); A.s_barrier()
            sk = only_w0(A)
            out, lp, nx, nc = A.newlabel('hso'), A.newlabel('hsl'), A.newlabel('hsn'), A.newlabel('hsc')
            dbg_atomic(A, dw)
            A.s_and_b32(s(C0), s(C0), 255); A.s_cbranch_scc1(nc)
            chain.xq_base(A, not timed); A.s_add_u32(s(C0), s(chain.S_T0), L_MEMB + 1536)
            lane_id(A, CV+2); A.v_lshlrev_b32(v(CV+2), 4, v(CV+2))
            for i in range(4): A.v_mov_b32(v(CV+4+i), 1)
            A.s_mov_b32(s(C1), -1); A.s_mov_b32(s(C2), -1)
            A.s_mov_b64('exec', '0xffffffff')
            for i in range(3):
                for pol in range(2):
                    A.s_memtime(s(C4, 2)); A.wait(lgkm=0); A.s_mov_b32(s(C3), s(C4))
                    A.buffer_store_dwordx4(v(CV+4, 4), v(CV+2), s(S_WS, 4), s(C0), m='offen sc1')
                    A.wait(vm=0); A.s_memtime(s(C4, 2)); A.wait(lgkm=0); A.s_sub_u32(s(C3), s(C4), s(C3))
                    A.s_min_u32(s(C1+pol), s(C1+pol), s(C3)); A.s_xor_b32(s(C0), s(C0), 8192)
            A.s_mov_b64('exec', -1)
            A.s_cmp_lt_u32(s(C2), s(C1)); A.s_cselect_b32(s(C3), 257, 1)
            if 'pol0' in OPTS or 'pol1' in OPTS: A.s_mov_b32(s(C3), 257 if 'pol1' in OPTS else 1)
            if 'polx' in OPTS: A.s_cselect_b32(s(C3), 1, 257)
            if timed:
                kl, kd = A.newlabel('hsk'), A.newlabel('hsd')
                ensure_init(A, out)
                lane_id(A, CV+2); A.v_and_b32(v(CV+2), 15, v(CV+2)); A.v_lshlrev_b32(v(CV+2), 7, v(CV+2))
                A.s_mov_b32(s(C2), cnt_addr(T_KV))
                A.label(kl)
                A.buffer_load_dword(v(CV+4), v(CV+2), s(S_WS, 4), s(C2), m='offen sc1')
                A.wait(vm=0)
                A.v_cmp_gt_u32('vcc', chain.KV_TARGET, v(CV+4))
                A.s_or_b32(s(C1), 'vcc_lo', 0x10000); A.s_ff1_i32_b32(s(C1), s(C1))
                A.s_lshl_b32(s(C1), s(C1), 20); A.s_cbranch_scc1(kd)
                guard(A, kl, out)
                A.label(kd)
                A.s_add_u32(s(C3), s(C3), s(C1))
            dbg_atomic(A, dw, ret=False, val=s(C3))
            A.label(nc)
            A.s_mov_b32(s(C2), 300 if 'forcefb' not in OPTS else 20)
            A.label(lp)
            A.buffer_load_dwordx4(v(CV+4, 4), v(CV+1), s(S_DBG, 4), 0, m=f'offen offset:{D_READY*4} sc1')
            A.wait(vm=0)
            A.v_readfirstlane_b32(s(C1), v(CV+4 + dw - D_READY)); A.v_readfirstlane_b32(s(C3), v(CV+7))
            A.s_or_b32(s(S_INIT), s(S_INIT), s(C3))
            A.s_and_b32(s(C0), s(C1), 256); A.s_lshl_b32(s(C0), s(C0), 5)
            A.s_and_b32(s(C3), s(C1), '0x1f00000'); A.s_or_b32(s(C0), s(C0), s(C3))
            A.s_and_b32(s(C3), s(C1), 0x100ff)
            A.s_cmp_lg_u32(s(C3), 65); A.s_cbranch_scc1(nx)
            A.s_bitcmp1_b32(s(S_INIT), 0); A.s_cbranch_scc1(out)
            A.label(nx)
            if timed:
                np_, wk = A.newlabel('hsp'), A.newlabel('hsw')
                A.s_bitcmp0_b32(s(C1), POISON); A.s_cbranch_scc1(np_)
                take_fb(A, out, wk)
                A.label(wk); A.s_mov_b32(s(C0), 1); A.s_branch(out)
                A.label(np_)
                g = A.newlabel('hsg')
                A.s_sub_u32(s(C2), s(C2), 1); A.s_cbranch_scc0(g)
                A.s_mov_b32(s(C2), 0)
                A.s_cmp_ge_u32(s(C3), 65); A.s_cbranch_scc1(g)
                A.s_or_b32(s(C3), s(C1), 1 << POISON)
                A.v_mov_b32(v(CV+2), s(C3)); A.v_mov_b32(v(CV+3), s(C1))
                A.s_mov_b64('exec', 1)
                A.buffer_atomic_cmpswap(v(CV+2, 2), v(CV+1), s(S_DBG, 4), 0, m=f'offen offset:{D_READY*4} sc1')
                A.s_mov_b64('exec', -1)
                A.label(g)
            if XP.get('hsl', 2): A.s_sleep(XP.get('hsl', 2))
            guard(A, lp, out)
            A.label(out)
            bcast(A, sk)
            A.s_lshr_b32(s(chain.S_KVR), s(C0), 20); A.s_and_b32(s(C0), s(C0), '0xfffff')
            A.s_and_b32(s(chain.S_POL), s(C0), 8192)
            A.s_cmp_lg_u32(s(C0), s(chain.S_POL)); A.s_cbranch_scc1(CSP)
        A.label(CHAINP)
        A.s_mov_b32(s(S_X), s(S_XCC)); A.s_mov_b32(s(S_H), s(C0))
        rts(A, 1)
        if 'log' in OPTS:
            A.s_lshl_b32(s(C4), s(S_X), 5); A.s_add_u32(s(C4), s(C4), s(S_H)); A.v_mov_b32(v(CV), s(C4)); A.v_mov_b32(v(CV+1), 0)
            A.buffer_store_dword(v(CV), v(CV+1), s(S_WS, 4), s(S_WG), m='offen offset:28')
            if 'wl' in OPTS: chain.HOOK = rts
        chain_setup(A, CABORT, False)
        chain.HOOK = None
        rts(A, 2)
        handshake(D_READY, True)
        def tstart(A, off):
            sk_ = A.newlabel('ts'); A.s_and_b32(s(C0), s(S_H), 7); A.s_or_b32(s(C0), s(C0), s(S_W)); A.s_cbranch_scc1(sk_)
            tstart_(A, off); A.label(sk_)
        def tstart_(A, off):
            A.s_memrealtime(s(C0, 2)); A.wait(lgkm=0); A.s_sub_u32(s(C0), s(C0), s(100))
            A.v_mov_b32(v(CV), s(C0)); A.v_mov_b32(v(CV+1), 0); A.s_mov_b64('exec', 1)
            A.buffer_atomic_umax(v(CV), v(CV+1), s(S_DBG, 4), 0, m=f'offen offset:{off} sc1'); A.s_mov_b64('exec', -1)
        if 'tim' in OPTS:
            tstart(A, 140)
            chain.HOOK2 = lambda A: tstart(A, 12 if "timd" in OPTS else 132)
        rts(A, 3)
        chain_loop(A, CABORT, CDONE, False)
        chain.HOOK2 = None
        A.label(CSP)
        A.s_cmp_eq_u32(s(C0), 1); A.s_cbranch_scc1(NEXT)
        A.s_branch(SPECIAL)
        A.label(CHAINF)
        A.s_and_b32(s(S_X), s(C0), 1); A.s_lshr_b32(s(S_H), s(C0), 1)
        A.wait(vm=0, lgkm=0); A.s_barrier()
        chain_setup(A, CABORT, True)
        handshake(D_READY2, False)
        chain_loop(A, CABORT, CDONE, True)
        A.label(CDONE)
        if chain.TIMERS:
            for i in range(16): A.v_mov_b32(v(32+i), s(chain.S_ACC+i))
            A.s_lshl_b32(s(C0), s(S_X), 5); A.s_add_u32(s(C0), s(C0), s(S_H)); A.s_lshl_b32(s(C0), s(C0), 2); A.s_add_u32(s(C0), s(C0), s(S_W))
            A.s_lshl_b32(s(C0), s(C0), 6); A.s_add_u32(s(C0), s(C0), WS_CTIM); A.v_mov_b32(v(48), 0)
            A.s_mov_b64('exec', 1)
            for i in range(4): A.buffer_store_dwordx4(v(32+4*i, 4), v(48), s(S_WS, 4), s(C0), m=f'offen offset:{16*i}')
            A.s_mov_b64('exec', -1)
            A.wait(vm=0, lgkm=0)
        rts(A, 4)
        att(A, 56)
        if 'tim' in OPTS: tstart(A, 24 if 'timd' in OPTS else 136)
        if chain.TIMERS: A.wait(vm=0); A.s_endpgm()
        A.s_cmp_eq_u32(s(S_TASK), -1); A.s_cbranch_scc1(NEXT)
        A.s_branch(DECODE)
        A.label(CABORT)
        A.s_mov_b64('exec', -1)
        A.v_mov_b32(v(CV), '0xdead'); A.v_mov_b32(v(CV+1), 0)
        A.buffer_store_dword(v(CV), v(CV+1), s(S_DBG, 4), 0, m=f'offen offset:{D_ABORT*4} sc1')
        A.wait(vm=0)
        A.s_endpgm()
    else:
        A.label(CHAINF); A.s_endpgm()
    n = A.fix_hazards()
    errs = A.check_waits()
    for e in errs[:20]: print('WAITERR', e)
    code, desc = kernel_wrap(KNAME + '_kernel', A.text())
    ol = ['; ORDER ' + ' '.join(f'{ty}{first+i}' for ty, first, cnt in order() for i in range(cnt))] if 'log' in OPTS else []
    return header(ol + [f'; @launch grid=(256,1,1) block=(256,1,1) lds={LDS_BYTES}']) + code + '.section .rodata,"a"\n' + desc

if __name__ == '__main__':
    for spec in sys.argv[1:]:
        OPTS = set(spec.split('+')) - {'base'}
        if 'timd' in OPTS: OPTS.add('tim')
        chain.TIMERS = 'ct' in OPTS; S0, NG, ORD = 40, 3, 3
        chain.PAR.clear(); chain.PAR.update(chain.PAR0)
        import gemm; gemm.XP.clear()
        for o in OPTS:
            if o.startswith('x_'): gemm.XP[o[2:].split('=')[0]] = int(o.split('=')[1]) if '=' in o else 1
        for o in OPTS:
            if '=' in o and not o.startswith('x_'):
                k_, v_ = o.split('=')
                if k_ == 'S0': S0 = int(v_)
                elif k_ == 'NG': NG = int(v_)
                elif k_ == 'ORD': ORD = int(v_)
                else: chain.PAR[k_] = int(v_)
        import asmcheck
        p = 'mega_%s.s' % spec.replace('+', '_').replace('=', '')
        open(p, 'w').write(build())
        asmcheck.assemble(p)
```

```python
from asmlib import *
from layout import *
from chain import S_WS, S_DBG, S_TMP, S_X, S_H, S_W, S_TO, ptr, srd, spin_guard

S_XCC, S_INIT, S_TASK = 2, 3, 46
SRD_A, SRD_B0, SRD_B1, SRD_C = 24, 28, 32, 36
G_SA, G_SB0, G_SB1, G_BSTEP, G_N, G_M0, G_DELTA, G_BUF, G_REM = 40, 41, 42, 43, 44, 45, 47, 48, 49
G_SC, G_MB, G_NT, G_EPI, G_CNT = 50, 51, 52, 53, 54
G_T0, G_T1, G_T2, G_T3 = 56, 57, 58, 59
G_STA, G_STB = 60, 61
G_ASTEP = 55
V_LANE, V_C, V_T = 16, 17, 18
FSET = [32, 56]
V_DA, V_DB, V_RA, V_RB = 80, 84, 88, 92
ACC = 128
STG = 49152
def acc(mt, nf): return ACC + (mt*2 + nf)*16

def lane_id(A, d):
    A.v_mbcnt_lo_u32_b32(v(d), -1, 0); A.v_mbcnt_hi_u32_b32(v(d), -1, v(d))

def gemm_consts(A):
    L, T0, T1, T2, T3 = V_LANE, V_T, V_T+1, V_T+2, V_T+3
    lane_id(A, L)
    A.v_lshrrev_b32(v(T0), 3, v(L)); A.s_lshl_b32(s(G_T0), s(S_W), 5); A.v_add_u32(v(T0), s(G_T0), v(T0))
    A.v_mul_u32_u24(v(T0), s(G_STA), v(T0))
    A.v_lshrrev_b32(v(T1), 4, v(L))
    A.v_and_b32(v(T2), 7, v(L)); A.v_xor_b32(v(T2), v(T2), v(T1))
    A.s_lshl_b32(s(G_T1), s(G_STA), 3); A.s_sub_u32(s(G_T1), s(G_T1), 1024)
    A.v_lshl_add_u32(v(V_DA), v(T2), 4, v(T0))
    A.v_xor_b32(v(T2), 4, v(T2)); A.v_lshl_add_u32(v(V_DA+1), v(T2), 4, v(T0)); A.v_add_u32(v(V_DA+1), s(G_T1), v(V_DA+1))
    A.s_lshl_b32(s(G_T1), s(G_T1), 1)
    A.v_add_u32(v(V_DA+2), s(G_T1), v(V_DA)); A.v_add_u32(v(V_DA+3), s(G_T1), v(V_DA+1))
    A.s_lshl_b32(s(G_T0), s(S_W), 4); A.v_add_u32(v(T0), s(G_T0), v(T1)); A.v_mul_u32_u24(v(T0), s(G_STB), v(T0))
    A.v_and_b32(v(T2), 15, v(L)); A.v_lshlrev_b32(v(T3), 2, v(T1)); A.v_xor_b32(v(T2), v(T2), v(T3))
    A.v_lshl_add_u32(v(V_DB), v(T2), 4, v(T0))
    A.s_lshl_b32(s(G_T1), s(G_STB), 2); A.s_sub_u32(s(G_T1), s(G_T1), 1024)
    for j in range(1, 4): A.v_add_u32(v(V_DB+j), s(G_T1), v(V_DB+j-1))
    A.v_and_b32(v(T0), 31, v(L)); A.v_bfe_u32(v(T2), v(L), 1, 3); A.v_lshrrev_b32(v(T3), 5, v(L)); A.v_xor_b32(v(T2), v(T2), v(T3))
    A.v_lshlrev_b32(v(T0), 7, v(T0)); A.v_lshl_add_u32(v(V_RA), v(T2), 4, v(T0))
    for kk in range(1, 4): A.v_xor_b32(v(V_RA+kk), 32*kk, v(V_RA))
    A.v_bfe_u32(v(T0), v(L), 2, 2)
    A.v_lshl_add_u32(v(T2), v(T3), 3, v(T0)); A.v_lshlrev_b32(v(T2), 8, v(T2))
    A.v_xor_b32(v(T0), s(S_W), v(T0)); A.v_lshl_add_u32(v(T2), v(T0), 6, v(T2))
    A.v_and_b32(v(T0), 1, v(T1)); A.v_lshl_add_u32(v(T2), v(T0), 5, v(T2))
    A.v_and_b32(v(T0), 3, v(L)); A.v_lshl_add_u32(v(T2), v(T0), 3, v(T2))
    A.v_add_u32(v(V_RB), 16384, v(T2))
    rm = A.newlabel('rm')
    A.s_cmp_eq_u32(s(G_ASTEP), 128); A.s_cbranch_scc1(rm)
    A.s_mul_i32(s(G_T0), s(G_STA), s(S_W))
    A.v_lshlrev_b32(v(V_RA), 4, v(L))
    for j in range(4): A.v_add_u32(v(V_DA+j), s(G_T0), v(V_RA))
    for kk in range(1, 4): A.v_add_u32(v(V_RA+kk), 1024*kk, v(V_RA))
    A.label(rm)

def store_lane(A, stride_shift=None, stride=None):
    L, T0, T1 = V_LANE, V_T, V_T+1
    A.v_bfe_u32(v(T0), v(L), 4, 1); A.v_lshlrev_b32(v(T0), 5, v(T0)); A.v_lshrrev_b32(v(T1), 5, v(L)); A.v_lshl_add_u32(v(T0), v(T1), 4, v(T0))
    A.v_and_b32(v(T1), 15, v(L))
    if stride_shift is not None: A.v_lshl_add_u32(v(V_C), v(T1), stride_shift, v(T0))
    else: A.v_mul_u32_u24(v(T1), stride, v(T1)); A.v_add_u32(v(V_C), v(T0), v(T1))

class LQ:
    def __init__(self, A, init=()): self.A, self.q = A, list(init)
    def issue(self, tag): self.q.append(tag)
    def need(self, tags):
        idx = max([i for i, t in enumerate(self.q) if t in tags], default=-1)
        if idx >= 0:
            self.A.wait(lgkm=len(self.q) - 1 - idx); del self.q[:idx+1]

RORD = ['A0', 'B0a', 'B0b', 'A1', 'B1a', 'B1b', 'A2', 'A3']
MORD = [(0, 0), (1, 0), (0, 1), (1, 1), (2, 0), (2, 1), (3, 0), (3, 1)]
def frag_read(A, st, kk, name):
    f = FSET[st]
    if name[0] == 'A':
        mt = int(name[1]); A.ds_read_b128(v(f+4*mt, 4), v(V_RA+kk), m=f'offset:{mt*4096}')
    else:
        nf, u = int(name[1]), 'ab'.index(name[2])
        A.ds_read_b64_tr_b16(v(f+16+4*nf+2*u, 2), v(V_RB), m=f'offset:{nf*16384 + kk*4096 + u*1024}')

def dma(A, i, asc):
    g, j = i // 4, i % 4
    if j == 0: A.s_add_u32('m0', s(G_M0), g*16384)
    if g == 0: A.buffer_load_dwordx4(v(V_DA+j), s(SRD_A, 4), s(G_SA), m=f'offen offset:{1024*j} {asc} lds')
    else: A.buffer_load_dwordx4(v(V_DB+j), s(SRD_B0 if g == 1 else SRD_B1, 4), s(G_SB0 if g == 1 else G_SB1), m=f'offen offset:{1024*j} lds')
XP = {}
def dma_advance(A):
    if not XP.get('nostep'):
        A.s_add_u32(s(G_SA), s(G_SA), s(G_ASTEP)); A.s_add_u32(s(G_SB0), s(G_SB0), s(G_BSTEP)); A.s_add_u32(s(G_SB1), s(G_SB1), s(G_BSTEP))
    A.s_add_u32(s(G_M0), s(G_M0), STG); A.s_cmp_ge_u32(s(G_M0), 3*STG); A.s_cselect_b32(s(G_T0), 3*STG, 0); A.s_sub_u32(s(G_M0), s(G_M0), s(G_T0))
    A.s_sub_u32(s(G_REM), s(G_REM), 1); A.s_cmp_gt_i32(s(G_REM), 0)
    for r_ in (SRD_A, SRD_B0, SRD_B1): A.s_cselect_b32(s(r_+2), s(r_+2), 0)

E_SC, E_EPI, E_CNT, G_HOOK = 16, 17, 19, 62
S_TICK, S_HST, S_NXT, S_RDY = 36, 37, 38, 39
def gemm_pro(A, lo, hi):
    asc = '' if XP.get('nosc') else 'sc1'
    if lo == 0: A.s_lshl_b32(s(G_M0), s(S_W), 12); A.s_mov_b32(s(G_REM), s(G_N)); A.s_mov_b32(s(G_BUF), 0)
    for i in range(lo, hi):
        dma(A, i % 12, asc)
        if i % 12 == 11: dma_advance(A)
def gemm_zero(A):
    for i in range(64): A.v_mov_b64(v(ACC+2*i, 2), 0)
def gemm_loop(A, swap, hook, ret):
    asc = '' if XP.get('nosc') else 'sc1'
    for n in RORD: frag_read(A, 0, 0, n)
    top = A.newlabel('gl'); A.label(top)
    q = LQ(A, [(0, n) for n in RORD])
    for kk in range(4):
        st = kk % 2
        f = FSET[st]
        nxt = [(1-st, (kk+1) % 4, n) for n in RORD]
        def rd(lst):
            for (s_, k_, n) in lst: frag_read(A, s_, k_, n); q.issue((s_, n))
        for i, (mt, nf) in enumerate(MORD):
            q.need([(st, f'A{mt}'), (st, f'B{nf}a'), (st, f'B{nf}b')])
            fa, fb = v(f+4*mt, 4), v(f+16+4*nf, 4)
            c = v(acc(mt, nf), 16)
            if swap: A.v_mfma_f32_32x32x16_bf16(c, fa, fb, c)
            else: A.v_mfma_f32_32x32x16_bf16(c, fb, fa, c)
            if kk < 3:
                if i == 0: rd(nxt[0:3])
                if i == 1: rd(nxt[3:6])
                if i == 2: rd(nxt[6:8])
                if i in (3, 5, 7): dma(A, 3 + 3*kk + (i-3)//2, asc)
                if kk == 2 and i == 7: pass
            else:
                if i == 0:
                    dma_advance(A)
                    A.s_add_u32(s(G_BUF), s(G_BUF), 1); A.s_cmp_eq_u32(s(G_BUF), 3)
                    A.s_mov_b32(s(G_DELTA), STG); A.s_cmov_b32(s(G_DELTA), -2*STG); A.s_cmov_b32(s(G_BUF), 0)
                if i == 1:
                    q.need([(st, n) for n in RORD])
                    A.wait(vm=12); A.s_barrier()
                    for r_ in (V_RA, V_RB): A.v_add_u32(v(r_), s(G_DELTA), v(r_))
                if i == 2: rd(nxt[0:3])
                if i == 3: rd(nxt[3:6])
                if i == 4:
                    rd(nxt[6:8])
                    for r_ in (V_RA+1, V_RA+2, V_RA+3): A.v_add_u32(v(r_), s(G_DELTA), v(r_))
                if i in (5, 6, 7): dma(A, i-5, asc)
    assert q.q == [(0, n) for n in RORD], q.q
    A.s_sub_u32(s(G_N), s(G_N), 1); A.s_cmp_eq_u32(s(G_N), s(G_HOOK)); A.s_cbranch_scc1(hook); A.label(ret)
    A.s_cmp_lg_u32(s(G_N), 0); A.s_cbranch_scc1(top)
    A.wait(lgkm=0)

def pack_ops(A, T):
    return [lambda i=i: A.v_cvt_pk_bf16_f32(v(T+i), v(T+2*i), v(T+2*i+1)) for i in range(8)]
def shuf32(A, T):
    return [lambda a_=a_: A.v_permlane32_swap_b32(v(T+a_), v(T+a_+2)) for a_ in (0, 1, 4, 5)]
def shuf16(A, T):
    return [lambda i=i: A.v_permlane16_swap_b32(v(T+i), v(T+4+i)) for i in range(4)]
def tile_stores(A, T, off, yoff, srd_, mods):
    def f():
        A.s_add_u32(s(G_T0), s(E_SC), hex(off)); A.s_add_u32(s(G_T1), s(E_SC), hex(off + yoff))
        A.buffer_store_dwordx4(v(T, 4), v(V_C), s(srd_, 4), s(G_T0), m='offen ' + mods)
        A.buffer_store_dwordx4(v(T+4, 4), v(V_C), s(srd_, 4), s(G_T1), m='offen ' + mods)
    return [f]
def epi_tiles(A, tiles, yoff, srd_, mods, pre=None, hc=None):
    n = len(tiles)
    for k in range(n+2):
        ops = []
        if k < n: ops += (pre(k) if pre else []) + pack_ops(A, tiles[k][0])
        if 0 <= k-2 < n: ops += shuf16(A, tiles[k-2][0])
        if 0 <= k-1 < n: ops += shuf32(A, tiles[k-1][0])
        if 0 <= k-2 < n:
            st = tile_stores(A, tiles[k-2][0], tiles[k-2][1], yoff, srd_, mods)
            if hc and k % 2:
                sk = A.newlabel('hsk')
                st = [lambda sk=sk: (A.s_cmp_eq_u32(s(E_CNT), hc), A.s_cbranch_scc1(sk))] + st + [lambda sk=sk: A.label(sk)]
            ops += st
        for f in ops: f()

def epi_native(A, tiles, pre=None):
    A.v_lshlrev_b32(v(V_C), 4, v(V_LANE))
    n = len(tiles)
    for k in range(n+1):
        ops = []
        if k < n: ops += (pre(k) if pre else []) + pack_ops(A, tiles[k][0])
        if k >= 1:
            T, off = tiles[k-1]
            ops += shuf32(A, T)
            ops.append(lambda off=off: A.s_add_u32(s(G_T0), s(E_SC), hex(off)))
            for hh in range(2): ops.append(lambda T=T, hh=hh: A.buffer_store_dwordx4(v(T+4*hh, 4), v(V_C), s(S_WS, 4), s(G_T0), m=f'offen offset:{1024*hh} sc1'))
        for f in ops: f()
ALLT = [(mt, nf) for mt in range(4) for nf in range(2)]
def epi_q(A): epi_native(A, [(acc(mt, nf), mt*262144 + nf*8192) for mt, nf in ALLT])
def chunk128(A):
    L, T0, T1 = V_LANE, V_T, V_T+1
    A.v_bfe_u32(v(T0), v(L), 4, 1); A.v_lshlrev_b32(v(T0), 8, v(T0)); A.v_lshrrev_b32(v(T1), 5, v(L)); A.v_lshl_add_u32(v(T0), v(T1), 7, v(T0))
def epi_vt(A, hc):
    L, T0, T1 = V_LANE, V_T, V_T+1
    chunk128(A)
    A.v_bfe_u32(v(T1), v(L), 3, 1); A.v_lshl_add_u32(v(T0), v(T1), 9, v(T0))
    A.v_and_b32(v(T1), 7, v(L)); A.v_lshl_add_u32(v(V_C), v(T1), 4, v(T0))
    epi_tiles(A, [(acc(mt, nf), mt*262144 + nf*8192) for mt, nf in ALLT], 1024, S_WS, 'sc1', hc=hc)
def epi_k(A, hc):
    L, T0, T1 = V_LANE, V_T, V_T+1
    chunk128(A)
    A.v_bfe_u32(v(T1), v(L), 2, 1); A.v_lshl_add_u32(v(T0), v(T1), 10, v(T0))
    A.v_bfe_u32(v(T1), v(L), 3, 1); A.v_lshl_add_u32(v(T0), v(T1), 6, v(T0))
    A.v_and_b32(v(T1), 3, v(L)); A.v_lshl_add_u32(v(V_C), v(T1), 4, v(T0))
    epi_tiles(A, [(acc(mt, nf), mt*262144 + nf*8192) for mt, nf in ALLT], 512, S_WS, 'sc1', hc=hc)
def epi_gu(A):
    A.s_mov_b32(s(G_T2), '0xbfb8aa3b'); A.s_mov_b32(s(G_T3), '0xbfb8aa3b')
    E = 32
    def pre(k):
        g, u = acc(k, 0), acc(k, 1)
        ops = [lambda i=i: A.v_pk_mul_f32(v(E+2*i, 2), v(g+2*i, 2), s(G_T2, 2)) for i in range(8)]
        ops += [lambda i=i: A.v_exp_f32(v(E+i), v(E+i)) for i in range(16)]
        ops += [lambda i=i: A.v_pk_mul_f32(v(g+2*i, 2), v(g+2*i, 2), v(u+2*i, 2)) for i in range(8)]
        ops += [lambda i=i: A.v_pk_add_f32(v(E+2*i, 2), v(E+2*i, 2), 1.0, m='op_sel_hi:[1,0]') for i in range(8)]
        ops += [lambda i=i: A.v_rcp_f32(v(E+i), v(E+i)) for i in range(16)]
        ops += [lambda i=i: A.v_pk_mul_f32(v(g+2*i, 2), v(g+2*i, 2), v(E+2*i, 2)) for i in range(8)]
        return ops
    epi_native(A, [(acc(mt, 0), mt*32*7168) for mt in range(4)], pre)
def epi_dn(A):
    A.v_lshlrev_b32(v(V_C), 4, v(V_LANE))
    for k, (mt, nf) in enumerate(ALLT):
        T = acc(mt, nf)
        for f in pack_ops(A, T): f()
        if k % 2 == 0: A.s_add_u32(s(G_T0), s(E_SC), k*2048)
        for hh in range(2):
            A.buffer_store_dwordx4(v(T+4*hh, 4), v(V_C), s(S_WS, 4), s(G_T0), m=f'offen offset:{(k % 2)*2048 + hh*1024} sc1')
def epi_op_loads(A):
    A.v_lshlrev_b32(v(V_T), 4, v(V_LANE)); A.v_and_b32(v(V_T+1), 31, v(V_LANE)); A.v_lshlrev_b32(v(V_T+1), 2, v(V_T+1))
    for mt in range(4): A.buffer_load_dword(v(24+mt), v(V_T+1), s(S_WS, 4), s(G_T3), m=f'offen offset:{mt*128} sc1')
    for k in range(8):
        if k % 2 == 0 and k: A.s_add_u32(s(G_T2), s(G_T2), 4096)
        for hh in range(2):
            A.buffer_load_dwordx4(v(32+8*k+4*hh, 4), v(V_T), s(S_WS, 4), s(G_T2), m=f'offen offset:{(k % 2)*2048 + hh*1024} sc1')
def epi_op(A):
    store_lane(A, stride_shift=11)
    E = 96
    A.wait(vm=0)
    def pre(k):
        mt, T, B = k // 2, ACC + 16*k, 32 + 8*k
        ops = []
        for i in range(8):
            ops.append(lambda i=i: A.v_lshlrev_b32(v(E+2*i), 16, v(B+i)))
            ops.append(lambda i=i: A.v_and_b32(v(E+2*i+1), '0xffff0000', v(B+i)))
        ops += [lambda i=i: A.v_pk_add_f32(v(T+2*i, 2), v(T+2*i, 2), v(E+2*i, 2), m='neg_lo:[0,1] neg_hi:[0,1]') for i in range(8)]
        sel = 'op_sel:[0,1,0] op_sel_hi:[1,1,1]' if mt % 2 else 'op_sel_hi:[1,0,1]'
        ops += [lambda i=i: A.v_pk_fma_f32(v(T+2*i, 2), v(T+2*i, 2), v(24 + (mt & 2), 2), v(E+2*i, 2), m=sel) for i in range(8)]
        return ops
    epi_tiles(A, [(acc(mt, nf), mt*32*2048 + nf*256) for mt, nf in ALLT], 16*2048, SRD_C, '', pre)
```

```python
import sys
from asmlib import *
from layout import *
import chain
from chain import S_WS, S_DBG, S_X, S_H, S_W, S_TO, ptr, srd, load_ptrs, chain_setup, chain_loop
from gemm import *
from tasks import *

C0, C1, C2, C3, C4, C5 = 94, 95, 96, 97, 98, 99
CV = 120
K_EXIT, K_FB = 0xFFFF, 0x10000
POISON = 16
S0 = 48
NG = 2
ORD = 1
ORDS = {
 10: 'K0-15 G8-15 D1 Q0-3 G0-7 Q4-5 A0-1 D0 A2-4 Q6 O0 O1 Q7 S0 A5-7',
 11: 'K0-15 G8-15 D1 Q0-3 G0-7 Q4-5 A0-3 D0 O0 Q6-7 A4 S0 O1 A5-7',
 12: 'K0-15 G8-15 Q0-1 D1 Q2-3 G0-7 Q4-5 A0-3 D0 O0 A4 Q6-7 O1 S0 A5-7',
 13: 'K0-15 G8-15 Q0-3 D1 G0-7 Q4-5 A0-3 D0 O0 A4 Q6-7 O1 S0 A5-7',
 14: 'K0-15 Q0-3 G8-15 A0-1 D1 G0-7 A2-3 Q4-5 O0 D0 A4 Q6-7 O1 S0 A5-7',
 15: 'K0-15 Q0-3 G8-15 G0-1 D1 G2-7 A0-3 Q4-5 O0 D0 A4 Q6-7 O1 S0 A5-7',
 16: 'K0-15 G0-15 D1 Q0-3 D0 Q4-5 A0-3 O0 Q6-7 A4 O1 S0 A5-7',
 18: 'K0-15 G8-15 Q0-1 D1 Q2-3 G0-7 Q4-5 A0-3 D0 O0 A4 Q6-7 S0 O1 A5-7',
 19: 'K0-15 Q0-3 G8-15 A0-1 D1 G0-7 A2-3 Q4-5 O0 D0 A4 Q6-7 S0 O1 A5-7',
 20: 'K0-15 G0-15 D1 Q0-3 D0 Q4-5 A0-3 O0 Q6-7 A4 S0 O1 A5-7',
 21: 'K0-15 G8-15 D1 Q0-5 G0-7 A0-3 D0 O0 Q6-7 A4 S0 O1 A5-7',
 17: 'K0-15 G8-15 G0-3 D1 G4-7 Q0-5 D0 A0-3 O0 Q6-7 A4 O1 S0 A5-7',
}
def order():
    k = (S0 + 7) // 8
    if ORD in ORDS:
        r_ = []
        for tok in ORDS[ORD].split():
            ty = {'K': 'KV', 'G': 'GU', 'D': 'DN', 'Q': 'Q', 'A': 'AT', 'O': 'OP', 'S': 'OPS'}[tok[0]]
            lo, hi = (tok[1:].split('-') + [tok[1:]])[:2]
            if ty == 'OPS': lo, hi = 0, NG - 1
            if ty == 'OP' and lo == '1' and S0 <= 32: continue
            r_.append((ty, int(lo), int(hi) - int(lo) + 1))
        for ty, n in (('KV', 16), ('GU', 16), ('DN', 2), ('Q', 8), ('AT', 8)):
            assert sorted(f + i for t_, f, c in r_ if t_ == ty for i in range(c)) == list(range(n)), ty
        return r_
    if ORD == 0: return [('KV', 0, 16), ('GU', 0, 16), ('DN', 0, 2), ('Q', 0, 8), ('AT', 0, 4), ('OP', 0, 1), ('AT', 4, S0//8 - 4), ('OP', 1, 1), ('AT', S0//8, 8 - S0//8), ('OPS', 0, NG)]
    if ORD == 1: return [('KV', 0, 16), ('GU', 0, 16), ('DN', 0, 2), ('Q', 0, 8), ('AT', 0, 4), ('OP', 0, 1), ('AT', 4, max(k, 5) - 4), ('OPS', 0, NG), ('OP', 1, int(S0 > 32)), ('AT', max(k, 5), 8 - max(k, 5))]
    if ORD == 2: return [('KV', 0, 16), ('GU', 0, 16), ('DN', 0, 2), ('Q', 0, 8), ('AT', 0, 4), ('OP', 0, 1), ('AT', 4, 1), ('OPS', 0, NG), ('OP', 1, int(S0 > 32)), ('AT', 5, 3)]
    tl = [('AT', 4, max(k, 5) - 4), ('OPS', 0, NG), ('OP', 1, int(S0 > 32)), ('AT', max(k, 5), (chain.PAR['sp0'] + 7)//8 - max(k, 5)), ('AX', chain.PAR['sp0']//4, 16 - chain.PAR['sp0']//4)]
    if ORD == 3: return ([('KV', 0, 4), ('KH', 0, 1), ('KV', 4, 12)] if XP.get('kh', 1) else [('KV', 0, 16)]) + [('GU', 8, 8), ('DN', 1, 1), ('Q', 0, 4), ('GU', 0, 8), ('AT', 0, 4), ('Q', 4, 2), ('DN', 0, 1), ('OP', 0, 1), ('Q', 6, 2)] + tl
    if ORD == 4: return [('KV', 0, 16), ('GU', 8, 8), ('DN', 1, 1), ('GU', 0, 8), ('Q', 0, 4), ('DN', 0, 1), ('AT', 0, 4), ('Q', 4, 2), ('OP', 0, 1), ('Q', 6, 2)] + tl
    if ORD == 5: return [('KV', 0, 16), ('GU', 8, 8), ('DN', 1, 1), ('Q', 0, 4), ('GU', 0, 8), ('AT', 0, 2), ('Q', 4, 2), ('AT', 2, 2), ('DN', 0, 1), ('OP', 0, 1), ('Q', 6, 2)] + tl
    if ORD == 6: return [('KV', 0, 16), ('GU', 8, 8), ('Q', 0, 2), ('DN', 1, 1), ('Q', 2, 2), ('GU', 0, 8), ('AT', 0, 3), ('Q', 4, 2), ('AT', 3, 1), ('DN', 0, 1), ('OP', 0, 1), ('Q', 6, 2)] + tl
OPTS = set()

def header(launch_lines):
    ref = open('cdna_kernels/%s.s.ref' % KNAME).read().split('\n')
    hd = [l for l in ref if l.startswith(';') and '@launch' not in l]
    return '\n'.join(hd + launch_lines) + '\n.amdgcn_target "amdgcn-amd-amdhsa--gfx950"\n.text\n'
def kernel_wrap(name, body, vgpr=512, accum=256):
    return (f".globl {name}\n.p2align 8\n.type {name},@function\n{name}:\n" + body,
            f".p2align 6\n.amdhsa_kernel {name}\n  .amdhsa_next_free_vgpr {vgpr}\n  .amdhsa_next_free_sgpr 102\n  .amdhsa_accum_offset {accum}\n"
            f"  .amdhsa_group_segment_fixed_size 0\n  .amdhsa_kernarg_size 120\n  .amdhsa_user_sgpr_count 2\n  .amdhsa_user_sgpr_kernarg_segment_ptr 1\n"
            f"  .amdhsa_system_sgpr_workgroup_id_x 1\n.end_amdhsa_kernel\n")

def stamp(A, d):
    if 'log' in OPTS:
        A.s_memrealtime(s(12, 2)); A.wait(lgkm=0); A.s_mov_b32(s(d), s(12))
        if d in (22, 23):
            A.s_memtime(s(12, 2)); A.wait(lgkm=0)
            if d == 22: A.s_mov_b32(s(100), s(12))
            else: A.s_sub_u32(s(101), s(12), s(100))
def att(A, dw, mb=None):
    if 'tt' not in OPTS: return
    reg = {57: 21, 58: 22, 59: 23, 60: 21, 61: 22, 62: 23, 36: 15, 37: 15, 56: 23, 63: 23}[dw]
    A.s_memrealtime(s(12, 2)); A.wait(lgkm=0); A.s_mov_b32(s(reg), s(12))
    fl = {59: [(57, 21), (58, 22), (59, 23)], 62: [(60, 21), (61, 22), (62, 23), (37, 15)], 56: [(56, 23)], 63: [(63, 23)]}.get(dw)
    if fl:
        sk = A.newlabel('att')
        if mb is not None: A.s_cmp_lg_u32(s(G_MB), mb); A.s_cbranch_scc1(sk)
        A.s_cmp_lg_u32(s(S_W), 1); A.s_cbranch_scc1(sk)
        A.wait(vm=0)
        if dw == 59: A.s_memrealtime(s(12, 2)); A.wait(lgkm=0); A.s_mov_b32(s(15), s(12)); fl = fl + [(36, 15)]
        for i, (d_, r_) in enumerate(fl): A.s_mov_b32(s(12), 4*d_); A.v_writelane_b32(v(CV), s(r_), i); A.v_writelane_b32(v(CV+1), s(12), i)
        A.s_mov_b64('exec', (1 << len(fl)) - 1)
        A.buffer_atomic_umax(v(CV), v(CV+1), s(S_DBG, 4), 0, m='offen sc1').nochk = True
        A.s_mov_b64('exec', -1)
        A.label(sk)
S_WG = 63
def rts(A, k):
    if 'log' in OPTS:
        A.s_memrealtime(s(C4, 2)); A.wait(lgkm=0); A.v_mov_b32(v(CV), s(C4)); A.v_mov_b32(v(CV+1), 0); A.s_mov_b64('exec', 1)
        A.buffer_store_dword(v(CV), v(CV+1), s(S_WS, 4), s(S_WG), m=f'offen offset:{4*k}'); A.s_mov_b64('exec', -1)
def only_w0(A):
    sk = A.newlabel('w0'); A.s_cmp_lg_u32(s(S_W), 0); A.s_cbranch_scc1(sk); return sk
def dbg_atomic(A, dw, soff=0, ret=True, val=1):
    A.v_mov_b32(v(CV), val); A.v_mov_b32(v(CV+1), 0)
    A.s_mov_b64('exec', 1)
    A.buffer_atomic_add(v(CV), v(CV+1), s(S_DBG, 4), soff, m=f'offen offset:{dw*4} ' + ('sc0 sc1' if ret else 'sc1'))
    A.s_mov_b64('exec', -1)
    if ret: A.wait(vm=0); A.v_readfirstlane_b32(s(C0), v(CV))
def bcast(A, sk, tail=True):
    A.v_mov_b32(v(CV), s(C0)); A.v_mov_b32(v(CV+1), L_MISC)
    A.ds_write_b32(v(CV+1), v(CV)); A.wait(lgkm=0)
    A.label(sk)
    A.s_barrier()
    A.v_mov_b32(v(CV+1), L_MISC); A.ds_read_b32(v(CV), v(CV+1)); A.wait(lgkm=0)
    A.v_readfirstlane_b32(s(C0), v(CV))
    if tail: A.s_barrier()
def guard(A, retry, out):
    A.s_sub_u32(s(S_TO), s(S_TO), 1); A.s_cbranch_scc0(retry)
    A.v_mov_b32(v(CV), '0xdead'); A.v_mov_b32(v(CV+1), 0)
    A.buffer_store_dword(v(CV), v(CV+1), s(S_DBG, 4), 0, m=f'offen offset:{D_ABORT*4} sc1')
    A.s_mov_b32(s(S_TO), 0); A.s_mov_b32(s(C0), K_EXIT); A.s_branch(out)
def ensure_init(A, out):
    ok, lp = A.newlabel('ini'), A.newlabel('inl')
    A.s_bitcmp1_b32(s(S_INIT), 0); A.s_cbranch_scc1(ok)
    A.v_mov_b32(v(CV+1), 0)
    A.label(lp)
    A.buffer_load_dword(v(CV), v(CV+1), s(S_DBG, 4), 0, m=f'offen offset:{D_INIT*4} sc1')
    A.wait(vm=0); A.v_readfirstlane_b32(s(C1), v(CV)); A.s_or_b32(s(S_INIT), s(S_INIT), s(C1))
    A.s_bitcmp1_b32(s(S_INIT), 0); A.s_cbranch_scc1(ok)
    A.s_sleep(2)
    guard(A, lp, out)
    A.label(ok)
def take_fb(A, out, cont):
    dbg_atomic(A, D_FBT)
    A.s_or_b32(s(S_INIT), s(S_INIT), 2)
    A.s_cmp_ge_u32(s(C0), 64); A.s_cbranch_scc1(cont)
    A.s_or_b32(s(C0), s(C0), K_FB); A.s_branch(out)
def settled(A, r_):
    A.s_and_b32(s(C0), s(r_), 0x100ff); A.s_cmp_eq_u32(s(C0), 65); A.s_cselect_b32(s(C0), 2, 0); A.s_or_b32(s(S_INIT), s(S_INIT), s(C0))
def dep_wait(A, setup, special):
    sk = only_w0(A)
    out, lp, sl = A.newlabel('dwo'), A.newlabel('dwl'), A.newlabel('dws')
    ensure_init(A, out)
    setup()
    A.v_mov_b32(v(CV+6), 0)
    A.label(lp)
    nr = A.newlabel('dwn')
    A.buffer_load_dword(v(CV+4), v(CV+2), s(S_WS, 4), 0, m='offen sc1')
    A.s_bitcmp1_b32(s(S_INIT), 1); A.s_cbranch_scc1(nr)
    A.buffer_load_dword(v(CV+5), v(CV+6), s(S_DBG, 4), 0, m=f'offen offset:{D_READY*4} sc1')
    A.label(nr)
    A.wait(vm=0)
    A.s_mov_b32(s(C0), 0)
    A.v_cmp_lt_i32('vcc', v(CV+4), v(CV+3)); A.s_cbranch_vccz(out)
    A.s_bitcmp1_b32(s(S_INIT), 1); A.s_cbranch_scc1(sl)
    A.v_readfirstlane_b32(s(C1), v(CV+5))
    settled(A, C1)
    A.s_bitcmp0_b32(s(C1), POISON); A.s_cbranch_scc1(sl)
    take_fb(A, out, sl)
    A.label(sl)
    A.s_sleep(4)
    guard(A, lp, out)
    A.label(out)
    bcast(A, sk)
    A.s_cmp_lg_u32(s(C0), 0); A.s_cbranch_scc1(special)
def cnt_addr(t): return WS_CTL + C_CNT + t*2048
def dep_cnt(A, t, target):
    def f():
        A.s_lshl_b32(s(C2), s(G_MB), 7); A.s_add_u32(s(C2), s(C2), cnt_addr(t))
        A.v_mov_b32(v(CV+2), s(C2)); A.v_mov_b32(v(CV+3), target)
    return f

def status_ld(A):
    A.s_lshl_b32(s(C1), s(S_XCC), 2); A.v_mov_b32(v(CV+1), 0)
    A.s_mov_b64('exec', 1)
    A.buffer_load_dwordx4(v(CV+4, 4), v(CV+1), s(S_DBG, 4), 0, m=f'offen offset:{D_READY*4} sc1').nochk = True
    A.buffer_load_dword(v(CV+2), v(CV+1), s(S_DBG, 4), s(C1), m=f'offen offset:{D_LH*4} sc1').nochk = True
    A.s_mov_b64('exec', -1)
def status_rd(A):
    A.v_readfirstlane_b32(s(C5), v(CV+4)); A.v_readfirstlane_b32(s(C1), v(CV+7)); A.v_readfirstlane_b32(s(C0), v(CV+2))
    A.s_or_b32(s(S_INIT), s(S_INIT), s(C1))
    A.s_cmp_ge_u32(s(C0), 32); A.s_cselect_b32(s(C0), 16, 0); A.s_or_b32(s(S_INIT), s(S_INIT), s(C0))
    settled(A, C5)
def ticket(A):
    A.s_lshl_b32(s(C1), s(S_XCC), 7); A.s_add_u32(s(C1), s(C1), WS_CTL + C_HEAD)
    A.v_mov_b32(v(CV), 1); A.v_mov_b32(v(CV+1), 0)
    A.s_mov_b64('exec', 1)
    A.buffer_atomic_add(v(CV), v(CV+1), s(S_WS, 4), s(C1), m='offen sc0 sc1').nochk = True
    A.s_mov_b64('exec', -1)
def tab_addr(A):
    A.s_lshl_b32(s(C4), s(S_XCC), 7); A.s_add_u32(s(C4), s(C4), s(C3)); A.s_lshl_b32(s(C4), s(C4), 2); A.s_add_u32(s(C4), s(C4), WS_CTL + C_TAB)
def ws_srd(A, d):
    A.s_mov_b32(s(d), s(ptr(P_WS))); A.s_mov_b32(s(d+1), s(ptr(P_WS)+1)); A.s_mov_b32(s(d+2), hex(WS_SIZE)); A.s_mov_b32(s(d+3), '0x20000')

def build():
    A = Asm()
    END, NEXT, DECODE, SPECIAL, DONE, CABORT = '.end', '.next', '.decode', '.special', '.done', '.cabort'
    GEMM, GEMMV, CHAINP, CHAINF, CDONE = '.gemm', '.gemmv', '.chainp', '.chainf', '.cdone'
    A.s_cmp_ge_u32(s(2), 256); A.s_cbranch_scc1('.end0')
    load_ptrs(A)
    if 'log' in OPTS: A.s_lshl_b32(s(S_WG), s(2), 6); A.s_add_u32(s(S_WG), s(S_WG), WS_TIM + 0x10000)
    A.v_lshrrev_b32(v(1), 6, v(0)); A.v_readfirstlane_b32(s(S_W), v(1))
    A.s_getreg_b32(s(S_XCC), 'hwreg(HW_REG_XCC_ID, 0, 3)')
    A.s_mov_b32(s(S_TO), 1 << 17); A.s_mov_b32(s(S_INIT), 0); A.s_mov_b32(s(S_TASK), -1)
    A.wait(lgkm=0)
    srd(A, S_WS, P_WS, WS_SIZE); srd(A, S_DBG, P_DBG, 256)
    if 'tim' in OPTS: A.s_memrealtime(s(100, 2))
    rts(A, 0)
    if 'nochain' not in OPTS:
        A.s_cmp_gt_u32(s(S_XCC), 0 if 'forcefb' in OPTS else 1); A.s_cbranch_scc1(NEXT)
        sk = only_w0(A)
        A.s_lshl_b32(s(C1), s(S_XCC), 2)
        dbg_atomic(A, D_CNT0, s(C1))
        bcast(A, sk)
        A.s_cmp_lt_u32(s(C0), 32); A.s_cbranch_scc1(CHAINP)
    A.label(NEXT)
    if 'chainonly' in OPTS: A.s_branch(END)
    A.s_sub_u32(s(S_TO), s(S_TO), 32); A.s_cbranch_scc1(END)
    if 'log' in OPTS:
        nl = A.newlabel('nl')
        A.s_cmp_lg_u32(s(S_W), 0); A.s_cbranch_scc1(nl)
        A.s_cmp_ge_u32(s(S_TASK), 2048); A.s_cbranch_scc1(nl)
        A.s_memrealtime(s(C0, 2)); A.wait(lgkm=0)
        A.v_mov_b32(v(CV+4), s(21)); A.v_mov_b32(v(CV+5), s(22)); A.v_mov_b32(v(CV+6), s(23)); A.v_mov_b32(v(CV+7), s(C0))
        A.v_mov_b32(v(CV), s(S_XCC)); A.v_mov_b32(v(CV+1), s(14)); A.v_mov_b32(v(CV+2), s(15)); A.v_mov_b32(v(CV+3), s(101)); A.v_mov_b32(v(112), 0)
        A.s_lshl_b32(s(C0), s(S_TASK), 5); A.s_add_u32(s(C0), s(C0), WS_TIM)
        A.s_mov_b64('exec', 1)
        A.buffer_store_dwordx4(v(CV+4, 4), v(112), s(S_WS, 4), s(C0), m='offen')
        A.buffer_store_dwordx4(v(CV, 4), v(112), s(S_WS, 4), s(C0), m='offen offset:16')
        A.s_mov_b64('exec', -1)
        A.label(nl)
        stamp(A, 14)
    sk = only_w0(A)
    out, lead, got, lp = A.newlabel('dqo'), A.newlabel('dqlead'), A.newlabel('dqgot'), A.newlabel('dql')
    pre, tk, t2, t3 = A.newlabel('dqp'), A.newlabel('dqt'), A.newlabel('dqs'), A.newlabel('dqu')
    A.s_mov_b32(s(C0), K_EXIT); A.s_bitcmp1_b32(s(S_INIT), 5); A.s_cbranch_scc1(out)
    A.s_bitcmp1_b32(s(S_INIT), 2); A.s_cbranch_scc1(pre)
    A.s_bitcmp1_b32(s(S_INIT), 4); A.s_cbranch_scc1(t2)
    A.s_lshl_b32(s(C1), s(S_XCC), 2)
    A.v_mov_b32(v(CV), 1); A.v_mov_b32(v(CV+1), 0)
    A.s_mov_b64('exec', 1)
    A.buffer_atomic_add(v(CV), v(CV+1), s(S_DBG, 4), s(C1), m=f'offen offset:{D_LH*4} sc0 sc1')
    A.s_mov_b64('exec', -1)
    A.s_mov_b32(s(C5), 0)
    A.wait(vm=0)
    A.v_readfirstlane_b32(s(C2), v(CV))
    A.s_cmp_lt_u32(s(C2), 32); A.s_cbranch_scc1(tk)
    A.s_bitset1_b32(s(S_INIT), 4)
    A.label(t2)
    ensure_init(A, out)
    ticket(A)
    A.s_mov_b32(s(C5), 0)
    A.s_bitcmp1_b32(s(S_INIT), 1); A.s_cbranch_scc1(t3)
    status_ld(A); A.wait(vm=0); status_rd(A)
    A.label(t3)
    A.wait(vm=0)
    A.v_readfirstlane_b32(s(C2), v(CV)); A.s_add_u32(s(C2), s(C2), 32)
    A.label(tk)
    A.s_lshr_b32(s(C3), s(C2), 5); A.s_and_b32(s(C2), s(C2), 31)
    A.s_mov_b32(s(C0), K_EXIT); A.s_cmp_ge_u32(s(C3), 128); A.s_cbranch_scc1(out)
    tab_addr(A)
    A.s_bitcmp1_b32(s(S_INIT), 2); A.s_bitset0_b32(s(S_INIT), 2); A.s_cselect_b32(s(C1), 1, s(C2))
    A.s_cmp_eq_u32(s(C1), 0); A.s_cbranch_scc1(lead)
    A.v_mov_b32(v(CV+1), 0)
    A.label(lp)
    l0, l1 = A.newlabel('dq0'), A.newlabel('dq1')
    A.s_cmp_eq_u32(s(C3), 0); A.s_cbranch_scc1(l0)
    A.buffer_load_dword(v(CV), v(CV+1), s(S_WS, 4), s(C4), m='offen sc1'); A.s_branch(l1)
    A.label(l0)
    A.s_lshl_b32(s(C1), s(S_XCC), 2)
    A.buffer_load_dword(v(CV), v(CV+1), s(S_DBG, 4), s(C1), m=f'offen offset:{D_SLOT0*4} sc1')
    A.label(l1)
    A.wait(vm=0); A.v_readfirstlane_b32(s(C0), v(CV))
    A.s_sub_u32(s(C0), s(C0), 1); A.s_cbranch_scc0(got)
    if XP.get('slp', 4): A.s_sleep(XP.get('slp', 4))
    guard(A, lp, out)
    A.label(pre)
    A.s_mov_b32(s(C2), s(S_TICK)); A.s_mov_b32(s(C5), s(S_RDY))
    A.s_sub_u32(s(C0), s(S_NXT), 1); A.s_cbranch_scc1(tk)
    A.s_bitset0_b32(s(S_INIT), 2); A.s_and_b32(s(C2), s(C2), 31); A.s_branch(got)
    A.label(lead)
    dbg_atomic(A, D_GHEAD)
    A.s_add_u32(s(C1), s(C0), 1); A.v_mov_b32(v(CV), s(C1))
    l0 = A.newlabel('dq0')
    A.s_mov_b64('exec', 1)
    A.s_cmp_eq_u32(s(C3), 0); A.s_cbranch_scc1(l0)
    A.buffer_store_dword(v(CV), v(CV+1), s(S_WS, 4), s(C4), m='offen sc1'); A.s_mov_b64('exec', -1); A.s_branch(got)
    A.label(l0)
    A.s_lshl_b32(s(C1), s(S_XCC), 2)
    A.buffer_store_dword(v(CV), v(CV+1), s(S_DBG, 4), s(C1), m=f'offen offset:{D_SLOT0*4} sc1'); A.s_mov_b64('exec', -1)
    A.label(got)
    A.s_min_u32(s(C0), s(C0), 1023)
    A.s_lshl_b32(s(C0), s(C0), 5); A.s_or_b32(s(C0), s(C0), s(C2))
    A.s_bitcmp0_b32(s(C5), POISON); A.s_cbranch_scc1(out)
    A.s_bitcmp1_b32(s(S_INIT), 1); A.s_cbranch_scc1(out)
    A.s_cmp_lt_u32(s(C0), 16*32); A.s_cbranch_scc1(out)
    A.s_mov_b32(s(C5), s(C0))
    back = A.newlabel('dqb')
    dbg_atomic(A, D_FBT)
    A.s_or_b32(s(S_INIT), s(S_INIT), 2)
    A.s_cmp_ge_u32(s(C0), 64); A.s_cbranch_scc1(back)
    A.s_lshl_b32(s(C0), s(C0), 17); A.s_or_b32(s(C0), s(C0), K_FB); A.s_or_b32(s(C0), s(C0), s(C5)); A.s_branch(out)
    A.label(back); A.s_mov_b32(s(C0), s(C5))
    A.label(out)
    bcast(A, sk)
    A.s_and_b32(s(S_TASK), s(C0), 0xFFFF)
    dec0 = A.newlabel('dec0')
    A.s_bitcmp0_b32(s(C0), 16); A.s_cbranch_scc1(DECODE)
    A.s_lshr_b32(s(C0), s(C0), 17); A.s_branch(CHAINF)
    A.label(SPECIAL)
    A.s_bitcmp0_b32(s(C0), 16); A.s_cbranch_scc1(END)
    A.s_and_b32(s(C0), s(C0), 63); A.s_branch(CHAINF)
    A.label(DECODE)
    stamp(A, 21); stamp(A, 22); stamp(A, 23); stamp(A, 15)
    A.s_lshr_b32(s(C0), s(S_TASK), 5); A.s_and_b32(s(C1), s(S_TASK), 31)
    TL = {n: A.newlabel('t' + n) for n in ('KV', 'GU', 'DN', 'Q', 'AT', 'OP', 'OPS', 'AX', 'KH')}
    tKV, tGU, tDN, tQ, tAT, tOP, tOPS, tAX, tKH = TL.values()
    pos = 0
    A.s_mov_b32(s(C2), s(C0))
    for ty, first, cnt in order():
        if not cnt: continue
        A.s_sub_u32(s(C0), s(C2), pos - first)
        pos += cnt
        A.s_cmp_lt_u32(s(C2), pos); A.s_cbranch_scc1(TL[ty])
    A.label(END)
    rts(A, 5); A.wait(vm=0); att(A, 63)
    if 'tim' in OPTS:
        A.s_cmp_lg_u32(s(S_W), 0); A.s_cbranch_scc1('.end0')
        A.s_memrealtime(s(C0, 2)); A.wait(lgkm=0); A.s_sub_u32(s(C0), s(C0), s(100))
        A.v_mov_b32(v(CV), s(C0)); A.v_mov_b32(v(CV+1), 0); A.s_mov_b64('exec', 1)
        A.buffer_atomic_umax(v(CV), v(CV+1), s(S_DBG, 4), 0, m=f'offen offset:{28 if "timd" in OPTS else 128} sc1'); A.wait(vm=0)
    A.label('.end0')
    A.s_endpgm()

    def x_operand():
        srd(A, SRD_A, P_X, 2048*2048); A.s_lshl_b32(s(G_SA), s(G_MB), 18); A.s_mov_b32(s(G_STA), 2048); A.s_mov_b32(s(G_N), 16); A.s_mov_b32(s(G_ASTEP), 128)
    def b_operand(p, nbytes, stride, ntreg):
        srd(A, SRD_B0, p, nbytes); srd(A, SRD_B1, p, nbytes)
        A.s_lshl_b32(s(G_SB0), s(ntreg), 9); A.s_add_u32(s(G_SB1), s(G_SB0), 256)
        A.s_mov_b32(s(G_STB), stride); A.s_mov_b32(s(G_BSTEP), 64*stride)
    def set_cnt(t): A.s_lshl_b32(s(G_CNT), s(G_MB), 7); A.s_add_u32(s(G_CNT), s(G_CNT), cnt_addr(t))
    def mb_nt(qshift, mul, tr=False):
        if tr: A.s_lshr_b32(s(C2), s(C1), 3); A.s_and_b32(s(C1), s(C1), 7); A.s_lshl_b32(s(C1), s(C1), 2); A.s_add_u32(s(C1), s(C1), s(C2))
        A.s_lshr_b32(s(G_MB), s(C0), qshift); A.s_lshl_b32(s(G_MB), s(G_MB), 2); A.s_and_b32(s(C2), s(C1), 3); A.s_add_u32(s(G_MB), s(G_MB), s(C2))
        A.s_and_b32(s(C3), s(C0), (1 << qshift) - 1); A.s_mul_i32(s(G_NT), s(C3), mul); A.s_lshr_b32(s(C2), s(C1), 2); A.s_add_u32(s(G_NT), s(G_NT), s(C2))
    A.label(tKV)
    noz = A.newlabel('noz')
    A.s_cmp_lg_u32(s(S_TASK), 0); A.s_cbranch_scc1(noz)
    lane_id(A, CV); A.s_lshl_b32(s(C2), s(S_W), 10); A.v_lshlrev_b32(v(CV), 4, v(CV)); A.v_add_u32(v(CV), s(C2), v(CV))
    A.v_mov_b64(v(CV+4, 2), 0); A.v_mov_b64(v(CV+6, 2), 0)
    KH = XP.get('kh', 1)
    for i in list(range(1, CTL_BYTES // 4096)) + [0]:
        if i == 0 and KH:
            assert cnt_addr(T_KV) == WS_CTL
            A.v_mov_b64(v(CV-4, 2), 0); A.v_mov_b64(v(CV-2, 2), 0); A.v_mov_b32(v(CV+1), -32)
            A.v_cmp_eq_u32('vcc', 0, v(CV)); A.v_cndmask_b32(v(CV-4), v(CV-4), v(CV+1), 'vcc')
            A.s_mov_b32(s(C2), WS_CTL)
            A.buffer_store_dwordx4(v(CV-4, 4), v(CV), s(S_WS, 4), s(C2), m='offen sc1'); continue
        A.s_mov_b32(s(C2), WS_CTL + i*4096)
        A.buffer_store_dwordx4(v(CV+4, 4), v(CV), s(S_WS, 4), s(C2), m='offen sc1')
    if 'nochain' in OPTS:
        A.wait(vm=0); A.s_barrier()
        A.v_mov_b32(v(CV+4), 64); A.v_lshlrev_b32(v(CV), 3, v(CV)); A.s_mov_b32(s(C2), WS_CTL + C_PROG)
        q = only_w0(A)
        A.buffer_store_dword(v(CV+4), v(CV), s(S_WS, 4), s(C2), m='offen sc1')
        A.label(q)
    A.wait(vm=0); A.s_barrier()
    q = only_w0(A); dbg_atomic(A, D_INIT, ret=False); A.label(q)
    A.label(noz)
    if XP.get('sw0', 1):
        A.s_and_b32(s(C2), s(S_TASK), ~8); A.s_cselect_b32(s(C2), 0, 8); A.s_xor_b32(s(C1), s(C1), s(C2))
    mb_nt(2, 8, not XP.get('notr'))
    kvj = A.newlabel('kvj')
    A.s_and_b32(s(C5), s(C1), 0)
    A.label(kvj)
    x_operand(); set_cnt(T_KV)
    def half():
        if not KH: return
        A.s_add_u32(s(G_SB0), s(G_SB0), s(C5)); A.s_lshl_b32(s(C5), s(C5), 5); A.s_add_u32(s(G_SC), s(G_SC), s(C5))
        A.s_cmp_eq_u32(s(G_MB), 0); A.s_cmov_b32(s(SRD_B1+2), 0)
    def kv_pf():
        NPF = XP.get('npf', 0)
        if not NPF: return
        sk_ = A.newlabel('kpf')
        A.s_cmp_ge_u32(s(S_TASK), NPF*32); A.s_cbranch_scc1(sk_)
        lane_id(A, CV)
        A.s_and_b32(s(C2), s(G_MB), 3); A.s_lshl2_add_u32(s(C2), s(C2), s(S_W)); A.s_lshl_b32(s(C2), s(C2), 17); A.s_add_u32(s(C2), s(C2), s(G_SB0))
        A.v_and_b32(v(CV+1), 3, v(CV)); A.v_lshlrev_b32(v(CV+1), 7, v(CV+1)); A.v_lshrrev_b32(v(CV+2), 2, v(CV)); A.v_lshl_add_u32(v(CV+1), v(CV+2), 13, v(CV+1))
        A.s_and_b32(s(C3), s(G_NT), 7); A.s_lshl2_add_u32(s(C3), s(C3), s(S_W)); A.s_lshl_b32(s(C3), s(C3), 13); A.s_add_u32(s(C3), s(C3), s(G_SA))
        A.v_and_b32(v(CV+3), 15, v(CV)); A.v_lshlrev_b32(v(CV+3), 7, v(CV+3)); A.v_lshrrev_b32(v(CV+2), 4, v(CV)); A.v_lshl_add_u32(v(CV+3), v(CV+2), 11, v(CV+3))
        for t in range(XP.get('pft', 4)):
            A.buffer_load_dword(v(96+t), v(CV+1), s(SRD_B0, 4), s(C2), m='offen').nochk = True
            if t == 0: A.buffer_load_dword(v(100), v(CV+3), s(SRD_A, 4), s(C3), m='offen').nochk = True
            A.s_add_u32(s(C2), s(C2), 1 << 21)
        A.label(sk_)
    tV = A.newlabel('tv')
    A.s_cmp_ge_u32(s(G_NT), 16); A.s_cbranch_scc1(tV)
    def kv_base(base):
        A.s_lshl_b32(s(G_SC), s(G_MB), 20); A.s_lshl_b32(s(C2), s(G_NT), 14); A.s_add_u32(s(G_SC), s(G_SC), s(C2))
        A.s_lshl_b32(s(C2), s(S_W), 11); A.s_add_u32(s(G_SC), s(G_SC), s(C2)); A.s_add_u32(s(G_SC), s(G_SC), base)
    b_operand(P_WK, 1024*8192, 8192, G_NT); kv_pf(); kv_base(WS_KX); half(); A.s_mov_b32(s(G_EPI), 1); A.s_branch(GEMM)
    A.label(tV)
    A.s_sub_u32(s(G_NT), s(G_NT), 16)
    b_operand(P_WV, 1024*8192, 8192, G_NT); kv_pf()
    kv_base(WS_VT); half()
    A.s_and_b32(s(G_EPI), s(G_N), 0); A.s_add_u32(s(G_EPI), s(G_EPI), 5); A.s_branch(GEMM)
    A.label(tKH)
    A.s_mov_b32(s(G_NT), s(C1)); A.s_and_b32(s(G_MB), s(C1), 0); A.s_or_b32(s(C5), s(G_MB), 256); A.s_branch(kvj)
    A.label(tQ)
    mb_nt(1, 8); x_operand(); set_cnt(T_Q)
    b_operand(P_WQ, 1024*8192, 8192, G_NT); kv_base(WS_QX); A.s_mov_b32(s(G_EPI), 0); A.s_branch(GEMM)
    A.label(tGU)
    tG = A.newlabel('tg')
    mb_nt(2, 7)
    A.s_cmp_ge_u32(s(C1), 28); A.s_cbranch_scc1(tG)
    x_operand(); set_cnt(T_GU)
    srd(A, SRD_B0, P_WG, 1024*7168); srd(A, SRD_B1, P_WU, 1024*7168)
    A.s_lshl_b32(s(G_SB0), s(G_NT), 8); A.s_mov_b32(s(G_SB1), s(G_SB0)); A.s_mov_b32(s(G_STB), 7168); A.s_mov_b32(s(G_BSTEP), 64*7168)
    A.s_mul_i32(s(G_SC), s(G_MB), 128*7168); A.s_lshl_b32(s(C2), s(G_NT), 13); A.s_add_u32(s(G_SC), s(G_SC), s(C2))
    A.s_lshl_b32(s(C2), s(S_W), 11); A.s_add_u32(s(G_SC), s(G_SC), s(C2)); A.s_add_u32(s(G_SC), s(G_SC), WS_H)
    A.s_mov_b32(s(G_EPI), 2); A.s_branch(GEMM)
    A.label(tG)
    A.s_cmp_lg_u32(s(C3), 0); A.s_cbranch_scc1(NEXT)
    set_cnt(T_DN); task_g(A); A.s_branch(DONE)
    A.label(tDN)
    A.s_lshl_b32(s(G_MB), s(C0), 3); A.s_and_b32(s(C2), s(C1), 7); A.s_add_u32(s(G_MB), s(G_MB), s(C2))
    A.s_lshr_b32(s(G_NT), s(C1), 3)
    dep_wait(A, dep_cnt(A, T_GU, 28), SPECIAL)
    set_cnt(T_DN)
    ws_srd(A, SRD_A); A.s_mul_i32(s(G_SA), s(G_MB), 128*7168); A.s_add_u32(s(G_SA), s(G_SA), WS_H); A.s_mov_b32(s(G_STA), 32*7168); A.s_mov_b32(s(G_N), 56); A.s_mov_b32(s(G_ASTEP), 4096)
    b_operand(P_WD, 3584*2048, 2048, G_NT)
    A.s_lshl_b32(s(G_SC), s(G_MB), 2); A.s_add_u32(s(G_SC), s(G_SC), s(G_NT)); A.s_lshl_b32(s(G_SC), s(G_SC), 2); A.s_add_u32(s(G_SC), s(G_SC), s(S_W))
    A.s_lshl_b32(s(G_SC), s(G_SC), 14); A.s_add_u32(s(G_SC), s(G_SC), WS_B)
    A.s_mov_b32(s(G_EPI), 3); A.s_branch(GEMM)
    TM_ = XP.get('tm', 63)
    SPA, SPO, SP0 = not XP.get('nospa'), not XP.get('nospo'), chain.PAR['sp0']
    def d_kvq():
        A.s_lshr_b32(s(C2), s(G_MB), 2); A.s_lshl_b32(s(C2), s(C2), 7); A.s_add_u32(s(C2), s(C2), cnt_addr(T_KV))
        lane_id(A, CV+3); A.v_and_b32(v(CV+3), 1, v(CV+3))
        A.v_lshlrev_b32(v(CV+2), 11, v(CV+3)); A.v_add_u32(v(CV+2), s(C2), v(CV+2))
        A.v_lshlrev_b32(v(CV+3), 4, v(CV+3)); A.v_sub_u32(v(CV+3), 32, v(CV+3))
        assert T_Q == T_KV + 1
    def d_prog(nh, d):
        def f():
            lane_id(A, CV+3)
            A.v_and_b32(v(CV+2), 1, v(CV+3)); A.v_lshlrev_b32(v(CV+2), 12, v(CV+2))
            A.v_bfe_u32(v(CV+3), v(CV+3), 1, 1 + nh); A.v_lshl_add_u32(v(CV+2), v(CV+3), 7, v(CV+2))
            A.s_lshl_b32(s(C2), s(G_NT), 8 + nh); A.s_add_u32(s(C2), s(C2), WS_CTL + C_PROG); A.v_add_u32(v(CV+2), s(C2), v(CV+2))
            A.s_add_u32(s(C2), s(G_MB), d); A.v_mov_b32(v(CV+3), s(C2))
        return f
    def probe(flag, mark, go):
        lp, acc_ = A.newlabel('prl'), A.newlabel('pra')
        NP = XP.get('np', 2)
        def ld(i): A.buffer_load_dword(v(CV+4+i % NP), v(CV+2), s(S_WS, 4), 0, m='offen sc1').nochk = True
        for i in range(NP - 1): ld(i)
        A.label(lp)
        for i in range(NP):
            rt = A.newlabel('prr')
            ld(i + NP - 1); A.wait(vm=NP - 1)
            flag(CV+4+i); A.s_cbranch_scc1(acc_)
            A.s_bitcmp0_b32(s(S_INIT), 6); A.s_cbranch_scc1(rt)
            mark(CV+4+i); A.s_cbranch_scc1(go)
            A.label(rt)
            if XP.get('ps'): A.s_sleep(XP['ps'])
        A.s_sub_u32(s(S_TO), s(S_TO), 1); A.s_cbranch_scc0(lp)
        A.s_branch(END)
        A.label(acc_); A.s_bitset0_b32(s(S_INIT), 6)
    A.label(tAT)
    A.s_lshl_b32(s(G_MB), s(C0), 3); A.s_lshr_b32(s(C2), s(C1), 2); A.s_add_u32(s(G_MB), s(G_MB), s(C2)); A.s_and_b32(s(G_NT), s(C1), 3)
    A.s_cmp_ge_u32(s(G_MB), SP0); A.s_cbranch_scc1(NEXT)
    set_cnt(T_AT)
    dep_wait(A, d_kvq, SPECIAL)
    stamp(A, 22); task_at_pre(A, None, 2)
    dep_wait(A, d_prog(2, 1), SPECIAL)
    att(A, 57, TM_); stamp(A, 23); task_at_post(A, None, 2); stamp(A, 15); att(A, 59, TM_); A.s_branch(DONE)
    A.label(tAX)
    A.s_lshr_b32(s(G_MB), s(C1), 3); A.s_lshl2_add_u32(s(G_MB), s(C0), s(G_MB)); A.s_and_b32(s(G_NT), s(C1), 7)
    A.s_cmp_lt_u32(s(G_MB), SP0); A.s_cbranch_scc1(NEXT)
    set_cnt(T_AT)
    dep_wait(A, d_kvq, SPECIAL)
    AG, APR, APO = A.newlabel('aag'), A.newlabel('apr'), A.newlabel('apo')
    stamp(A, 22); task_at_pre(A, AG, 1)
    A.s_bitcmp1_b32(s(S_INIT), 7); A.s_cbranch_scc1(APR)
    dep_wait(A, d_prog(1, -XP.get('spe', 1)), SPECIAL)
    A.v_lshlrev_b32(v(V_C), 4, v(V_LANE))
    for i in range(4): A.v_mov_b32(v(CV+i), -1)
    for i in range(8):
        if i % 4 == 0: A.s_add_u32(s(G_T0), s(E_SC), i*1024)
        A.buffer_store_dwordx4(v(CV, 4), v(V_C), s(S_WS, 4), s(G_T0), m=f'offen offset:{(i % 4)*1024} sc1')
    A.wait(vm=0); A.s_barrier()
    sk = only_w0(A)
    A.v_mov_b32(v(CV), 16); A.v_mov_b32(v(CV+1), 0)
    A.s_mov_b64('exec', 1)
    A.buffer_atomic_add(v(CV), v(CV+1), s(S_WS, 4), s(G_CNT), m='offen sc1')
    A.s_mov_b64('exec', -1)
    A.label(sk)
    if SPA: A.s_bitset1_b32(s(S_INIT), 6)
    DRY = XP.get('dry')
    if DRY: A.s_bitset1_b32(s(S_INIT), 8); A.s_branch(APO)
    A.label(APR)
    A.v_and_b32(v(CV+2), 15, v(V_LANE)); A.v_lshlrev_b32(v(CV+2), 9, v(CV+2)); A.s_add_u32(s(C2), s(G_BSTEP), 496); A.v_add_u32(v(CV+2), s(C2), v(CV+2))
    A.v_and_b32(v(CV+3), 1, v(V_LANE)); A.v_lshlrev_b32(v(CV+3), 12, v(CV+3))
    A.s_lshl_b32(s(C2), s(G_NT), 9); A.s_lshl_b32(s(C3), s(S_W), 7); A.s_add_u32(s(C2), s(C2), s(C3)); A.s_add_u32(s(C2), s(C2), WS_CTL + C_PROG)
    A.v_add_u32(v(CV+3), s(C2), v(CV+3))
    A.v_cmp_lt_u32('vcc', 31, v(V_LANE)); A.v_cndmask_b32(v(CV+2), v(CV+2), v(CV+3), 'vcc')
    probe(lambda r_: (A.v_cmp_ge_u32('vcc', s(G_MB), v(r_)), A.s_cmp_eq_u32('vcc_hi', 0)),
          lambda r_: (A.v_cmp_eq_u32('vcc', -1, v(r_)), A.s_cmp_eq_u32('vcc_lo', 0)), APO)
    A.label(APO)
    def at_check():
        ok, dr = A.newlabel('aok'), A.newlabel('adr')
        if DRY: A.s_bitcmp1_b32(s(S_INIT), 8); A.s_cselect_b64('exec', 0, -1); A.s_cbranch_scc1(dr)
        A.s_bitcmp0_b32(s(S_INIT), 6); A.s_cbranch_scc1(ok)
        A.v_add_f32(v(96), v(96), v(114)); A.v_pk_add_f32(v(96, 2), v(96, 2), v(98, 2))
        A.v_cmp_u_f32('vcc', v(96), v(97)); A.s_cbranch_vccz(ok)
        A.s_bitset0_b32(s(S_INIT), 6); A.s_bitset1_b32(s(S_INIT), 7); A.s_branch(AG)
        A.label(ok); A.s_and_b32(s(S_INIT), s(S_INIT), 63); att(A, 58, TM_); A.label(dr)
    att(A, 57, TM_); stamp(A, 23); task_at_post(A, at_check, 1)
    if DRY:
        nd = A.newlabel('and')
        A.s_bitcmp0_b32(s(S_INIT), 8); A.s_cbranch_scc1(nd)
        A.s_mov_b64('exec', -1); A.s_xor_b32(s(S_INIT), s(S_INIT), 384); A.s_branch(AG)
        A.label(nd)
    stamp(A, 15); att(A, 59, TM_); A.s_branch(DONE)
    A.label(tOPS)
    A.s_mov_b32(s(G_NT), s(C1)); A.s_add_u32(s(G_MB), s(C0), S0)
    task_ops_pre(A)
    stamp(A, 22)
    opl = A.newlabel('opsl'); A.label(opl)
    def d_ops():
        lane_id(A, CV+3); A.v_and_b32(v(CV+3), 1, v(CV+3))
        A.s_lshl_b32(s(C2), s(G_MB), 7); A.s_add_u32(s(C2), s(C2), cnt_addr(T_AT))
        A.s_lshr_b32(s(C3), s(G_MB), 2); A.s_lshl_b32(s(C3), s(C3), 7); A.s_add_u32(s(C3), s(C3), cnt_addr(T_DN)); A.s_sub_u32(s(C3), s(C2), s(C3))
        A.v_mul_u32_u24(v(CV+2), s(C3), v(CV+3)); A.v_sub_u32(v(CV+2), s(C2), v(CV+2))
        A.v_add_u32(v(CV+3), 4, v(CV+3))
        A.s_cmp_ge_u32(s(G_MB), SP0); A.s_cselect_b32(s(C3), 128, 4); A.v_writelane_b32(v(CV+3), s(C3), 0)
    dep_wait(A, d_ops, SPECIAL)
    OPR, OGO = A.newlabel('opr'), A.newlabel('ogo')
    A.s_cmp_lt_u32(s(G_MB), SP0); A.s_cbranch_scc1(OGO)
    if SPO: A.s_bitset1_b32(s(S_INIT), 6)
    A.label(OPR)
    PW = XP.get('pw', 3)
    A.v_and_b32(v(CV+2), (1 << PW) - 1, v(V_LANE)); A.v_lshlrev_b32(v(CV+2), 16 - PW, v(CV+2)); A.v_mov_b32(v(CV+3), 0)
    A.s_lshl_b32(s(C2), s(G_MB), 2); A.s_add_u32(s(C2), s(C2), s(S_W)); A.s_lshl_b32(s(C2), s(C2), 16); A.s_add_u32(s(C2), s(C2), WS_O + (1 << 16 - PW) - 16)
    A.s_lshl_b32(s(C3), s(G_MB), 7); A.s_add_u32(s(C3), s(C3), cnt_addr(T_AT))
    if XP.get('pc') is not None: A.s_cmp_eq_u32(s(G_MB), 63); A.s_cselect_b32(s(C4), (7 - XP['pc'])*1024, 0); A.s_sub_u32(s(C2), s(C2), s(C4))
    A.v_add_u32(v(CV+2), s(C2), v(CV+2)); A.v_mov_b32(v(CV+3), s(C3))
    A.v_cmp_lt_u32('vcc', 31, v(V_LANE)); A.v_cndmask_b32(v(CV+2), v(CV+2), v(CV+3), 'vcc')
    probe(lambda r_: (A.v_readlane_b32(s(C0), v(r_), 32), A.s_cmp_ge_u32(s(C0), 136)),
          lambda r_: (A.v_cmp_eq_u32('vcc', -1, v(r_)), A.s_cmp_lt_u32(s(C0), 128), A.s_cmov_b32('vcc_lo', 1), A.s_cmp_eq_u32('vcc_lo', 0)), OGO)
    A.label(OGO)
    def ops_check(c, c2):
        ok = A.newlabel('ook')
        A.s_bitcmp0_b32(s(S_INIT), 6); A.s_cbranch_scc1(ok)
        A.s_bitset0_b32(s(S_INIT), 6)
        att(A, 37, TM_); A.v_cmp_u_f32('vcc', v(c), v(c2)); A.s_cbranch_vccnz(OPR)
        A.label(ok); att(A, 61, TM_)
    stamp(A, 23); att(A, 60, TM_)
    spl, ope, oph = opl, A.newlabel('opse'), A.newlabel('opsh')
    HS = not XP.get('nohs')
    opn = A.newlabel('opsx')
    WARM = HS and XP.get('warm')
    if HS: A.s_cmp_eq_u32(s(G_MB), 63); A.s_cbranch_scc1(oph)
    if WARM: A.s_sub_u32(s(C0), s(G_MB), 63 - 2*NG); A.s_cmp_lt_u32(s(C0), 2); A.s_cbranch_scc1(oph)
    task_ops_seg(A, ops_check); att(A, 62, TM_)
    A.label(opn)
    A.s_add_u32(s(G_MB), s(G_MB), NG); A.s_cmp_lt_u32(s(G_MB), 64 - NG); A.s_cbranch_scc1(opl)
    A.s_cmp_ge_u32(s(G_MB), 65 if HS else 64); A.s_cbranch_scc1(ope)
    if HS:
        nsh = A.newlabel('opsn')
        A.s_cmp_lg_u32(s(G_MB), 64); A.s_cbranch_scc1(nsh)
        A.s_mov_b32(s(G_MB), 63); A.s_or_b32(s(S_INIT), s(S_INIT), 192 if SPO else 128); A.s_barrier(); A.s_branch(OPR)
        A.label(nsh)
    if not XP.get('nopeek'):
        A.s_cmp_lg_u32(s(S_W), 0); A.s_cbranch_scc1(spl)
        A.s_bitcmp0_b32(s(S_INIT), 4); A.s_cbranch_scc1(spl)
        NSUP = sum(c_ for _, _, c_ in order())
        A.v_mov_b32(v(CV+1), 0)
        A.buffer_load_dword(v(CV), v(CV+1), s(S_DBG, 4), 0, m=f'offen offset:{D_GHEAD*4} sc1'); A.wait(vm=0)
        A.v_readfirstlane_b32(s(C0), v(CV)); A.s_cmp_lt_u32(s(C0), NSUP); A.s_cbranch_scc1(spl)
        A.s_lshl_b32(s(C1), s(S_XCC), 7); A.s_add_u32(s(C1), s(C1), WS_CTL + C_HEAD)
        A.buffer_load_dword(v(CV), v(CV+1), s(S_WS, 4), s(C1), m='offen sc1'); A.wait(vm=0)
        yes = A.newlabel('opy')
        A.v_readfirstlane_b32(s(C2), v(CV)); A.s_and_b32(s(C0), s(C2), 31); A.s_cbranch_scc0(yes)
        A.s_lshr_b32(s(C3), s(C2), 5); A.s_add_u32(s(C3), s(C3), 1); A.s_cmp_ge_u32(s(C3), 128); A.s_cbranch_scc1(yes)
        tab_addr(A)
        A.buffer_load_dword(v(CV), v(CV+1), s(S_WS, 4), s(C4), m='offen sc1'); A.wait(vm=0)
        A.v_readfirstlane_b32(s(C0), v(CV)); A.s_cmp_le_u32(s(C0), NSUP); A.s_cbranch_scc1(spl)
        A.label(yes); A.s_bitset1_b32(s(S_INIT), 5)
    A.s_branch(opl)
    if HS:
        A.label(oph)
        A.s_bitcmp1_b32(s(S_INIT), 7); A.s_cselect_b32(s(G_T3), 8 if XP.get('il', 1) else 16, 0)
        task_ops_seg(A, ops_check, True, XP.get('pc') is not None); att(A, 62, TM_)
        A.s_xor_b32(s(S_INIT), s(S_INIT), 128)
        if WARM:
            lst = A.newlabel('opsz')
            A.s_cmp_eq_u32(s(G_MB), 63); A.s_cbranch_scc1(lst)
            A.s_bitcmp0_b32(s(S_INIT), 7); A.s_cbranch_scc1(opn)
            if SPO: A.s_bitset1_b32(s(S_INIT), 6)
            A.s_barrier(); A.s_branch(OPR)
            A.label(lst)
        A.s_bitset0_b32(s(S_INIT), 7)
    A.label(ope)
    stamp(A, 15)
    A.s_branch(NEXT)
    A.label(tOP)
    A.s_lshl_b32(s(G_MB), s(C0), 3); A.s_lshr_b32(s(C2), s(C1), 2); A.s_add_u32(s(G_MB), s(G_MB), s(C2)); A.s_and_b32(s(G_NT), s(C1), 3)
    A.s_cmp_ge_u32(s(G_MB), S0 // 4); A.s_cbranch_scc1(NEXT)
    def d_at():
        lane_id(A, CV+3); A.v_and_b32(v(CV+3), 3, v(CV+3))
        A.s_lshl_b32(s(C2), s(G_MB), 9); A.s_add_u32(s(C2), s(C2), cnt_addr(T_AT))
        A.v_lshlrev_b32(v(CV+2), 7, v(CV+3)); A.v_add_u32(v(CV+2), s(C2), v(CV+2)); A.v_mov_b32(v(CV+3), 4)
    dep_wait(A, d_at, SPECIAL)
    ws_srd(A, SRD_A); A.s_lshl_b32(s(G_SA), s(G_MB), 20); A.s_add_u32(s(G_SA), s(G_SA), WS_O); A.s_mov_b32(s(G_STA), 262144); A.s_mov_b32(s(G_N), 64)
    A.s_mov_b32(s(G_ASTEP), 4096)
    b_operand(P_WO, 4096*2048, 2048, G_NT)
    A.s_lshl_b32(s(G_SC), s(G_MB), 18); A.s_lshl_b32(s(C2), s(G_NT), 9); A.s_add_u32(s(G_SC), s(G_SC), s(C2))
    A.s_lshl_b32(s(C2), s(S_W), 6); A.s_add_u32(s(G_SC), s(G_SC), s(C2))
    A.s_mov_b32(s(G_EPI), 4)
    A.label(GEMM)
    EPI, EPIRET, LEND, HOOK, RET, RETV, go = '.epi', '.epiret', '.lend', '.hook', '.hret', '.hretv', A.newlabel('go')
    stamp(A, 22); gemm_consts(A)
    A.s_or_b32(s(G_HOOK), s(G_N), -1)
    nh = A.newlabel('nh')
    A.s_cmp_lg_u32(s(S_W), 0); A.s_cbranch_scc1(nh)
    A.s_cmp_lg_u32(s(G_N), 16); A.s_cbranch_scc1(nh)
    if 'nopf' not in OPTS:
        A.s_mov_b32(s(G_HOOK), 14); A.s_and_b32(s(S_HST), s(G_N), 0)
        A.s_and_b32(s(C0), s(S_INIT), 17); A.s_cmp_eq_u32(s(C0), 17); A.s_cbranch_scc1(nh)
        status_ld(A)
    A.label(nh)
    NPRE = XP.get('npre', 12)
    gemm_pro(A, 0, NPRE)
    A.s_bitcmp1_b32(s(S_INIT), 3); A.s_cbranch_scc1(EPI)
    A.s_mov_b32(s(E_CNT), 0)
    gemm_pro(A, max(NPRE, 1) if not NPRE else NPRE, 27) if NPRE else [dma(A, 0, 'sc1'), gemm_pro(A, 1, 27)]
    gemm_zero(A); A.wait(vm=15)
    A.label(go)
    A.s_barrier()
    A.s_cmp_eq_u32(s(G_EPI), 5); A.s_cbranch_scc1(GEMMV)
    gemm_loop(A, False, HOOK, RET)
    A.label(LEND)
    stamp(A, 23)
    A.s_mov_b32(s(E_SC), s(G_SC)); A.s_mov_b32(s(E_EPI), s(G_EPI)); A.s_mov_b32(s(E_CNT), s(G_CNT))
    A.s_cmp_lg_u32(s(G_ASTEP), 128); A.s_cbranch_scc1(EPI)
    sk = only_w0(A)
    sl = A.newlabel('slow')
    A.s_mov_b32(s(C0), -1)
    A.s_cmp_lg_u32(s(G_HOOK), -2); A.s_cbranch_scc1(sl)
    np_ = A.newlabel('np')
    A.v_readfirstlane_b32(s(S_NXT), v(CV))
    A.s_bitcmp1_b32(s(S_INIT), 1); A.s_cbranch_scc1(np_)
    status_rd(A); A.s_mov_b32(s(S_RDY), s(C5)); A.s_mov_b32(s(C0), -1)
    A.s_bitcmp1_b32(s(S_RDY), POISON); A.s_cbranch_scc1(sl)
    A.label(np_)
    A.s_cmp_eq_u32(s(G_CNT), cnt_addr(T_KV)); A.s_cbranch_scc1(sl)
    A.s_sub_u32(s(C1), s(S_NXT), 1); A.s_cmp_ge_u32(s(C1), 64); A.s_cbranch_scc1(sl)
    seq = [ty for ty, first, cnt in order() for i in range(cnt)]
    m_all = sum(1 << i for i, ty in enumerate(seq) if ty in ('KV', 'Q', 'GU')); m_ng = sum(1 << i for i, ty in enumerate(seq) if ty in ('KV', 'Q'))
    A.s_and_b32(s(C2), s(S_TICK), 31); A.s_cmp_ge_u32(s(C2), 28)
    for i in range(2):
        A.s_mov_b32(s(C4+i), hex((m_all >> 32*i) & 0xffffffff)); A.s_cmov_b32(s(C4+i), hex((m_ng >> 32*i) & 0xffffffff))
    A.s_bitcmp0_b64(s(C4, 2), s(C1)); A.s_cbranch_scc1(sl)
    A.s_lshl_b32(s(C0), s(C1), 5); A.s_or_b32(s(C0), s(C0), s(C2)); A.s_bitset0_b32(s(S_INIT), 2)
    A.label(sl)
    bcast(A, sk, False)
    A.s_cmp_eq_u32(s(C0), -1); A.s_cbranch_scc1(EPI)
    if 'log' in OPTS:
        A.s_lshl_b32(s(C1), s(S_TASK), 5); A.s_add_u32(s(C1), s(C1), WS_TIM); A.v_mov_b32(v(104), s(C1))
        for i, k in enumerate((21, 22, 23)): A.v_mov_b32(v(96+i), s(k))
        A.v_mov_b32(v(100), s(S_XCC)); A.v_mov_b32(v(101), s(14)); A.s_mov_b32(s(14), s(23)); A.v_mov_b32(v(103), s(101))
    A.s_mov_b32(s(S_TASK), s(C0)); A.s_bitset1_b32(s(S_INIT), 3); A.s_branch(DECODE)
    A.label(GEMMV)
    gemm_loop(A, True, HOOK, RETV)
    A.s_branch(LEND)
    A.label(HOOK)
    h1, h2, h3, h4, hx, hn, hoff, hk, hm = (A.newlabel(n_) for n_ in ('ha', 'hb', 'hc', 'hd', 'hx', 'hn', 'hoff', 'hk', 'hm'))
    for i, l_ in enumerate((h1, h2, h3)): A.s_cmp_eq_u32(s(S_HST), i+1); A.s_cbranch_scc1(l_)
    A.s_cmp_eq_u32(s(E_CNT), 0); A.s_cbranch_scc1(hn)
    A.v_mov_b32(v(CV), 1); A.v_mov_b32(v(CV+1), 0)
    A.s_mov_b64('exec', 1)
    A.buffer_atomic_add(v(CV), v(CV+1), s(S_WS, 4), s(E_CNT), m='offen sc1')
    A.s_mov_b64('exec', -1)
    A.s_mov_b32(s(E_CNT), 0)
    A.label(hn)
    A.s_and_b32(s(C0), s(S_INIT), 17); A.s_cmp_eq_u32(s(C0), 17); A.s_cbranch_scc1(hk)
    status_rd(A)
    A.s_and_b32(s(C0), s(S_INIT), 17); A.s_cmp_eq_u32(s(C0), 17); A.s_cbranch_scc1(hk)
    A.s_cmp_le_u32(s(G_HOOK), 8); A.s_cbranch_scc1(hoff)
    status_ld(A); A.s_branch(hm)
    A.label(hk)
    ticket(A)
    A.s_mov_b32(s(S_HST), 1); A.s_branch(hm)
    A.label(h1)
    A.v_readfirstlane_b32(s(S_TICK), v(CV)); A.s_add_u32(s(S_TICK), s(S_TICK), 32)
    A.s_bitset1_b32(s(S_INIT), 2); A.s_mov_b32(s(S_NXT), 0); A.s_mov_b32(s(S_RDY), 0)
    A.s_cmp_ge_u32(s(S_TICK), 128*32); A.s_cbranch_scc1(hoff)
    A.s_mov_b32(s(S_HST), 3); A.s_mov_b32(s(C0), s(G_HOOK)); A.s_mov_b32(s(G_HOOK), 3)
    A.s_and_b32(s(C2), s(S_TICK), 31); A.s_cbranch_scc1(hx)
    A.v_mov_b32(v(CV), 1); A.v_mov_b32(v(CV+1), 0)
    A.s_mov_b64('exec', 1)
    A.buffer_atomic_add(v(CV), v(CV+1), s(S_DBG, 4), 0, m=f'offen offset:{D_GHEAD*4} sc0 sc1').nochk = True
    A.s_mov_b64('exec', -1)
    A.s_mov_b32(s(S_HST), 2); A.s_sub_u32(s(G_HOOK), s(C0), 2); A.s_branch(hx)
    A.label(h2)
    A.s_lshr_b32(s(C3), s(S_TICK), 5); tab_addr(A)
    A.v_add_u32(v(CV), 1, v(CV)); A.v_mov_b32(v(CV+1), 0)
    A.s_mov_b64('exec', 1)
    A.buffer_store_dword(v(CV), v(CV+1), s(S_WS, 4), s(C4), m='offen sc1')
    A.s_branch(h4)
    A.label(h3)
    A.s_lshr_b32(s(C3), s(S_TICK), 5); tab_addr(A)
    A.v_mov_b32(v(CV+1), 0)
    A.s_mov_b64('exec', 1)
    A.buffer_load_dword(v(CV), v(CV+1), s(S_WS, 4), s(C4), m='offen sc1').nochk = True
    A.label(h4)
    A.s_mov_b64('exec', -1)
    A.s_mov_b32(s(G_HOOK), -2)
    A.s_bitcmp1_b32(s(S_INIT), 1); A.s_cbranch_scc1(hx)
    status_ld(A); A.s_branch(hx)
    A.label(hm)
    A.s_sub_u32(s(G_HOOK), s(G_HOOK), 2); A.s_branch(hx)
    A.label(hoff)
    A.s_mov_b32(s(G_HOOK), -1)
    A.label(hx)
    A.s_cmp_eq_u32(s(G_EPI), 5); A.s_cbranch_scc1(RETV)
    A.s_branch(RET)
    A.label(EPIRET)
    A.s_bitcmp0_b32(s(S_INIT), 3); A.s_cbranch_scc1(DONE)
    A.s_bitset0_b32(s(S_INIT), 3)
    if 'log' in OPTS:
        nl = only_w0(A)
        A.v_mov_b32(v(99), s(15)); A.v_mov_b32(v(102), s(15))
        A.s_mov_b64('exec', 1)
        A.buffer_store_dwordx4(v(96, 4), v(104), s(S_WS, 4), 0, m='offen')
        A.buffer_store_dwordx4(v(100, 4), v(104), s(S_WS, 4), 0, m='offen offset:16')
        A.s_mov_b64('exec', -1)
        A.label(nl)
    gemm_pro(A, NPRE, 27) if NPRE else [dma(A, 0, 'sc1'), gemm_pro(A, 1, 27)]
    gemm_zero(A); A.wait(vm=23 if NPRE >= 12 else 15); A.s_branch(go)
    A.label(EPI)
    eGU, eDN, eOP, eK, eV = A.newlabel('egu'), A.newlabel('edn'), A.newlabel('eop'), A.newlabel('ek'), A.newlabel('ev')
    A.s_cmp_eq_u32(s(E_EPI), 1); A.s_cbranch_scc1(eK)
    A.s_cmp_eq_u32(s(E_EPI), 2); A.s_cbranch_scc1(eGU)
    A.s_cmp_eq_u32(s(E_EPI), 3); A.s_cbranch_scc1(eDN)
    A.s_cmp_eq_u32(s(E_EPI), 4); A.s_cbranch_scc1(eOP)
    A.s_cmp_eq_u32(s(E_EPI), 5); A.s_cbranch_scc1(eV)
    epi_q(A); stamp(A, 15); A.s_branch(EPIRET)
    A.label(eK); epi_k(A, KH and cnt_addr(T_KV)); stamp(A, 15); A.s_branch(EPIRET)
    A.label(eV); epi_vt(A, KH and cnt_addr(T_KV)); stamp(A, 15); A.s_branch(EPIRET)
    A.label(eGU); epi_gu(A); stamp(A, 15); A.s_branch(EPIRET)
    A.label(eDN); epi_dn(A); stamp(A, 15); A.s_branch(DONE)
    A.label(eOP)
    dep_wait(A, dep_cnt(A, T_DN, 5), SPECIAL)
    A.s_lshl_b32(s(G_T2), s(G_MB), 2); A.s_add_u32(s(G_T2), s(G_T2), s(G_NT)); A.s_lshl_b32(s(G_T2), s(G_T2), 2); A.s_add_u32(s(G_T2), s(G_T2), s(S_W))
    A.s_lshl_b32(s(G_T2), s(G_T2), 14); A.s_add_u32(s(G_T2), s(G_T2), WS_B)
    A.s_lshl_b32(s(G_T3), s(G_MB), 9); A.s_add_u32(s(G_T3), s(G_T3), WS_G)
    srd(A, SRD_C, P_OUT, 2048*2048)
    stamp(A, 15); epi_op_loads(A); epi_op(A)
    A.wait(vm=0); A.s_branch(NEXT)
    A.label(DONE)
    A.wait(vm=0); A.s_barrier()
    A.s_cmp_lg_u32(s(S_W), 0); A.s_cbranch_scc1(NEXT)
    ensure_init(A, NEXT)
    A.v_mov_b32(v(CV), 1); A.v_mov_b32(v(CV+1), 0)
    A.s_mov_b64('exec', 1)
    A.buffer_atomic_add(v(CV), v(CV+1), s(S_WS, 4), s(G_CNT), m='offen sc1')
    A.s_mov_b64('exec', -1)
    A.s_branch(NEXT)
    if 'nochain' not in OPTS:
        CSP = '.cspecial'
        def handshake(dw, timed):
            A.wait(vm=0); A.s_barrier()
            sk = only_w0(A)
            out, lp, nx, nc = A.newlabel('hso'), A.newlabel('hsl'), A.newlabel('hsn'), A.newlabel('hsc')
            dbg_atomic(A, dw)
            A.s_and_b32(s(C0), s(C0), 255); A.s_cbranch_scc1(nc)
            chain.xq_base(A, not timed); A.s_add_u32(s(C0), s(chain.S_T0), L_MEMB + 1536)
            lane_id(A, CV+2); A.v_lshlrev_b32(v(CV+2), 4, v(CV+2))
            for i in range(4): A.v_mov_b32(v(CV+4+i), 1)
            A.s_mov_b32(s(C1), -1); A.s_mov_b32(s(C2), -1)
            A.s_mov_b64('exec', '0xffffffff')
            for i in range(3):
                for pol in range(2):
                    A.s_memtime(s(C4, 2)); A.wait(lgkm=0); A.s_mov_b32(s(C3), s(C4))
                    A.buffer_store_dwordx4(v(CV+4, 4), v(CV+2), s(S_WS, 4), s(C0), m='offen sc1')
                    A.wait(vm=0); A.s_memtime(s(C4, 2)); A.wait(lgkm=0); A.s_sub_u32(s(C3), s(C4), s(C3))
                    A.s_min_u32(s(C1+pol), s(C1+pol), s(C3)); A.s_xor_b32(s(C0), s(C0), 8192)
            A.s_mov_b64('exec', -1)
            A.s_cmp_lt_u32(s(C2), s(C1)); A.s_cselect_b32(s(C3), 257, 1)
            if 'pol0' in OPTS or 'pol1' in OPTS: A.s_mov_b32(s(C3), 257 if 'pol1' in OPTS else 1)
            if 'polx' in OPTS: A.s_cselect_b32(s(C3), 1, 257)
            if timed:
                kl, kd = A.newlabel('hsk'), A.newlabel('hsd')
                ensure_init(A, out)
                lane_id(A, CV+2); A.v_and_b32(v(CV+2), 15, v(CV+2)); A.v_lshlrev_b32(v(CV+2), 7, v(CV+2))
                A.s_mov_b32(s(C2), cnt_addr(T_KV))
                A.label(kl)
                A.buffer_load_dword(v(CV+4), v(CV+2), s(S_WS, 4), s(C2), m='offen sc1')
                A.wait(vm=0)
                A.v_cmp_gt_i32('vcc', chain.KV_TARGET, v(CV+4))
                A.s_or_b32(s(C1), 'vcc_lo', 0x10000); A.s_ff1_i32_b32(s(C1), s(C1))
                A.s_lshl_b32(s(C1), s(C1), 20); A.s_cbranch_scc1(kd)
                guard(A, kl, out)
                A.label(kd)
                A.s_add_u32(s(C3), s(C3), s(C1))
            dbg_atomic(A, dw, ret=False, val=s(C3))
            A.label(nc)
            A.s_mov_b32(s(C2), 300 if 'forcefb' not in OPTS else 20)
            A.label(lp)
            A.buffer_load_dwordx4(v(CV+4, 4), v(CV+1), s(S_DBG, 4), 0, m=f'offen offset:{D_READY*4} sc1')
            A.wait(vm=0)
            A.v_readfirstlane_b32(s(C1), v(CV+4 + dw - D_READY)); A.v_readfirstlane_b32(s(C3), v(CV+7))
            A.s_or_b32(s(S_INIT), s(S_INIT), s(C3))
            A.s_and_b32(s(C0), s(C1), 256); A.s_lshl_b32(s(C0), s(C0), 5)
            A.s_and_b32(s(C3), s(C1), '0x1f00000'); A.s_or_b32(s(C0), s(C0), s(C3))
            A.s_and_b32(s(C3), s(C1), 0x100ff)
            A.s_cmp_lg_u32(s(C3), 65); A.s_cbranch_scc1(nx)
            A.s_bitcmp1_b32(s(S_INIT), 0); A.s_cbranch_scc1(out)
            A.label(nx)
            if timed:
                np_, wk = A.newlabel('hsp'), A.newlabel('hsw')
                A.s_bitcmp0_b32(s(C1), POISON); A.s_cbranch_scc1(np_)
                take_fb(A, out, wk)
                A.label(wk); A.s_mov_b32(s(C0), 1); A.s_branch(out)
                A.label(np_)
                g = A.newlabel('hsg')
                A.s_sub_u32(s(C2), s(C2), 1); A.s_cbranch_scc0(g)
                A.s_mov_b32(s(C2), 0)
                A.s_cmp_ge_u32(s(C3), 65); A.s_cbranch_scc1(g)
                A.s_or_b32(s(C3), s(C1), 1 << POISON)
                A.v_mov_b32(v(CV+2), s(C3)); A.v_mov_b32(v(CV+3), s(C1))
                A.s_mov_b64('exec', 1)
                A.buffer_atomic_cmpswap(v(CV+2, 2), v(CV+1), s(S_DBG, 4), 0, m=f'offen offset:{D_READY*4} sc1')
                A.s_mov_b64('exec', -1)
                A.label(g)
            if XP.get('hsl', 2): A.s_sleep(XP.get('hsl', 2))
            guard(A, lp, out)
            A.label(out)
            bcast(A, sk)
            A.s_lshr_b32(s(chain.S_KVR), s(C0), 20); A.s_and_b32(s(C0), s(C0), '0xfffff')
            A.s_and_b32(s(chain.S_POL), s(C0), 8192)
            A.s_cmp_lg_u32(s(C0), s(chain.S_POL)); A.s_cbranch_scc1(CSP)
        A.label(CHAINP)
        A.s_mov_b32(s(S_X), s(S_XCC)); A.s_mov_b32(s(S_H), s(C0))
        rts(A, 1)
        if 'log' in OPTS:
            A.s_lshl_b32(s(C4), s(S_X), 5); A.s_add_u32(s(C4), s(C4), s(S_H)); A.v_mov_b32(v(CV), s(C4)); A.v_mov_b32(v(CV+1), 0)
            A.buffer_store_dword(v(CV), v(CV+1), s(S_WS, 4), s(S_WG), m='offen offset:28')
            if 'wl' in OPTS: chain.HOOK = rts
        chain_setup(A, CABORT, False)
        chain.HOOK = None
        rts(A, 2)
        handshake(D_READY, True)
        def tstart(A, off):
            sk_ = A.newlabel('ts'); A.s_and_b32(s(C0), s(S_H), 7); A.s_or_b32(s(C0), s(C0), s(S_W)); A.s_cbranch_scc1(sk_)
            tstart_(A, off); A.label(sk_)
        def tstart_(A, off):
            A.s_memrealtime(s(C0, 2)); A.wait(lgkm=0); A.s_sub_u32(s(C0), s(C0), s(100))
            A.v_mov_b32(v(CV), s(C0)); A.v_mov_b32(v(CV+1), 0); A.s_mov_b64('exec', 1)
            A.buffer_atomic_umax(v(CV), v(CV+1), s(S_DBG, 4), 0, m=f'offen offset:{off} sc1'); A.s_mov_b64('exec', -1)
        if 'tim' in OPTS:
            tstart(A, 140)
            chain.HOOK2 = lambda A: tstart(A, 12 if "timd" in OPTS else 132)
        rts(A, 3)
        chain_loop(A, CABORT, CDONE, False)
        chain.HOOK2 = None
        A.label(CSP)
        A.s_cmp_eq_u32(s(C0), 1); A.s_cbranch_scc1(NEXT)
        A.s_branch(SPECIAL)
        A.label(CHAINF)
        A.s_and_b32(s(S_X), s(C0), 1); A.s_lshr_b32(s(S_H), s(C0), 1)
        A.wait(vm=0, lgkm=0); A.s_barrier()
        chain_setup(A, CABORT, True)
        handshake(D_READY2, False)
        chain_loop(A, CABORT, CDONE, True)
        A.label(CDONE)
        if chain.TIMERS:
            for i in range(16): A.v_mov_b32(v(32+i), s(chain.S_ACC+i))
            A.s_lshl_b32(s(C0), s(S_X), 5); A.s_add_u32(s(C0), s(C0), s(S_H)); A.s_lshl_b32(s(C0), s(C0), 2); A.s_add_u32(s(C0), s(C0), s(S_W))
            A.s_lshl_b32(s(C0), s(C0), 6); A.s_add_u32(s(C0), s(C0), WS_CTIM); A.v_mov_b32(v(48), 0)
            A.s_mov_b64('exec', 1)
            for i in range(4): A.buffer_store_dwordx4(v(32+4*i, 4), v(48), s(S_WS, 4), s(C0), m=f'offen offset:{16*i}')
            A.s_mov_b64('exec', -1)
            A.wait(vm=0, lgkm=0)
        rts(A, 4)
        att(A, 56)
        if 'tim' in OPTS: tstart(A, 24 if 'timd' in OPTS else 136)
        if chain.TIMERS: A.wait(vm=0); A.s_endpgm()
        A.s_cmp_eq_u32(s(S_TASK), -1); A.s_cbranch_scc1(NEXT)
        A.s_branch(DECODE)
        A.label(CABORT)
        A.s_mov_b64('exec', -1)
        A.v_mov_b32(v(CV), '0xdead'); A.v_mov_b32(v(CV+1), 0)
        A.buffer_store_dword(v(CV), v(CV+1), s(S_DBG, 4), 0, m=f'offen offset:{D_ABORT*4} sc1')
        A.wait(vm=0)
        A.s_endpgm()
    else:
        A.label(CHAINF); A.s_endpgm()
    n = A.fix_hazards()
    errs = A.check_waits()
    for e in errs[:20]: print('WAITERR', e)
    code, desc = kernel_wrap(KNAME + '_kernel', A.text())
    ol = ['; ORDER ' + ' '.join(f'{ty}{first+i}' for ty, first, cnt in order() for i in range(cnt))] if 'log' in OPTS else []
    return header(ol + [f'; @launch grid=(256,1,1) block=(256,1,1) lds={LDS_BYTES}']) + code + '.section .rodata,"a"\n' + desc

if __name__ == '__main__':
    for spec in sys.argv[1:]:
        OPTS = set(spec.split('+')) - {'base'}
        if 'timd' in OPTS: OPTS.add('tim')
        chain.TIMERS = 'ct' in OPTS; S0, NG, ORD = 40, 3, 3
        chain.PAR.clear(); chain.PAR.update(chain.PAR0)
        import gemm; gemm.XP.clear()
        for o in OPTS:
            if o.startswith('x_'): gemm.XP[o[2:].split('=')[0]] = int(o.split('=')[1]) if '=' in o else 1
        for o in OPTS:
            if '=' in o and not o.startswith('x_'):
                k_, v_ = o.split('=')
                if k_ == 'S0': S0 = int(v_)
                elif k_ == 'NG': NG = int(v_)
                elif k_ == 'ORD': ORD = int(v_)
                else: chain.PAR[k_] = int(v_)
        import asmcheck
        p = 'mega_%s.s' % spec.replace('+', '_').replace('=', '')
        open(p, 'w').write(build())
        asmcheck.assemble(p)
```
